```python
import torch

def _softmax(x, axis=-1):
    return torch.softmax(x, dim=axis)
def _gelu(x):
    return torch.nn.functional.gelu(x, approximate="tanh")
def _silu(x):
    return torch.nn.functional.silu(x)
def _sigmoid(x):
    return torch.sigmoid(x)
def _layernorm(x, axis=-1, eps=1e-5):
    m = x.mean(dim=axis, keepdim=True)
    v = x.var(dim=axis, keepdim=True, unbiased=False)
    return (x - m) / torch.sqrt(v + eps)
def _scatter_add(tgt, idx, src, axis=0):
    return tgt.clone().index_add_(axis, idx, src)
def _segment_sum(src, seg, n):
    out = torch.zeros((n,) + src.shape[1:], dtype=src.dtype)
    return out.index_add_(0, seg, src)
def _pad(x, pw):
    flat = tuple(v for pair in reversed(pw) for v in pair)
    return torch.nn.functional.pad(x, flat)

kernel_name = 'gated_mix__linear_attn_block__mixer_token_mlp__prompt'

def setup_inputs():

    _w = (lambda a: (lambda t: t.to(torch.bfloat16) if t.is_floating_point() else t)(torch.as_tensor(a)))
    def _A_setup():
        B, S, D = 1, 2048, 512
        return {
            "x": _w((lambda *s: torch.randn(*s, dtype=torch.bfloat16) * 0.05)(B, S, D)),
            "wqkv": _w((lambda *s: torch.randn(*s, dtype=torch.bfloat16) * 0.4)(D, 3 * D)),
            "wo": _w((lambda *s: torch.randn(*s, dtype=torch.bfloat16) * 0.05)(D, D)),
        }
    _A_in = _A_setup()

    def _B_setup():
        B, S, D, F = 1, 2048, 512, 1376
        return {
            "x": _w((lambda *s: torch.randn(*s, dtype=torch.bfloat16) * 0.05)(B, S, D)),
            "w1": _w((lambda *s: torch.randn(*s, dtype=torch.bfloat16) * 0.4)(S, F) * (S ** -0.5)),
            "b1": _w((lambda *s: torch.randn(*s, dtype=torch.bfloat16) * 3.2)(F) * 0.02),
            "w2": _w((lambda *s: torch.randn(*s, dtype=torch.bfloat16) * 0.05)(F, S) * (F ** -0.5)),
            "b2": _w((lambda *s: torch.randn(*s, dtype=torch.bfloat16) * 0.1)(S) * 0.02),
        }
    _B_in = _B_setup()

    return {
        "A_x": _A_in["x"],
        "A_wqkv": _A_in["wqkv"],
        "A_wo": _A_in["wo"],
        "B_x": _B_in["x"],
        "B_w1": _B_in["w1"],
        "B_b1": _B_in["b1"],
        "B_w2": _B_in["w2"],
        "B_b2": _B_in["b2"],
        "gate_w": _w((lambda *s: torch.randn(*s, dtype=torch.bfloat16) * 0.05)(512) * 16.0),
    }

def reference(A_x, A_wqkv, A_wo, B_x, B_w1, B_b1, B_w2, B_b2, gate_w):
    def _A_ref(x, wqkv, wo):
        B, S, D = x.shape
        H = 32; Dh = D // H
        qkv = (lambda x, *d: x.permute(*d))((x @ wqkv).reshape(B, S, 3, H, Dh), 2, 0, 3, 1, 4)
        q, k, v = qkv[0], qkv[1], qkv[2]
        phi = lambda t: torch.where(t > 0, t + 1, torch.exp(t)) + 1e-6
        pq, pk = phi(q), phi(k)
        kv = torch.einsum("bhsd,bhse->bhde", pk, v)
        z = torch.einsum("bhsd->bhd", pk)
        num = torch.einsum("bhqd,bhde->bhqe", pq, kv)
        den = torch.einsum("bhqd,bhd->bhq", pq, z)[..., None] + 1e-6
        o = num / den
        return (lambda x, *d: x.permute(*d))(o, 0, 2, 1, 3).reshape(B, S, D) @ wo

    def _B_ref(x, w1, b1, w2, b2):
        B, S, D = x.shape
        h = _layernorm(x, axis=-1)
        u = torch.einsum("bsd,sf->bdf", h, w1) + b1
        u = _gelu(u)
        y = torch.einsum("bdf,fs->bds", u, w2) + b2
        return (lambda x, *d: x.permute(*d))(y, 0, 2, 1)

    x = A_x
    g = _sigmoid((x * gate_w).sum(-1, keepdims=True))
    a = _A_ref(x, A_wqkv, A_wo)
    b = _B_ref(x, B_w1, B_b1, B_w2, B_b2)
    return g * a + (1 - g) * b
```

```python
import sys

NAME = "gated_mix__linear_attn_block__mixer_token_mlp__prompt"

HF = 0x000000
GUF = 0x200000
OF = 0x400000
KVP = 0x600000
ZP = 0x680000
GG = 0x690000
CNT = 0x6A0000
DIAG = 0x700000
WS_BYTES = 0x800000

X, WQKV, WO, W1, B1, W2, B2, GW, OUT, DBG, WS = [f"s[{40+4*i}:{43+4*i}]" for i in range(11)]
SRD_INFO = [(40, 16, 2048*512*2), (44, 18, 512*1536*2), (48, 20, 512*512*2), (52, 24, 2048*1376*2),
            (56, 26, 1376*2), (60, 28, 1376*2048*2), (64, 30, 2048*2), (68, 32, 512*2),
            (72, 34, 2048*512*2), (76, 36, 256), (80, 38, WS_BYTES)]

LOG2E = 0x3fb8aa3b


def f32bits(x):
    import struct
    return struct.unpack("<I", struct.pack("<f", x))[0]


def rr(kind, base, n):
    return f"{kind}{base}" if n == 1 else f"{kind}[{base}:{base+n-1}]"


def V(b, n=1):
    return rr("v", b, n)


def A(b, n=1):
    return rr("a", b, n)


class Em:
    def __init__(self, opt):
        self.l = []
        self.vm = 0
        self.lab = 0
        self.opt = opt
        self.nstamp = 0

    def e(self, s):
        self.l.append("    " + s)

    def c(self, s):
        self.l.append("    ; " + s)

    def label(self, s):
        self.l.append(s + ":")

    def newlab(self, p="L"):
        self.lab += 1
        return f"{p}_{self.lab}"

    def vmem(self, s):
        self.e(s)
        self.vm += 1
        return self.vm

    def wait_vm(self, tok):
        n = self.vm - tok
        assert n >= 0
        self.e(f"s_waitcnt vmcnt({min(n, 63)})")

    def wait_vm0(self):
        self.e("s_waitcnt vmcnt(0)")

    def lgkm0(self):
        self.e("s_waitcnt lgkmcnt(0)")

    def nop(self, n):
        while n > 0:
            k = min(n, 16)
            self.e(f"s_nop {k-1}")
            n -= k

    def stamp(self, i):
        if self.opt.get("diag"):
            assert i < 12
            self.e(f"s_memrealtime s[{16+2*i}:{17+2*i}]")

    def dma(self, voff, srd, soff, m0expr, flags=""):
        sreg, imm = m0expr
        if sreg is None:
            self.e(f"s_mov_b32 m0, {imm}")
        else:
            self.e(f"s_add_u32 m0, {sreg}, {imm}")
        sr, si = soff
        self.e(f"s_add_u32 s13, {sr}, {si}")
        return self.vmem(f"buffer_load_dwordx4 {voff}, {srd}, s13 offen {flags} lds".replace("  ", " "))

    def poll(self, voff, srd, expect, tmp="v31"):
        if self.opt.get("nowait"):
            self.wait_vm0()
            return
        lp = self.newlab("L_poll")
        dn = self.newlab("L_polled")
        self.e("s_mov_b32 s14, 0")
        self.label(lp)
        self.e(f"buffer_load_dword {tmp}, {voff}, {srd}, 0 offen sc1")
        self.e("s_add_u32 s14, s14, 1")
        self.e("s_waitcnt vmcnt(0)")
        self.e(f"v_cmp_ne_u32 vcc, {expect}, {tmp}")
        self.e(f"s_cbranch_vccz {dn}")
        self.e(f"s_sleep {self.opt.get('sleep', 2)}")
        self.e("s_cmp_lt_u32 s14, 0x40000")
        self.e(f"s_cbranch_scc1 {lp}")
        self.label(dn)

    def arrive(self, srd, off_sreg):
        sk = self.newlab("L_arr")
        self.e("s_cmp_lg_u32 s3, 0")
        self.e(f"s_cbranch_scc1 {sk}")
        self.e(f"v_mov_b32 v30, {off_sreg}")
        self.e("v_mov_b32 v31, 1")
        self.e("s_mov_b64 exec, 1")
        self.e(f"buffer_atomic_add v31, v30, {srd}, 0 offen sc1")
        self.e("s_mov_b64 exec, -1")
        self.label(sk)


def mfma(k, d, a, b, c):
    k.e(f"v_mfma_f32_16x16x32_bf16 {d}, {a}, {b}, {c}")


def sk_gemm(k, n, L, R, NWB, FB, NF, wdma, wread, fload, mm, poll, pre_done=None):
    wt = {}
    for t in range(min(L, n)):
        wt[t] = wdma(t)
    for t in range(R):
        k.wait_vm(wt[t])
        for s in wread(t):
            k.e(s)
        k.lgkm0()
        if t + L < n:
            wt[t + L] = wdma(t + L)
    poll()
    drained = k.vm
    ft = {}
    for t in range(min(FB, n)):
        ft[t] = fload(t)
    nxt = R
    if R == 0:
        for s in wread(0):
            k.e(s)
        k.lgkm0()
        if L < n:
            wt[L] = wdma(L)
        nxt = 1
    for t in range(n):
        u = None
        if nxt < n and nxt <= t + NWB - 1 and (nxt + L < n or nxt <= t + 1):
            u = nxt
            nxt += 1
        assert t + 1 >= n or nxt > t + 1, (t, nxt)
        reads = wread(u) if u is not None else []
        ri = 0
        cnt = 0
        for b in range(4):
            k.wait_vm(ft[t][b])
            for j in range(NF):
                mm(t, b, j)
                cnt += 1
                if reads and cnt == 2 and wt[u] > drained:
                    k.wait_vm(wt[u])
                if reads and cnt >= 2 and ri < len(reads):
                    k.e(reads[ri])
                    ri += 1
        while ri < len(reads):
            k.e(reads[ri])
            ri += 1
        if reads:
            k.lgkm0()
            if u + L < n:
                wt[u + L] = wdma(u + L)
        if t + FB < n:
            ft[t + FB] = fload(t + FB)


def gen_body(opt):
    k = Em(opt)
    e = k.e
    WFL = opt.get("wflags", "")
    e("s_cmp_ge_u32 s2, 256")
    e("s_cbranch_scc1 L_end")
    e("s_load_dwordx16 s[16:31], s[0:1], 0")
    e("s_load_dwordx8 s[32:39], s[0:1], 64")
    if opt.get("diag"):
        e("s_memrealtime s[98:99]")
    e("v_lshrrev_b32 v2, 6, v0")
    e("v_and_b32 v1, 63, v0")
    e("v_readfirstlane_b32 s3, v2")
    e("s_and_b32 s4, s2, 7")
    e("s_lshr_b32 s6, s2, 3")
    e("s_and_b32 s5, s4, 1")
    e("s_lshr_b32 s4, s4, 1")
    k.c("P3 tile: s10 = st, s11 = dt3")
    e("s_and_b32 s10, s6, 7")
    e("s_lshl_b32 s12, s4, 3")
    e("s_add_u32 s10, s10, s12")
    e("s_lshr_b32 s11, s6, 3")
    e("s_lshl_b32 s12, s5, 2")
    e("s_add_u32 s11, s11, s12")
    k.c("role tile: s8 = a*4 + ((idx&15)>>2) (sb / ft), s9 = b*4 + (idx&3) (hg / dt)")
    e("s_bfe_u32 s8, s6, 0x20002")
    e("s_lshl_b32 s12, s4, 2")
    e("s_add_u32 s8, s8, s12")
    e("s_and_b32 s9, s6, 3")
    e("s_lshl_b32 s12, s5, 2")
    e("s_add_u32 s9, s9, s12")
    e("s_mul_i32 s7, s3, 40960")
    e("v_and_b32 v2, 15, v1")
    e("v_lshrrev_b32 v3, 4, v1")
    e("v_lshlrev_b32 v4, 4, v1")
    e("v_and_b32 v5, 3, v1")
    e("v_lshlrev_b32 v5, 6, v5")
    e("s_waitcnt lgkmcnt(0)")
    for (d, s, sz) in SRD_INFO:
        e(f"s_mov_b32 s{d}, s{s}")
        e(f"s_mov_b32 s{d+1}, s{s+1}")
        e(f"s_mov_b32 s{d+2}, {sz}")
        e(f"s_mov_b32 s{d+3}, 0x20000")
    if opt.get("diag"):
        for i in range(16, 40):
            e(f"s_mov_b32 s{i}, 0")
    e("s_cmp_ge_u32 s6, 16")
    e("s_cbranch_scc1 L_urole")

    k.c("================= Q role: LN =================")
    k.vm = 0
    k.stamp(0)
    e("s_lshl_b32 s15, s8, 7")
    e("s_lshl_b32 s12, s9, 4")
    e("s_add_u32 s15, s15, s12")
    e("s_lshl_b32 s12, s3, 2")
    e("s_add_u32 s12, s12, s15")
    e("s_lshl_b32 s12, s12, 10")
    e("v_lshlrev_b32 v7, 4, v2")
    e("v_lshl_add_u32 v6, v3, 10, v7")
    tx = [k.vmem(f"buffer_load_dwordx4 {V(32+4*j,4)}, v6, {X}, s12 offen offset:{256*j}") for j in range(4)]
    tg = [k.vmem(f"buffer_load_dwordx4 {V(48+4*j,4)}, v7, {GW}, 0 offen offset:{256*j}") for j in range(4)]
    e("s_lshl_b32 s12, s8, 3")
    e("s_add_u32 s12, s12, s9")
    e("s_cmp_ge_u32 s12, 32")
    e("s_cselect_b32 s13, 0x7ffffff0, 0")
    e("s_lshl_b32 s12, s12, 8")
    e(f"s_add_u32 s12, s12, {CNT}")
    e("s_or_b32 s12, s12, s13")
    e("v_mov_b32 v30, s12")
    e("v_mov_b32 v31, 0")
    k.vmem(f"buffer_store_dword v31, v30, {WS}, 0 offen sc1")
    LNB = 3 * 40960
    e("s_mul_i32 s12, s3, 4352")
    e(f"s_add_u32 s12, s12, {LNB}")
    e("v_mul_u32_u24 v8, 1088, v3")
    e("v_add3_u32 v8, v8, v7, s12")
    e("v_and_b32 v9, 1, v3")
    e("v_lshlrev_b32 v9, 3, v9")
    e("v_lshrrev_b32 v10, 2, v2")
    e("v_add_u32 v9, v9, v10")
    e("v_mul_u32_u24 v9, 1088, v9")
    e("v_lshrrev_b32 v10, 1, v3")
    e("v_lshl_add_u32 v9, v10, 5, v9")
    e("v_and_b32 v11, 3, v2")
    e("v_lshl_add_u32 v9, v11, 3, v9")
    e("s_lshl_b32 s12, s3, 8")
    e(f"s_add_u32 s12, s12, {LNB}")
    e("v_add_u32 v9, s12, v9")
    e("v_lshlrev_b32 v10, 16, v10")
    e("v_and_b32 v11, 1, v3")
    e("v_lshl_add_u32 v10, v11, 8, v10")
    e("v_add_u32 v10, v10, v7")
    e("s_lshl_b32 s84, s3, 19")
    e("s_lshl_b32 s12, s15, 5")
    e("s_add_u32 s84, s84, s12")
    if HF:
        e(f"s_add_u32 s84, s84, {HF}")
    e("s_lshl_b32 s12, s3, 2")
    e("s_add_u32 s12, s12, s15")
    e("s_lshl_b32 s12, s12, 2")
    e(f"s_add_u32 s12, s12, {GG}")
    e("v_lshl_add_u32 v11, v3, 2, s12")
    e("v_cmp_eq_u32 vcc, 0, v2")
    e("v_mov_b32 v12, 0x7ffffff0")
    e("s_mov_b32 s85, 0x3f803f80")
    e("v_cndmask_b32 v11, v12, v11, vcc")
    e("v_lshrrev_b32 v12, 3, v1")
    e("v_and_b32 v13, 7, v1")
    e("v_lshrrev_b32 v14, 1, v12")
    e("v_xor_b32 v14, v14, v13")
    e("v_lshlrev_b32 v14, 4, v14")
    e("v_lshl_add_u32 v14, v12, 10, v14")
    e("v_xor_b32 v15, 64, v14")
    e("v_and_b32 v16, 2, v12")
    e("v_xor_b32 v16, v16, v13")
    e("v_lshlrev_b32 v16, 4, v16")
    e("v_xor_b32 v17, 64, v16")
    e("v_mul_u32_u24 v12, 3072, v12")
    e("v_add_u32 v16, v16, v12")
    e("v_add_u32 v17, v17, v12")
    e("s_lshr_b32 s86, s3, 1")
    e("s_and_b32 s87, s3, 1")
    e("v_lshrrev_b32 v18, 1, v2")
    e("v_xor_b32 v18, v18, v3")
    e("v_lshlrev_b32 v18, 4, v18")
    e("v_lshl_add_u32 v18, v2, 7, v18")
    e("s_lshl_b32 s12, s86, 13")
    e("v_add_u32 v18, s12, v18")
    e("v_xor_b32 v19, 64, v18")
    e("v_add_u32 v20, 81920, v18")
    e("v_add_u32 v21, 81920, v19")
    e("v_lshrrev_b32 v22, 2, v2")
    e("v_lshrrev_b32 v23, 3, v2")
    e("v_and_b32 v24, 1, v3")
    e("v_lshl_add_u32 v23, v24, 1, v23")
    e("s_lshl_b32 s12, s87, 1")
    e("v_xor_b32 v23, s12, v23")
    e("v_lshl_add_u32 v22, v3, 3, v22")
    e("v_lshlrev_b32 v22, 7, v22")
    e("v_lshl_add_u32 v22, v23, 5, v22")
    e("v_and_b32 v24, 3, v2")
    e("v_lshl_add_u32 v22, v24, 3, v22")
    e("v_add_u32 v22, 16384, v22")
    e("v_xor_b32 v23, 32, v22")
    e("v_add_u32 v24, 81920, v22")
    e("v_add_u32 v25, 81920, v23")
    e("s_lshl_b32 s88, s8, 17")
    e("s_lshl_b32 s12, s3, 15")
    e("s_add_u32 s88, s88, s12")
    e("s_mul_i32 s89, s3, 49152")
    e("s_lshl_b32 s12, s9, 7")
    e("s_add_u32 s89, s89, s12")
    e("s_lshl_b32 s90, s3, 12")
    e("s_lshl_b32 s91, s3, 11")

    k.wait_vm(tx[3])
    e("v_dot2_f32_bf16 v26, v32, s85, 0")
    e("v_dot2_f32_bf16 v27, v33, s85, 0")
    for j in range(2, 16):
        e(f"v_dot2_f32_bf16 v{26+(j&1)}, v{32+j}, s85, v{26+(j&1)}")
    k.wait_vm(tg[3])
    e("v_dot2_f32_bf16 v28, v32, v48, 0")
    e("v_dot2_f32_bf16 v29, v33, v49, 0")
    for j in range(2, 16):
        e(f"v_dot2_f32_bf16 v{28+(j&1)}, v{32+j}, v{48+j}, v{28+(j&1)}")
    unp = []
    for j in range(16):
        unp.append(f"v_lshlrev_b32 v{64+2*j}, 16, v{32+j}")
        unp.append(f"v_and_b32 v{65+2*j}, 0xffff0000, v{32+j}")
    for s in unp[:4]:
        e(s)
    e("v_add_f32 v26, v26, v27")
    e("v_add_f32 v28, v28, v29")
    ui = 4
    for rot in (8, 4, 2, 1):
        for s in unp[ui:ui+3]:
            e(s)
        ui += 3
        e(f"v_add_f32_dpp v26, v26, v26 row_ror:{rot} row_mask:0xf bank_mask:0xf")
        e(f"v_add_f32_dpp v28, v28, v28 row_ror:{rot} row_mask:0xf bank_mask:0xf")
    for s in unp[ui:]:
        e(s)
    e(f"v_mul_f32 v26, {hex(f32bits(-1.0/512))}, v26")
    e(f"v_mul_f32 v28, {hex(f32bits(-1.4426950408889634))}, v28")
    e("v_exp_f32 v28, v28")
    for j in range(16):
        e(f"v_pk_add_f32 {V(64+2*j,2)}, {V(64+2*j,2)}, v[26:27] op_sel_hi:[1,0]")
    e("v_add_f32 v28, 1.0, v28")
    e("v_rcp_f32 v28, v28")
    e("v_pk_mul_f32 v[48:49], v[64:65], v[64:65]")
    e("v_pk_mul_f32 v[50:51], v[66:67], v[66:67]")
    for j in range(2, 16):
        a_ = 48 + 2 * (j & 1)
        e(f"v_pk_fma_f32 {V(a_,2)}, {V(64+2*j,2)}, {V(64+2*j,2)}, {V(a_,2)}")
    tgs = k.vmem(f"buffer_store_dword v28, v11, {WS}, 0 offen sc1")
    e("v_pk_add_f32 v[48:49], v[48:49], v[50:51]")
    e("v_add_f32 v26, v48, v49")
    for rot in (8, 4, 2, 1):
        k.nop(2)
        e(f"v_add_f32_dpp v26, v26, v26 row_ror:{rot} row_mask:0xf bank_mask:0xf")
    e(f"v_mov_b32 v27, {hex(f32bits(1e-5))}")
    e(f"v_fmac_f32 v27, {hex(f32bits(1.0/512))}, v26")
    e("v_rsq_f32 v26, v27")
    k.nop(1)
    for j in range(16):
        e(f"v_pk_mul_f32 {V(64+2*j,2)}, {V(64+2*j,2)}, v[26:27] op_sel_hi:[1,0]")
    for j in range(16):
        e(f"v_cvt_pk_bf16_f32 v{32+j}, v{64+2*j}, v{65+2*j}")
        if j % 4 == 3:
            e(f"ds_write_b128 v8, {V(32+j-3,4)} offset:{256*(j//4)}")
    k.lgkm0()
    e("s_barrier")
    for j in range(4):
        e(f"ds_read_b64_tr_b16 {V(48+4*j,2)}, v9 offset:{64*j}")
        e(f"ds_read_b64_tr_b16 {V(50+4*j,2)}, v9 offset:{64*j+4*1088}")
    th = None
    for j in range(4):
        e(f"s_waitcnt lgkmcnt({6-2*j})") if not opt.get("diag") else k.lgkm0()
        e(f"s_add_u32 s12, s84, {j*131072}")
        th = k.vmem(f"buffer_store_dwordx4 {V(48+4*j,4)}, v10, {WS}, s12 offen sc1")
    k.stamp(1)

    def qdma(c):
        slot = c % 4
        t = None
        for j in range(4):
            t = k.dma(f"v{14+(j&1)}", X, ("s88", j*8192 + c*128), ("s90", slot*40960 + j*1024))
        for sec in range(3):
            for j in range(2):
                t = k.dma(f"v{16+j}", WQKV, ("s89", (64*c + 8*j)*3072 + sec*1024),
                          ("s91", slot*40960 + 16384 + sec*8192 + j*1024), WFL)
        return t
    ct = {}
    npre = opt.get("q_pre", 1)
    for c in range(npre):
        ct[c] = qdma(c)
    k.wait_vm(th)
    e("s_barrier")
    k.stamp(2)
    e("s_lshr_b32 s12, s8, 2")
    e("s_lshl_b32 s12, s12, 6")
    k.arrive(DBG, "s12")
    for c in range(npre):
        ct[c] += 0
    extra_fix = (k.vm, npre)
    for c in range(npre, 4):
        ct[c] = qdma(c)

    ACC = 160
    FR = [64, 104]

    def qreads(t):
        c, kk = t // 2, t % 2
        slot = c % 4
        hi = slot >= 2
        so = (slot % 2) * 40960
        base = FR[t % 2]
        out = []
        xa = 18 + kk + (2 if hi else 0)
        for i in range(4):
            out.append(f"ds_read_b128 {V(base+4*i,4)}, v{xa} offset:{so + i*2048}")
        for sec in range(3):
            for hh in range(2):
                wa = 22 + hh + (2 if hi else 0)
                r = base + 16 + (sec*2 + hh)*4
                o = so + sec*8192 + kk*4096
                out.append(f"ds_read_b64_tr_b16 {V(r,2)}, v{wa} offset:{o}")
                out.append(f"ds_read_b64_tr_b16 {V(r+2,2)}, v{wa} offset:{o+512}")
        return out

    def qwait(c):
        k.wait_vm(ct[c])
        e("s_barrier")

    qwait(0)
    k.stamp(3)
    for s in qreads(0):
        e(s)
    k.lgkm0()
    for t in range(16):
        if t % 2 == 1 and t + 1 < 16:
            c = (t + 1) // 2
            qwait(c)
            if c + 3 < 8:
                ct[c + 3] = qdma(c + 3)
        reads = qreads(t + 1) if t + 1 < 16 else []
        base = FR[t % 2]
        ri = 0
        for sec in range(3):
            for hh in range(2):
                for i in range(4):
                    d = ACC + sec*32 + (hh*4 + i)*4
                    xf = V(base + 4*i, 4)
                    wf = V(base + 16 + (sec*2 + hh)*4, 4)
                    cc = "0" if t == 0 else V(d, 4)
                    if sec == 0:
                        mfma(k, V(d, 4), wf, xf, cc)
                    else:
                        mfma(k, V(d, 4), xf, wf, cc)
                    if ri < len(reads):
                        e(reads[ri])
                        ri += 1
        if reads:
            k.lgkm0()
    k.stamp(4)

    e(f"s_mov_b32 s92, {hex(LOG2E)}")
    e(f"s_mov_b32 s93, {hex(LOG2E)}")
    e(f"s_mov_b32 s94, {hex(f32bits(1e-6))}")
    e(f"s_mov_b32 s95, {hex(f32bits(1e-6))}")
    e("v_mov_b32 v26, s85")
    e("v_mov_b32 v27, s85")
    e("v_mov_b32 v28, s85")
    e("v_mov_b32 v29, s85")
    k.nop(8)

    def phi(src, dst):
        for j in range(16):
            e(f"v_pk_mul_f32 {V(64+2*j,2)}, {V(src+2*j,2)}, s[92:93]")
        for j in range(32):
            e(f"v_exp_f32 v{64+j}, v{64+j} clamp")
            e(f"v_max_f32 v{src+j}, 0, v{src+j}")
        for j in range(16):
            e(f"v_pk_add_f32 {V(64+2*j,2)}, {V(64+2*j,2)}, s[94:95]")
        for j in range(16):
            e(f"v_pk_add_f32 {V(64+2*j,2)}, {V(64+2*j,2)}, {V(src+2*j,2)}")
        for j in range(16):
            e(f"v_cvt_pk_bf16_f32 v{dst+j}, v{64+2*j}, v{65+2*j}")
    PK, PV, PQ = 96, 112, 128
    phi(ACC + 32, PK)
    for j in range(16):
        e(f"v_cvt_pk_bf16_f32 v{PV+j}, v{ACC+64+2*j}, v{ACC+65+2*j}")
    k.nop(2)
    for p in range(2):
        for hh in range(2):
            a_ = V(PK + hh*8 + p*4, 4)
            b_ = V(PV + hh*8 + p*4, 4)
            mfma(k, V(32+8*hh, 4), a_, b_, "0" if p == 0 else V(32+8*hh, 4))
            mfma(k, V(36+8*hh, 4), a_, "v[26:29]", "0" if p == 0 else V(36+8*hh, 4))
    e("s_barrier")
    e("v_add_u32 v12, s7, v4")
    e("s_xor_b32 s12, s3, 2")
    e("s_mul_i32 s12, s12, 40960")
    e("v_add_u32 v13, s12, v4")
    k.nop(4)
    l1 = k.newlab()
    l2 = k.newlab()
    e("s_cmp_eq_u32 s86, 0")
    e(f"s_cbranch_scc1 {l1}")
    e("ds_write_b128 v12, v[32:35]")
    e("ds_write_b128 v12, v[36:39] offset:1024")
    k.lgkm0()
    for j in range(8):
        e(f"v_mov_b32 v{32+j}, v{40+j}")
    e(f"s_branch {l2}")
    k.label(l1)
    e("ds_write_b128 v12, v[40:43]")
    e("ds_write_b128 v12, v[44:47] offset:1024")
    k.label(l2)
    k.lgkm0()
    e("s_barrier")
    e("ds_read_b128 v[40:43], v13")
    e("ds_read_b128 v[44:47], v13 offset:1024")
    e("s_lshl_b32 s96, s9, 2")
    e("s_lshl_b32 s12, s87, 1")
    e("s_add_u32 s96, s96, s12")
    e("s_add_u32 s96, s96, s86")
    e("s_lshl_b32 s12, s96, 4")
    e("s_add_u32 s12, s12, s8")
    e("s_lshl_b32 s97, s12, 10")
    e(f"s_add_u32 s97, s97, {KVP}")
    e("s_lshl_b32 s12, s12, 6")
    e(f"s_add_u32 s12, s12, {ZP}")
    e("v_lshlrev_b32 v14, 4, v3")
    e("v_cmp_eq_u32 vcc, 0, v2")
    e("v_mov_b32 v15, 0x7ffffff0")
    k.nop(1)
    e("v_cndmask_b32 v14, v15, v14, vcc")
    k.lgkm0()
    for j in range(4):
        e(f"v_pk_add_f32 {V(32+2*j,2)}, {V(32+2*j,2)}, {V(40+2*j,2)}")
    k.vmem(f"buffer_store_dwordx4 v[32:35], v4, {WS}, s97 offen sc1")
    k.vmem(f"buffer_store_dwordx4 v[36:39], v14, {WS}, s12 offen sc1")
    k.poll("v5", DBG, 32)
    e("s_barrier")
    e(f"s_lshl_b32 s12, s9, 8")
    e(f"s_add_u32 s12, s12, {CNT}")
    k.arrive(WS, "s12")
    k.stamp(5)
    phi(ACC, PQ)
    e(f"s_lshl_b32 s12, s9, 8")
    e(f"s_add_u32 s12, s12, {CNT}")
    e("v_mov_b32 v14, s12")
    k.poll("v14", WS, 16)
    k.stamp(6)
    e("s_lshl_b32 s97, s96, 14")
    e(f"s_add_u32 s97, s97, {KVP}")
    e("s_lshl_b32 s12, s96, 10")
    e(f"s_add_u32 s12, s12, {ZP}")
    e("v_lshlrev_b32 v14, 6, v2")
    e("v_lshl_add_u32 v14, v3, 4, v14")
    tz = k.vmem(f"buffer_load_dwordx4 v[36:39], v14, {WS}, s12 offen sc1")
    tp = []
    for j in range(16):
        if j % 4 == 0 and j:
            e(f"s_add_u32 s97, s97, 4096")
        tp.append(k.vmem(f"buffer_load_dwordx4 {V(160+4*j,4)}, v4, {WS}, s97 offen offset:{(j%4)*1024} sc1"))
    k.wait_vm(tz)
    for rot in (8, 4, 2, 1):
        for r in range(4):
            e(f"v_add_f32_dpp v{36+r}, v{36+r}, v{36+r} row_ror:{rot} row_mask:0xf bank_mask:0xf")
    for j in range(1, 16):
        k.wait_vm(tp[j])
        e(f"v_pk_add_f32 v[160:161], v[160:161], {V(160+4*j,2)}")
        e(f"v_pk_add_f32 v[162:163], v[162:163], {V(162+4*j,2)}")
    e("v_cvt_pk_bf16_f32 v32, v160, v161")
    e("v_cvt_pk_bf16_f32 v33, v162, v163")
    e("v_cvt_pk_bf16_f32 v34, v36, v37")
    e("v_cvt_pk_bf16_f32 v35, v38, v39")
    e("ds_write_b128 v12, v[32:35] offset:2048")
    k.lgkm0()
    e("s_barrier")
    l1 = k.newlab()
    l2 = k.newlab()
    e("s_cmp_eq_u32 s86, 0")
    e(f"s_cbranch_scc1 {l1}")
    e("ds_read_b128 v[40:43], v13 offset:2048")
    e("ds_read_b128 v[44:47], v12 offset:2048")
    e(f"s_branch {l2}")
    k.label(l1)
    e("ds_read_b128 v[40:43], v12 offset:2048")
    e("ds_read_b128 v[44:47], v13 offset:2048")
    k.label(l2)
    e("s_lshl_b32 s97, s8, 3")
    e("s_lshl_b32 s12, s86, 2")
    e("s_add_u32 s97, s97, s12")
    e("s_lshl_b32 s97, s97, 4")
    e("s_lshl_b32 s12, s9, 1")
    e("s_add_u32 s97, s97, s12")
    e("s_add_u32 s97, s97, s87")
    e("s_lshl_b32 s97, s97, 10")
    e(f"s_add_u32 s97, s97, {OF}")
    k.lgkm0()
    for hh in range(2):
        for i in range(4):
            q_ = V(PQ + (hh*4+i)*2, 2)
            e(f"v_mfma_f32_16x16x16_bf16 {V(192+(hh*4+i)*4,4)}, {V(42+4*hh,2)}, {q_}, 0")
            e(f"v_mfma_f32_16x16x16_bf16 {V(160+(hh*4+i)*4,4)}, {V(40+4*hh,2)}, {q_}, 0")
    k.nop(8)
    for n_ in range(8):
        e(f"v_add_f32 v{192+4*n_}, s94, v{192+4*n_}")
    for n_ in range(8):
        e(f"v_rcp_f32 v{192+4*n_}, v{192+4*n_}")
    for n_ in range(8):
        e(f"v_pk_mul_f32 {V(160+4*n_,2)}, {V(160+4*n_,2)}, {V(192+4*n_,2)} op_sel_hi:[1,0]")
        e(f"v_pk_mul_f32 {V(162+4*n_,2)}, {V(162+4*n_,2)}, {V(192+4*n_,2)} op_sel_hi:[1,0]")
    for i in range(4):
        for hh in range(2):
            s_ = 160 + (hh*4+i)*4
            e(f"v_cvt_pk_bf16_f32 v{64+4*i+2*hh}, v{s_}, v{s_+1}")
            e(f"v_cvt_pk_bf16_f32 v{65+4*i+2*hh}, v{s_+2}, v{s_+3}")
        e(f"s_add_u32 s12, s97, {i*16384}")
        k.vmem(f"buffer_store_dwordx4 {V(64+4*i,4)}, v4, {WS}, s12 offen sc1")
    k.wait_vm0()
    e("s_barrier")
    e("s_lshl_b32 s12, s8, 8")
    e(f"s_add_u32 s12, s12, {CNT + 8*256}")
    k.arrive(WS, "s12")
    k.stamp(7)
    e("s_branch L_p3")

    k.label("L_urole")
    k.c("================= U role =================")
    k.vm = 0
    k.stamp(0)
    e("s_cmp_eq_u32 s8, 15")
    e("s_cbranch_scc1 L_spare")
    e("v_lshrrev_b32 v9, 2, v1")
    e("v_and_b32 v10, 3, v1")
    for j in range(3):
        e(f"v_add_u32 v11, {16*j}, v9")
        e("v_mul_u32_u24 v12, 43, v11")
        e("v_lshrrev_b32 v12, 7, v12")
        e("v_mul_u32_u24 v13, 3, v12")
        e("v_sub_u32 v11, v11, v13")
        e("v_lshrrev_b32 v13, 2, v12")
        e("v_and_b32 v13, 2, v13")
        e("v_xor_b32 v13, v13, v10")
        e("v_lshlrev_b32 v13, 4, v13")
        e("v_lshl_add_u32 v13, v11, 6, v13")
        e("v_mul_u32_u24 v12, 2752, v12")
        e(f"v_add_u32 v{6+j}, v12, v13")
    e(f"s_mul_i32 s84, s3, {512*2752}")
    e("s_mul_i32 s12, s8, 192")
    e("s_add_u32 s84, s84, s12")
    e("v_lshrrev_b32 v9, 2, v2")
    e("v_lshl_add_u32 v9, v3, 3, v9")
    e("v_mul_u32_u24 v9, 192, v9")
    e("v_and_b32 v11, 3, v2")
    e("v_lshl_add_u32 v9, v11, 3, v9")
    e("v_add_u32 v9, s7, v9")
    e("v_and_b32 v11, 1, v3")
    e("v_lshlrev_b32 v11, 5, v11")
    e("v_xor_b32 v12, 32, v11")
    e("v_add_u32 v10, v9, v12")
    e("v_add_u32 v9, v9, v11")
    e("s_lshl_b32 s85, s9, 18")
    e("s_lshl_b32 s12, s3, 14")
    e("s_add_u32 s85, s85, s12")
    if HF:
        e(f"s_add_u32 s85, s85, {HF}")
    UL, UNWB, UFB = 6, 6, 14
    UR = opt.get("u_r", 5)

    def u_wdma(t):
        tok = None
        for j in range(6):
            tok = k.dma(f"v{6+(j%3)}", W1, ("s84", (32*t + 16*(j//3))*2752), ("s7", (t % UL)*6144 + j*1024), WFL)
        return tok

    def u_wread(t):
        out = []
        for fb in range(6):
            r = 96 + (t % UNWB)*24 + fb*4
            o = (t % UL)*6144 + (fb >> 1)*64
            out.append(f"ds_read_b64_tr_b16 {A(r,2)}, v{9+(fb&1)} offset:{o}")
            out.append(f"ds_read_b64_tr_b16 {A(r+2,2)}, v{9+(fb&1)} offset:{o+768}")
        return out

    def u_fload(t):
        toks = []
        for b in range(4):
            e(f"s_add_u32 s13, s85, {b*65536 + t*1024}")
            toks.append(k.vmem(f"buffer_load_dwordx4 {V(32+(t%UFB)*16+4*b,4)}, v4, {WS}, s13 offen sc1"))
        return toks

    def u_mm(t, b, j):
        d = A((b*6 + j)*4, 4)
        mfma(k, d, A(96 + (t % UNWB)*24 + j*4, 4), V(32+(t % UFB)*16+4*b, 4), "0" if t == 0 else d)

    def u_poll():
        k.stamp(1)
        k.poll("v5", DBG, 32)
        k.stamp(2)
        e("s_mul_i32 s12, s8, 192")
        e("v_lshlrev_b32 v11, 3, v3")
        for j in range(6):
            k.vmem(f"buffer_load_dwordx2 {V(14+2*j,2)}, v11, {B1}, s12 offen offset:{32*j}")

    sk_gemm(k, 16, UL, UR, UNWB, UFB, 6, u_wdma, u_wread, u_fload, u_mm, u_poll)
    k.stamp(3)
    e("v_add_u32 v12, s7, v4")
    k.nop(8)
    skip = [k.newlab() for _ in range(4)]
    for b in range(4):
        e(f"s_cmp_eq_u32 s3, {b}")
        e(f"s_cbranch_scc1 {skip[b]}")
        for j in range(6):
            e(f"ds_write_b128 v12, {A((b*6+j)*4,4)} offset:{(b*6+j)*1024}")
        k.label(skip[b])
    own = [k.newlab() for _ in range(4)]
    done = k.newlab()
    for b in range(4):
        if b < 3:
            e(f"s_cmp_lg_u32 s3, {b}")
            e(f"s_cbranch_scc1 {own[b]}")
        for r in range(24):
            e(f"v_accvgpr_read_b32 v{32+r}, a{b*24+r}")
        if b < 3:
            e(f"s_branch {done}")
            k.label(own[b])
    k.label(done)
    e("s_mul_i32 s86, s3, 6144")
    for o in range(1, 4):
        e(f"s_add_u32 s12, s3, {o}")
        e("s_and_b32 s12, s12, 3")
        e("s_mul_i32 s12, s12, 40960")
        e("s_add_u32 s12, s12, s86")
        e(f"v_add_u32 v{26+o}, s12, v4")
    k.lgkm0()
    e("s_barrier")
    for o in range(1, 4):
        for j in range(6):
            e(f"ds_read_b128 {V(32+24*o+4*j,4)}, v{26+o} offset:{j*1024}")
        if o == 2:
            k.lgkm0()
    for j in range(6):
        e(f"v_lshlrev_b32 v{128+4*j}, 16, v{14+2*j}")
        e(f"v_and_b32 v{129+4*j}, 0xffff0000, v{14+2*j}")
        e(f"v_lshlrev_b32 v{130+4*j}, 16, v{15+2*j}")
        e(f"v_and_b32 v{131+4*j}, 0xffff0000, v{15+2*j}")
    for r in range(12):
        e(f"v_pk_add_f32 {V(32+2*r,2)}, {V(32+2*r,2)}, {V(128+2*r,2)}")
    for r in range(12):
        e(f"v_pk_add_f32 {V(56+2*r,2)}, {V(56+2*r,2)}, {V(80+2*r,2)}")
    k.lgkm0()
    for r in range(12):
        e(f"v_pk_add_f32 {V(32+2*r,2)}, {V(32+2*r,2)}, {V(104+2*r,2)}")
    for r in range(12):
        e(f"v_pk_add_f32 {V(32+2*r,2)}, {V(32+2*r,2)}, {V(56+2*r,2)}")
    c0 = -2.0 * 0.7978845608028654 * 1.4426950408889634
    c1 = c0 * 0.044715
    e(f"s_mov_b32 s92, {hex(f32bits(c1))}")
    e(f"s_mov_b32 s93, {hex(f32bits(c1))}")
    e(f"v_mov_b32 v26, {hex(f32bits(c0))}")
    e(f"v_mov_b32 v27, {hex(f32bits(c0))}")
    for r in range(12):
        e(f"v_pk_mul_f32 {V(56+2*r,2)}, {V(32+2*r,2)}, {V(32+2*r,2)}")
    for r in range(12):
        e(f"v_pk_fma_f32 {V(56+2*r,2)}, {V(56+2*r,2)}, s[92:93], v[26:27]")
    for r in range(12):
        e(f"v_pk_mul_f32 {V(56+2*r,2)}, {V(56+2*r,2)}, {V(32+2*r,2)}")
    for r in range(24):
        e(f"v_exp_f32 v{56+r}, v{56+r}")
    for r in range(24):
        e(f"v_add_f32 v{56+r}, 1.0, v{56+r}")
    for r in range(24):
        e(f"v_rcp_f32 v{56+r}, v{56+r}")
    for r in range(12):
        e(f"v_pk_mul_f32 {V(32+2*r,2)}, {V(32+2*r,2)}, {V(56+2*r,2)}")
    e("s_lshl_b32 s12, s9, 2")
    e("s_add_u32 s12, s12, s3")
    e("s_mul_i32 s12, s12, 43")
    e("s_mul_i32 s86, s8, 3")
    e("s_add_u32 s12, s12, s86")
    e("s_lshl_b32 s12, s12, 10")
    e(f"s_add_u32 s12, s12, {GUF}")
    e("s_cmp_eq_u32 s8, 14")
    e("s_cselect_b32 s86, 0x7ff00000, 0")
    e("v_or_b32 v13, s86, v4")
    for p in range(3):
        for q in range(4):
            e(f"v_cvt_pk_bf16_f32 v{80+4*p+q}, v{32+8*p+2*q}, v{33+8*p+2*q}")
        k.vmem(f"buffer_store_dwordx4 {V(80+4*p,4)}, {'v4' if p == 0 else 'v13'}, {WS}, s12 offen offset:{p*1024} sc1")
    k.wait_vm0()
    e("s_barrier")
    e("s_lshl_b32 s12, s9, 8")
    e(f"s_add_u32 s12, s12, {CNT + 24*256}")
    k.arrive(WS, "s12")
    k.stamp(7)
    e("s_branch L_p3")
    k.label("L_spare")
    k.poll("v5", DBG, 32)

    k.label("L_p3")
    k.c("================= P3 =================")
    k.vm = 0
    e("v_lshrrev_b32 v7, 3, v1")
    e("v_and_b32 v6, 7, v1")
    e("v_and_b32 v8, 6, v7")
    e("v_xor_b32 v6, v6, v8")
    e("v_lshlrev_b32 v6, 4, v6")
    e("v_lshrrev_b32 v8, 2, v2")
    e("v_lshl_add_u32 v8, v3, 2, v8")
    e("v_lshrrev_b32 v9, 1, v8")
    e("v_and_b32 v9, 3, v9")
    e("v_lshlrev_b32 v8, 7, v8")
    e("v_lshl_add_u32 v8, v9, 5, v8")
    e("v_and_b32 v9, 3, v2")
    e("v_lshl_add_u32 v8, v9, 3, v8")
    e("v_add_u32 v8, s7, v8")
    e("v_xor_b32 v9, 32, v8")
    e("v_xor_b32 v10, 64, v8")
    e("v_xor_b32 v11, 96, v8")
    PL, PNWB, PFB = 10, 7, 16

    def freg(t, b):
        return V(32 + t*16 + 4*b, 4) if t < 14 else A(176 + (t-14)*16 + 4*b, 4)

    def p_wread(t):
        out = []
        for j in range(4):
            r = 64 + (t % PNWB)*16 + j*4
            o = (t % PL)*4096
            out.append(f"ds_read_b64_tr_b16 {A(r,2)}, v{8+j} offset:{o}")
            out.append(f"ds_read_b64_tr_b16 {A(r+2,2)}, v{8+j} offset:{o+2048}")
        return out

    def epi_loads():
        e("s_lshl_b32 s12, s10, 6")
        e("s_lshl_b32 s86, s3, 4")
        e("s_add_u32 s12, s12, s86")
        e("v_add_u32 v14, s12, v2")
        e("v_lshlrev_b32 v15, 2, v14")
        e("v_lshlrev_b32 v16, 1, v14")
        e(f"s_mov_b32 s12, {GG}")
        k.vmem(f"buffer_load_dword v17, v15, {WS}, s12 offen sc1")
        k.vmem(f"buffer_load_ushort v18, v16, {B2}, 0 offen")

    e("s_cmp_eq_u32 s3, 3")
    e("s_cbranch_scc1 L_p3a")
    e("v_lshl_add_u32 v6, v7, 12, v6")
    e(f"s_mul_i32 s84, s3, {15*32*4096}")
    e("s_lshl_b32 s12, s10, 7")
    e("s_add_u32 s84, s84, s12")
    e(f"s_mul_i32 s85, s11, {4*43*1024}")
    e(f"s_mul_i32 s12, s3, {15*1024}")
    e("s_add_u32 s85, s85, s12")
    e(f"s_add_u32 s85, s85, {GUF}")
    e("s_cmp_eq_u32 s3, 2")
    e("s_cselect_b32 s86, 0x7ff00000, 0")
    e("v_or_b32 v13, s86, v4")
    e("s_lshl_b32 s12, s11, 8")
    e(f"s_add_u32 s12, s12, {CNT + 24*256}")
    e("v_mov_b32 v12, s12")

    def y_wdma(t):
        tok = None
        for j in range(4):
            tok = k.dma("v6", W2, ("s84", (32*t + 8*j)*4096), ("s7", (t % PL)*4096 + j*1024), WFL)
        return tok

    def y_fload(t):
        toks = []
        for b in range(4):
            e(f"s_add_u32 s13, s85, {b*43*1024 + t*1024}")
            toks.append(k.vmem(f"buffer_load_dwordx4 {freg(t,b)}, {'v13' if t >= 13 else 'v4'}, {WS}, s13 offen sc1"))
        return toks

    def y_mm(t, b, j):
        d = A((j*4 + b)*4, 4)
        mfma(k, d, freg(t, b), A(64 + (t % PNWB)*16 + j*4, 4), "0" if t == 0 else d)

    def y_poll():
        epi_loads()
        k.stamp(8)
        k.poll("v12", WS, 15)
        k.stamp(9)

    sk_gemm(k, 15, PL, 5, PNWB, PFB, 4, y_wdma, p_wread, y_fload, y_mm, y_poll)
    e("s_branch L_p3red")
    k.label("L_p3a")
    k.vm = 0
    e("v_lshl_add_u32 v6, v7, 10, v6")
    e("s_lshl_b32 s84, s11, 7")
    e("s_lshl_b32 s85, s10, 16")
    e(f"s_add_u32 s85, s85, {OF}")
    e("s_lshr_b32 s12, s10, 1")
    e("s_lshl_b32 s12, s12, 8")
    e(f"s_add_u32 s12, s12, {CNT + 8*256}")
    e("v_mov_b32 v12, s12")

    def a_wdma(t):
        tok = None
        for j in range(4):
            tok = k.dma("v6", WO, ("s84", (32*t + 8*j)*1024), ("s7", (t % PL)*4096 + j*1024), WFL)
        return tok

    def a_fload(t):
        toks = []
        for b in range(4):
            e(f"s_add_u32 s13, s85, {b*16384 + t*1024}")
            toks.append(k.vmem(f"buffer_load_dwordx4 {freg(t,b)}, v4, {WS}, s13 offen sc1"))
        return toks

    def a_mm(t, b, j):
        d = A((b*4 + j)*4, 4)
        mfma(k, d, A(64 + (t % PNWB)*16 + j*4, 4), freg(t, b), "0" if t == 0 else d)

    def a_poll():
        epi_loads()
        k.stamp(8)
        k.poll("v12", WS, 8)
        k.stamp(9)

    sk_gemm(k, 16, PL, 6, PNWB, PFB, 4, a_wdma, p_wread, a_fload, a_mm, a_poll)
    k.label("L_p3red")
    k.stamp(10)
    e("v_add_u32 v12, s7, v4")
    e("s_lshl_b32 s12, s3, 12")
    e("v_add_u32 v13, s12, v4")
    e("v_add_u32 v19, 81920, v13")
    k.nop(6)
    for n_ in range(16):
        e(f"ds_write_b128 v12, {A(n_*4,4)} offset:{n_*1024}")
    e("v_lshlrev_b32 v14, 10, v14")
    e("v_and_b32 v15, 1, v3")
    e("v_lshl_add_u32 v14, v15, 5, v14")
    e("v_lshrrev_b32 v15, 1, v3")
    e("v_lshl_add_u32 v14, v15, 4, v14")
    e("s_lshl_b32 s12, s11, 7")
    e("v_lshlrev_b32 v18, 16, v18")
    e("v_mov_b32 v20, v17")
    e("v_sub_f32 v22, 1.0, v17")
    k.lgkm0()
    e("s_barrier")
    for src in range(4):
        for j in range(4):
            e(f"ds_read_b128 {V(32+16*src+4*j,4)}, {'v13' if src < 2 else 'v19'} offset:{(src%2)*40960 + j*1024}")
        if src == 1:
            k.lgkm0()
    for r in range(8):
        e(f"v_pk_add_f32 {V(32+2*r,2)}, {V(32+2*r,2)}, {V(48+2*r,2)}")
    for r in range(8):
        e(f"v_pk_add_f32 {V(32+2*r,2)}, {V(32+2*r,2)}, v[18:19] op_sel_hi:[1,0]")
    k.lgkm0()
    for r in range(8):
        e(f"v_pk_add_f32 {V(32+2*r,2)}, {V(32+2*r,2)}, {V(64+2*r,2)}")
    for r in range(8):
        e(f"v_pk_mul_f32 {V(80+2*r,2)}, {V(80+2*r,2)}, v[20:21] op_sel_hi:[1,0]")
    for r in range(8):
        e(f"v_pk_fma_f32 {V(32+2*r,2)}, {V(32+2*r,2)}, v[22:23], {V(80+2*r,2)} op_sel_hi:[1,0,1]")
    for t in range(4):
        e(f"v_cvt_pk_bf16_f32 v{48+2*t}, v{32+4*t}, v{33+4*t}")
        e(f"v_cvt_pk_bf16_f32 v{49+2*t}, v{34+4*t}, v{35+4*t}")
    k.nop(2)
    for p in range(2):
        e(f"v_permlane16_swap_b32 v{48+4*p}, v{50+4*p}")
        e(f"v_permlane16_swap_b32 v{49+4*p}, v{51+4*p}")
    k.nop(1)
    for p in range(2):
        e(f"buffer_store_dwordx4 {V(48+4*p,4)}, v14, {OUT}, s12 offen offset:{64*p}")
    if opt.get("diag"):
        e("s_waitcnt vmcnt(0)")
        k.stamp(11)
        k.lgkm0()
        for i in range(12):
            e(f"v_mov_b32 v{32+i}, s{16+2*i}")
        e("v_mov_b32 v44, s98")
        e("s_getreg_b32 s12, hwreg(HW_REG_XCC_ID)")
        e("v_mov_b32 v45, s12")
        e("s_lshl_b32 s12, s2, 2")
        e("s_add_u32 s12, s12, s3")
        e("s_lshl_b32 s12, s12, 6")
        e(f"s_add_u32 s12, s12, {DIAG}")
        e("v_mov_b32 v30, 0")
        e("s_mov_b64 exec, 1")
        for i in range(4):
            e(f"buffer_store_dwordx4 {V(32+4*i,4)}, v30, {WS}, s12 offen offset:{16*i}")
    k.label("L_end")
    e("s_endpgm")
    return "\n".join(k.l)


HEADER = open("cdna_kernels/" + NAME + ".s.ref").read().split("; Override launch geometry")[0]


def gen_file(opt):
    kn = NAME + "_kernel"
    nl = opt.get("launches", 1)
    s = HEADER
    if nl == 1:
        s += "; @launch grid=(256,1,1) block=(256,1,1) lds=163840\n"
    else:
        for _ in range(nl):
            s += f"; @launch kernel={kn} grid=(256,1,1) block=(256,1,1) lds=163840\n"
    s += f""".amdgcn_target "amdgcn-amd-amdhsa--gfx950"
.text
.globl {kn}
.p2align 8
.type {kn},@function
{kn}:
{gen_body(opt)}
.section .rodata,"a"
.p2align 6
.amdhsa_kernel {kn}
  .amdhsa_next_free_vgpr 512
  .amdhsa_next_free_sgpr 102
  .amdhsa_accum_offset 256
  .amdhsa_group_segment_fixed_size 0
  .amdhsa_kernarg_size 96
  .amdhsa_user_sgpr_count 2
  .amdhsa_user_sgpr_kernarg_segment_ptr 1
  .amdhsa_system_sgpr_workgroup_id_x 1
.end_amdhsa_kernel
"""
    return s


if __name__ == "__main__":
    opt = {}
    out = None
    for a in sys.argv[1:]:
        if "=" in a:
            kk, vv = a.split("=", 1)
            try:
                vv = int(vv)
            except ValueError:
                pass
            opt[kk] = vv
        else:
            out = a
    txt = gen_file(opt)
    open(out or ("cdna_kernels/" + NAME + ".s"), "w").write(txt)
```

```python
import sys

NAME = "gated_mix__linear_attn_block__mixer_token_mlp__prompt"

HF = 0x000000
GUF = 0x200000
OF = 0x400000
KVP = 0x600000
ZP = 0x680000
GG = 0x690000
CNT = 0x6A0000
DIAG = 0x700000
WS_BYTES = 0x800000

X, WQKV, WO, W1, B1, W2, B2, GW, OUT, DBG, WS = [f"s[{40+4*i}:{43+4*i}]" for i in range(11)]
SRD_INFO = [(40, 16, 2048*512*2), (44, 18, 512*1536*2), (48, 20, 512*512*2), (52, 24, 2048*1376*2),
            (56, 26, 1376*2), (60, 28, 1376*2048*2), (64, 30, 2048*2), (68, 32, 512*2),
            (72, 34, 2048*512*2), (76, 36, 256), (80, 38, WS_BYTES)]

LOG2E = 0x3fb8aa3b


def f32bits(x):
    import struct
    return struct.unpack("<I", struct.pack("<f", x))[0]


def rr(kind, base, n):
    return f"{kind}{base}" if n == 1 else f"{kind}[{base}:{base+n-1}]"


def V(b, n=1):
    return rr("v", b, n)


def A(b, n=1):
    return rr("a", b, n)


class Em:
    def __init__(self, opt):
        self.l = []
        self.vm = 0
        self.lab = 0
        self.opt = opt
        self.nstamp = 0

    def e(self, s):
        self.l.append("    " + s)

    def c(self, s):
        self.l.append("    ; " + s)

    def label(self, s):
        self.l.append(s + ":")

    def newlab(self, p="L"):
        self.lab += 1
        return f"{p}_{self.lab}"

    def vmem(self, s):
        self.e(s)
        self.vm += 1
        return self.vm

    def wait_vm(self, tok):
        n = self.vm - tok
        assert n >= 0
        self.e(f"s_waitcnt vmcnt({min(n, 63)})")

    def wait_vm0(self):
        self.e("s_waitcnt vmcnt(0)")

    def lgkm0(self):
        self.e("s_waitcnt lgkmcnt(0)")

    def nop(self, n):
        while n > 0:
            k = min(n, 16)
            self.e(f"s_nop {k-1}")
            n -= k

    def stamp(self, i):
        if self.opt.get("diag"):
            assert i < 12
            self.e(f"s_memrealtime s[{16+2*i}:{17+2*i}]")

    def dma(self, voff, srd, soff, m0expr, flags=""):
        sreg, imm = m0expr
        if sreg is None:
            self.e(f"s_mov_b32 m0, {imm}")
        else:
            self.e(f"s_add_u32 m0, {sreg}, {imm}")
        sr, si = soff
        self.e(f"s_add_u32 s13, {sr}, {si}")
        return self.vmem(f"buffer_load_dwordx4 {voff}, {srd}, s13 offen {flags} lds".replace("  ", " "))

    def poll(self, voff, srd, expect, tmp="v31"):
        if self.opt.get("nowait"):
            self.wait_vm0()
            return
        lp = self.newlab("L_poll")
        dn = self.newlab("L_polled")
        self.e("s_mov_b32 s14, 0")
        self.label(lp)
        self.e(f"buffer_load_dword {tmp}, {voff}, {srd}, 0 offen sc1")
        self.e("s_add_u32 s14, s14, 1")
        self.e("s_waitcnt vmcnt(0)")
        self.e(f"v_cmp_gt_u32 vcc, {expect}, {tmp}")
        self.e(f"s_cbranch_vccz {dn}")
        self.e(f"s_sleep {self.opt.get('sleep', 2)}")
        self.e("s_cmp_lt_u32 s14, 0x40000")
        self.e(f"s_cbranch_scc1 {lp}")
        self.label(dn)

    def arrive(self, srd, off_sreg):
        sk = self.newlab("L_arr")
        self.e("s_cmp_lg_u32 s3, 0")
        self.e(f"s_cbranch_scc1 {sk}")
        self.e(f"v_mov_b32 v30, {off_sreg}")
        self.e("v_mov_b32 v31, 1")
        self.e("s_mov_b64 exec, 1")
        self.e(f"buffer_atomic_add v31, v30, {srd}, 0 offen sc1")
        self.e("s_mov_b64 exec, -1")
        self.label(sk)


def mfma(k, d, a, b, c):
    k.e(f"v_mfma_f32_16x16x32_bf16 {d}, {a}, {b}, {c}")


def sk_gemm(k, n, L, R, NWB, FB, NF, wdma, wread, fload, mm, poll, pre_done=None):
    wt = {}
    for t in range(min(L, n)):
        wt[t] = wdma(t)
    for t in range(R):
        k.wait_vm(wt[t])
        for s in wread(t):
            k.e(s)
        k.lgkm0()
        if t + L < n:
            wt[t + L] = wdma(t + L)
    poll()
    drained = k.vm
    ft = {}
    for t in range(min(FB, n)):
        ft[t] = fload(t)
    nxt = R
    if R == 0:
        for s in wread(0):
            k.e(s)
        k.lgkm0()
        if L < n:
            wt[L] = wdma(L)
        nxt = 1
    for t in range(n):
        u = None
        if nxt < n and nxt <= t + NWB - 1 and (nxt + L < n or nxt <= t + 1):
            u = nxt
            nxt += 1
        assert t + 1 >= n or nxt > t + 1, (t, nxt)
        reads = wread(u) if u is not None else []
        ri = 0
        cnt = 0
        for b in range(4):
            k.wait_vm(ft[t][b])
            for j in range(NF):
                mm(t, b, j)
                cnt += 1
                if reads and cnt == 2 and wt[u] > drained:
                    k.wait_vm(wt[u])
                if reads and cnt >= 2 and ri < len(reads):
                    k.e(reads[ri])
                    ri += 1
        while ri < len(reads):
            k.e(reads[ri])
            ri += 1
        if reads:
            k.lgkm0()
            if u + L < n:
                wt[u + L] = wdma(u + L)
        if t + FB < n:
            ft[t + FB] = fload(t + FB)


def gen_body(opt):
    k = Em(opt)
    e = k.e
    WFL = opt.get("wflags", "")
    e("s_cmp_ge_u32 s2, 256")
    e("s_cbranch_scc1 L_end")
    e("s_load_dwordx16 s[16:31], s[0:1], 0")
    e("s_load_dwordx8 s[32:39], s[0:1], 64")
    if opt.get("diag"):
        e("s_memrealtime s[98:99]")
    e("v_lshrrev_b32 v2, 6, v0")
    e("v_and_b32 v1, 63, v0")
    e("v_readfirstlane_b32 s3, v2")
    e("s_and_b32 s4, s2, 7")
    e("s_lshr_b32 s6, s2, 3")
    e("s_and_b32 s5, s4, 1")
    e("s_lshr_b32 s4, s4, 1")
    k.c("P3 tile: s10 = st, s11 = dt3")
    e("s_and_b32 s10, s6, 7")
    e("s_lshl_b32 s12, s4, 3")
    e("s_add_u32 s10, s10, s12")
    e("s_lshr_b32 s11, s6, 3")
    e("s_lshl_b32 s12, s5, 2")
    e("s_add_u32 s11, s11, s12")
    k.c("role tile: s8 = a*4 + ((idx&15)>>2) (sb / ft), s9 = b*4 + (idx&3) (hg / dt)")
    e("s_bfe_u32 s8, s6, 0x20002")
    e("s_lshl_b32 s12, s4, 2")
    e("s_add_u32 s8, s8, s12")
    e("s_and_b32 s9, s6, 3")
    e("s_lshl_b32 s12, s5, 2")
    e("s_add_u32 s9, s9, s12")
    e("s_mul_i32 s7, s3, 40960")
    e("v_and_b32 v2, 15, v1")
    e("v_lshrrev_b32 v3, 4, v1")
    e("v_lshlrev_b32 v4, 4, v1")
    e("v_and_b32 v5, 3, v1")
    e("v_lshlrev_b32 v5, 6, v5")
    e("s_waitcnt lgkmcnt(0)")
    for (d, s, sz) in SRD_INFO:
        e(f"s_mov_b32 s{d}, s{s}")
        e(f"s_mov_b32 s{d+1}, s{s+1}")
        e(f"s_mov_b32 s{d+2}, {sz}")
        e(f"s_mov_b32 s{d+3}, 0x20000")
    if opt.get("diag"):
        for i in range(16, 40):
            e(f"s_mov_b32 s{i}, 0")
    e("s_cmp_ge_u32 s6, 16")
    e("s_cbranch_scc1 L_urole")

    k.c("================= Q role: LN =================")
    k.vm = 0
    k.stamp(0)
    e("s_lshl_b32 s15, s8, 7")
    e("s_lshl_b32 s12, s9, 4")
    e("s_add_u32 s15, s15, s12")
    e("s_lshl_b32 s12, s3, 2")
    e("s_add_u32 s12, s12, s15")
    e("s_lshl_b32 s12, s12, 10")
    e("v_lshlrev_b32 v7, 4, v2")
    e("v_lshl_add_u32 v6, v3, 10, v7")
    tx = [k.vmem(f"buffer_load_dwordx4 {V(32+4*j,4)}, v6, {X}, s12 offen offset:{256*j}") for j in range(4)]
    tg = [k.vmem(f"buffer_load_dwordx4 {V(48+4*j,4)}, v7, {GW}, 0 offen offset:{256*j}") for j in range(4)]
    e("s_lshl_b32 s12, s8, 3")
    e("s_add_u32 s12, s12, s9")
    e("s_cmp_ge_u32 s12, 32")
    e("s_cselect_b32 s13, 0x7ffffff0, 0")
    e("s_lshl_b32 s12, s12, 8")
    e(f"s_add_u32 s12, s12, {CNT}")
    e("s_or_b32 s12, s12, s13")
    e("v_mov_b32 v30, s12")
    e("v_mov_b32 v31, 0")
    k.vmem(f"buffer_store_dword v31, v30, {WS}, 0 offen sc1")
    LNB = 3 * 40960
    e("s_mul_i32 s12, s3, 4352")
    e(f"s_add_u32 s12, s12, {LNB}")
    e("v_mul_u32_u24 v8, 1088, v3")
    e("v_add3_u32 v8, v8, v7, s12")
    e("v_and_b32 v9, 1, v3")
    e("v_lshlrev_b32 v9, 3, v9")
    e("v_lshrrev_b32 v10, 2, v2")
    e("v_add_u32 v9, v9, v10")
    e("v_mul_u32_u24 v9, 1088, v9")
    e("v_lshrrev_b32 v10, 1, v3")
    e("v_lshl_add_u32 v9, v10, 5, v9")
    e("v_and_b32 v11, 3, v2")
    e("v_lshl_add_u32 v9, v11, 3, v9")
    e("s_lshl_b32 s12, s3, 8")
    e(f"s_add_u32 s12, s12, {LNB}")
    e("v_add_u32 v9, s12, v9")
    e("v_lshlrev_b32 v10, 16, v10")
    e("v_and_b32 v11, 1, v3")
    e("v_lshl_add_u32 v10, v11, 8, v10")
    e("v_add_u32 v10, v10, v7")
    e("s_lshl_b32 s84, s3, 19")
    e("s_lshl_b32 s12, s15, 5")
    e("s_add_u32 s84, s84, s12")
    if HF:
        e(f"s_add_u32 s84, s84, {HF}")
    e("s_lshl_b32 s12, s3, 2")
    e("s_add_u32 s12, s12, s15")
    e("s_lshl_b32 s12, s12, 2")
    e(f"s_add_u32 s12, s12, {GG}")
    e("v_lshl_add_u32 v11, v3, 2, s12")
    e("v_cmp_eq_u32 vcc, 0, v2")
    e("v_mov_b32 v12, 0x7ffffff0")
    e("s_mov_b32 s85, 0x3f803f80")
    e("v_cndmask_b32 v11, v12, v11, vcc")
    e("v_lshrrev_b32 v12, 3, v1")
    e("v_and_b32 v13, 7, v1")
    e("v_lshrrev_b32 v14, 1, v12")
    e("v_xor_b32 v14, v14, v13")
    e("v_lshlrev_b32 v14, 4, v14")
    e("v_lshl_add_u32 v14, v12, 10, v14")
    e("v_xor_b32 v15, 64, v14")
    e("v_and_b32 v16, 2, v12")
    e("v_xor_b32 v16, v16, v13")
    e("v_lshlrev_b32 v16, 4, v16")
    e("v_xor_b32 v17, 64, v16")
    e("v_mul_u32_u24 v12, 3072, v12")
    e("v_add_u32 v16, v16, v12")
    e("v_add_u32 v17, v17, v12")
    e("s_lshr_b32 s86, s3, 1")
    e("s_and_b32 s87, s3, 1")
    e("v_lshrrev_b32 v18, 1, v2")
    e("v_xor_b32 v18, v18, v3")
    e("v_lshlrev_b32 v18, 4, v18")
    e("v_lshl_add_u32 v18, v2, 7, v18")
    e("s_lshl_b32 s12, s86, 13")
    e("v_add_u32 v18, s12, v18")
    e("v_xor_b32 v19, 64, v18")
    e("v_add_u32 v20, 81920, v18")
    e("v_add_u32 v21, 81920, v19")
    e("v_lshrrev_b32 v22, 2, v2")
    e("v_lshrrev_b32 v23, 3, v2")
    e("v_and_b32 v24, 1, v3")
    e("v_lshl_add_u32 v23, v24, 1, v23")
    e("s_lshl_b32 s12, s87, 1")
    e("v_xor_b32 v23, s12, v23")
    e("v_lshl_add_u32 v22, v3, 3, v22")
    e("v_lshlrev_b32 v22, 7, v22")
    e("v_lshl_add_u32 v22, v23, 5, v22")
    e("v_and_b32 v24, 3, v2")
    e("v_lshl_add_u32 v22, v24, 3, v22")
    e("v_add_u32 v22, 16384, v22")
    e("v_xor_b32 v23, 32, v22")
    e("v_add_u32 v24, 81920, v22")
    e("v_add_u32 v25, 81920, v23")
    e("s_lshl_b32 s88, s8, 17")
    e("s_lshl_b32 s12, s3, 15")
    e("s_add_u32 s88, s88, s12")
    e("s_mul_i32 s89, s3, 49152")
    e("s_lshl_b32 s12, s9, 7")
    e("s_add_u32 s89, s89, s12")
    e("s_lshl_b32 s90, s3, 12")
    e("s_lshl_b32 s91, s3, 11")

    k.wait_vm(tx[3])
    e("v_dot2_f32_bf16 v26, v32, s85, 0")
    e("v_dot2_f32_bf16 v27, v33, s85, 0")
    for j in range(2, 16):
        e(f"v_dot2_f32_bf16 v{26+(j&1)}, v{32+j}, s85, v{26+(j&1)}")
    k.wait_vm(tg[3])
    e("v_dot2_f32_bf16 v28, v32, v48, 0")
    e("v_dot2_f32_bf16 v29, v33, v49, 0")
    for j in range(2, 16):
        e(f"v_dot2_f32_bf16 v{28+(j&1)}, v{32+j}, v{48+j}, v{28+(j&1)}")
    unp = []
    for j in range(16):
        unp.append(f"v_lshlrev_b32 v{64+2*j}, 16, v{32+j}")
        unp.append(f"v_and_b32 v{65+2*j}, 0xffff0000, v{32+j}")
    for s in unp[:4]:
        e(s)
    e("v_add_f32 v26, v26, v27")
    e("v_add_f32 v28, v28, v29")
    ui = 4
    for rot in (8, 4, 2, 1):
        for s in unp[ui:ui+3]:
            e(s)
        ui += 3
        e(f"v_add_f32_dpp v26, v26, v26 row_ror:{rot} row_mask:0xf bank_mask:0xf")
        e(f"v_add_f32_dpp v28, v28, v28 row_ror:{rot} row_mask:0xf bank_mask:0xf")
    for s in unp[ui:]:
        e(s)
    e(f"v_mul_f32 v26, {hex(f32bits(-1.0/512))}, v26")
    e(f"v_mul_f32 v28, {hex(f32bits(-1.4426950408889634))}, v28")
    e("v_exp_f32 v28, v28")
    for j in range(16):
        e(f"v_pk_add_f32 {V(64+2*j,2)}, {V(64+2*j,2)}, v[26:27] op_sel_hi:[1,0]")
    e("v_add_f32 v28, 1.0, v28")
    e("v_rcp_f32 v28, v28")
    e("v_pk_mul_f32 v[48:49], v[64:65], v[64:65]")
    e("v_pk_mul_f32 v[50:51], v[66:67], v[66:67]")
    for j in range(2, 16):
        a_ = 48 + 2 * (j & 1)
        e(f"v_pk_fma_f32 {V(a_,2)}, {V(64+2*j,2)}, {V(64+2*j,2)}, {V(a_,2)}")
    tgs = k.vmem(f"buffer_store_dword v28, v11, {WS}, 0 offen sc1")
    e("v_pk_add_f32 v[48:49], v[48:49], v[50:51]")
    e("v_add_f32 v26, v48, v49")
    for rot in (8, 4, 2, 1):
        k.nop(2)
        e(f"v_add_f32_dpp v26, v26, v26 row_ror:{rot} row_mask:0xf bank_mask:0xf")
    e(f"v_mov_b32 v27, {hex(f32bits(1e-5))}")
    e(f"v_fmac_f32 v27, {hex(f32bits(1.0/512))}, v26")
    e("v_rsq_f32 v26, v27")
    k.nop(1)
    for j in range(16):
        e(f"v_pk_mul_f32 {V(64+2*j,2)}, {V(64+2*j,2)}, v[26:27] op_sel_hi:[1,0]")
    for j in range(16):
        e(f"v_cvt_pk_bf16_f32 v{32+j}, v{64+2*j}, v{65+2*j}")
        if j % 4 == 3:
            e(f"ds_write_b128 v8, {V(32+j-3,4)} offset:{256*(j//4)}")
    k.lgkm0()
    e("s_barrier")
    for j in range(4):
        e(f"ds_read_b64_tr_b16 {V(48+4*j,2)}, v9 offset:{64*j}")
        e(f"ds_read_b64_tr_b16 {V(50+4*j,2)}, v9 offset:{64*j+4*1088}")
    th = None
    for j in range(4):
        e(f"s_waitcnt lgkmcnt({6-2*j})") if not opt.get("diag") else k.lgkm0()
        e(f"s_add_u32 s12, s84, {j*131072}")
        th = k.vmem(f"buffer_store_dwordx4 {V(48+4*j,4)}, v10, {WS}, s12 offen sc1")
    k.stamp(1)

    def qdma(c):
        slot = c % 4
        t = None
        for j in range(4):
            t = k.dma(f"v{14+(j&1)}", X, ("s88", j*8192 + c*128), ("s90", slot*40960 + j*1024))
        for sec in range(3):
            for j in range(2):
                t = k.dma(f"v{16+j}", WQKV, ("s89", (64*c + 8*j)*3072 + sec*1024),
                          ("s91", slot*40960 + 16384 + sec*8192 + j*1024), WFL)
        return t
    ct = {}
    npre = opt.get("q_pre", 1)
    for c in range(npre):
        ct[c] = qdma(c)
    k.wait_vm(th)
    e("s_barrier")
    k.stamp(2)
    e("s_lshr_b32 s12, s8, 2")
    e("s_lshl_b32 s12, s12, 6")
    k.arrive(DBG, "s12")
    for c in range(npre):
        ct[c] += 0
    extra_fix = (k.vm, npre)
    for c in range(npre, 4):
        ct[c] = qdma(c)

    ACC = 160
    FR = [64, 104]

    def qreads(t):
        c, kk = t // 2, t % 2
        slot = c % 4
        hi = slot >= 2
        so = (slot % 2) * 40960
        base = FR[t % 2]
        out = []
        xa = 18 + kk + (2 if hi else 0)
        for i in range(4):
            out.append(f"ds_read_b128 {V(base+4*i,4)}, v{xa} offset:{so + i*2048}")
        for sec in range(3):
            for hh in range(2):
                wa = 22 + hh + (2 if hi else 0)
                r = base + 16 + (sec*2 + hh)*4
                o = so + sec*8192 + kk*4096
                out.append(f"ds_read_b64_tr_b16 {V(r,2)}, v{wa} offset:{o}")
                out.append(f"ds_read_b64_tr_b16 {V(r+2,2)}, v{wa} offset:{o+512}")
        return out

    def qwait(c):
        k.wait_vm(ct[c])
        e("s_barrier")

    qwait(0)
    k.stamp(3)
    for s in qreads(0):
        e(s)
    k.lgkm0()
    for t in range(16):
        if t % 2 == 1 and t + 1 < 16:
            c = (t + 1) // 2
            qwait(c)
            if c + 3 < 8:
                ct[c + 3] = qdma(c + 3)
        reads = qreads(t + 1) if t + 1 < 16 else []
        base = FR[t % 2]
        ri = 0
        for sec in range(3):
            for hh in range(2):
                for i in range(4):
                    d = ACC + sec*32 + (hh*4 + i)*4
                    xf = V(base + 4*i, 4)
                    wf = V(base + 16 + (sec*2 + hh)*4, 4)
                    cc = "0" if t == 0 else V(d, 4)
                    if sec == 0:
                        mfma(k, V(d, 4), wf, xf, cc)
                    else:
                        mfma(k, V(d, 4), xf, wf, cc)
                    if ri < len(reads):
                        e(reads[ri])
                        ri += 1
        if reads:
            k.lgkm0()
    k.stamp(4)

    e(f"s_mov_b32 s92, {hex(LOG2E)}")
    e(f"s_mov_b32 s93, {hex(LOG2E)}")
    e(f"s_mov_b32 s94, {hex(f32bits(1e-6))}")
    e(f"s_mov_b32 s95, {hex(f32bits(1e-6))}")
    e("v_mov_b32 v26, s85")
    e("v_mov_b32 v27, s85")
    e("v_mov_b32 v28, s85")
    e("v_mov_b32 v29, s85")
    k.nop(8)

    def phi(src, dst):
        for j in range(16):
            e(f"v_pk_mul_f32 {V(64+2*j,2)}, {V(src+2*j,2)}, s[92:93]")
        for j in range(32):
            e(f"v_exp_f32 v{64+j}, v{64+j} clamp")
            e(f"v_max_f32 v{src+j}, 0, v{src+j}")
        for j in range(16):
            e(f"v_pk_add_f32 {V(64+2*j,2)}, {V(64+2*j,2)}, s[94:95]")
        for j in range(16):
            e(f"v_pk_add_f32 {V(64+2*j,2)}, {V(64+2*j,2)}, {V(src+2*j,2)}")
        for j in range(16):
            e(f"v_cvt_pk_bf16_f32 v{dst+j}, v{64+2*j}, v{65+2*j}")
    PK, PV, PQ = 96, 112, 128
    phi(ACC + 32, PK)
    for j in range(16):
        e(f"v_cvt_pk_bf16_f32 v{PV+j}, v{ACC+64+2*j}, v{ACC+65+2*j}")
    k.nop(2)
    for p in range(2):
        for hh in range(2):
            a_ = V(PK + hh*8 + p*4, 4)
            b_ = V(PV + hh*8 + p*4, 4)
            mfma(k, V(32+8*hh, 4), a_, b_, "0" if p == 0 else V(32+8*hh, 4))
            mfma(k, V(36+8*hh, 4), a_, "v[26:29]", "0" if p == 0 else V(36+8*hh, 4))
    e("s_barrier")
    e("v_add_u32 v12, s7, v4")
    e("s_xor_b32 s12, s3, 2")
    e("s_mul_i32 s12, s12, 40960")
    e("v_add_u32 v13, s12, v4")
    k.nop(4)
    l1 = k.newlab()
    l2 = k.newlab()
    e("s_cmp_eq_u32 s86, 0")
    e(f"s_cbranch_scc1 {l1}")
    e("ds_write_b128 v12, v[32:35]")
    e("ds_write_b128 v12, v[36:39] offset:1024")
    k.lgkm0()
    for j in range(8):
        e(f"v_mov_b32 v{32+j}, v{40+j}")
    e(f"s_branch {l2}")
    k.label(l1)
    e("ds_write_b128 v12, v[40:43]")
    e("ds_write_b128 v12, v[44:47] offset:1024")
    k.label(l2)
    k.lgkm0()
    e("s_barrier")
    e("ds_read_b128 v[40:43], v13")
    e("ds_read_b128 v[44:47], v13 offset:1024")
    e("s_lshl_b32 s96, s9, 2")
    e("s_lshl_b32 s12, s87, 1")
    e("s_add_u32 s96, s96, s12")
    e("s_add_u32 s96, s96, s86")
    e("s_lshl_b32 s12, s96, 4")
    e("s_add_u32 s12, s12, s8")
    e("s_lshl_b32 s97, s12, 10")
    e(f"s_add_u32 s97, s97, {KVP}")
    e("s_lshl_b32 s12, s12, 6")
    e(f"s_add_u32 s12, s12, {ZP}")
    e("v_lshlrev_b32 v14, 4, v3")
    e("v_cmp_eq_u32 vcc, 0, v2")
    e("v_mov_b32 v15, 0x7ffffff0")
    k.nop(1)
    e("v_cndmask_b32 v14, v15, v14, vcc")
    k.lgkm0()
    for j in range(4):
        e(f"v_pk_add_f32 {V(32+2*j,2)}, {V(32+2*j,2)}, {V(40+2*j,2)}")
    k.vmem(f"buffer_store_dwordx4 v[32:35], v4, {WS}, s97 offen sc1")
    k.vmem(f"buffer_store_dwordx4 v[36:39], v14, {WS}, s12 offen sc1")
    k.poll("v5", DBG, 32)
    e("s_barrier")
    e(f"s_lshl_b32 s12, s9, 8")
    e(f"s_add_u32 s12, s12, {CNT}")
    k.arrive(WS, "s12")
    k.stamp(5)
    phi(ACC, PQ)
    e(f"s_lshl_b32 s12, s9, 8")
    e(f"s_add_u32 s12, s12, {CNT}")
    e("v_mov_b32 v14, s12")
    k.poll("v14", WS, 16)
    k.stamp(6)
    e("s_lshl_b32 s97, s96, 14")
    e(f"s_add_u32 s97, s97, {KVP}")
    e("s_lshl_b32 s12, s96, 10")
    e(f"s_add_u32 s12, s12, {ZP}")
    e("v_lshlrev_b32 v14, 6, v2")
    e("v_lshl_add_u32 v14, v3, 4, v14")
    tz = k.vmem(f"buffer_load_dwordx4 v[36:39], v14, {WS}, s12 offen sc1")
    tp = []
    for j in range(16):
        if j % 4 == 0 and j:
            e(f"s_add_u32 s97, s97, 4096")
        tp.append(k.vmem(f"buffer_load_dwordx4 {V(160+4*j,4)}, v4, {WS}, s97 offen offset:{(j%4)*1024} sc1"))
    k.wait_vm(tz)
    for rot in (8, 4, 2, 1):
        for r in range(4):
            e(f"v_add_f32_dpp v{36+r}, v{36+r}, v{36+r} row_ror:{rot} row_mask:0xf bank_mask:0xf")
    for j in range(1, 16):
        k.wait_vm(tp[j])
        e(f"v_pk_add_f32 v[160:161], v[160:161], {V(160+4*j,2)}")
        e(f"v_pk_add_f32 v[162:163], v[162:163], {V(162+4*j,2)}")
    e("v_cvt_pk_bf16_f32 v32, v160, v161")
    e("v_cvt_pk_bf16_f32 v33, v162, v163")
    e("v_cvt_pk_bf16_f32 v34, v36, v37")
    e("v_cvt_pk_bf16_f32 v35, v38, v39")
    e("ds_write_b128 v12, v[32:35] offset:2048")
    k.lgkm0()
    e("s_barrier")
    l1 = k.newlab()
    l2 = k.newlab()
    e("s_cmp_eq_u32 s86, 0")
    e(f"s_cbranch_scc1 {l1}")
    e("ds_read_b128 v[40:43], v13 offset:2048")
    e("ds_read_b128 v[44:47], v12 offset:2048")
    e(f"s_branch {l2}")
    k.label(l1)
    e("ds_read_b128 v[40:43], v12 offset:2048")
    e("ds_read_b128 v[44:47], v13 offset:2048")
    k.label(l2)
    e("s_lshl_b32 s97, s8, 3")
    e("s_lshl_b32 s12, s86, 2")
    e("s_add_u32 s97, s97, s12")
    e("s_lshl_b32 s97, s97, 4")
    e("s_lshl_b32 s12, s9, 1")
    e("s_add_u32 s97, s97, s12")
    e("s_add_u32 s97, s97, s87")
    e("s_lshl_b32 s97, s97, 10")
    e(f"s_add_u32 s97, s97, {OF}")
    k.lgkm0()
    for hh in range(2):
        for i in range(4):
            q_ = V(PQ + (hh*4+i)*2, 2)
            e(f"v_mfma_f32_16x16x16_bf16 {V(192+(hh*4+i)*4,4)}, {V(42+4*hh,2)}, {q_}, 0")
            e(f"v_mfma_f32_16x16x16_bf16 {V(160+(hh*4+i)*4,4)}, {V(40+4*hh,2)}, {q_}, 0")
    k.nop(8)
    for n_ in range(8):
        e(f"v_add_f32 v{192+4*n_}, s94, v{192+4*n_}")
    for n_ in range(8):
        e(f"v_rcp_f32 v{192+4*n_}, v{192+4*n_}")
    for n_ in range(8):
        e(f"v_pk_mul_f32 {V(160+4*n_,2)}, {V(160+4*n_,2)}, {V(192+4*n_,2)} op_sel_hi:[1,0]")
        e(f"v_pk_mul_f32 {V(162+4*n_,2)}, {V(162+4*n_,2)}, {V(192+4*n_,2)} op_sel_hi:[1,0]")
    for i in range(4):
        for hh in range(2):
            s_ = 160 + (hh*4+i)*4
            e(f"v_cvt_pk_bf16_f32 v{64+4*i+2*hh}, v{s_}, v{s_+1}")
            e(f"v_cvt_pk_bf16_f32 v{65+4*i+2*hh}, v{s_+2}, v{s_+3}")
        e(f"s_add_u32 s12, s97, {i*16384}")
        k.vmem(f"buffer_store_dwordx4 {V(64+4*i,4)}, v4, {WS}, s12 offen sc1")
    k.wait_vm0()
    e("s_barrier")
    e("s_lshl_b32 s12, s8, 8")
    e(f"s_add_u32 s12, s12, {CNT + 8*256}")
    k.arrive(WS, "s12")
    k.stamp(7)
    e("s_branch L_p3")

    k.label("L_urole")
    k.c("================= U role =================")
    k.vm = 0
    k.stamp(0)
    e("s_cmp_eq_u32 s8, 15")
    e("s_cbranch_scc1 L_spare")
    e("v_lshrrev_b32 v9, 2, v1")
    e("v_and_b32 v10, 3, v1")
    for j in range(3):
        e(f"v_add_u32 v11, {16*j}, v9")
        e("v_mul_u32_u24 v12, 43, v11")
        e("v_lshrrev_b32 v12, 7, v12")
        e("v_mul_u32_u24 v13, 3, v12")
        e("v_sub_u32 v11, v11, v13")
        e("v_lshrrev_b32 v13, 2, v12")
        e("v_and_b32 v13, 2, v13")
        e("v_xor_b32 v13, v13, v10")
        e("v_lshlrev_b32 v13, 4, v13")
        e("v_lshl_add_u32 v13, v11, 6, v13")
        e("v_mul_u32_u24 v12, 2752, v12")
        e(f"v_add_u32 v{6+j}, v12, v13")
    e(f"s_mul_i32 s84, s3, {512*2752}")
    e("s_mul_i32 s12, s8, 192")
    e("s_add_u32 s84, s84, s12")
    e("v_lshrrev_b32 v9, 2, v2")
    e("v_lshl_add_u32 v9, v3, 3, v9")
    e("v_mul_u32_u24 v9, 192, v9")
    e("v_and_b32 v11, 3, v2")
    e("v_lshl_add_u32 v9, v11, 3, v9")
    e("v_add_u32 v9, s7, v9")
    e("v_and_b32 v11, 1, v3")
    e("v_lshlrev_b32 v11, 5, v11")
    e("v_xor_b32 v12, 32, v11")
    e("v_add_u32 v10, v9, v12")
    e("v_add_u32 v9, v9, v11")
    e("s_lshl_b32 s85, s9, 18")
    e("s_lshl_b32 s12, s3, 14")
    e("s_add_u32 s85, s85, s12")
    if HF:
        e(f"s_add_u32 s85, s85, {HF}")
    UL, UNWB, UFB = 6, 6, 14
    UR = opt.get("u_r", 5)

    def u_wdma(t):
        tok = None
        for j in range(6):
            tok = k.dma(f"v{6+(j%3)}", W1, ("s84", (32*t + 16*(j//3))*2752), ("s7", (t % UL)*6144 + j*1024), WFL)
        return tok

    def u_wread(t):
        out = []
        for fb in range(6):
            r = 96 + (t % UNWB)*24 + fb*4
            o = (t % UL)*6144 + (fb >> 1)*64
            out.append(f"ds_read_b64_tr_b16 {A(r,2)}, v{9+(fb&1)} offset:{o}")
            out.append(f"ds_read_b64_tr_b16 {A(r+2,2)}, v{9+(fb&1)} offset:{o+768}")
        return out

    def u_fload(t):
        toks = []
        for b in range(4):
            e(f"s_add_u32 s13, s85, {b*65536 + t*1024}")
            toks.append(k.vmem(f"buffer_load_dwordx4 {V(32+(t%UFB)*16+4*b,4)}, v4, {WS}, s13 offen sc1"))
        return toks

    def u_mm(t, b, j):
        d = A((b*6 + j)*4, 4)
        mfma(k, d, A(96 + (t % UNWB)*24 + j*4, 4), V(32+(t % UFB)*16+4*b, 4), "0" if t == 0 else d)

    def u_poll():
        k.stamp(1)
        k.poll("v5", DBG, 32)
        k.stamp(2)
        e("s_mul_i32 s12, s8, 192")
        e("v_lshlrev_b32 v11, 3, v3")
        for j in range(6):
            k.vmem(f"buffer_load_dwordx2 {V(14+2*j,2)}, v11, {B1}, s12 offen offset:{32*j}")

    sk_gemm(k, 16, UL, UR, UNWB, UFB, 6, u_wdma, u_wread, u_fload, u_mm, u_poll)
    k.stamp(3)
    e("v_add_u32 v12, s7, v4")
    k.nop(8)
    skip = [k.newlab() for _ in range(4)]
    for b in range(4):
        e(f"s_cmp_eq_u32 s3, {b}")
        e(f"s_cbranch_scc1 {skip[b]}")
        for j in range(6):
            e(f"ds_write_b128 v12, {A((b*6+j)*4,4)} offset:{(b*6+j)*1024}")
        k.label(skip[b])
    own = [k.newlab() for _ in range(4)]
    done = k.newlab()
    for b in range(4):
        if b < 3:
            e(f"s_cmp_lg_u32 s3, {b}")
            e(f"s_cbranch_scc1 {own[b]}")
        for r in range(24):
            e(f"v_accvgpr_read_b32 v{32+r}, a{b*24+r}")
        if b < 3:
            e(f"s_branch {done}")
            k.label(own[b])
    k.label(done)
    e("s_mul_i32 s86, s3, 6144")
    for o in range(1, 4):
        e(f"s_add_u32 s12, s3, {o}")
        e("s_and_b32 s12, s12, 3")
        e("s_mul_i32 s12, s12, 40960")
        e("s_add_u32 s12, s12, s86")
        e(f"v_add_u32 v{26+o}, s12, v4")
    k.lgkm0()
    e("s_barrier")
    for o in range(1, 4):
        for j in range(6):
            e(f"ds_read_b128 {V(32+24*o+4*j,4)}, v{26+o} offset:{j*1024}")
        if o == 2:
            k.lgkm0()
    for j in range(6):
        e(f"v_lshlrev_b32 v{128+4*j}, 16, v{14+2*j}")
        e(f"v_and_b32 v{129+4*j}, 0xffff0000, v{14+2*j}")
        e(f"v_lshlrev_b32 v{130+4*j}, 16, v{15+2*j}")
        e(f"v_and_b32 v{131+4*j}, 0xffff0000, v{15+2*j}")
    for r in range(12):
        e(f"v_pk_add_f32 {V(32+2*r,2)}, {V(32+2*r,2)}, {V(128+2*r,2)}")
    for r in range(12):
        e(f"v_pk_add_f32 {V(56+2*r,2)}, {V(56+2*r,2)}, {V(80+2*r,2)}")
    k.lgkm0()
    for r in range(12):
        e(f"v_pk_add_f32 {V(32+2*r,2)}, {V(32+2*r,2)}, {V(104+2*r,2)}")
    for r in range(12):
        e(f"v_pk_add_f32 {V(32+2*r,2)}, {V(32+2*r,2)}, {V(56+2*r,2)}")
    c0 = -2.0 * 0.7978845608028654 * 1.4426950408889634
    c1 = c0 * 0.044715
    e(f"s_mov_b32 s92, {hex(f32bits(c1))}")
    e(f"s_mov_b32 s93, {hex(f32bits(c1))}")
    e(f"v_mov_b32 v26, {hex(f32bits(c0))}")
    e(f"v_mov_b32 v27, {hex(f32bits(c0))}")
    for r in range(12):
        e(f"v_pk_mul_f32 {V(56+2*r,2)}, {V(32+2*r,2)}, {V(32+2*r,2)}")
    for r in range(12):
        e(f"v_pk_fma_f32 {V(56+2*r,2)}, {V(56+2*r,2)}, s[92:93], v[26:27]")
    for r in range(12):
        e(f"v_pk_mul_f32 {V(56+2*r,2)}, {V(56+2*r,2)}, {V(32+2*r,2)}")
    for r in range(24):
        e(f"v_exp_f32 v{56+r}, v{56+r}")
    for r in range(24):
        e(f"v_add_f32 v{56+r}, 1.0, v{56+r}")
    for r in range(24):
        e(f"v_rcp_f32 v{56+r}, v{56+r}")
    for r in range(12):
        e(f"v_pk_mul_f32 {V(32+2*r,2)}, {V(32+2*r,2)}, {V(56+2*r,2)}")
    e("s_lshl_b32 s12, s9, 2")
    e("s_add_u32 s12, s12, s3")
    e("s_mul_i32 s12, s12, 43")
    e("s_mul_i32 s86, s8, 3")
    e("s_add_u32 s12, s12, s86")
    e("s_lshl_b32 s12, s12, 10")
    e(f"s_add_u32 s12, s12, {GUF}")
    e("s_cmp_eq_u32 s8, 14")
    e("s_cselect_b32 s86, 0x7ff00000, 0")
    e("v_or_b32 v13, s86, v4")
    for p in range(3):
        for q in range(4):
            e(f"v_cvt_pk_bf16_f32 v{80+4*p+q}, v{32+8*p+2*q}, v{33+8*p+2*q}")
        k.vmem(f"buffer_store_dwordx4 {V(80+4*p,4)}, {'v4' if p == 0 else 'v13'}, {WS}, s12 offen offset:{p*1024} sc1")
    k.wait_vm0()
    e("s_barrier")
    e("s_lshl_b32 s12, s9, 8")
    e(f"s_add_u32 s12, s12, {CNT + 24*256}")
    k.arrive(WS, "s12")
    k.stamp(7)
    e("s_branch L_p3")
    k.label("L_spare")
    k.poll("v5", DBG, 32)

    k.label("L_p3")
    k.c("================= P3 =================")
    k.vm = 0
    e("v_lshrrev_b32 v7, 3, v1")
    e("v_and_b32 v6, 7, v1")
    e("v_and_b32 v8, 6, v7")
    e("v_xor_b32 v6, v6, v8")
    e("v_lshlrev_b32 v6, 4, v6")
    e("v_lshrrev_b32 v8, 2, v2")
    e("v_lshl_add_u32 v8, v3, 2, v8")
    e("v_lshrrev_b32 v9, 1, v8")
    e("v_and_b32 v9, 3, v9")
    e("v_lshlrev_b32 v8, 7, v8")
    e("v_lshl_add_u32 v8, v9, 5, v8")
    e("v_and_b32 v9, 3, v2")
    e("v_lshl_add_u32 v8, v9, 3, v8")
    e("v_add_u32 v8, s7, v8")
    e("v_xor_b32 v9, 32, v8")
    e("v_xor_b32 v10, 64, v8")
    e("v_xor_b32 v11, 96, v8")
    PL, PNWB, PFB = 10, 7, 16

    def freg(t, b):
        return V(32 + t*16 + 4*b, 4) if t < 14 else A(176 + (t-14)*16 + 4*b, 4)

    def p_wread(t):
        out = []
        for j in range(4):
            r = 64 + (t % PNWB)*16 + j*4
            o = (t % PL)*4096
            out.append(f"ds_read_b64_tr_b16 {A(r,2)}, v{8+j} offset:{o}")
            out.append(f"ds_read_b64_tr_b16 {A(r+2,2)}, v{8+j} offset:{o+2048}")
        return out

    def epi_loads():
        e("s_lshl_b32 s12, s10, 6")
        e("s_lshl_b32 s86, s3, 4")
        e("s_add_u32 s12, s12, s86")
        e("v_add_u32 v14, s12, v2")
        e("v_lshlrev_b32 v15, 2, v14")
        e("v_lshlrev_b32 v16, 1, v14")
        e(f"s_mov_b32 s12, {GG}")
        k.vmem(f"buffer_load_dword v17, v15, {WS}, s12 offen sc1")
        k.vmem(f"buffer_load_ushort v18, v16, {B2}, 0 offen")

    e("s_cmp_eq_u32 s3, 3")
    e("s_cbranch_scc1 L_p3a")
    e("v_lshl_add_u32 v6, v7, 12, v6")
    e(f"s_mul_i32 s84, s3, {15*32*4096}")
    e("s_lshl_b32 s12, s10, 7")
    e("s_add_u32 s84, s84, s12")
    e(f"s_mul_i32 s85, s11, {4*43*1024}")
    e(f"s_mul_i32 s12, s3, {15*1024}")
    e("s_add_u32 s85, s85, s12")
    e(f"s_add_u32 s85, s85, {GUF}")
    e("s_cmp_eq_u32 s3, 2")
    e("s_cselect_b32 s86, 0x7ff00000, 0")
    e("v_or_b32 v13, s86, v4")
    e("s_lshl_b32 s12, s11, 8")
    e(f"s_add_u32 s12, s12, {CNT + 24*256}")
    e("v_mov_b32 v12, s12")

    def y_wdma(t):
        tok = None
        for j in range(4):
            tok = k.dma("v6", W2, ("s84", (32*t + 8*j)*4096), ("s7", (t % PL)*4096 + j*1024), WFL)
        return tok

    def y_fload(t):
        toks = []
        for b in range(4):
            e(f"s_add_u32 s13, s85, {b*43*1024 + t*1024}")
            toks.append(k.vmem(f"buffer_load_dwordx4 {freg(t,b)}, {'v13' if t >= 13 else 'v4'}, {WS}, s13 offen sc1"))
        return toks

    def y_mm(t, b, j):
        d = A((j*4 + b)*4, 4)
        mfma(k, d, freg(t, b), A(64 + (t % PNWB)*16 + j*4, 4), "0" if t == 0 else d)

    def y_poll():
        epi_loads()
        k.stamp(8)
        k.poll("v12", WS, 15)
        k.stamp(9)

    sk_gemm(k, 15, PL, 5, PNWB, PFB, 4, y_wdma, p_wread, y_fload, y_mm, y_poll)
    e("s_branch L_p3red")
    k.label("L_p3a")
    k.vm = 0
    e("v_lshl_add_u32 v6, v7, 10, v6")
    e("s_lshl_b32 s84, s11, 7")
    e("s_lshl_b32 s85, s10, 16")
    e(f"s_add_u32 s85, s85, {OF}")
    e("s_lshr_b32 s12, s10, 1")
    e("s_lshl_b32 s12, s12, 8")
    e(f"s_add_u32 s12, s12, {CNT + 8*256}")
    e("v_mov_b32 v12, s12")

    def a_wdma(t):
        tok = None
        for j in range(4):
            tok = k.dma("v6", WO, ("s84", (32*t + 8*j)*1024), ("s7", (t % PL)*4096 + j*1024), WFL)
        return tok

    def a_fload(t):
        toks = []
        for b in range(4):
            e(f"s_add_u32 s13, s85, {b*16384 + t*1024}")
            toks.append(k.vmem(f"buffer_load_dwordx4 {freg(t,b)}, v4, {WS}, s13 offen sc1"))
        return toks

    def a_mm(t, b, j):
        d = A((b*4 + j)*4, 4)
        mfma(k, d, A(64 + (t % PNWB)*16 + j*4, 4), freg(t, b), "0" if t == 0 else d)

    def a_poll():
        epi_loads()
        k.stamp(8)
        k.poll("v12", WS, 8)
        k.stamp(9)

    sk_gemm(k, 16, PL, 6, PNWB, PFB, 4, a_wdma, p_wread, a_fload, a_mm, a_poll)
    k.label("L_p3red")
    k.stamp(10)
    e("v_add_u32 v12, s7, v4")
    e("s_lshl_b32 s12, s3, 12")
    e("v_add_u32 v13, s12, v4")
    e("v_add_u32 v19, 81920, v13")
    k.nop(6)
    for n_ in range(16):
        e(f"ds_write_b128 v12, {A(n_*4,4)} offset:{n_*1024}")
    e("v_lshlrev_b32 v14, 10, v14")
    e("v_and_b32 v15, 1, v3")
    e("v_lshl_add_u32 v14, v15, 5, v14")
    e("v_lshrrev_b32 v15, 1, v3")
    e("v_lshl_add_u32 v14, v15, 4, v14")
    e("s_lshl_b32 s12, s11, 7")
    e("v_lshlrev_b32 v18, 16, v18")
    e("v_mov_b32 v20, v17")
    e("v_sub_f32 v22, 1.0, v17")
    k.lgkm0()
    e("s_barrier")
    for src in range(4):
        for j in range(4):
            e(f"ds_read_b128 {V(32+16*src+4*j,4)}, {'v13' if src < 2 else 'v19'} offset:{(src%2)*40960 + j*1024}")
        if src == 1:
            k.lgkm0()
    for r in range(8):
        e(f"v_pk_add_f32 {V(32+2*r,2)}, {V(32+2*r,2)}, {V(48+2*r,2)}")
    for r in range(8):
        e(f"v_pk_add_f32 {V(32+2*r,2)}, {V(32+2*r,2)}, v[18:19] op_sel_hi:[1,0]")
    k.lgkm0()
    for r in range(8):
        e(f"v_pk_add_f32 {V(32+2*r,2)}, {V(32+2*r,2)}, {V(64+2*r,2)}")
    for r in range(8):
        e(f"v_pk_mul_f32 {V(80+2*r,2)}, {V(80+2*r,2)}, v[20:21] op_sel_hi:[1,0]")
    for r in range(8):
        e(f"v_pk_fma_f32 {V(32+2*r,2)}, {V(32+2*r,2)}, v[22:23], {V(80+2*r,2)} op_sel_hi:[1,0,1]")
    for t in range(4):
        e(f"v_cvt_pk_bf16_f32 v{48+2*t}, v{32+4*t}, v{33+4*t}")
        e(f"v_cvt_pk_bf16_f32 v{49+2*t}, v{34+4*t}, v{35+4*t}")
    k.nop(2)
    for p in range(2):
        e(f"v_permlane16_swap_b32 v{48+4*p}, v{50+4*p}")
        e(f"v_permlane16_swap_b32 v{49+4*p}, v{51+4*p}")
    k.nop(1)
    for p in range(2):
        e(f"buffer_store_dwordx4 {V(48+4*p,4)}, v14, {OUT}, s12 offen offset:{64*p}")
    if opt.get("diag"):
        e("s_waitcnt vmcnt(0)")
        k.stamp(11)
        k.lgkm0()
        for i in range(12):
            e(f"v_mov_b32 v{32+i}, s{16+2*i}")
        e("v_mov_b32 v44, s98")
        e("s_getreg_b32 s12, hwreg(HW_REG_XCC_ID)")
        e("v_mov_b32 v45, s12")
        e("s_lshl_b32 s12, s2, 2")
        e("s_add_u32 s12, s12, s3")
        e("s_lshl_b32 s12, s12, 6")
        e(f"s_add_u32 s12, s12, {DIAG}")
        e("v_mov_b32 v30, 0")
        e("s_mov_b64 exec, 1")
        for i in range(4):
            e(f"buffer_store_dwordx4 {V(32+4*i,4)}, v30, {WS}, s12 offen offset:{16*i}")
    k.label("L_end")
    e("s_endpgm")
    return "\n".join(k.l)


HEADER = open("cdna_kernels/" + NAME + ".s.ref").read().split("; Override launch geometry")[0]


def gen_meas(opt):
    mj, mk = opt["meas"], opt.get("mk", 1)
    l = []
    a = l.append
    a("s_cmp_ge_u32 s2, 1")
    a("s_cbranch_scc1 M_end")
    a("s_load_dwordx2 s[4:5], s[0:1], 88")
    a("v_lshlrev_b32 v1, 6, v0")
    a("v_mov_b32 v2, -1")
    a("v_mov_b32 v3, 0")
    a("s_waitcnt lgkmcnt(0)")
    a("s_mov_b32 s8, s4")
    a("s_mov_b32 s9, s5")
    a(f"s_mov_b32 s10, {WS_BYTES}")
    a("s_mov_b32 s11, 0x20000")
    lo, hi = {"Q": (0, 8), "U": (8, 16), "A": (0, 16)}[opt.get("mrole", "A")]
    for it in range(16):
        a(f"s_mov_b32 s12, {DIAG + it*4096}")
        a(f"buffer_load_dword v4, v1, s[8:11], s12 offen offset:48")
        a(f"buffer_load_dword v5, v1, s[8:11], s12 offen offset:{4*mj}")
        a("s_waitcnt vmcnt(0)")
        a("v_min_u32 v2, v2, v4")
        if lo <= it < hi:
            a("v_max_u32 v3, v3, v5")
    a("s_mov_b32 s14, -1")
    a("s_mov_b32 s15, 0")
    a("s_nop 4")
    for i in range(64):
        a(f"v_readlane_b32 s16, v2, {i}")
        a(f"v_readlane_b32 s17, v3, {i}")
        a("s_nop 3")
        a("s_min_u32 s14, s14, s16")
        a("s_max_u32 s15, s15, s17")
    a("s_sub_u32 s15, s15, s14")
    a("s_min_u32 s15, s15, 20000")
    a(f"s_mul_i32 s15, s15, {mk}")
    a("s_memrealtime s[20:21]")
    a("s_waitcnt lgkmcnt(0)")
    a("M_spin:")
    a("s_memrealtime s[22:23]")
    a("s_waitcnt lgkmcnt(0)")
    a("s_sub_u32 s24, s22, s20")
    a("s_cmp_lt_u32 s24, s15")
    a("s_cbranch_scc1 M_spin")
    a("M_end:")
    a("s_endpgm")
    return "\n".join(l)


def gen_file(opt):
    kn = NAME + "_kernel"
    nl = opt.get("launches", 1)
    s = HEADER
    if "meas" in opt:
        s += f"; @launch kernel={kn} grid=(256,1,1) block=(256,1,1) lds=163840\n"
        s += f"; @launch kernel=meas_kernel grid=(1,1,1) block=(64,1,1) lds=0\n"
    elif nl == 1:
        s += "; @launch grid=(256,1,1) block=(256,1,1) lds=163840\n"
    else:
        for _ in range(nl):
            s += f"; @launch kernel={kn} grid=(256,1,1) block=(256,1,1) lds=163840\n"
    extra_code = ""
    if "meas" in opt:
        extra_code = ".globl meas_kernel\n.p2align 8\n.type meas_kernel,@function\nmeas_kernel:\n" + gen_meas(opt) + "\n"
    s += f""".amdgcn_target "amdgcn-amd-amdhsa--gfx950"
.text
.globl {kn}
.p2align 8
.type {kn},@function
{kn}:
{gen_body(opt)}
{extra_code}.section .rodata,"a"
.p2align 6
.amdhsa_kernel {kn}
  .amdhsa_next_free_vgpr 512
  .amdhsa_next_free_sgpr 102
  .amdhsa_accum_offset 256
  .amdhsa_group_segment_fixed_size 0
  .amdhsa_kernarg_size 96
  .amdhsa_user_sgpr_count 2
  .amdhsa_user_sgpr_kernarg_segment_ptr 1
  .amdhsa_system_sgpr_workgroup_id_x 1
.end_amdhsa_kernel
"""
    if "meas" in opt:
        s += """.p2align 6
.amdhsa_kernel meas_kernel
  .amdhsa_next_free_vgpr 32
  .amdhsa_next_free_sgpr 102
  .amdhsa_accum_offset 32
  .amdhsa_group_segment_fixed_size 0
  .amdhsa_kernarg_size 96
  .amdhsa_user_sgpr_count 2
  .amdhsa_user_sgpr_kernarg_segment_ptr 1
  .amdhsa_system_sgpr_workgroup_id_x 1
.end_amdhsa_kernel
"""
    return s


if __name__ == "__main__":
    opt = {}
    out = None
    for a in sys.argv[1:]:
        if "=" in a:
            kk, vv = a.split("=", 1)
            try:
                vv = int(vv)
            except ValueError:
                pass
            opt[kk] = vv
        else:
            out = a
    txt = gen_file(opt)
    open(out or ("cdna_kernels/" + NAME + ".s"), "w").write(txt)
```

```python
import sys

NAME = "gated_mix__linear_attn_block__mixer_token_mlp__prompt"

HF = 0x000000
GUF = 0x240000
OF = 0x400000
KVP = 0x600000
ZP = 0x680000
GG = 0x690000
CNT = 0x6A0000
DIAG = 0x700000
WS_BYTES = 0x800000

X, WQKV, WO, W1, B1, W2, B2, GW, OUT, DBG, WS = [f"s[{40+4*i}:{43+4*i}]" for i in range(11)]
SRD_INFO = [(40, 16, 2048*512*2), (44, 18, 512*1536*2), (48, 20, 512*512*2), (52, 24, 2048*1376*2),
            (56, 26, 1376*2), (60, 28, 1376*2048*2), (64, 30, 2048*2), (68, 32, 512*2),
            (72, 34, 2048*512*2), (76, 36, 256), (80, 38, WS_BYTES)]

LOG2E = 0x3fb8aa3b
HS = 65536


def f32bits(x):
    import struct
    return struct.unpack("<I", struct.pack("<f", x))[0]


def rr(kind, base, n):
    return f"{kind}{base}" if n == 1 else f"{kind}[{base}:{base+n-1}]"


def V(b, n=1):
    return rr("v", b, n)


def A(b, n=1):
    return rr("a", b, n)


class Em:
    def __init__(self, opt):
        self.l = []
        self.vm = 0
        self.lab = 0
        self.opt = opt
        self.nstamp = 0

    def e(self, s):
        self.l.append("    " + s)

    def c(self, s):
        self.l.append("    ; " + s)

    def label(self, s):
        self.l.append(s + ":")

    def newlab(self, p="L"):
        self.lab += 1
        return f"{p}_{self.lab}"

    def vmem(self, s):
        self.e(s)
        self.vm += 1
        return self.vm

    def wait_vm(self, tok):
        n = self.vm - tok
        assert n >= 0
        self.e(f"s_waitcnt vmcnt({min(n, 63)})")

    def wait_vm0(self):
        self.e("s_waitcnt vmcnt(0)")

    def lgkm0(self):
        self.e("s_waitcnt lgkmcnt(0)")

    def nop(self, n):
        while n > 0:
            k = min(n, 16)
            self.e(f"s_nop {k-1}")
            n -= k

    def stamp(self, i, prof=False):
        if bool(self.opt.get("prof")) != prof:
            return
        if self.opt.get("diag"):
            assert i < 12
            self.e(f"{'s_memtime' if self.opt.get('clk') else 's_memrealtime'} s[{16+2*i}:{17+2*i}]")

    def dma(self, voff, srd, soff, m0expr, flags=""):
        sreg, imm = m0expr
        if sreg is None:
            self.e(f"s_mov_b32 m0, {imm}")
        else:
            self.e(f"s_add_u32 m0, {sreg}, {imm}")
        sr, si = soff
        self.e(f"s_add_u32 s13, {sr}, {si}")
        return self.vmem(f"buffer_load_dwordx4 {voff}, {srd}, s13 offen {flags} lds".replace("  ", " "))

    def poll(self, voff, srd, expect, tmp="v31", sleep=None):
        if self.opt.get("nowait"):
            self.wait_vm0()
            return
        lp = self.newlab("L_poll")
        dn = self.newlab("L_polled")
        self.e("s_mov_b32 s14, 0")
        self.label(lp)
        self.e(f"buffer_load_dword {tmp}, {voff}, {srd}, 0 offen sc1")
        self.e("s_add_u32 s14, s14, 1")
        self.e("s_waitcnt vmcnt(0)")
        self.e(f"v_cmp_gt_u32 vcc, {expect}, {tmp}")
        self.e(f"s_cbranch_vccz {dn}")
        self.e(f"s_sleep {sleep or self.opt.get('sleep', 3)}")
        self.e("s_cmp_lt_u32 s14, 0x40000")
        self.e(f"s_cbranch_scc1 {lp}")
        self.label(dn)

    def poll2(self, voff, srd, expect, more, tmp="v31"):
        if self.opt.get("nowait"):
            more()
            return 0
        t = self.vmem(f"buffer_load_dword {tmp}, {voff}, {srd}, 0 offen sc1")
        more()
        self.wait_vm(t)
        dn = self.newlab("L_fast")
        self.e(f"v_cmp_gt_u32 vcc, {expect}, {tmp}")
        self.e(f"s_cbranch_vccz {dn}")
        self.poll(voff, srd, expect, tmp)
        self.label(dn)
        return t

    def arrive(self, srd, off_sreg, nrep):
        sk = self.newlab("L_arr")
        self.e("s_cmp_lg_u32 s3, 0")
        self.e(f"s_cbranch_scc1 {sk}")
        self.e("v_lshlrev_b32 v30, 8, v1")
        self.e("v_mov_b32 v31, 1")
        self.e(f"s_mov_b64 exec, {(1 << nrep) - 1}")
        self.e(f"buffer_atomic_add v31, v30, {srd}, {off_sreg} offen sc1")
        self.e("s_mov_b64 exec, -1")
        self.label(sk)


def mf(d, a, b, c):
    return f"v_mfma_f32_16x16x32_bf16 {d}, {a}, {b}, {c}"


def interleave(k, mfmas, fillers, tail=2, cap=2, late=()):
    nm = len(mfmas)
    if late:
        interleave(k, mfmas[:8], fillers[:len(fillers) * 8 // nm + 1], tail=0, cap=cap)
        interleave(k, mfmas[8:], mix(list(late), fillers[len(fillers) * 8 // nm + 1:]), tail=min(tail, 1), cap=cap)
        return
    nf = len(fillers)
    span = max(1, nm - tail)
    fi = 0
    for i, (pre, txt) in enumerate(mfmas):
        if pre:
            pre()
        k.e(txt)
        want = min(nf, -(-(i + 1) * nf // span))
        budget = cap - (1 if (i + 1 < nm and mfmas[i + 1][0]) else 0)
        while fi < want and budget > 0:
            f = fillers[fi]
            fi += 1
            budget -= 1
            if callable(f):
                f()
            else:
                k.e(f)
    while fi < nf:
        f = fillers[fi]
        fi += 1
        if callable(f):
            f()
        else:
            k.e(f)


def run_all(k, items):
    for f in items:
        if callable(f):
            f()
        else:
            k.e(f)


def mix(a, b):
    out = []
    ia = ib = 0
    while ia < len(a) or ib < len(b):
        if ib >= len(b) or (ia < len(a) and ia * len(b) <= ib * len(a)):
            out.append(a[ia])
            ia += 1
        else:
            out.append(b[ib])
            ib += 1
    return out


class SK:
    def __init__(self, k, n, L, NWB, FB, NF, wdma, wread, fload, mm):
        self.__dict__.update(locals())
        self.wt = {}
        self.ft = {}
        self.issued = 0
        self.nread = 0
        self.done = set()
        self.wdone = 0
        self.wq = []
        self.wtmp = {}
        self.wage = {}

    def issue_w(self, upto):
        while self.issued < min(upto, self.n):
            assert self.issued < self.nread + self.L
            run_all(self.k, self.wdma(self.issued, self.wt))
            self.issued += 1

    def assume_issued(self, e, per):
        for t in range(e):
            self.k.vm += per
            self.wt[t] = self.k.vm
        self.issued = e

    def to_regs(self, R, hold=0):
        k = self.k
        while self.nread < R:
            t = self.nread
            assert t < self.wdone + self.NWB
            k.wait_vm(self.wt[t])
            run_all(k, self.wread(t))
            k.lgkm0()
            self.nread += 1
            if self.nread <= R - hold:
                self.issue_w(t + self.L + 1)

    def run(self, seq, LA, drained=0, post=None, wdelay=0, extra=None, pre_issued=0, prof=None,
            wsplit=1, rmax=2, age=2):
        k, n, L = self.k, self.n, self.L
        fi = pre_issued

        def fl(i):
            t, b = seq[i]
            if t - self.FB >= 0:
                assert (t - self.FB, b) in self.done, (t, b)
            return self.fload(t, b, self.ft)
        while fi < min(LA, len(seq)):
            run_all(k, fl(fi))
            fi += 1
        for win in range(len(seq) // 4):
            if prof and win in prof:
                k.stamp(prof[win], True)
            grp = seq[4*win:4*win+4]
            assert max(t for t, b in grp) < self.nread, (grp, self.nread)
            vm = []
            for _ in range(4):
                if fi < len(seq):
                    vm += fl(fi)
                    fi += 1
            if not self.wq and win >= wdelay and self.issued < n and self.issued < self.nread + L:
                self.wq = self.wdma(self.issued, self.wtmp)
                self.wq_t = self.issued
                self.wq_n = -(-len(self.wq) // wsplit)
                self.issued += 1
            fin = None
            if self.wq:
                vm += self.wq[:self.wq_n]
                self.wq = self.wq[self.wq_n:]
                if not self.wq:
                    fin = self.wq_t
            rd = []
            nr = 0
            while nr < rmax:
                u = self.nread
                if not (u < n and u < self.wdone + self.NWB and u in self.wt):
                    break
                must = u <= max(t for t, b in seq[4*win:4*win+8])
                if not must and self.wage.get(u, -99) + age > win:
                    break
                if nr >= 1 and not must and self.issued < n:
                    break
                if self.wt[u] > drained:
                    rd.append(lambda u=u: k.wait_vm(self.wt[u]))
                rd += self.wread(u)
                self.nread += 1
                nr += 1
            mfmas = []
            for (t, b) in grp:
                for j in range(self.NF):
                    pre = (lambda t=t, b=b: k.wait_vm(self.ft[(t, b)])) if j == 0 else None
                    mfmas.append((pre, self.mm(t, b, j)))
            fill = mix(rd, vm)
            ps = post(win) if post else []
            if extra:
                fill = mix(fill, extra(win))
            interleave(k, mfmas, fill, tail=3, late=ps)
            if fin is not None:
                self.wt[fin] = self.wtmp[fin]
                self.wage[fin] = win
            for gb in grp:
                self.done.add(gb)
            while self.wdone < n and all((self.wdone, b) in self.done for b in range(4)):
                self.wdone += 1
            if rd:
                k.lgkm0()
        assert not self.wq
        self.wage = {}


def gen_body(opt):
    k = Em(opt)
    e = k.e
    WFL = opt.get("wflags", "")
    ROTQ = opt.get("rot_q", 0)
    ROTU = opt.get("rot_u", 2)
    ROTP = opt.get("rot_p", 1)
    UPART = opt.get("upart", 4)
    UFL = opt.get("u_wflags", "")
    global HS
    HS = opt.get("hs", 65536)
    PW = "s[84:87]"

    def srd(name):
        for (d, s, sz) in SRD_INFO:
            if f"s[{d}:{d+3}]" == name:
                e(f"s_mov_b32 s{d}, s{s}")
                e(f"s_mov_b32 s{d+1}, s{s+1}")
                e(f"s_mov_b32 s{d+2}, {sz}")
                e(f"s_mov_b32 s{d+3}, 0x20000")

    def dmai(voff, srd_, soff, off, toks=None, key=None, fl=""):
        def f():
            if " m0," in k.l[-1]:
                e("s_nop 0")
            t = k.vmem(f"buffer_load_dwordx4 {voff}, {srd_}, {soff} offen offset:{off} {fl} lds".replace("  ", " "))
            if toks is not None:
                toks[key] = t
        return f

    def diag_clear():
        if opt.get("diag"):
            for i in range(16, 40):
                e(f"s_mov_b32 s{i}, 0")

    e("s_cmp_ge_u32 s2, 256")
    e("s_cbranch_scc1 L_end")
    e("s_load_dwordx16 s[16:31], s[0:1], 0")
    e("s_load_dwordx8 s[32:39], s[0:1], 64")
    if opt.get("diag"):
        e(f"{'s_memtime' if opt.get('clk') else 's_memrealtime'} s[98:99]")
    e("v_lshrrev_b32 v2, 6, v0")
    e("v_and_b32 v1, 63, v0")
    e("v_readfirstlane_b32 s3, v2")
    e("s_and_b32 s4, s2, 7")
    e("s_lshr_b32 s6, s2, 3")
    e("s_and_b32 s5, s4, 1")
    e("s_lshr_b32 s4, s4, 1")
    k.c("role tile: s8 = a*4 + ((idx&15)>>2) (sb / ft), s9 = b*4 + (idx&3) (hg / dt)")
    e("s_bfe_u32 s8, s6, 0x20002")
    e("s_lshl_b32 s12, s4, 2")
    e("s_add_u32 s8, s8, s12")
    e("s_and_b32 s9, s6, 3")
    e("s_lshl_b32 s12, s5, 2")
    e("s_add_u32 s9, s9, s12")
    k.c("P3 tile: s10 = st = a*8 + (idx&7), s11 = dt3 = b*4 + 2*((idx>>3)&1) + ((idx ^ (idx>>4))&1)")
    e("s_and_b32 s10, s6, 7")
    e("s_lshr_b32 s11, s6, 4")
    e("s_xor_b32 s11, s11, s6")
    e("s_and_b32 s11, s11, 1")
    e("s_add_u32 s11, s11, s12")
    e("s_lshr_b32 s12, s6, 2")
    e("s_and_b32 s12, s12, 2")
    e("s_add_u32 s11, s11, s12")
    e("s_lshl_b32 s12, s4, 3")
    e("s_add_u32 s10, s10, s12")
    e("s_mul_i32 s7, s3, 40960")
    e("v_and_b32 v2, 15, v1")
    e("v_lshrrev_b32 v3, 4, v1")
    e("v_lshlrev_b32 v4, 4, v1")
    e("v_mov_b32 v5, 0")
    e("s_cmp_ge_u32 s6, 16")
    e("s_cbranch_scc1 L_urole")


    def touch_xw():
        if not opt.get("pfx", 2):
            return
        if opt.get("pfx", 2) == 2:
            return touch_xw_all()
        e("s_lshl_b32 s12, s6, 2")
        e("s_add_u32 s12, s12, s3")
        e("v_lshrrev_b32 v116, 2, v1")
        e("v_lshlrev_b32 v116, 10, v116")
        e("v_and_b32 v117, 3, v1")
        e("v_lshl_add_u32 v116, v117, 7, v116")
        e(f"s_mul_i32 s13, s12, {8*3072}")
        e("s_lshl_b32 s14, s5, 9")
        e("s_add_u32 s13, s13, s14")
        k.vmem(f"buffer_load_dword v157, v116, {WQKV}, s13 offen")
        e("v_lshlrev_b32 v117, 7, v1")
        e("s_lshl_b32 s12, s12, 13")
        e("s_lshl_b32 s14, s4, 19")
        e("s_add_u32 s12, s12, s14")
        k.vmem(f"buffer_load_dword v157, v117, {X}, s12 offen")
        e("s_add_u32 s13, s13, 16384")
        e("s_mov_b64 exec, 0xffffffff")
        k.vmem(f"buffer_load_dword v157, v116, {WQKV}, s13 offen")
        e("s_mov_b64 exec, -1")

    def touch_xw_all():
        e("s_lshl_b32 s12, s6, 2")
        e("s_add_u32 s12, s12, s3")
        e("v_lshrrev_b32 v116, 2, v1")
        e("v_lshlrev_b32 v116, 10, v116")
        e("v_and_b32 v117, 3, v1")
        e("v_lshl_add_u32 v116, v117, 7, v116")
        e(f"s_mul_i32 s13, s12, {4*3072}")
        e("s_lshl_b32 s14, s5, 9")
        e("s_add_u32 s13, s13, s14")
        e("s_mov_b32 s14, 0xffff")
        e("s_mov_b32 exec_hi, s14")
        k.vmem(f"buffer_load_dword v157, v116, {WQKV}, s13 offen")
        e("s_mov_b64 exec, -1")

    def touch_x_other():
        e("s_and_b32 s12, s6, 15")
        e("s_lshl_b32 s12, s12, 2")
        e("s_add_u32 s12, s12, s3")
        e("s_lshr_b32 s13, s12, 4")
        e("s_lshl_b32 s13, s13, 17")
        e("s_and_b32 s12, s12, 15")
        e("s_lshl_b32 s12, s12, 12")
        e("s_add_u32 s12, s12, s13")
        e("s_lshl_b32 s13, s4, 19")
        e("s_add_u32 s12, s12, s13")
        e("s_xor_b32 s13, s5, 1")
        e("s_lshl_b32 s13, s13, 16")
        e("s_add_u32 s12, s12, s13")
        e("v_lshlrev_b32 v117, 7, v1")
        e("s_mov_b64 exec, 0xffffffff")
        k.vmem(f"buffer_load_dword v157, v117, {X}, s12 offen")
        e("s_mov_b64 exec, -1")

    def touch_w1():
        if opt.get("pfx", 2) == 2:
            srd(X)
            srd(WQKV)
            touch_x_other()
            touch_xw_all()
        if not opt.get("pfw", 0):
            return
        bw = 768 if UPART == 4 else 384
        e("s_and_b32 s12, s6, 15")
        e("s_lshl_b32 s12, s12, 2")
        e("s_add_u32 s12, s12, s3")
        e(f"s_mul_i32 s12, s12, {32*2752}")
        if UPART == 4:
            e("s_mul_i32 s13, s4, 768")
            e("v_lshrrev_b32 v158, 3, v1")
            e("v_and_b32 v159, 7, v1")
        else:
            e("s_and_b32 s13, s2, 7")
            e("s_mul_i32 s13, s13, 384")
            e("v_lshrrev_b32 v158, 2, v1")
            e("v_and_b32 v159, 3, v1")
        e("s_add_u32 s12, s12, s13")
        e("v_lshlrev_b32 v159, 7, v159")
        e(f"v_min_u32 v159, {bw-4}, v159")
        e("v_mul_u32_u24 v158, 2752, v158")
        e("v_add_u32 v158, v158, v159")
        nrow = 8 if UPART == 4 else 16
        for j in range(32 // nrow):
            k.vmem(f"buffer_load_dword v157, v158, {W1}, s12 offen {UFL}")
            if j + 1 < 32 // nrow:
                e(f"s_add_u32 s12, s12, {nrow*2752}")

    PL, PNWB, PFB = 10, 8, 8

    def p3_setup():
        out = ["v_lshrrev_b32 v30, 3, v1", "v_and_b32 v31, 7, v1", "v_and_b32 v18, 6, v30", "v_xor_b32 v31, v31, v18",
               "v_lshlrev_b32 v31, 4, v31", "v_lshl_add_u32 v18, v30, 10, v31", "v_lshl_add_u32 v22, v30, 12, v31",
               "s_lshl_b32 s12, s3, 17", "s_lshl_b32 s13, s11, 7", "s_add_u32 s12, s12, s13", "v_add_u32 v18, s12, v18",
               "s_lshl_b32 s87, s3, 5", "s_add_u32 s87, s87, s13",
               f"s_mul_i32 s12, s3, {352*4096}", "s_lshl_b32 s13, s10, 7", "s_add_u32 s12, s12, s13", "v_add_u32 v22, s12, v22"]
        for j in range(1, 4):
            out.append(f"v_add_u32 v{18+j}, {j*(8*1024-1024)}, v18")
            out.append(f"v_add_u32 v{22+j}, {j*(8*4096-1024)}, v22")
        out += ["s_and_b32 s12, s10, 30", "s_add_u32 s12, s12, s5", "s_lshl_b32 s12, s12, 8",
                f"s_add_u32 s12, s12, {CNT + 32*256}", "v_mov_b32 v240, s12",
                "s_lshl_b32 s12, s11, 2", "s_add_u32 s12, s12, s4", "s_lshl_b32 s12, s12, 8",
                f"s_add_u32 s12, s12, {CNT + 64*256}", "v_mov_b32 v241, s12"]
        out += ["v_lshrrev_b32 v228, 2, v2", "v_lshl_add_u32 v228, v3, 2, v228", "v_lshrrev_b32 v229, 1, v228",
                "v_and_b32 v229, 3, v229", "v_lshlrev_b32 v228, 7, v228", "v_lshl_add_u32 v228, v229, 5, v228",
                "v_and_b32 v229, 3, v2", "v_lshl_add_u32 v228, v229, 3, v228", "v_add_u32 v228, s7, v228"]
        for j in range(1, 4):
            out.append(f"v_xor_b32 v{228+j}, {32*j}, v228")
        out += ["s_lshl_b32 s12, s10, 16", "s_lshl_b32 s13, s3, 12", "s_add_u32 s12, s12, s13",
                f"s_add_u32 s12, s12, {OF}", "v_add_u32 v232, s12, v4"]
        for b in range(1, 4):
            out.append(f"v_add_u32 v{232+b}, {b*16384}, v232")
        out += [f"s_mul_i32 s13, s11, {4*43*1024}", f"s_mul_i32 s12, s3, {11*1024}", "s_add_u32 s13, s13, s12",
                f"s_add_u32 s13, s13, {GUF}"]
        for b in range(4):
            out += [f"s_add_u32 s12, s3, {1+b}", "s_and_b32 s12, s12, 3", "s_lshl_b32 s14, s12, 5",
                    f"v_xor_b32 v{224+b}, s14, v228", "s_mul_i32 s14, s12, 40960"]
            if b < 3:
                out += [f"s_add_u32 s14, s14, {(2-b)*4096}", f"v_add_u32 v{245+b}, s14, v4"]
            else:
                out += ["v_add_u32 v244, s14, v4"]
            out += [f"s_mul_i32 s12, s12, {43*1024}", "s_add_u32 s12, s12, s13", f"v_add_u32 v{236+b}, s12, v4"]
        out += ["s_mov_b32 s84, 4096", "s_mov_b32 s85, 8192", "s_mov_b32 s86, 10240",
                lambda: (e("s_cmp_eq_u32 s3, 3"), e(f"s_cselect_b32 s86, {hex(WS_BYTES)}, s86")),
                "s_lshl_b32 s12, s10, 6", "v_add_u32 v248, s12, v2", "v_lshlrev_b32 v242, 2, v248",
                f"v_add_u32 v242, {GG}, v242", "v_lshlrev_b32 v243, 1, v248",
                "v_and_b32 v249, 1, v3", "v_lshl_add_u32 v248, v249, 4, v248", "v_lshlrev_b32 v248, 10, v248",
                "v_lshrrev_b32 v249, 1, v3", "v_lshl_add_u32 v248, v249, 4, v248", "v_add_u32 v249, 32768, v248"]
        return out

    def yblk(t):
        return (t - 4 + 10) % 11

    def pslot(t):
        return t % 5 if t < 10 else t - 5

    def p_wdma(t, toks):
        out = [f"s_add_u32 m0, s7, {pslot(t)*4096}",
               f"s_mov_b32 s101, {t*32*1024 if t < 4 else yblk(t)*32*4096}"]
        for j in range(4):
            out.append(dmai(f"v{(18 if t < 4 else 22)+j}", WO if t < 4 else W2, "s101", j*1024, toks, t, WFL))
        return out

    def p_wread(t):
        out = []
        for j in range(4):
            r = (t % PNWB)*16 + j*4
            o = pslot(t)*4096
            ar = (224 if t < 4 else 228) + j
            out.append(f"ds_read_b64_tr_b16 {A(r,2)}, v{ar} offset:{o}")
            out.append(f"ds_read_b64_tr_b16 {A(r+2,2)}, v{ar} offset:{o+2048}")
        return out

    def p3_e1(d):
        out = []
        for t in range(5):
            out += p_wdma(t, d)
        return out

    def p3_e2r(d):
        out = []
        for t in range(5):
            out.append(lambda t=t: k.wait_vm(d[t]))
            out += p_wread(t)
        return out

    def p3_e2d():
        out = []
        for t in range(5, 10):
            out += p_wdma(t, {})
        return out

    def oflag():
        k.vmem(f"buffer_load_dword v250, v240, {WS}, 0 offen sc1")

    def zload():
        return k.vmem(f"buffer_load_dword v31, v5, {DBG}, 0 offen sc1")

    def zcheck():
        if opt.get("nowait"):
            return
        dn = k.newlab("L_z")
        e("v_cmp_gt_u32 vcc, 1, v31")
        e(f"s_cbranch_vccz {dn}")
        k.poll("v5", DBG, 1)
        k.label(dn)

    k.c("================= Q role: LN =================")
    k.vm = 0
    e("s_lshl_b32 s15, s8, 7")
    e("s_lshl_b32 s12, s9, 4")
    e("s_add_u32 s15, s15, s12")
    e("s_lshl_b32 s12, s3, 2")
    e("s_add_u32 s12, s12, s15")
    e("s_lshl_b32 s12, s12, 10")
    e("v_lshlrev_b32 v7, 4, v2")
    e("v_lshl_add_u32 v6, v3, 10, v7")
    e("s_waitcnt lgkmcnt(0)")
    srd(X)
    tx = [k.vmem(f"buffer_load_dwordx4 {V(32+4*j,4)}, v6, {X}, s12 offen offset:{256*j}") for j in range(4)]
    srd(GW)
    tg = [k.vmem(f"buffer_load_dwordx4 {V(48+4*j,4)}, v7, {GW}, 0 offen offset:{256*j}") for j in range(4)]
    srd(WQKV)
    if not opt.get("q_late", 0):
        touch_xw()
    for n_ in (WS, DBG, WO, W2, B2, OUT):
        srd(n_)
    diag_clear()
    e("v_lshrrev_b32 v12, 3, v1")
    e("v_and_b32 v13, 7, v1")
    e("v_lshrrev_b32 v14, 1, v12")
    e("v_xor_b32 v14, v14, v13")
    e("v_lshlrev_b32 v14, 4, v14")
    e("v_lshl_add_u32 v14, v12, 10, v14")
    e("v_xor_b32 v15, 64, v14")
    e("s_lshl_b32 s13, s8, 17")
    e("s_lshl_b32 s12, s3, 15")
    e("s_add_u32 s13, s13, s12")
    e("v_add_u32 v144, s13, v14")
    e(f"s_add_u32 s13, s13, {7168}")
    e("v_add_u32 v145, s13, v15")
    e(f"v_add_u32 v146, {2*7168}, v144")
    e(f"v_add_u32 v147, {2*7168}, v145")
    e("v_and_b32 v16, 2, v12")
    e("v_xor_b32 v16, v16, v13")
    e("v_lshlrev_b32 v16, 4, v16")
    e("v_xor_b32 v17, 64, v16")
    e("v_mul_u32_u24 v12, 3072, v12")
    e("s_mul_i32 s13, s3, 49152")
    e("s_lshl_b32 s12, s9, 7")
    e("s_add_u32 s13, s13, s12")
    e("v_add3_u32 v148, v16, v12, s13")
    e(f"s_add_u32 s13, s13, {8*3072-1024}")
    e("v_add3_u32 v149, v17, v12, s13")
    for sec in (1, 2):
        e(f"v_add_u32 v{148+2*sec}, {1024*sec}, v148")
        e(f"v_add_u32 v{149+2*sec}, {1024*sec}, v149")
    e("s_lshl_b32 s90, s3, 12")
    e("s_lshl_b32 s91, s3, 11")
    if ROTQ:
        e("s_add_u32 s88, s8, s9")
        e("s_and_b32 s88, s88, 3")
        e("s_lshl_b32 s88, s88, 1")
        e("s_xor_b32 s12, s4, s5")
        e("s_and_b32 s12, s12, 1")
        e("s_add_u32 s88, s88, s12")
        e("s_lshl_b32 s88, s88, 7")
    else:
        e("s_mov_b32 s88, 0")
    ct = {}

    def qdma(c):
        slot = c % 4
        out = [f"s_add_u32 m0, s90, {slot*40960}", "s_mul_i32 s89, s88, 1536"]
        for j in range(4):
            out.append(dmai(f"v{144+j}", X, "s88", j*1024))
        for sec in range(3):
            out.append(f"s_add_u32 m0, s91, {slot*40960 + 16384 + sec*8192}")
            if sec == 0:
                out.append("s_add_u32 s88, s88, 128")
            if sec == 1:
                out.append("s_and_b32 s88, s88, 1023")
            for j in range(2):
                out.append(dmai(f"v{148+2*sec+j}", WQKV, "s89", j*1024, ct, c, WFL))
        out.append(lambda: ctd.add(c))
        return out
    ctd = set()
    nearly = opt.get("q_early", 0)
    for c in range(nearly):
        run_all(k, qdma(c))
    LNB = 3 * 40960
    e("s_mul_i32 s12, s3, 4352")
    e(f"s_add_u32 s12, s12, {LNB}")
    e("v_mul_u32_u24 v8, 1088, v3")
    e("v_add3_u32 v8, v8, v7, s12")
    e("v_and_b32 v9, 1, v3")
    e("v_lshlrev_b32 v9, 3, v9")
    e("v_lshrrev_b32 v10, 2, v2")
    e("v_add_u32 v9, v9, v10")
    e("v_mul_u32_u24 v9, 1088, v9")
    e("v_lshrrev_b32 v10, 1, v3")
    e("v_lshl_add_u32 v9, v10, 5, v9")
    e("v_and_b32 v11, 3, v2")
    e("v_lshl_add_u32 v9, v11, 3, v9")
    e("s_lshl_b32 s12, s3, 8")
    e(f"s_add_u32 s12, s12, {LNB}")
    e("v_add_u32 v9, s12, v9")
    e(f"v_mul_u32_u24 v10, {HS}, v10")
    e("v_and_b32 v11, 1, v3")
    e("v_lshl_add_u32 v10, v11, 8, v10")
    e("v_add_u32 v10, v10, v7")
    e(f"s_mul_i32 s84, s3, {8*HS}")
    e("s_lshl_b32 s12, s15, 5")
    e("s_add_u32 s84, s84, s12")
    if HF:
        e(f"s_add_u32 s84, s84, {HF}")
    e("s_lshl_b32 s12, s3, 2")
    e("s_add_u32 s12, s12, s15")
    e("s_lshl_b32 s12, s12, 2")
    e(f"s_add_u32 s12, s12, {GG}")
    e("v_lshl_add_u32 v11, v3, 2, s12")
    e("v_cmp_eq_u32 vcc, 0, v2")
    e("v_mov_b32 v12, 0x7ffffff0")
    e("s_mov_b32 s85, 0x3f803f80")
    e("v_cndmask_b32 v11, v12, v11, vcc")
    e("s_lshr_b32 s96, s3, 1")
    e("s_and_b32 s97, s3, 1")
    e("v_lshrrev_b32 v18, 1, v2")
    e("v_xor_b32 v18, v18, v3")
    e("v_lshlrev_b32 v18, 4, v18")
    e("v_lshl_add_u32 v18, v2, 7, v18")
    e("s_lshl_b32 s12, s96, 13")
    e("v_add_u32 v18, s12, v18")
    e("v_xor_b32 v19, 64, v18")
    e("v_add_u32 v20, 81920, v18")
    e("v_add_u32 v21, 81920, v19")
    e("v_lshrrev_b32 v22, 2, v2")
    e("v_lshrrev_b32 v23, 3, v2")
    e("v_and_b32 v24, 1, v3")
    e("v_lshl_add_u32 v23, v24, 1, v23")
    e("s_lshl_b32 s12, s97, 1")
    e("v_xor_b32 v23, s12, v23")
    e("v_lshl_add_u32 v22, v3, 3, v22")
    e("v_lshlrev_b32 v22, 7, v22")
    e("v_lshl_add_u32 v22, v23, 5, v22")
    e("v_and_b32 v24, 3, v2")
    e("v_lshl_add_u32 v22, v24, 3, v22")
    e("v_add_u32 v22, 16384, v22")
    e("v_xor_b32 v23, 32, v22")
    e("v_add_u32 v24, 81920, v22")
    e("v_add_u32 v25, 81920, v23")
    e("v_lshrrev_b32 v154, 3, v1")
    e("v_and_b32 v155, 7, v1")
    e("v_lshlrev_b32 v154, 12, v154")
    e("v_lshl_add_u32 v154, v155, 7, v154")
    e("s_lshl_b32 s12, s6, 2")
    e("s_add_u32 s12, s12, s3")
    if opt.get("pf_split", 1):
        e("s_lshl_b32 s13, s5, 5")
        e("s_xor_b32 s13, s13, s12")
    else:
        e("s_mov_b32 s13, s12")
    e(f"s_mul_i32 s13, s13, {24*4096}")
    e("s_lshl_b32 s14, s4, 10")
    e("s_add_u32 s13, s13, s14")
    e("v_add_u32 v154, s13, v154")
    e("v_lshrrev_b32 v155, 2, v1")
    e("v_lshlrev_b32 v155, 10, v155")
    e("v_and_b32 v156, 3, v1")
    e("v_lshl_add_u32 v155, v156, 7, v155")
    e("s_lshl_b32 s13, s12, 14")
    e("s_lshl_b32 s14, s5, 9")
    e("s_add_u32 s13, s13, s14")
    e("v_add_u32 v155, s13, v155")
    e("s_lshl_b32 s13, s5, 4")
    e("s_add_u32 s13, s13, s6")
    e(f"s_mul_i32 s13, s13, {HS}")
    e("s_lshl_b32 s14, s3, 14")
    e("s_add_u32 s13, s13, s14")
    if HF:
        e(f"s_add_u32 s13, s13, {HF}")
    e("v_lshl_add_u32 v156, v1, 7, s13")
    e("s_and_b32 s13, s2, 7")
    e("s_lshl_b32 s13, s13, 8")
    e(f"s_add_u32 s13, s13, {CNT + 96*256}")
    e("v_and_b32 v158, 3, v1")
    e("v_lshl_add_u32 v158, v158, 11, s13")

    k.wait_vm(tx[3])
    if opt.get("q_late", 0):
        touch_xw()
    QFAST = opt.get("q_fast", 1)
    ln_start = len(k.l)
    e("v_dot2_f32_bf16 v26, v32, s85, 0")
    e("v_dot2_f32_bf16 v27, v33, s85, 0")
    for j in range(2, 16):
        e(f"v_dot2_f32_bf16 v{26+(j&1)}, v{32+j}, s85, v{26+(j&1)}")
    unp = []
    for j in range(16):
        unp.append(f"v_lshlrev_b32 v{64+2*j}, 16, v{32+j}")
        unp.append(f"v_and_b32 v{65+2*j}, 0xffff0000, v{32+j}")
    for s in unp[:4]:
        e(s)
    e("v_add_f32 v26, v26, v27")
    ui = 4
    for rot in (8, 4, 2, 1):
        for s in unp[ui:ui+3]:
            e(s)
        ui += 3
        e(f"v_add_f32_dpp v26, v26, v26 row_ror:{rot} row_mask:0xf bank_mask:0xf")
    for s in unp[ui:]:
        e(s)
    e(f"v_mul_f32 v26, {hex(f32bits(-1.0/512))}, v26")
    for j in range(16):
        e(f"v_pk_add_f32 {V(64+2*j,2)}, {V(64+2*j,2)}, v[26:27] op_sel_hi:[1,0]")
    e("v_pk_mul_f32 v[96:97], v[64:65], v[64:65]")
    e("v_pk_mul_f32 v[98:99], v[66:67], v[66:67]")
    for j in range(2, 16):
        a_ = 96 + 2 * (j & 1)
        e(f"v_pk_fma_f32 {V(a_,2)}, {V(64+2*j,2)}, {V(64+2*j,2)}, {V(a_,2)}")
    e("v_pk_add_f32 v[96:97], v[96:97], v[98:99]")
    e("v_add_f32 v26, v96, v97")
    k.wait_vm(tg[3])
    gd = ["v_dot2_f32_bf16 v28, v32, v48, 0", "v_dot2_f32_bf16 v29, v33, v49, 0"]
    for j in range(2, 16):
        gd.append(f"v_dot2_f32_bf16 v{28+(j&1)}, v{32+j}, v{48+j}, v{28+(j&1)}")
    gi = 0
    for rot in (8, 4, 2, 1):
        e(gd[gi]); e(gd[gi+1]); gi += 2
        e(f"v_add_f32_dpp v26, v26, v26 row_ror:{rot} row_mask:0xf bank_mask:0xf")
    e(f"v_mov_b32 v27, {hex(f32bits(1e-5))}")
    e(f"v_fmac_f32 v27, {hex(f32bits(1.0/512))}, v26")
    e("v_rsq_f32 v26, v27")
    e(gd[gi]); gi += 1
    for j in range(16):
        e(f"v_pk_mul_f32 {V(64+2*j,2)}, {V(64+2*j,2)}, v[26:27] op_sel_hi:[1,0]")
    for j in range(16):
        e(f"v_cvt_pk_bf16_f32 v{100+j}, v{64+2*j}, v{65+2*j}")
        if j % 4 == 3:
            e(f"ds_write_b128 v8, {V(100+j-3,4)} offset:{256*(j//4)}")
    while gi < 16:
        e(gd[gi]); gi += 1
    if QFAST:
        body = [x.strip() for x in k.l[ln_start:]]
        del k.l[ln_start:]
        body = [(lambda: k.wait_vm(tg[3])) if x.startswith("s_waitcnt vmcnt") else x for x in body]
        skip = opt.get("q_skip", 0)
        run_all(k, body[:skip] + mix(body[skip:], qdma(0) + qdma(1)))
    k.lgkm0()
    e("s_barrier")
    for j in range(4):
        e(f"ds_read_b64_tr_b16 {V(64+4*j,2)}, v9 offset:{64*j}")
        e(f"ds_read_b64_tr_b16 {V(66+4*j,2)}, v9 offset:{64*j+4*1088}")
    e("v_add_f32 v28, v28, v29")
    th = None
    for j in range(4):
        e(f"s_waitcnt lgkmcnt({6-2*j})") if not opt.get("diag") else k.lgkm0()
        e(f"s_add_u32 s12, s84, {j*2*HS}")
        th = k.vmem(f"buffer_store_dwordx4 {V(64+4*j,4)}, v10, {WS}, s12 offen sc1")
    for rot in (8, 4, 2, 1):
        e(f"v_add_f32_dpp v28, v28, v28 row_ror:{rot} row_mask:0xf bank_mask:0xf")
        k.nop(2)
    e(f"v_mul_f32 v28, {hex(f32bits(-1.4426950408889634))}, v28")
    e("v_exp_f32 v28, v28")
    k.nop(1)
    e("v_add_f32 v28, 1.0, v28")
    e("v_rcp_f32 v28, v28")
    k.nop(1)
    th = k.vmem(f"buffer_store_dword v28, v11, {WS}, 0 offen sc1")
    k.stamp(1)

    th = zload()
    npre = 2 if QFAST else max(nearly, opt.get("q_pre", 2))

    def h_arrive():
        k.stamp(2)
        e("s_lshr_b32 s12, s8, 2")
        e("s_lshl_b32 s12, s12, 11")
        e(f"s_add_u32 s12, s12, {CNT + 96*256}")
        k.arrive(WS, "s12", 8)
    if not QFAST:
        for c in range(nearly, npre):
            run_all(k, qdma(c))
        k.wait_vm(th)
        zcheck()
        e("s_barrier")
        h_arrive()

    ACC = 160
    FR = [64, 104]

    def qreads(t):
        c, kk = t // 2, t % 2
        slot = c % 4
        hi = slot >= 2
        so = (slot % 2) * 40960
        base = FR[t % 2]
        out = []
        xa = 18 + kk + (2 if hi else 0)
        for i in range(4):
            out.append(f"ds_read_b128 {V(base+4*i,4)}, v{xa} offset:{so + i*2048}")
        for sec in range(3):
            for hh in range(2):
                wa = 22 + hh + (2 if hi else 0)
                r = base + 16 + (sec*2 + hh)*4
                o = so + sec*8192 + kk*4096
                out.append(f"ds_read_b64_tr_b16 {V(r,2)}, v{wa} offset:{o}")
                out.append(f"ds_read_b64_tr_b16 {V(r+2,2)}, v{wa} offset:{o+512}")
        return out

    k.wait_vm(ct[0])
    e("s_barrier")
    k.stamp(3)
    run_all(k, qreads(0))
    k.lgkm0()
    pend = []
    for c in range(npre, 4):
        pend += qdma(c)
    PFT = opt.get("pf_t", 11)
    HT = opt.get("h_t", 4)
    QPER = opt.get("q_per", 10)
    qdone = set(range(npre))
    for t in range(16):
        qp = dict(zip((0, 1, 2, 3, 4, 5, 6, 8, 10, 12, 14), (1, 2, 3, 4, 5, 6, 7, 8, 0, 9, 10)))
        if t in qp:
            k.stamp(qp[t], True)
        head = []
        if t % 2 == 1 and t + 1 < 16:
            c = (t + 1) // 2
            assert c in ctd, (t, c)
            head = [lambda c=c: k.wait_vm(ct[c]), "s_barrier"]
            if QFAST and c == 2:
                head = [lambda c=c: (k.wait_vm(ct[c]), zcheck()), "s_barrier", h_arrive]
            if c + 3 < 8:
                pend = pend + qdma(c + 3)
        vm = pend[:QPER]
        pend = pend[len(vm):]
        if t == HT - 1 and opt.get("pfh", 0):
            def hl():
                ct["h"] = k.vmem(f"buffer_load_dword v159, v158, {WS}, 0 offen sc1")
            vm = vm + [hl]
        if t == HT and opt.get("pfh", 0):
            vm = vm + [lambda: k.wait_vm(ct["h"]), "v_cmp_gt_u32 vcc, 32, v159", "s_nop 0",
                       lambda: (e("s_cmp_eq_u64 vcc, 0"), e(f"s_cselect_b32 s13, 0, {hex(WS_BYTES)}")),
                       lambda: k.vmem(f"buffer_load_dword v157, v156, {WS}, s13 offen sc1"),
                       "s_add_u32 s13, s13, 8192", f"s_min_u32 s13, s13, {hex(WS_BYTES)}",
                       lambda: k.vmem(f"buffer_load_dword v157, v156, {WS}, s13 offen sc1")]
        if t == PFT and opt.get("pf", 1):
            assert not pend and t >= 7
            for j in range(opt.get("pf_n", 2)):
                vm = vm + [f"s_mov_b32 s13, {j*8*4096}", lambda: k.vmem(f"buffer_load_dword v157, v154, {W2}, s13 offen")]
            vm = vm + [lambda: k.vmem(f"buffer_load_dword v157, v155, {WO}, 0 offen")]
        reads = qreads(t + 1) if t + 1 < 16 else []
        base = FR[t % 2]
        mfmas = []
        for sec in (1, 2, 0):
            for hh in range(2):
                for i in range(4):
                    d = ACC + sec*32 + (hh*4 + i)*4
                    xf = V(base + 4*i, 4)
                    wf = V(base + 16 + (sec*2 + hh)*4, 4)
                    cc = "0" if t == 0 else V(d, 4)
                    mfmas.append((None, mf(V(d, 4), wf, xf, cc) if sec == 0 else mf(V(d, 4), xf, wf, cc)))
        interleave(k, mfmas, head + mix(reads, vm), tail=4)
        if reads:
            k.lgkm0()
    k.stamp(4)
    k.stamp(11, True)

    e(f"s_mov_b32 s92, {hex(LOG2E)}")
    e(f"s_mov_b32 s93, {hex(LOG2E)}")
    e(f"s_mov_b32 s94, {hex(f32bits(1e-6))}")
    e(f"s_mov_b32 s95, {hex(f32bits(1e-6))}")
    e("v_mov_b32 v26, s85")
    e("v_mov_b32 v27, s85")
    e("v_mov_b32 v28, s85")
    e("v_mov_b32 v29, s85")

    def phi(src, dst):
        for j in range(16):
            e(f"v_pk_mul_f32 {V(64+2*j,2)}, {V(src+2*j,2)}, s[92:93]")
        for j in range(32):
            e(f"v_exp_f32 v{64+j}, v{64+j} clamp")
            e(f"v_max_f32 v{src+j}, 0, v{src+j}")
        for j in range(16):
            e(f"v_pk_add_f32 {V(64+2*j,2)}, {V(64+2*j,2)}, s[94:95]")
        for j in range(16):
            e(f"v_pk_add_f32 {V(64+2*j,2)}, {V(64+2*j,2)}, {V(src+2*j,2)}")
        for j in range(16):
            e(f"v_cvt_pk_bf16_f32 v{dst+j}, v{64+2*j}, v{65+2*j}")
    PK, PV, PQ = 96, 112, 128
    XB = 36864
    phi(ACC + 32, PK)
    for j in range(16):
        e(f"v_cvt_pk_bf16_f32 v{PV+j}, v{ACC+64+2*j}, v{ACC+65+2*j}")
    e("s_barrier")
    k.nop(1)
    for p in range(2):
        for hh in range(2):
            a_ = V(PK + hh*8 + p*4, 4)
            b_ = V(PV + hh*8 + p*4, 4)
            e(mf(V(32+8*hh, 4), a_, b_, "0" if p == 0 else V(32+8*hh, 4)))
            e(mf(V(36+8*hh, 4), a_, "v[26:29]", "0" if p == 0 else V(36+8*hh, 4)))
    e("v_add_u32 v6, s7, v4")
    e("s_xor_b32 s12, s3, 2")
    e("s_mul_i32 s12, s12, 40960")
    e("v_add_u32 v7, s12, v4")
    k.nop(4)
    l1 = k.newlab()
    l2 = k.newlab()
    e("s_cmp_eq_u32 s96, 0")
    e(f"s_cbranch_scc1 {l1}")
    e(f"ds_write_b128 v6, v[32:35] offset:{XB}")
    e(f"ds_write_b128 v6, v[36:39] offset:{XB+1024}")
    k.lgkm0()
    for j in range(8):
        e(f"v_mov_b32 v{32+j}, v{40+j}")
    e(f"s_branch {l2}")
    k.label(l1)
    e(f"ds_write_b128 v6, v[40:43] offset:{XB}")
    e(f"ds_write_b128 v6, v[44:47] offset:{XB+1024}")
    k.label(l2)
    k.lgkm0()
    e("s_barrier")
    e(f"ds_read_b128 v[40:43], v7 offset:{XB}")
    e(f"ds_read_b128 v[44:47], v7 offset:{XB+1024}")
    e("s_lshl_b32 s15, s9, 2")
    e("s_lshl_b32 s12, s97, 1")
    e("s_add_u32 s15, s15, s12")
    e("s_add_u32 s15, s15, s96")
    e("s_lshl_b32 s12, s15, 4")
    e("s_add_u32 s12, s12, s8")
    e("s_lshl_b32 s13, s12, 10")
    e(f"s_add_u32 s13, s13, {KVP}")
    e("s_lshl_b32 s12, s12, 6")
    e(f"s_add_u32 s12, s12, {ZP}")
    e("v_lshlrev_b32 v8, 4, v3")
    e("v_cmp_eq_u32 vcc, 0, v2")
    e("v_mov_b32 v9, 0x7ffffff0")
    k.nop(1)
    e("v_cndmask_b32 v8, v9, v8, vcc")
    k.lgkm0()
    for j in range(4):
        e(f"v_pk_add_f32 {V(32+2*j,2)}, {V(32+2*j,2)}, {V(40+2*j,2)}")
    k.vmem(f"buffer_store_dwordx4 v[32:35], v4, {WS}, s13 offen sc1")
    k.vmem(f"buffer_store_dwordx4 v[36:39], v8, {WS}, s12 offen sc1")
    run_all(k, p3_setup())
    k.wait_vm0()
    e("s_barrier")
    e(f"s_lshl_b32 s12, s9, 10")
    e(f"s_add_u32 s12, s12, {CNT}")
    k.arrive(WS, "s12", 4)
    e("s_lshl_b32 s13, s4, 8")
    e("s_add_u32 s12, s12, s13")
    e("v_mov_b32 v8, s12")
    k.stamp(5)
    if opt.get("pf", 1):
        for j in range(opt.get("pf_n", 2), 3):
            e(f"s_mov_b32 s13, {j*8*4096}")
            k.vmem(f"buffer_load_dword v157, v154, {W2}, s13 offen")
    qd = {}
    if opt.get("q_p3early", 0):
        run_all(k, p3_e1(qd))
    phi(ACC, PQ)
    k.poll("v8", WS, 16)
    k.stamp(6)
    e("s_lshl_b32 s13, s15, 14")
    e(f"s_add_u32 s13, s13, {KVP}")
    e("s_lshl_b32 s12, s15, 10")
    e(f"s_add_u32 s12, s12, {ZP}")
    e("v_lshlrev_b32 v8, 6, v2")
    e("v_lshl_add_u32 v8, v3, 4, v8")
    tz = k.vmem(f"buffer_load_dwordx4 v[36:39], v8, {WS}, s12 offen sc1")
    tp = []
    for j in range(16):
        if j % 4 == 0 and j:
            e(f"s_add_u32 s13, s13, 4096")
        tp.append(k.vmem(f"buffer_load_dwordx4 {V(160+4*j,4)}, v4, {WS}, s13 offen offset:{(j%4)*1024} sc1"))
    k.wait_vm(tz)
    for rot in (8, 4, 2, 1):
        for r in range(4):
            e(f"v_add_f32_dpp v{36+r}, v{36+r}, v{36+r} row_ror:{rot} row_mask:0xf bank_mask:0xf")
    for j in range(1, 16):
        k.wait_vm(tp[j])
        e(f"v_pk_add_f32 v[160:161], v[160:161], {V(160+4*j,2)}")
        e(f"v_pk_add_f32 v[162:163], v[162:163], {V(162+4*j,2)}")
    e("v_cvt_pk_bf16_f32 v32, v160, v161")
    e("v_cvt_pk_bf16_f32 v33, v162, v163")
    e("v_cvt_pk_bf16_f32 v34, v36, v37")
    e("v_cvt_pk_bf16_f32 v35, v38, v39")
    e(f"ds_write_b128 v6, v[32:35] offset:{XB+2048}")
    k.lgkm0()
    e("s_barrier")
    l1 = k.newlab()
    l2 = k.newlab()
    e("s_cmp_eq_u32 s96, 0")
    e(f"s_cbranch_scc1 {l1}")
    e(f"ds_read_b128 v[40:43], v7 offset:{XB+2048}")
    e(f"ds_read_b128 v[44:47], v6 offset:{XB+2048}")
    e(f"s_branch {l2}")
    k.label(l1)
    e(f"ds_read_b128 v[40:43], v6 offset:{XB+2048}")
    e(f"ds_read_b128 v[44:47], v7 offset:{XB+2048}")
    k.label(l2)
    e("s_lshl_b32 s15, s8, 3")
    e("s_lshl_b32 s12, s96, 2")
    e("s_add_u32 s15, s15, s12")
    e("s_lshl_b32 s15, s15, 4")
    e("s_lshl_b32 s12, s9, 1")
    e("s_add_u32 s15, s15, s12")
    e("s_add_u32 s15, s15, s97")
    e("s_lshl_b32 s15, s15, 10")
    e(f"s_add_u32 s15, s15, {OF}")
    k.lgkm0()
    for hh in range(2):
        for i in range(4):
            q_ = V(PQ + (hh*4+i)*2, 2)
            e(f"v_mfma_f32_16x16x16_bf16 {V(192+(hh*4+i)*4,4)}, {V(42+4*hh,2)}, {q_}, 0")
    for hh in range(2):
        for i in range(4):
            q_ = V(PQ + (hh*4+i)*2, 2)
            e(f"v_mfma_f32_16x16x16_bf16 {V(160+(hh*4+i)*4,4)}, {V(40+4*hh,2)}, {q_}, 0")
    k.nop(1)
    for n_ in range(8):
        e(f"v_add_f32 v{192+4*n_}, s94, v{192+4*n_}")
    for n_ in range(8):
        e(f"v_rcp_f32 v{192+4*n_}, v{192+4*n_}")
    for n_ in range(8):
        e(f"v_pk_mul_f32 {V(160+4*n_,2)}, {V(160+4*n_,2)}, {V(192+4*n_,2)} op_sel_hi:[1,0]")
        e(f"v_pk_mul_f32 {V(162+4*n_,2)}, {V(162+4*n_,2)}, {V(192+4*n_,2)} op_sel_hi:[1,0]")
    for i in range(4):
        for hh in range(2):
            s_ = 160 + (hh*4+i)*4
            e(f"v_cvt_pk_bf16_f32 v{64+4*i+2*hh}, v{s_}, v{s_+1}")
            e(f"v_cvt_pk_bf16_f32 v{65+4*i+2*hh}, v{s_+2}, v{s_+3}")
        e(f"s_add_u32 s12, s15, {i*16384}")
        tos = k.vmem(f"buffer_store_dwordx4 {V(64+4*i,4)}, v4, {WS}, s12 offen sc1")
    qe1 = p3_e1(qd) if not opt.get("q_p3early", 0) else []
    nq = 6 * opt.get("q_e1pre", 2)
    run_all(k, qe1[:nq])
    k.wait_vm(tos)
    e("s_barrier")
    e("s_lshl_b32 s12, s8, 9")
    e(f"s_add_u32 s12, s12, {CNT + 32*256}")
    k.arrive(WS, "s12", 2)
    k.stamp(7)
    run_all(k, qe1[nq:])
    run_all(k, p3_e2r(qd))
    oflag()
    k.lgkm0()
    run_all(k, p3_e2d())
    e("s_branch L_p3")

    k.label("L_urole")
    k.c("================= U role =================")
    k.vm = 0
    if UPART == 8:
        e("s_and_b32 s9, s6, 7")
        e("s_bfe_u32 s8, s6, 0x10003")
        e("s_and_b32 s12, s2, 7")
        e("s_lshl_b32 s12, s12, 1")
        e("s_add_u32 s8, s8, s12")
    e("v_lshrrev_b32 v12, 2, v1")
    e("v_and_b32 v13, 3, v1")
    e(f"s_mul_i32 s13, s3, {512*2752}")
    e("s_mul_i32 s12, s8, 192")
    e("s_add_u32 s13, s13, s12")
    for j in range(3):
        e(f"v_add_u32 v14, {16*j}, v12")
        e("v_mul_u32_u24 v15, 43, v14")
        e("v_lshrrev_b32 v15, 7, v15")
        e("v_mul_u32_u24 v16, 3, v15")
        e("v_sub_u32 v14, v14, v16")
        e("v_lshrrev_b32 v16, 2, v15")
        e("v_and_b32 v16, 2, v16")
        e("v_xor_b32 v16, v16, v13")
        e("v_lshlrev_b32 v16, 4, v16")
        e("v_lshl_add_u32 v16, v14, 6, v16")
        e("v_mul_u32_u24 v15, 2752, v15")
        e(f"v_add3_u32 v{6+j}, v15, v16, s13")
        if j:
            e(f"v_subrev_u32 v{6+j}, {j*1024}, v{6+j}")
        e(f"v_add_u32 v{9+j}, {16*2752}, v{6+j}")
    if ROTU:
        e("s_add_u32 s91, s9, s8" if ROTU == 1 else "s_mov_b32 s91, s9")
        e("s_and_b32 s91, s91, 3")
        e("s_lshl_b32 s91, s91, 2")
    else:
        e("s_mov_b32 s91, 0")
    e(f"s_mul_i32 s88, s91, {32*2752}")
    e("s_lshl_b32 s91, s91, 10")
    e("s_waitcnt lgkmcnt(0)")
    srd(W1)
    e("s_cmp_eq_u32 s8, 15")
    e("s_cbranch_scc1 L_spare")
    srd(B1)
    e("s_mul_i32 s12, s8, 192")
    e("v_lshlrev_b32 v30, 3, v3")
    for j in range(6):
        k.vmem(f"buffer_load_dwordx2 {V(184+2*j,2)}, v30, {B1}, s12 offen offset:{32*j}")
    if opt.get("u_late", 0):
        k.wait_vm0()
    touch_w1()
    UL, UNWB, UFB = 6, 7, 8
    UR = opt.get("u_r", 2)
    RB = 22528

    def u_wdma(t, toks):
        out = []
        for j in range(6):
            if j % 3 == 0:
                out.append(f"s_add_u32 m0, s7, {(t % UL)*6144 + j*1024}")
            out.append(dmai(f"v{6+j}", W1, "s88", (j % 3)*1024, toks, t, UFL if t < opt.get("u_nt_steps", 0) else ""))
        out.append(f"s_add_u32 s88, s88, {32*2752}")
        if t % 4 == 3:
            out.append(lambda: (e(f"s_cmp_eq_u32 s88, {16*32*2752}"), e("s_cselect_b32 s88, 0, s88")))
        return out

    def u_wread(t):
        out = []
        for fb in range(6):
            r = 72 + (t % UNWB)*24 + fb*4
            o = (t % UL)*6144 + (fb >> 1)*64
            out.append(f"ds_read_b64_tr_b16 {A(r,2)}, v{16+(fb&1)} offset:{o}")
            out.append(f"ds_read_b64_tr_b16 {A(r+2,2)}, v{16+(fb&1)} offset:{o+768}")
        return out

    def u_fload(t, b, toks):
        def f():
            toks[(t, b)] = k.vmem(f"buffer_load_dwordx4 {V(32+(t%UFB)*16+4*b,4)}, v{12+b}, {WS}, s91 offen offset:{(t%4)*1024} sc1")
        out = [f]
        if t % 4 == 3 and b == 3:
            out.append("s_add_u32 s91, s91, 4096")
            out.append("s_and_b32 s91, s91, 0x3fff")
        return out

    def uacc(b, j):
        return A((b*6 + j)*4, 4) if b < 3 else V(160 + j*4, 4)

    def u_mm(t, b, j):
        d = uacc(b, j)
        return mf(d, A(72 + (t % UNWB)*24 + j*4, 4), V(32+(t % UFB)*16+4*b, 4), "0" if t == 0 else d)

    su = SK(k, 16, UL, UNWB, UFB, 6, u_wdma, u_wread, u_fload, u_mm)
    if not opt.get("pfw", 0):
        su.issue_w(2)
    for n_ in (WS, DBG, WO, W2, B2, OUT):
        srd(n_)
    diag_clear()
    e("v_lshrrev_b32 v16, 2, v2")
    e("v_lshl_add_u32 v16, v3, 3, v16")
    e("v_mul_u32_u24 v16, 192, v16")
    e("v_and_b32 v12, 3, v2")
    e("v_lshl_add_u32 v16, v12, 3, v16")
    e("v_add_u32 v16, s7, v16")
    e("v_and_b32 v12, 1, v3")
    e("v_lshlrev_b32 v12, 5, v12")
    e("v_xor_b32 v13, 32, v12")
    e("v_add_u32 v17, v16, v13")
    e("v_add_u32 v16, v16, v12")
    e(f"s_mul_i32 s13, s9, {4*HS}")
    e("s_lshl_b32 s12, s3, 14")
    e("s_add_u32 s13, s13, s12")
    if HF:
        e(f"s_add_u32 s13, s13, {HF}")
    for b in range(4):
        e(f"s_add_u32 s12, s3, {1+b}")
        e("s_and_b32 s12, s12, 3")
        e(f"s_mul_i32 s12, s12, {HS}")
        e("s_add_u32 s12, s12, s13")
        e(f"v_add_u32 v{12+b}, s12, v4")
    run_all(k, p3_setup())
    e(f"s_add_u32 s12, s7, {RB}")
    e("v_add_u32 v26, s12, v4")
    for o in range(1, 4):
        e(f"s_add_u32 s12, s3, {o}")
        e("s_and_b32 s12, s12, 3")
        e("s_mul_i32 s12, s12, 40960")
        e(f"s_add_u32 s12, s12, {RB + (3-o)*6144}")
        e(f"v_add_u32 v{26+o}, s12, v4")
    e("s_and_b32 s12, s2, 7")
    e("s_lshl_b32 s13, s3, 3")
    e("s_add_u32 s12, s12, s13")
    e("s_lshl_b32 s12, s12, 8")
    e(f"s_add_u32 s12, s12, {CNT + 96*256}")
    e("v_mov_b32 v196, s12")
    su.issue_w(4)
    tz_ = zload()
    su.issue_w(UL)
    hold = opt.get("u_hold", 2)
    k.stamp(5)
    su.to_regs(UR, hold)
    k.wait_vm(tz_)
    zcheck()
    k.stamp(1)
    drained = k.poll2("v196", WS, 32, lambda: su.issue_w(UR + UL))
    k.stamp(2)
    k.stamp(1, True)
    seq = [(t, b) for t in range(12) for b in range(4)] + [(t, b) for b in range(4) for t in range(12, 16)]

    def u_post(win):
        if win < 13:
            return []
        b = win - 13
        return [f"ds_write_b128 v26, {uacc(b, j)} offset:{(b*6+j)*1024}" for j in range(6)]
    ud = {}
    pe = p3_e1(ud)
    bias = []
    for j in range(6):
        bias += [f"v_lshlrev_b32 v{200+4*j}, 16, v{184+2*j}", f"v_and_b32 v{201+4*j}, 0xffff0000, v{184+2*j}",
                 f"v_lshlrev_b32 v{202+4*j}, 16, v{185+2*j}", f"v_and_b32 v{203+4*j}, 0xffff0000, v{185+2*j}"]
    c0 = -2.0 * 0.7978845608028654 * 1.4426950408889634
    c1 = c0 * 0.044715
    misc = [f"s_mov_b32 s92, {hex(f32bits(c1))}", f"s_mov_b32 s93, {hex(f32bits(c1))}",
            f"v_mov_b32 v198, {hex(f32bits(c0))}", f"v_mov_b32 v199, {hex(f32bits(c0))}",
            "s_lshl_b32 s15, s9, 2", "s_add_u32 s15, s15, s3", "s_mul_i32 s15, s15, 43", "s_mul_i32 s13, s8, 3",
            "s_add_u32 s15, s15, s13", "s_lshl_b32 s15, s15, 10", f"s_add_u32 s15, s15, {GUF}",
            lambda: (e("s_cmp_eq_u32 s8, 14"), e("s_cselect_b32 s13, 0x7ff00000, 0")), "v_or_b32 v197, s13, v4"]

    def u_extra(win):
        if win == 12:
            return bias[:12] + misc
        if win == 13:
            return bias[12:]
        return []

    UPW = opt.get("u_pw", 12)

    def u_extra2(win):
        out = u_extra(win)
        if win >= UPW:
            assert su.nread == 16 and su_rd_done[0] < win
            n3 = -(-len(pe) // (16 - UPW))
            out = out + pe[(win-UPW)*n3:(win-UPW+1)*n3]
        if su.nread == 16 and su_rd_done[0] == 99:
            su_rd_done[0] = win
        return out
    su_rd_done = [99]
    su.run(seq, opt.get("u_la", 12), drained, u_post, opt.get("u_wdelay", 0), u_extra2,
           wsplit=opt.get("u_wsplit", 1),
           prof=dict(zip((0, 1, 2, 3, 4, 6, 8, 10, 12, 14), (2, 3, 4, 5, 6, 7, 8, 0, 9, 10))))
    k.stamp(11, True)
    k.stamp(3)
    k.lgkm0()
    e("s_barrier")
    for p in range(3):
        for o in range(1, 4):
            for j in (2*p, 2*p+1):
                e(f"ds_read_b128 {V(8+24*o+4*j,4)}, v{26+o} offset:{j*1024}")
        if p == 1:
            for r in range(12):
                e(f"v_pk_add_f32 {V(160+2*r,2)}, {V(160+2*r,2)}, {V(200+2*r,2)}")
    oflag()
    k.lgkm0()
    e2d = p3_e2d()
    E2LATE = opt.get("u_e2late", 1)
    ne = 0 if E2LATE else 6 * opt.get("u_e2in", 2)
    tst = {}
    for p in range(3):
        R_ = range(4*p, 4*p+4)
        va = []
        va += [f"v_pk_add_f32 {V(32+2*r,2)}, {V(32+2*r,2)}, {V(56+2*r,2)}" for r in R_]
        va += [f"v_pk_add_f32 {V(160+2*r,2)}, {V(160+2*r,2)}, {V(80+2*r,2)}" for r in R_]
        va += [f"v_pk_add_f32 {V(32+2*r,2)}, {V(32+2*r,2)}, {V(160+2*r,2)}" for r in R_]
        va += [f"v_pk_mul_f32 {V(56+2*r,2)}, {V(32+2*r,2)}, {V(32+2*r,2)}" for r in R_]
        va += [f"v_pk_fma_f32 {V(56+2*r,2)}, {V(56+2*r,2)}, s[92:93], v[198:199]" for r in R_]
        va += [f"v_pk_mul_f32 {V(56+2*r,2)}, {V(56+2*r,2)}, {V(32+2*r,2)}" for r in R_]
        va += [f"v_exp_f32 v{56+r}, v{56+r}" for r in range(8*p, 8*p+8)]
        va += [f"v_add_f32 v{56+r}, 1.0, v{56+r}" for r in range(8*p, 8*p+8)]
        va += [f"v_rcp_f32 v{56+r}, v{56+r}" for r in range(8*p, 8*p+8)]
        va += [f"v_pk_mul_f32 {V(32+2*r,2)}, {V(32+2*r,2)}, {V(56+2*r,2)}" for r in R_]
        va += [f"v_cvt_pk_bf16_f32 v{112+4*p+q}, v{32+8*p+2*q}, v{33+8*p+2*q}" for q in range(4)]
        if E2LATE:
            fl_ = []
        elif p == 0:
            fl_ = p3_e2r(ud)
        else:
            fl_ = e2d[(p-1)*ne//2:p*ne//2]
        run_all(k, mix(va, fl_))
        tst[p] = k.vmem(f"buffer_store_dwordx4 {V(112+4*p,4)}, {'v4' if p == 0 else 'v197'}, {WS}, s15 offen offset:{p*1024} sc1")
        if p == 0:
            k.lgkm0()
    k.stamp(4)
    if E2LATE:
        run_all(k, p3_e2r(ud))
        k.lgkm0()
    ne2 = ne + 6 * opt.get("u_e2dr", 1)
    run_all(k, e2d[ne:ne2])
    e("s_lshl_b32 s12, s9, 10")
    e(f"s_add_u32 s12, s12, {CNT + 64*256}")
    k.wait_vm(tst[2])
    e("s_barrier")
    k.arrive(WS, "s12", 4)
    k.stamp(7)
    run_all(k, e2d[ne2:])
    e("s_branch L_p3")

    k.label("L_spare")
    for n_ in (WS, DBG):
        srd(n_)
    nz = k.newlab("L_nz")
    e("s_or_b32 s12, s9, s3")
    e("s_cmp_lg_u32 s12, 0")
    e(f"s_cbranch_scc1 {nz}")
    e("v_lshlrev_b32 v30, 8, v1")
    e(f"s_mov_b32 s12, {CNT}")
    e(f"s_mov_b32 s13, {CNT + 64*256}")
    e(f"buffer_store_dword v5, v30, {WS}, s12 offen sc1")
    e(f"buffer_store_dword v5, v30, {WS}, s13 offen sc1")
    e("v_mov_b32 v31, 1")
    k.wait_vm0()
    e(f"buffer_store_dword v31, v5, {DBG}, 0 offen sc1")
    k.label(nz)
    touch_w1()
    for n_ in (WO, W2, B2, OUT):
        srd(n_)
    diag_clear()
    run_all(k, p3_setup())
    k.poll("v5", DBG, 1)
    k.poll("v240", WS, 8, sleep=32)
    sd = {}
    run_all(k, p3_e1(sd))
    run_all(k, p3_e2r(sd))
    oflag()
    k.lgkm0()
    run_all(k, p3_e2d())

    k.label("L_p3")
    k.c("================= P3 =================")

    def freg(t, b):
        return A(128 + (t % PFB)*16 + 4*b, 4)

    def p_fload(t, b, toks):
        if t < 4:
            so, off, vr = "0", t*1024, 232 + b
        else:
            y = yblk(t)
            so, off, vr = ("s86" if y == 10 else ["0", "s84", "s85"][y // 4]), (0 if y == 10 else (y % 4)*1024), 236 + b

        def f():
            toks[(t, b)] = k.vmem(f"buffer_load_dwordx4 {freg(t,b)}, v{vr}, {WS}, {so} offen offset:{off} sc1")
        return [f]

    YA, AA = 64, 128

    def p_mm(t, b, j):
        wr = A((t % PNWB)*16 + j*4, 4)
        if t < 4:
            d = V(AA + (j*4 + b)*4, 4)
            return mf(d, wr, freg(t, b), "0" if t == 0 else d)
        d = V(YA + (b*4 + j)*4, 4)
        return mf(d, freg(t, b), wr, "0" if t == 4 else d)

    k.vm = 0
    sp = SK(k, 15, PL, PNWB, PFB, 4, p_wdma, p_wread, p_fload, p_mm)
    k.vm = 1
    for t in range(5, 10):
        k.vm += 4
        sp.wt[t] = k.vm
    sp.issued = 10
    sp.nread = 5
    if not opt.get("nowait"):
        k.wait_vm(1)
        dn = k.newlab("L_fo")
        e("v_cmp_gt_u32 vcc, 8, v250")
        e(f"s_cbranch_vccz {dn}")
        k.poll("v240", WS, 8)
        k.label(dn)
    k.stamp(8)
    seq_a = [(t, b) for t in range(4) for b in range(4)]
    for i in range(8):
        run_all(k, p_fload(*seq_a[i], sp.ft))
    for j in range(4):
        k.vmem(f"buffer_load_dword v{32+2*j}, v242, {WS}, 0 offen offset:{64*j} sc1")
        k.vmem(f"buffer_load_ushort v{40+2*j}, v243, {B2}, 0 offen offset:{32*j}")
    sp.issue_w(11)
    gt = {}

    def a_extra(win):
        if win == opt.get("p_gw", 3):
            def f():
                gt[0] = k.vmem(f"buffer_load_dword v251, v241, {WS}, 0 offen sc1")
            return [f]
        return []
    sp.run(seq_a, 8, pre_issued=8, extra=a_extra, rmax=1)
    assert sp.issued == 15
    seq_y = [(t, b) for t in range(4, 11) for b in range(4)] + [(t, b) for b in range(4) for t in range(11, 15)]
    PLA = opt.get("p_la", 12)

    def shadow():
        for j in range(4):
            e(f"v_lshlrev_b32 v{40+2*j}, 16, v{40+2*j}")
            e(f"v_sub_f32 v{48+2*j}, 1.0, v{32+2*j}")
        for j in range(4):
            e(f"v_mul_f32 v{40+2*j}, v{40+2*j}, v{48+2*j}")
        for b in range(4):
            for j in range(4):
                for h_ in range(2):
                    r = AA + (b*4 + j)*4 + 2*h_
                    if b < 3:
                        e(f"v_pk_mul_f32 {V(r,2)}, {V(r,2)}, {V(32+2*j,2)} op_sel_hi:[1,0]")
                    else:
                        e(f"v_pk_fma_f32 {V(r,2)}, {V(r,2)}, {V(32+2*j,2)}, {V(40+2*j,2)} op_sel_hi:[1,0,0]")

    def yfirst():
        for i in range(PLA):
            run_all(k, p_fload(*seq_y[i], sp.ft))
    k.stamp(0)
    if not opt.get("nowait"):
        fast = k.newlab("L_yf")
        jn = k.newlab("L_yj")
        k.wait_vm(gt[0])
        e("v_cmp_gt_u32 vcc, 15, v251")
        e(f"s_cbranch_vccz {fast}")
        vs = k.vm
        shadow()
        k.poll("v241", WS, 15)
        k.stamp(9)
        yfirst()
        e(f"s_branch {jn}")
        k.label(fast)
        k.vm = vs
        k.stamp(9)
        yfirst()
        shadow()
        k.label(jn)
    else:
        yfirst()
        shadow()

    def comb(b):
        out = []
        for j in range(4):
            for h_ in range(2):
                r = (b*4 + j)*4 + 2*h_
                out.append(f"v_pk_fma_f32 {V(YA+r,2)}, {V(YA+r,2)}, {V(48+2*j,2)}, {V(AA+r,2)} op_sel_hi:[1,0,1]")
            if b < 3:
                out.append(f"ds_write_b128 v244, {V(YA+(b*4+j)*4,4)} offset:{(b*4+j)*1024}")
        return out
    sp.run(seq_y, PLA, 0, lambda win: comb(win - 8) if win >= 8 else [], pre_issued=PLA, rmax=1,
           prof=(dict(zip(range(11), (1, 2, 3, 4, 5, 6, 7, 8, 0, 9, 10))) if opt.get("prof") == 2 else None))
    if opt.get("prof") == 2:
        k.stamp(11, True)
    k.stamp(10)
    k.lgkm0()
    e("s_barrier")
    for o in range(3):
        for j in range(4):
            e(f"ds_read_b128 {V(AA+16*o+4*j,4)}, v{245+o} offset:{j*1024}")
    run_all(k, comb(3))
    for o in range(3):
        e(f"s_waitcnt lgkmcnt({8-4*o})") if not opt.get("diag") else k.lgkm0()
        for r in range(8):
            e(f"v_pk_add_f32 {V(YA+48+2*r,2)}, {V(YA+48+2*r,2)}, {V(AA+16*o+2*r,2)}")
    for t in range(4):
        e(f"v_cvt_pk_bf16_f32 v{32+2*t}, v{YA+48+4*t}, v{YA+49+4*t}")
        e(f"v_cvt_pk_bf16_f32 v{33+2*t}, v{YA+50+4*t}, v{YA+51+4*t}")
    k.nop(2)
    for p in range(2):
        e(f"v_permlane16_swap_b32 v{32+4*p}, v{34+4*p}")
        e(f"v_permlane16_swap_b32 v{33+4*p}, v{35+4*p}")
    k.nop(1)
    for p in range(2):
        e(f"buffer_store_dwordx4 {V(32+4*p,4)}, v{248+p}, {OUT}, s87 offen")
    if opt.get("diag"):
        e("s_waitcnt vmcnt(0)")
        k.stamp(11)
        k.lgkm0()
        for i in range(12):
            e(f"v_mov_b32 v{32+i}, s{16+2*i}")
        e("v_mov_b32 v44, s98")
        e("s_getreg_b32 s12, hwreg(HW_REG_XCC_ID)")
        e("v_mov_b32 v45, s12")
        e("s_lshl_b32 s12, s2, 2")
        e("s_add_u32 s12, s12, s3")
        e("s_lshl_b32 s12, s12, 6")
        e(f"s_add_u32 s12, s12, {DIAG}")
        e("v_mov_b32 v30, 0")
        e("s_mov_b64 exec, 1")
        for i in range(4):
            e(f"buffer_store_dwordx4 {V(32+4*i,4)}, v30, {WS}, s12 offen offset:{16*i}")
    k.label("L_end")
    e("s_endpgm")
    return "\n".join(k.l)


HEADER = open("cdna_kernels/" + NAME + ".s.ref").read().split("; Override launch geometry")[0]


def gen_meas(opt):
    mj, mk = opt["meas"], opt.get("mk", 1)
    l = []
    a = l.append
    a("s_cmp_ge_u32 s2, 1")
    a("s_cbranch_scc1 M_end")
    a("s_load_dwordx2 s[4:5], s[0:1], 88")
    a("v_lshlrev_b32 v1, 6, v0")
    a("v_mov_b32 v2, -1")
    a("v_mov_b32 v3, 0")
    a("s_waitcnt lgkmcnt(0)")
    a("s_mov_b32 s8, s4")
    a("s_mov_b32 s9, s5")
    a(f"s_mov_b32 s10, {WS_BYTES}")
    a("s_mov_b32 s11, 0x20000")
    lo, hi = {"Q": (0, 8), "U": (8, 16), "A": (0, 16)}[opt.get("mrole", "A")]
    for it in range(16):
        a(f"s_mov_b32 s12, {DIAG + it*4096}")
        a(f"buffer_load_dword v4, v1, s[8:11], s12 offen offset:48")
        a(f"buffer_load_dword v5, v1, s[8:11], s12 offen offset:{4*mj}")
        a("s_waitcnt vmcnt(0)")
        a("v_min_u32 v2, v2, v4")
        if lo <= it < hi:
            a("v_max_u32 v3, v3, v5")
    a("s_mov_b32 s14, -1")
    a("s_mov_b32 s15, 0")
    a("s_nop 4")
    for i in range(64):
        a(f"v_readlane_b32 s16, v2, {i}")
        a(f"v_readlane_b32 s17, v3, {i}")
        a("s_nop 3")
        a("s_min_u32 s14, s14, s16")
        a("s_max_u32 s15, s15, s17")
    a("s_sub_u32 s15, s15, s14")
    a("s_min_u32 s15, s15, 20000")
    a(f"s_mul_i32 s15, s15, {mk}")
    a("s_memrealtime s[20:21]")
    a("s_waitcnt lgkmcnt(0)")
    a("M_spin:")
    a("s_memrealtime s[22:23]")
    a("s_waitcnt lgkmcnt(0)")
    a("s_sub_u32 s24, s22, s20")
    a("s_cmp_lt_u32 s24, s15")
    a("s_cbranch_scc1 M_spin")
    a("M_end:")
    a("s_endpgm")
    return "\n".join(l)


def gen_file(opt):
    kn = NAME + "_kernel"
    nl = opt.get("launches", 1)
    s = HEADER
    if "meas" in opt:
        s += f"; @launch kernel={kn} grid=(256,1,1) block=(256,1,1) lds=163840\n"
        s += f"; @launch kernel=meas_kernel grid=(1,1,1) block=(64,1,1) lds=0\n"
    elif nl == 1:
        s += "; @launch grid=(256,1,1) block=(256,1,1) lds=163840\n"
    else:
        for _ in range(nl):
            s += f"; @launch kernel={kn} grid=(256,1,1) block=(256,1,1) lds=163840\n"
    extra_code = ""
    if "meas" in opt:
        extra_code = ".globl meas_kernel\n.p2align 8\n.type meas_kernel,@function\nmeas_kernel:\n" + gen_meas(opt) + "\n"
    s += f""".amdgcn_target "amdgcn-amd-amdhsa--gfx950"
.text
.globl {kn}
.p2align 8
.type {kn},@function
{kn}:
{gen_body(opt)}
{extra_code}.section .rodata,"a"
.p2align 6
.amdhsa_kernel {kn}
  .amdhsa_next_free_vgpr 512
  .amdhsa_next_free_sgpr 102
  .amdhsa_accum_offset 256
  .amdhsa_group_segment_fixed_size 0
  .amdhsa_kernarg_size 96
  .amdhsa_user_sgpr_count 2
  .amdhsa_user_sgpr_kernarg_segment_ptr 1
  .amdhsa_system_sgpr_workgroup_id_x 1
.end_amdhsa_kernel
"""
    if "meas" in opt:
        s += """.p2align 6
.amdhsa_kernel meas_kernel
  .amdhsa_next_free_vgpr 32
  .amdhsa_next_free_sgpr 102
  .amdhsa_accum_offset 32
  .amdhsa_group_segment_fixed_size 0
  .amdhsa_kernarg_size 96
  .amdhsa_user_sgpr_count 2
  .amdhsa_user_sgpr_kernarg_segment_ptr 1
  .amdhsa_system_sgpr_workgroup_id_x 1
.end_amdhsa_kernel
"""
    return s


if __name__ == "__main__":
    opt = {}
    out = None
    for a in sys.argv[1:]:
        if "=" in a:
            kk, vv = a.split("=", 1)
            try:
                vv = int(vv)
            except ValueError:
                pass
            opt[kk] = vv
        else:
            out = a
    txt = gen_file(opt)
    open(out or ("cdna_kernels/" + NAME + ".s"), "w").write(txt)
```

```python
import sys

NAME = "gated_mix__linear_attn_block__mixer_token_mlp__prompt"

HF = 0x000000
GUF = 0x240000
OF = 0x400000
KVP = 0x600000
ZP = 0x680000
GG = 0x690000
CNT = 0x6A0000
DIAG = 0x700000
WS_BYTES = 0x800000

X, WQKV, WO, W1, B1, W2, B2, GW, OUT, DBG, WS = [f"s[{40+4*i}:{43+4*i}]" for i in range(11)]
SRD_INFO = [(40, 16, 2048*512*2), (44, 18, 512*1536*2), (48, 20, 512*512*2), (52, 24, 2048*1376*2),
            (56, 26, 1376*2), (60, 28, 1376*2048*2), (64, 30, 2048*2), (68, 32, 512*2),
            (72, 34, 2048*512*2), (76, 36, 256), (80, 38, WS_BYTES)]

LOG2E = 0x3fb8aa3b
HS = 65536


def f32bits(x):
    import struct
    return struct.unpack("<I", struct.pack("<f", x))[0]


def rr(kind, base, n):
    return f"{kind}{base}" if n == 1 else f"{kind}[{base}:{base+n-1}]"


def V(b, n=1):
    return rr("v", b, n)


def A(b, n=1):
    return rr("a", b, n)


class Em:
    def __init__(self, opt):
        self.l = []
        self.vm = 0
        self.lab = 0
        self.opt = opt
        self.nstamp = 0

    def e(self, s):
        self.l.append("    " + s)

    def c(self, s):
        self.l.append("    ; " + s)

    def label(self, s):
        self.l.append(s + ":")

    def newlab(self, p="L"):
        self.lab += 1
        return f"{p}_{self.lab}"

    def vmem(self, s):
        self.e(s)
        self.vm += 1
        return self.vm

    def wait_vm(self, tok):
        n = self.vm - tok
        assert n >= 0
        self.e(f"s_waitcnt vmcnt({min(n, 63)})")

    def wait_vm0(self):
        self.e("s_waitcnt vmcnt(0)")

    def lgkm0(self):
        self.e("s_waitcnt lgkmcnt(0)")

    def nop(self, n):
        while n > 0:
            k = min(n, 16)
            self.e(f"s_nop {k-1}")
            n -= k

    def stamp(self, i, prof=False):
        if bool(self.opt.get("prof")) != prof:
            return
        if self.opt.get("diag"):
            assert i < 12
            self.e(f"{'s_memtime' if self.opt.get('clk') else 's_memrealtime'} s[{16+2*i}:{17+2*i}]")

    def dma(self, voff, srd, soff, m0expr, flags=""):
        sreg, imm = m0expr
        if sreg is None:
            self.e(f"s_mov_b32 m0, {imm}")
        else:
            self.e(f"s_add_u32 m0, {sreg}, {imm}")
        sr, si = soff
        self.e(f"s_add_u32 s13, {sr}, {si}")
        return self.vmem(f"buffer_load_dwordx4 {voff}, {srd}, s13 offen {flags} lds".replace("  ", " "))

    def poll(self, voff, srd, expect, tmp="v31", sleep=None):
        if self.opt.get("nowait"):
            self.wait_vm0()
            return
        lp = self.newlab("L_poll")
        dn = self.newlab("L_polled")
        self.e("s_mov_b32 s14, 0")
        self.label(lp)
        self.e(f"buffer_load_dword {tmp}, {voff}, {srd}, 0 offen sc1")
        self.e("s_add_u32 s14, s14, 1")
        self.e("s_waitcnt vmcnt(0)")
        self.e(f"v_cmp_gt_u32 vcc, {expect}, {tmp}")
        self.e(f"s_cbranch_vccz {dn}")
        self.e(f"s_sleep {sleep or self.opt.get('sleep', 3)}")
        self.e("s_cmp_lt_u32 s14, 0x40000")
        self.e(f"s_cbranch_scc1 {lp}")
        self.label(dn)

    def poll2(self, voff, srd, expect, more, tmp="v31"):
        if self.opt.get("nowait"):
            more()
            return 0
        t = self.vmem(f"buffer_load_dword {tmp}, {voff}, {srd}, 0 offen sc1")
        more()
        self.wait_vm(t)
        dn = self.newlab("L_fast")
        self.e(f"v_cmp_gt_u32 vcc, {expect}, {tmp}")
        self.e(f"s_cbranch_vccz {dn}")
        self.poll(voff, srd, expect, tmp)
        self.label(dn)
        return t

    def arrive(self, srd, off_sreg, nrep):
        sk = self.newlab("L_arr")
        self.e("s_cmp_lg_u32 s3, 0")
        self.e(f"s_cbranch_scc1 {sk}")
        self.e("v_lshlrev_b32 v30, 8, v1")
        self.e("v_mov_b32 v31, 1")
        self.e(f"s_mov_b64 exec, {(1 << nrep) - 1}")
        self.e(f"buffer_atomic_add v31, v30, {srd}, {off_sreg} offen sc1")
        self.e("s_mov_b64 exec, -1")
        self.label(sk)


def mf(d, a, b, c):
    return f"v_mfma_f32_16x16x32_bf16 {d}, {a}, {b}, {c}"


def interleave(k, mfmas, fillers, tail=2, cap=2, late=()):
    nm = len(mfmas)
    if late:
        interleave(k, mfmas[:8], fillers[:len(fillers) * 8 // nm + 1], tail=0, cap=cap)
        interleave(k, mfmas[8:], mix(list(late), fillers[len(fillers) * 8 // nm + 1:]), tail=min(tail, 1), cap=cap)
        return
    nf = len(fillers)
    span = max(1, nm - tail)
    fi = 0
    for i, (pre, txt) in enumerate(mfmas):
        if pre:
            pre()
        k.e(txt)
        want = min(nf, -(-(i + 1) * nf // span))
        budget = cap - (1 if (i + 1 < nm and mfmas[i + 1][0]) else 0)
        while fi < want and budget > 0:
            f = fillers[fi]
            fi += 1
            budget -= 1
            if callable(f):
                f()
            else:
                k.e(f)
    while fi < nf:
        f = fillers[fi]
        fi += 1
        if callable(f):
            f()
        else:
            k.e(f)


def run_all(k, items):
    for f in items:
        if callable(f):
            f()
        else:
            k.e(f)


def mix(a, b):
    out = []
    ia = ib = 0
    while ia < len(a) or ib < len(b):
        if ib >= len(b) or (ia < len(a) and ia * len(b) <= ib * len(a)):
            out.append(a[ia])
            ia += 1
        else:
            out.append(b[ib])
            ib += 1
    return out


class SK:
    def __init__(self, k, n, L, NWB, FB, NF, wdma, wread, fload, mm):
        self.__dict__.update(locals())
        self.wt = {}
        self.ft = {}
        self.issued = 0
        self.nread = 0
        self.done = set()
        self.wdone = 0
        self.wq = []
        self.wtmp = {}
        self.wage = {}

    def issue_w(self, upto):
        while self.issued < min(upto, self.n):
            assert self.issued < self.nread + self.L
            run_all(self.k, self.wdma(self.issued, self.wt))
            self.issued += 1

    def assume_issued(self, e, per):
        for t in range(e):
            self.k.vm += per
            self.wt[t] = self.k.vm
        self.issued = e

    def to_regs(self, R, hold=0):
        k = self.k
        while self.nread < R:
            t = self.nread
            assert t < self.wdone + self.NWB
            k.wait_vm(self.wt[t])
            run_all(k, self.wread(t))
            k.lgkm0()
            self.nread += 1
            if self.nread <= R - hold:
                self.issue_w(t + self.L + 1)

    def run(self, seq, LA, drained=0, post=None, wdelay=0, extra=None, pre_issued=0, prof=None,
            wsplit=1, rmax=2, age=2):
        k, n, L = self.k, self.n, self.L
        fi = pre_issued

        def fl(i):
            t, b = seq[i]
            if t - self.FB >= 0:
                assert (t - self.FB, b) in self.done, (t, b)
            return self.fload(t, b, self.ft)
        while fi < min(LA, len(seq)):
            run_all(k, fl(fi))
            fi += 1
        for win in range(len(seq) // 4):
            if prof and win in prof:
                k.stamp(prof[win], True)
            grp = seq[4*win:4*win+4]
            assert max(t for t, b in grp) < self.nread, (grp, self.nread)
            vm = []
            for _ in range(4):
                if fi < len(seq):
                    vm += fl(fi)
                    fi += 1
            if not self.wq and win >= wdelay and self.issued < n and self.issued < self.nread + L:
                self.wq = self.wdma(self.issued, self.wtmp)
                self.wq_t = self.issued
                self.wq_n = -(-len(self.wq) // wsplit)
                self.issued += 1
            fin = None
            if self.wq:
                vm += self.wq[:self.wq_n]
                self.wq = self.wq[self.wq_n:]
                if not self.wq:
                    fin = self.wq_t
            rd = []
            nr = 0
            while nr < rmax:
                u = self.nread
                if not (u < n and u < self.wdone + self.NWB and u in self.wt):
                    break
                must = u <= max(t for t, b in seq[4*win:4*win+8])
                if not must and self.wage.get(u, -99) + age > win:
                    break
                if nr >= 1 and not must and self.issued < n:
                    break
                if self.wt[u] > drained:
                    rd.append(lambda u=u: k.wait_vm(self.wt[u]))
                rd += self.wread(u)
                self.nread += 1
                nr += 1
            mfmas = []
            for (t, b) in grp:
                for j in range(self.NF):
                    pre = (lambda t=t, b=b: k.wait_vm(self.ft[(t, b)])) if j == 0 else None
                    mfmas.append((pre, self.mm(t, b, j)))
            fill = mix(rd, vm)
            ps = post(win) if post else []
            if extra:
                fill = mix(fill, extra(win))
            interleave(k, mfmas, fill, tail=3, late=ps)
            if fin is not None:
                self.wt[fin] = self.wtmp[fin]
                self.wage[fin] = win
            for gb in grp:
                self.done.add(gb)
            while self.wdone < n and all((self.wdone, b) in self.done for b in range(4)):
                self.wdone += 1
            if rd:
                k.lgkm0()
        assert not self.wq
        self.wage = {}


def gen_body(opt):
    k = Em(opt)
    e = k.e
    WFL = opt.get("wflags", "")
    ROTQ = opt.get("rot_q", 0)
    ROTU = opt.get("rot_u", 2)
    ROTP = opt.get("rot_p", 1)
    UPART = opt.get("upart", 4)
    UFL = opt.get("u_wflags", "")
    global HS
    HS = opt.get("hs", 65536)
    PW = "s[84:87]"

    def srd(name):
        for (d, s, sz) in SRD_INFO:
            if f"s[{d}:{d+3}]" == name:
                e(f"s_mov_b32 s{d}, s{s}")
                e(f"s_mov_b32 s{d+1}, s{s+1}")
                e(f"s_mov_b32 s{d+2}, {sz}")
                e(f"s_mov_b32 s{d+3}, 0x20000")

    def dmai(voff, srd_, soff, off, toks=None, key=None, fl=""):
        def f():
            if " m0," in k.l[-1]:
                e("s_nop 0")
            t = k.vmem(f"buffer_load_dwordx4 {voff}, {srd_}, {soff} offen offset:{off} {fl} lds".replace("  ", " "))
            if toks is not None:
                toks[key] = t
        return f

    def diag_clear():
        if opt.get("diag"):
            for i in range(16, 40):
                e(f"s_mov_b32 s{i}, 0")

    e("s_cmp_ge_u32 s2, 256")
    e("s_cbranch_scc1 L_end")
    e("s_load_dwordx16 s[16:31], s[0:1], 0")
    e("s_load_dwordx8 s[32:39], s[0:1], 64")
    if opt.get("diag"):
        e(f"{'s_memtime' if opt.get('clk') else 's_memrealtime'} s[98:99]")
    e("v_lshrrev_b32 v2, 6, v0")
    e("v_and_b32 v1, 63, v0")
    e("v_readfirstlane_b32 s3, v2")
    e("s_and_b32 s4, s2, 7")
    e("s_lshr_b32 s6, s2, 3")
    e("s_and_b32 s5, s4, 1")
    e("s_lshr_b32 s4, s4, 1")
    k.c("role tile: s8 = a*4 + ((idx&15)>>2) (sb / ft), s9 = b*4 + (idx&3) (hg / dt)")
    e("s_bfe_u32 s8, s6, 0x20002")
    e("s_lshl_b32 s12, s4, 2")
    e("s_add_u32 s8, s8, s12")
    e("s_and_b32 s9, s6, 3")
    e("s_lshl_b32 s12, s5, 2")
    e("s_add_u32 s9, s9, s12")
    k.c("P3 tile: s10 = st = a*8 + (idx&7), s11 = dt3 = b*4 + 2*((idx>>3)&1) + ((idx ^ (idx>>4))&1)")
    e("s_and_b32 s10, s6, 7")
    e("s_lshr_b32 s11, s6, 4")
    e("s_xor_b32 s11, s11, s6")
    e("s_and_b32 s11, s11, 1")
    e("s_add_u32 s11, s11, s12")
    e("s_lshr_b32 s12, s6, 2")
    e("s_and_b32 s12, s12, 2")
    e("s_add_u32 s11, s11, s12")
    e("s_lshl_b32 s12, s4, 3")
    e("s_add_u32 s10, s10, s12")
    e("s_mul_i32 s7, s3, 40960")
    e("v_and_b32 v2, 15, v1")
    e("v_lshrrev_b32 v3, 4, v1")
    e("v_lshlrev_b32 v4, 4, v1")
    e("v_mov_b32 v5, 0")
    e("s_cmp_ge_u32 s6, 16")
    e("s_cbranch_scc1 L_urole")


    def touch_xw():
        if not opt.get("pfx", 2):
            return
        if opt.get("pfx", 2) == 2:
            return touch_xw_all()
        e("s_lshl_b32 s12, s6, 2")
        e("s_add_u32 s12, s12, s3")
        e("v_lshrrev_b32 v116, 2, v1")
        e("v_lshlrev_b32 v116, 10, v116")
        e("v_and_b32 v117, 3, v1")
        e("v_lshl_add_u32 v116, v117, 7, v116")
        e(f"s_mul_i32 s13, s12, {8*3072}")
        e("s_lshl_b32 s14, s5, 9")
        e("s_add_u32 s13, s13, s14")
        k.vmem(f"buffer_load_dword v157, v116, {WQKV}, s13 offen")
        e("v_lshlrev_b32 v117, 7, v1")
        e("s_lshl_b32 s12, s12, 13")
        e("s_lshl_b32 s14, s4, 19")
        e("s_add_u32 s12, s12, s14")
        k.vmem(f"buffer_load_dword v157, v117, {X}, s12 offen")
        e("s_add_u32 s13, s13, 16384")
        e("s_mov_b64 exec, 0xffffffff")
        k.vmem(f"buffer_load_dword v157, v116, {WQKV}, s13 offen")
        e("s_mov_b64 exec, -1")

    def touch_xw_all():
        e("s_lshl_b32 s12, s6, 2")
        e("s_add_u32 s12, s12, s3")
        e("v_lshrrev_b32 v116, 2, v1")
        e("v_lshlrev_b32 v116, 10, v116")
        e("v_and_b32 v117, 3, v1")
        e("v_lshl_add_u32 v116, v117, 7, v116")
        e(f"s_mul_i32 s13, s12, {4*3072}")
        e("s_lshl_b32 s14, s5, 9")
        e("s_add_u32 s13, s13, s14")
        e("s_mov_b32 s14, 0xffff")
        e("s_mov_b32 exec_hi, s14")
        k.vmem(f"buffer_load_dword v157, v116, {WQKV}, s13 offen")
        e("s_mov_b64 exec, -1")

    def touch_x_other():
        e("s_and_b32 s12, s6, 15")
        e("s_lshl_b32 s12, s12, 2")
        e("s_add_u32 s12, s12, s3")
        e("s_lshr_b32 s13, s12, 4")
        e("s_lshl_b32 s13, s13, 17")
        e("s_and_b32 s12, s12, 15")
        e("s_lshl_b32 s12, s12, 12")
        e("s_add_u32 s12, s12, s13")
        e("s_lshl_b32 s13, s4, 19")
        e("s_add_u32 s12, s12, s13")
        e("s_xor_b32 s13, s5, 1")
        e("s_lshl_b32 s13, s13, 16")
        e("s_add_u32 s12, s12, s13")
        e("v_lshlrev_b32 v117, 7, v1")
        e("s_mov_b64 exec, 0xffffffff")
        k.vmem(f"buffer_load_dword v157, v117, {X}, s12 offen")
        e("s_mov_b64 exec, -1")

    def touch_w1():
        if opt.get("pfx", 2) == 2:
            srd(X)
            srd(WQKV)
            touch_x_other()
            touch_xw_all()
        if not opt.get("pfw", 0):
            return
        bw = 768 if UPART == 4 else 384
        e("s_and_b32 s12, s6, 15")
        e("s_lshl_b32 s12, s12, 2")
        e("s_add_u32 s12, s12, s3")
        e(f"s_mul_i32 s12, s12, {32*2752}")
        if UPART == 4:
            e("s_mul_i32 s13, s4, 768")
            e("v_lshrrev_b32 v158, 3, v1")
            e("v_and_b32 v159, 7, v1")
        else:
            e("s_and_b32 s13, s2, 7")
            e("s_mul_i32 s13, s13, 384")
            e("v_lshrrev_b32 v158, 2, v1")
            e("v_and_b32 v159, 3, v1")
        e("s_add_u32 s12, s12, s13")
        e("v_lshlrev_b32 v159, 7, v159")
        e(f"v_min_u32 v159, {bw-4}, v159")
        e("v_mul_u32_u24 v158, 2752, v158")
        e("v_add_u32 v158, v158, v159")
        nrow = 8 if UPART == 4 else 16
        for j in range(32 // nrow):
            k.vmem(f"buffer_load_dword v157, v158, {W1}, s12 offen {UFL}")
            if j + 1 < 32 // nrow:
                e(f"s_add_u32 s12, s12, {nrow*2752}")

    PL, PNWB, PFB = 10, 8, 8

    def p3_setup():
        out = ["v_lshrrev_b32 v30, 3, v1", "v_and_b32 v31, 7, v1", "v_and_b32 v18, 6, v30", "v_xor_b32 v31, v31, v18",
               "v_lshlrev_b32 v31, 4, v31", "v_lshl_add_u32 v18, v30, 10, v31", "v_lshl_add_u32 v22, v30, 12, v31",
               "s_lshl_b32 s12, s3, 17", "s_lshl_b32 s13, s11, 7", "s_add_u32 s12, s12, s13", "v_add_u32 v18, s12, v18",
               "s_lshl_b32 s87, s3, 5", "s_add_u32 s87, s87, s13",
               f"s_mul_i32 s12, s3, {352*4096}", "s_lshl_b32 s13, s10, 7", "s_add_u32 s12, s12, s13", "v_add_u32 v22, s12, v22"]
        for j in range(1, 4):
            out.append(f"v_add_u32 v{18+j}, {j*(8*1024-1024)}, v18")
            out.append(f"v_add_u32 v{22+j}, {j*(8*4096-1024)}, v22")
        out += ["s_and_b32 s12, s10, 30", "s_add_u32 s12, s12, s5", "s_lshl_b32 s12, s12, 8",
                f"s_add_u32 s12, s12, {CNT + 32*256}", "v_mov_b32 v240, s12",
                "s_lshl_b32 s12, s11, 2", "s_add_u32 s12, s12, s4", "s_lshl_b32 s12, s12, 8",
                f"s_add_u32 s12, s12, {CNT + 64*256}", "v_mov_b32 v241, s12"]
        out += ["v_lshrrev_b32 v228, 2, v2", "v_lshl_add_u32 v228, v3, 2, v228", "v_lshrrev_b32 v229, 1, v228",
                "v_and_b32 v229, 3, v229", "v_lshlrev_b32 v228, 7, v228", "v_lshl_add_u32 v228, v229, 5, v228",
                "v_and_b32 v229, 3, v2", "v_lshl_add_u32 v228, v229, 3, v228", "v_add_u32 v228, s7, v228"]
        for j in range(1, 4):
            out.append(f"v_xor_b32 v{228+j}, {32*j}, v228")
        out += ["s_lshl_b32 s12, s10, 16", "s_lshl_b32 s13, s3, 12", "s_add_u32 s12, s12, s13",
                f"s_add_u32 s12, s12, {OF}", "v_add_u32 v232, s12, v4"]
        for b in range(1, 4):
            out.append(f"v_add_u32 v{232+b}, {b*16384}, v232")
        out += [f"s_mul_i32 s13, s11, {4*43*1024}", f"s_mul_i32 s12, s3, {11*1024}", "s_add_u32 s13, s13, s12",
                f"s_add_u32 s13, s13, {GUF}"]
        for b in range(4):
            out += [f"s_add_u32 s12, s3, {1+b}", "s_and_b32 s12, s12, 3", "s_lshl_b32 s14, s12, 5",
                    f"v_xor_b32 v{224+b}, s14, v228", "s_mul_i32 s14, s12, 40960"]
            if b < 3:
                out += [f"s_add_u32 s14, s14, {(2-b)*4096}", f"v_add_u32 v{245+b}, s14, v4"]
            else:
                out += ["v_add_u32 v244, s14, v4"]
            out += [f"s_mul_i32 s12, s12, {43*1024}", "s_add_u32 s12, s12, s13", f"v_add_u32 v{236+b}, s12, v4"]
        out += ["s_mov_b32 s84, 4096", "s_mov_b32 s85, 8192", "s_mov_b32 s86, 10240",
                lambda: (e("s_cmp_eq_u32 s3, 3"), e(f"s_cselect_b32 s86, {hex(WS_BYTES)}, s86")),
                "s_lshl_b32 s12, s10, 6", "v_add_u32 v248, s12, v2", "v_lshlrev_b32 v242, 2, v248",
                f"v_add_u32 v242, {GG}, v242", "v_lshlrev_b32 v243, 1, v248",
                "v_and_b32 v249, 1, v3", "v_lshl_add_u32 v248, v249, 4, v248", "v_lshlrev_b32 v248, 10, v248",
                "v_lshrrev_b32 v249, 1, v3", "v_lshl_add_u32 v248, v249, 4, v248", "v_add_u32 v249, 32768, v248"]
        return out

    def yblk(t):
        return (t - 4 + 10) % 11

    def pslot(t):
        return t % 5 if t < 10 else t - 5

    def p_wdma(t, toks):
        out = [f"s_add_u32 m0, s7, {pslot(t)*4096}",
               f"s_mov_b32 s101, {t*32*1024 if t < 4 else yblk(t)*32*4096}"]
        for j in range(4):
            out.append(dmai(f"v{(18 if t < 4 else 22)+j}", WO if t < 4 else W2, "s101", j*1024, toks, t, WFL))
        return out

    def p_wread(t):
        out = []
        for j in range(4):
            r = (t % PNWB)*16 + j*4
            o = pslot(t)*4096
            ar = (224 if t < 4 else 228) + j
            out.append(f"ds_read_b64_tr_b16 {A(r,2)}, v{ar} offset:{o}")
            out.append(f"ds_read_b64_tr_b16 {A(r+2,2)}, v{ar} offset:{o+2048}")
        return out

    def p3_e1(d):
        out = []
        for t in range(5):
            out += p_wdma(t, d)
        return out

    def p3_e2r(d):
        out = []
        for t in range(5):
            out.append(lambda t=t: k.wait_vm(d[t]))
            out += p_wread(t)
        return out

    def p3_e2d():
        out = []
        for t in range(5, 10):
            out += p_wdma(t, {})
        return out

    def oflag():
        k.vmem(f"buffer_load_dword v250, v240, {WS}, 0 offen sc1")

    def zload():
        return k.vmem(f"buffer_load_dword v31, v5, {DBG}, 0 offen sc1")

    def zcheck():
        if opt.get("nowait"):
            return
        dn = k.newlab("L_z")
        e("v_cmp_gt_u32 vcc, 1, v31")
        e(f"s_cbranch_vccz {dn}")
        k.poll("v5", DBG, 1)
        k.label(dn)

    k.c("================= Q role: LN =================")
    k.vm = 0
    e("s_lshl_b32 s15, s8, 7")
    e("s_lshl_b32 s12, s9, 4")
    e("s_add_u32 s15, s15, s12")
    e("s_lshl_b32 s12, s3, 2")
    e("s_add_u32 s12, s12, s15")
    e("s_lshl_b32 s12, s12, 10")
    e("v_lshlrev_b32 v7, 4, v2")
    e("v_lshl_add_u32 v6, v3, 10, v7")
    e("s_waitcnt lgkmcnt(0)")
    srd(X)
    tx = [k.vmem(f"buffer_load_dwordx4 {V(32+4*j,4)}, v6, {X}, s12 offen offset:{256*j}") for j in range(4)]
    srd(GW)
    tg = [k.vmem(f"buffer_load_dwordx4 {V(48+4*j,4)}, v7, {GW}, 0 offen offset:{256*j}") for j in range(4)]
    srd(WQKV)
    if not opt.get("q_late", 0):
        touch_xw()
    for n_ in (WS, DBG, WO, W2, B2, OUT):
        srd(n_)
    diag_clear()
    e("v_lshrrev_b32 v12, 3, v1")
    e("v_and_b32 v13, 7, v1")
    e("v_lshrrev_b32 v14, 1, v12")
    e("v_xor_b32 v14, v14, v13")
    e("v_lshlrev_b32 v14, 4, v14")
    e("v_lshl_add_u32 v14, v12, 10, v14")
    e("v_xor_b32 v15, 64, v14")
    e("s_lshl_b32 s13, s8, 17")
    e("s_lshl_b32 s12, s3, 15")
    e("s_add_u32 s13, s13, s12")
    e("v_add_u32 v144, s13, v14")
    e(f"s_add_u32 s13, s13, {7168}")
    e("v_add_u32 v145, s13, v15")
    e(f"v_add_u32 v146, {2*7168}, v144")
    e(f"v_add_u32 v147, {2*7168}, v145")
    e("v_and_b32 v16, 2, v12")
    e("v_xor_b32 v16, v16, v13")
    e("v_lshlrev_b32 v16, 4, v16")
    e("v_xor_b32 v17, 64, v16")
    e("v_mul_u32_u24 v12, 3072, v12")
    e("s_mul_i32 s13, s3, 49152")
    e("s_lshl_b32 s12, s9, 7")
    e("s_add_u32 s13, s13, s12")
    e("v_add3_u32 v148, v16, v12, s13")
    e(f"s_add_u32 s13, s13, {8*3072-1024}")
    e("v_add3_u32 v149, v17, v12, s13")
    for sec in (1, 2):
        e(f"v_add_u32 v{148+2*sec}, {1024*sec}, v148")
        e(f"v_add_u32 v{149+2*sec}, {1024*sec}, v149")
    e("s_lshl_b32 s90, s3, 12")
    e("s_lshl_b32 s91, s3, 11")
    if ROTQ:
        e("s_add_u32 s88, s8, s9")
        e("s_and_b32 s88, s88, 3")
        e("s_lshl_b32 s88, s88, 1")
        e("s_xor_b32 s12, s4, s5")
        e("s_and_b32 s12, s12, 1")
        e("s_add_u32 s88, s88, s12")
        e("s_lshl_b32 s88, s88, 7")
    else:
        e("s_mov_b32 s88, 0")
    ct = {}

    def qdma(c):
        slot = c % 4
        out = [f"s_add_u32 m0, s90, {slot*40960}", "s_mul_i32 s89, s88, 1536"]
        for j in range(4):
            out.append(dmai(f"v{144+j}", X, "s88", j*1024))
        for sec in range(3):
            out.append(f"s_add_u32 m0, s91, {slot*40960 + 16384 + sec*8192}")
            if sec == 0:
                out.append("s_add_u32 s88, s88, 128")
            if sec == 1:
                out.append("s_and_b32 s88, s88, 1023")
            for j in range(2):
                out.append(dmai(f"v{148+2*sec+j}", WQKV, "s89", j*1024, ct, c, WFL))
        out.append(lambda: ctd.add(c))
        return out
    ctd = set()
    nearly = opt.get("q_early", 0)
    for c in range(nearly):
        run_all(k, qdma(c))
    LNB = 3 * 40960
    e("s_mul_i32 s12, s3, 4352")
    e(f"s_add_u32 s12, s12, {LNB}")
    e("v_mul_u32_u24 v8, 1088, v3")
    e("v_add3_u32 v8, v8, v7, s12")
    e("v_and_b32 v9, 1, v3")
    e("v_lshlrev_b32 v9, 3, v9")
    e("v_lshrrev_b32 v10, 2, v2")
    e("v_add_u32 v9, v9, v10")
    e("v_mul_u32_u24 v9, 1088, v9")
    e("v_lshrrev_b32 v10, 1, v3")
    e("v_lshl_add_u32 v9, v10, 5, v9")
    e("v_and_b32 v11, 3, v2")
    e("v_lshl_add_u32 v9, v11, 3, v9")
    e("s_lshl_b32 s12, s3, 8")
    e(f"s_add_u32 s12, s12, {LNB}")
    e("v_add_u32 v9, s12, v9")
    e(f"v_mul_u32_u24 v10, {HS}, v10")
    e("v_and_b32 v11, 1, v3")
    e("v_lshl_add_u32 v10, v11, 8, v10")
    e("v_add_u32 v10, v10, v7")
    e(f"s_mul_i32 s84, s3, {8*HS}")
    e("s_lshl_b32 s12, s15, 5")
    e("s_add_u32 s84, s84, s12")
    if HF:
        e(f"s_add_u32 s84, s84, {HF}")
    e("s_lshl_b32 s12, s3, 2")
    e("s_add_u32 s12, s12, s15")
    e("s_lshl_b32 s12, s12, 2")
    e(f"s_add_u32 s12, s12, {GG}")
    e("v_lshl_add_u32 v11, v3, 2, s12")
    e("v_cmp_eq_u32 vcc, 0, v2")
    e("v_mov_b32 v12, 0x7ffffff0")
    e("s_mov_b32 s85, 0x3f803f80")
    e("v_cndmask_b32 v11, v12, v11, vcc")
    e("s_lshr_b32 s96, s3, 1")
    e("s_and_b32 s97, s3, 1")
    e("v_lshrrev_b32 v18, 1, v2")
    e("v_xor_b32 v18, v18, v3")
    e("v_lshlrev_b32 v18, 4, v18")
    e("v_lshl_add_u32 v18, v2, 7, v18")
    e("s_lshl_b32 s12, s96, 13")
    e("v_add_u32 v18, s12, v18")
    e("v_xor_b32 v19, 64, v18")
    e("v_add_u32 v20, 81920, v18")
    e("v_add_u32 v21, 81920, v19")
    e("v_lshrrev_b32 v22, 2, v2")
    e("v_lshrrev_b32 v23, 3, v2")
    e("v_and_b32 v24, 1, v3")
    e("v_lshl_add_u32 v23, v24, 1, v23")
    e("s_lshl_b32 s12, s97, 1")
    e("v_xor_b32 v23, s12, v23")
    e("v_lshl_add_u32 v22, v3, 3, v22")
    e("v_lshlrev_b32 v22, 7, v22")
    e("v_lshl_add_u32 v22, v23, 5, v22")
    e("v_and_b32 v24, 3, v2")
    e("v_lshl_add_u32 v22, v24, 3, v22")
    e("v_add_u32 v22, 16384, v22")
    e("v_xor_b32 v23, 32, v22")
    e("v_add_u32 v24, 81920, v22")
    e("v_add_u32 v25, 81920, v23")
    e("v_lshrrev_b32 v154, 3, v1")
    e("v_and_b32 v155, 7, v1")
    e("v_lshlrev_b32 v154, 12, v154")
    e("v_lshl_add_u32 v154, v155, 7, v154")
    e("s_lshl_b32 s12, s6, 2")
    e("s_add_u32 s12, s12, s3")
    if opt.get("pf_split", 1):
        e("s_lshl_b32 s13, s5, 5")
        e("s_xor_b32 s13, s13, s12")
    else:
        e("s_mov_b32 s13, s12")
    e(f"s_mul_i32 s13, s13, {24*4096}")
    e("s_lshl_b32 s14, s4, 10")
    e("s_add_u32 s13, s13, s14")
    e("v_add_u32 v154, s13, v154")
    e("v_lshrrev_b32 v155, 2, v1")
    e("v_lshlrev_b32 v155, 10, v155")
    e("v_and_b32 v156, 3, v1")
    e("v_lshl_add_u32 v155, v156, 7, v155")
    e("s_lshl_b32 s13, s12, 14")
    e("s_lshl_b32 s14, s5, 9")
    e("s_add_u32 s13, s13, s14")
    e("v_add_u32 v155, s13, v155")
    e("s_lshl_b32 s13, s5, 4")
    e("s_add_u32 s13, s13, s6")
    e(f"s_mul_i32 s13, s13, {HS}")
    e("s_lshl_b32 s14, s3, 14")
    e("s_add_u32 s13, s13, s14")
    if HF:
        e(f"s_add_u32 s13, s13, {HF}")
    e("v_lshl_add_u32 v156, v1, 7, s13")
    e("s_and_b32 s13, s2, 7")
    e("s_lshl_b32 s13, s13, 8")
    e(f"s_add_u32 s13, s13, {CNT + 96*256}")
    e("v_and_b32 v158, 3, v1")
    e("v_lshl_add_u32 v158, v158, 11, s13")

    k.wait_vm(tx[3])
    if opt.get("q_late", 0):
        touch_xw()
    QFAST = opt.get("q_fast", 1)
    ln_start = len(k.l)
    e("v_dot2_f32_bf16 v26, v32, s85, 0")
    e("v_dot2_f32_bf16 v27, v33, s85, 0")
    for j in range(2, 16):
        e(f"v_dot2_f32_bf16 v{26+(j&1)}, v{32+j}, s85, v{26+(j&1)}")
    unp = []
    for j in range(16):
        unp.append(f"v_lshlrev_b32 v{64+2*j}, 16, v{32+j}")
        unp.append(f"v_and_b32 v{65+2*j}, 0xffff0000, v{32+j}")
    for s in unp[:4]:
        e(s)
    e("v_add_f32 v26, v26, v27")
    ui = 4
    for rot in (8, 4, 2, 1):
        for s in unp[ui:ui+3]:
            e(s)
        ui += 3
        e(f"v_add_f32_dpp v26, v26, v26 row_ror:{rot} row_mask:0xf bank_mask:0xf")
    for s in unp[ui:]:
        e(s)
    e(f"v_mul_f32 v26, {hex(f32bits(-1.0/512))}, v26")
    for j in range(16):
        e(f"v_pk_add_f32 {V(64+2*j,2)}, {V(64+2*j,2)}, v[26:27] op_sel_hi:[1,0]")
    e("v_pk_mul_f32 v[96:97], v[64:65], v[64:65]")
    e("v_pk_mul_f32 v[98:99], v[66:67], v[66:67]")
    for j in range(2, 16):
        a_ = 96 + 2 * (j & 1)
        e(f"v_pk_fma_f32 {V(a_,2)}, {V(64+2*j,2)}, {V(64+2*j,2)}, {V(a_,2)}")
    e("v_pk_add_f32 v[96:97], v[96:97], v[98:99]")
    e("v_add_f32 v26, v96, v97")
    k.wait_vm(tg[3])
    gd = ["v_dot2_f32_bf16 v28, v32, v48, 0", "v_dot2_f32_bf16 v29, v33, v49, 0"]
    for j in range(2, 16):
        gd.append(f"v_dot2_f32_bf16 v{28+(j&1)}, v{32+j}, v{48+j}, v{28+(j&1)}")
    gi = 0
    for rot in (8, 4, 2, 1):
        e(gd[gi]); e(gd[gi+1]); gi += 2
        e(f"v_add_f32_dpp v26, v26, v26 row_ror:{rot} row_mask:0xf bank_mask:0xf")
    e(f"v_mov_b32 v27, {hex(f32bits(1e-5))}")
    e(f"v_fmac_f32 v27, {hex(f32bits(1.0/512))}, v26")
    e("v_rsq_f32 v26, v27")
    e(gd[gi]); gi += 1
    for j in range(16):
        e(f"v_pk_mul_f32 {V(64+2*j,2)}, {V(64+2*j,2)}, v[26:27] op_sel_hi:[1,0]")
    for j in range(16):
        e(f"v_cvt_pk_bf16_f32 v{100+j}, v{64+2*j}, v{65+2*j}")
        if j % 4 == 3:
            e(f"ds_write_b128 v8, {V(100+j-3,4)} offset:{256*(j//4)}")
    while gi < 16:
        e(gd[gi]); gi += 1
    if QFAST:
        body = [x.strip() for x in k.l[ln_start:]]
        del k.l[ln_start:]
        body = [(lambda: k.wait_vm(tg[3])) if x.startswith("s_waitcnt vmcnt") else x for x in body]
        skip = opt.get("q_skip", 0)
        run_all(k, body[:skip] + mix(body[skip:], qdma(0) + qdma(1)))
    k.lgkm0()
    e("s_barrier")
    for j in range(4):
        e(f"ds_read_b64_tr_b16 {V(64+4*j,2)}, v9 offset:{64*j}")
        e(f"ds_read_b64_tr_b16 {V(66+4*j,2)}, v9 offset:{64*j+4*1088}")
    e("v_add_f32 v28, v28, v29")
    th = None
    for j in range(4):
        e(f"s_waitcnt lgkmcnt({6-2*j})") if not opt.get("diag") else k.lgkm0()
        e(f"s_add_u32 s12, s84, {j*2*HS}")
        th = k.vmem(f"buffer_store_dwordx4 {V(64+4*j,4)}, v10, {WS}, s12 offen sc1")
    for rot in (8, 4, 2, 1):
        e(f"v_add_f32_dpp v28, v28, v28 row_ror:{rot} row_mask:0xf bank_mask:0xf")
        k.nop(2)
    e(f"v_mul_f32 v28, {hex(f32bits(-1.4426950408889634))}, v28")
    e("v_exp_f32 v28, v28")
    k.nop(1)
    e("v_add_f32 v28, 1.0, v28")
    e("v_rcp_f32 v28, v28")
    k.nop(1)
    th = k.vmem(f"buffer_store_dword v28, v11, {WS}, 0 offen sc1")
    k.stamp(1)

    th = zload()
    npre = 2 if QFAST else max(nearly, opt.get("q_pre", 2))

    def h_arrive():
        k.stamp(2)
        e("s_lshr_b32 s12, s8, 2")
        e("s_lshl_b32 s12, s12, 11")
        e(f"s_add_u32 s12, s12, {CNT + 96*256}")
        k.arrive(WS, "s12", 8)
    if not QFAST:
        for c in range(nearly, npre):
            run_all(k, qdma(c))
        k.wait_vm(th)
        zcheck()
        e("s_barrier")
        h_arrive()

    ACC = 160
    FR = [64, 104]

    def qreads(t):
        c, kk = t // 2, t % 2
        slot = c % 4
        hi = slot >= 2
        so = (slot % 2) * 40960
        base = FR[t % 2]
        out = []
        xa = 18 + kk + (2 if hi else 0)
        for i in range(4):
            out.append(f"ds_read_b128 {V(base+4*i,4)}, v{xa} offset:{so + i*2048}")
        for sec in range(3):
            for hh in range(2):
                wa = 22 + hh + (2 if hi else 0)
                r = base + 16 + (sec*2 + hh)*4
                o = so + sec*8192 + kk*4096
                out.append(f"ds_read_b64_tr_b16 {V(r,2)}, v{wa} offset:{o}")
                out.append(f"ds_read_b64_tr_b16 {V(r+2,2)}, v{wa} offset:{o+512}")
        return out

    k.wait_vm(ct[0])
    e("s_barrier")
    k.stamp(3)
    run_all(k, qreads(0))
    k.lgkm0()
    pend = []
    for c in range(npre, 4):
        pend += qdma(c)
    PFT = opt.get("pf_t", 11)
    HT = opt.get("h_t", 4)
    QPER = opt.get("q_per", 10)
    qdone = set(range(npre))
    for t in range(16):
        qp = dict(zip((0, 1, 2, 3, 4, 5, 6, 8, 10, 12, 14), (1, 2, 3, 4, 5, 6, 7, 8, 0, 9, 10)))
        if t in qp:
            k.stamp(qp[t], True)
        head = []
        if t % 2 == 1 and t + 1 < 16:
            c = (t + 1) // 2
            assert c in ctd, (t, c)
            head = [lambda c=c: k.wait_vm(ct[c]), "s_barrier"]
            if QFAST and c == 2:
                head = [lambda c=c: (k.wait_vm(ct[c]), zcheck()), "s_barrier", h_arrive]
            if c + 3 < 8:
                pend = pend + qdma(c + 3)
        vm = pend[:QPER]
        pend = pend[len(vm):]
        if t == HT - 1 and opt.get("pfh", 0):
            def hl():
                ct["h"] = k.vmem(f"buffer_load_dword v159, v158, {WS}, 0 offen sc1")
            vm = vm + [hl]
        if t == HT and opt.get("pfh", 0):
            vm = vm + [lambda: k.wait_vm(ct["h"]), "v_cmp_gt_u32 vcc, 32, v159", "s_nop 0",
                       lambda: (e("s_cmp_eq_u64 vcc, 0"), e(f"s_cselect_b32 s13, 0, {hex(WS_BYTES)}")),
                       lambda: k.vmem(f"buffer_load_dword v157, v156, {WS}, s13 offen sc1"),
                       "s_add_u32 s13, s13, 8192", f"s_min_u32 s13, s13, {hex(WS_BYTES)}",
                       lambda: k.vmem(f"buffer_load_dword v157, v156, {WS}, s13 offen sc1")]
        if t == PFT and opt.get("pf", 1):
            assert not pend and t >= 7
            for j in range(opt.get("pf_n", 2)):
                vm = vm + [f"s_mov_b32 s13, {j*8*4096}", lambda: k.vmem(f"buffer_load_dword v157, v154, {W2}, s13 offen")]
            vm = vm + [lambda: k.vmem(f"buffer_load_dword v157, v155, {WO}, 0 offen")]
        reads = qreads(t + 1) if t + 1 < 16 else []
        base = FR[t % 2]
        mfmas = []
        for sec in (1, 2, 0):
            for hh in range(2):
                for i in range(4):
                    d = ACC + sec*32 + (hh*4 + i)*4
                    xf = V(base + 4*i, 4)
                    wf = V(base + 16 + (sec*2 + hh)*4, 4)
                    cc = "0" if t == 0 else V(d, 4)
                    mfmas.append((None, mf(V(d, 4), wf, xf, cc) if sec == 0 else mf(V(d, 4), xf, wf, cc)))
        interleave(k, mfmas, head + mix(reads, vm), tail=4)
        if reads:
            k.lgkm0()
    k.stamp(4)
    k.stamp(11, True)

    e(f"s_mov_b32 s92, {hex(LOG2E)}")
    e(f"s_mov_b32 s93, {hex(LOG2E)}")
    e(f"s_mov_b32 s94, {hex(f32bits(1e-6))}")
    e(f"s_mov_b32 s95, {hex(f32bits(1e-6))}")
    e("v_mov_b32 v26, s85")
    e("v_mov_b32 v27, s85")
    e("v_mov_b32 v28, s85")
    e("v_mov_b32 v29, s85")

    def phi(src, dst):
        for j in range(16):
            e(f"v_pk_mul_f32 {V(64+2*j,2)}, {V(src+2*j,2)}, s[92:93]")
        for j in range(32):
            e(f"v_exp_f32 v{64+j}, v{64+j} clamp")
            e(f"v_max_f32 v{src+j}, 0, v{src+j}")
        for j in range(16):
            e(f"v_pk_add_f32 {V(64+2*j,2)}, {V(64+2*j,2)}, s[94:95]")
        for j in range(16):
            e(f"v_pk_add_f32 {V(64+2*j,2)}, {V(64+2*j,2)}, {V(src+2*j,2)}")
        for j in range(16):
            e(f"v_cvt_pk_bf16_f32 v{dst+j}, v{64+2*j}, v{65+2*j}")
    PK, PV, PQ = 96, 112, 128
    XB = 36864
    phi(ACC + 32, PK)
    for j in range(16):
        e(f"v_cvt_pk_bf16_f32 v{PV+j}, v{ACC+64+2*j}, v{ACC+65+2*j}")
    e("s_barrier")
    k.nop(1)
    for p in range(2):
        for hh in range(2):
            a_ = V(PK + hh*8 + p*4, 4)
            b_ = V(PV + hh*8 + p*4, 4)
            e(mf(V(32+8*hh, 4), a_, b_, "0" if p == 0 else V(32+8*hh, 4)))
            e(mf(V(36+8*hh, 4), a_, "v[26:29]", "0" if p == 0 else V(36+8*hh, 4)))
    e("v_add_u32 v6, s7, v4")
    e("s_xor_b32 s12, s3, 2")
    e("s_mul_i32 s12, s12, 40960")
    e("v_add_u32 v7, s12, v4")
    k.nop(4)
    l1 = k.newlab()
    l2 = k.newlab()
    e("s_cmp_eq_u32 s96, 0")
    e(f"s_cbranch_scc1 {l1}")
    e(f"ds_write_b128 v6, v[32:35] offset:{XB}")
    e(f"ds_write_b128 v6, v[36:39] offset:{XB+1024}")
    k.lgkm0()
    for j in range(8):
        e(f"v_mov_b32 v{32+j}, v{40+j}")
    e(f"s_branch {l2}")
    k.label(l1)
    e(f"ds_write_b128 v6, v[40:43] offset:{XB}")
    e(f"ds_write_b128 v6, v[44:47] offset:{XB+1024}")
    k.label(l2)
    k.lgkm0()
    e("s_barrier")
    e(f"ds_read_b128 v[40:43], v7 offset:{XB}")
    e(f"ds_read_b128 v[44:47], v7 offset:{XB+1024}")
    e("s_lshl_b32 s15, s9, 2")
    e("s_lshl_b32 s12, s97, 1")
    e("s_add_u32 s15, s15, s12")
    e("s_add_u32 s15, s15, s96")
    e("s_lshl_b32 s12, s15, 4")
    e("s_add_u32 s12, s12, s8")
    e("s_lshl_b32 s13, s12, 10")
    e(f"s_add_u32 s13, s13, {KVP}")
    e("s_lshl_b32 s12, s12, 6")
    e(f"s_add_u32 s12, s12, {ZP}")
    e("v_lshlrev_b32 v8, 4, v3")
    e("v_cmp_eq_u32 vcc, 0, v2")
    e("v_mov_b32 v9, 0x7ffffff0")
    k.nop(1)
    e("v_cndmask_b32 v8, v9, v8, vcc")
    k.lgkm0()
    for j in range(4):
        e(f"v_pk_add_f32 {V(32+2*j,2)}, {V(32+2*j,2)}, {V(40+2*j,2)}")
    k.vmem(f"buffer_store_dwordx4 v[32:35], v4, {WS}, s13 offen sc1")
    k.vmem(f"buffer_store_dwordx4 v[36:39], v8, {WS}, s12 offen sc1")
    run_all(k, p3_setup())
    k.wait_vm0()
    e("s_barrier")
    e(f"s_lshl_b32 s12, s9, 10")
    e(f"s_add_u32 s12, s12, {CNT}")
    k.arrive(WS, "s12", 4)
    e("s_lshl_b32 s13, s4, 8")
    e("s_add_u32 s12, s12, s13")
    e("v_mov_b32 v8, s12")
    k.stamp(5)
    if opt.get("pf", 1):
        for j in range(opt.get("pf_n", 2), 3):
            e(f"s_mov_b32 s13, {j*8*4096}")
            k.vmem(f"buffer_load_dword v157, v154, {W2}, s13 offen")
    qd = {}
    if opt.get("q_p3early", 0):
        run_all(k, p3_e1(qd))
    phi(ACC, PQ)
    k.poll("v8", WS, 16)
    k.stamp(6)
    e("s_lshl_b32 s13, s15, 14")
    e(f"s_add_u32 s13, s13, {KVP}")
    e("s_lshl_b32 s12, s15, 10")
    e(f"s_add_u32 s12, s12, {ZP}")
    e("v_lshlrev_b32 v8, 6, v2")
    e("v_lshl_add_u32 v8, v3, 4, v8")
    tz = k.vmem(f"buffer_load_dwordx4 v[36:39], v8, {WS}, s12 offen sc1")
    tp = []
    for j in range(16):
        if j % 4 == 0 and j:
            e(f"s_add_u32 s13, s13, 4096")
        tp.append(k.vmem(f"buffer_load_dwordx4 {V(160+4*j,4)}, v4, {WS}, s13 offen offset:{(j%4)*1024} sc1"))
    k.wait_vm(tz)
    for rot in (8, 4, 2, 1):
        for r in range(4):
            e(f"v_add_f32_dpp v{36+r}, v{36+r}, v{36+r} row_ror:{rot} row_mask:0xf bank_mask:0xf")
    for j in range(1, 16):
        k.wait_vm(tp[j])
        e(f"v_pk_add_f32 v[160:161], v[160:161], {V(160+4*j,2)}")
        e(f"v_pk_add_f32 v[162:163], v[162:163], {V(162+4*j,2)}")
    e("v_cvt_pk_bf16_f32 v32, v160, v161")
    e("v_cvt_pk_bf16_f32 v33, v162, v163")
    e("v_cvt_pk_bf16_f32 v34, v36, v37")
    e("v_cvt_pk_bf16_f32 v35, v38, v39")
    e(f"ds_write_b128 v6, v[32:35] offset:{XB+2048}")
    k.lgkm0()
    e("s_barrier")
    l1 = k.newlab()
    l2 = k.newlab()
    e("s_cmp_eq_u32 s96, 0")
    e(f"s_cbranch_scc1 {l1}")
    e(f"ds_read_b128 v[40:43], v7 offset:{XB+2048}")
    e(f"ds_read_b128 v[44:47], v6 offset:{XB+2048}")
    e(f"s_branch {l2}")
    k.label(l1)
    e(f"ds_read_b128 v[40:43], v6 offset:{XB+2048}")
    e(f"ds_read_b128 v[44:47], v7 offset:{XB+2048}")
    k.label(l2)
    e("s_lshl_b32 s15, s8, 3")
    e("s_lshl_b32 s12, s96, 2")
    e("s_add_u32 s15, s15, s12")
    e("s_lshl_b32 s15, s15, 4")
    e("s_lshl_b32 s12, s9, 1")
    e("s_add_u32 s15, s15, s12")
    e("s_add_u32 s15, s15, s97")
    e("s_lshl_b32 s15, s15, 10")
    e(f"s_add_u32 s15, s15, {OF}")
    k.lgkm0()
    for hh in range(2):
        for i in range(4):
            q_ = V(PQ + (hh*4+i)*2, 2)
            e(f"v_mfma_f32_16x16x16_bf16 {V(192+(hh*4+i)*4,4)}, {V(42+4*hh,2)}, {q_}, 0")
    for hh in range(2):
        for i in range(4):
            q_ = V(PQ + (hh*4+i)*2, 2)
            e(f"v_mfma_f32_16x16x16_bf16 {V(160+(hh*4+i)*4,4)}, {V(40+4*hh,2)}, {q_}, 0")
    k.nop(1)
    for n_ in range(8):
        e(f"v_add_f32 v{192+4*n_}, s94, v{192+4*n_}")
    for n_ in range(8):
        e(f"v_rcp_f32 v{192+4*n_}, v{192+4*n_}")
    for n_ in range(8):
        e(f"v_pk_mul_f32 {V(160+4*n_,2)}, {V(160+4*n_,2)}, {V(192+4*n_,2)} op_sel_hi:[1,0]")
        e(f"v_pk_mul_f32 {V(162+4*n_,2)}, {V(162+4*n_,2)}, {V(192+4*n_,2)} op_sel_hi:[1,0]")
    for i in range(4):
        for hh in range(2):
            s_ = 160 + (hh*4+i)*4
            e(f"v_cvt_pk_bf16_f32 v{64+4*i+2*hh}, v{s_}, v{s_+1}")
            e(f"v_cvt_pk_bf16_f32 v{65+4*i+2*hh}, v{s_+2}, v{s_+3}")
        e(f"s_add_u32 s12, s15, {i*16384}")
        tos = k.vmem(f"buffer_store_dwordx4 {V(64+4*i,4)}, v4, {WS}, s12 offen sc1")
    qe1 = p3_e1(qd) if not opt.get("q_p3early", 0) else []
    nq = 6 * opt.get("q_e1pre", 2)
    run_all(k, qe1[:nq])
    k.wait_vm(tos)
    e("s_barrier")
    e("s_lshl_b32 s12, s8, 9")
    e(f"s_add_u32 s12, s12, {CNT + 32*256}")
    k.arrive(WS, "s12", 2)
    k.stamp(7)
    run_all(k, qe1[nq:])
    run_all(k, p3_e2r(qd))
    oflag()
    k.lgkm0()
    run_all(k, p3_e2d())
    e("s_branch L_p3")

    k.label("L_urole")
    k.c("================= U role =================")
    k.vm = 0
    if UPART == 8:
        e("s_and_b32 s9, s6, 7")
        e("s_bfe_u32 s8, s6, 0x10003")
        e("s_and_b32 s12, s2, 7")
        e("s_lshl_b32 s12, s12, 1")
        e("s_add_u32 s8, s8, s12")
    e("v_lshrrev_b32 v12, 2, v1")
    e("v_and_b32 v13, 3, v1")
    e(f"s_mul_i32 s13, s3, {512*2752}")
    e("s_mul_i32 s12, s8, 192")
    e("s_add_u32 s13, s13, s12")
    for j in range(3):
        e(f"v_add_u32 v14, {16*j}, v12")
        e("v_mul_u32_u24 v15, 43, v14")
        e("v_lshrrev_b32 v15, 7, v15")
        e("v_mul_u32_u24 v16, 3, v15")
        e("v_sub_u32 v14, v14, v16")
        e("v_lshrrev_b32 v16, 2, v15")
        e("v_and_b32 v16, 2, v16")
        e("v_xor_b32 v16, v16, v13")
        e("v_lshlrev_b32 v16, 4, v16")
        e("v_lshl_add_u32 v16, v14, 6, v16")
        e("v_mul_u32_u24 v15, 2752, v15")
        e(f"v_add3_u32 v{6+j}, v15, v16, s13")
        if j:
            e(f"v_subrev_u32 v{6+j}, {j*1024}, v{6+j}")
        e(f"v_add_u32 v{9+j}, {16*2752}, v{6+j}")
    if ROTU:
        e("s_add_u32 s91, s9, s8" if ROTU == 1 else "s_mov_b32 s91, s9")
        e("s_and_b32 s91, s91, 3")
        e("s_lshl_b32 s91, s91, 2")
    else:
        e("s_mov_b32 s91, 0")
    e(f"s_mul_i32 s88, s91, {32*2752}")
    e("s_lshl_b32 s91, s91, 10")
    e("s_waitcnt lgkmcnt(0)")
    srd(W1)
    e("s_cmp_eq_u32 s8, 15")
    e("s_cbranch_scc1 L_spare")
    srd(B1)
    e("s_mul_i32 s12, s8, 192")
    e("v_lshlrev_b32 v30, 3, v3")
    for j in range(6):
        k.vmem(f"buffer_load_dwordx2 {V(184+2*j,2)}, v30, {B1}, s12 offen offset:{32*j}")
    if opt.get("u_late", 0):
        k.wait_vm0()
    touch_w1()
    UL, UNWB, UFB = 6, 7, 8
    UR = opt.get("u_r", 2)
    RB = 22528

    def u_wdma(t, toks):
        out = []
        for j in range(6):
            if j % 3 == 0:
                out.append(f"s_add_u32 m0, s7, {(t % UL)*6144 + j*1024}")
            out.append(dmai(f"v{6+j}", W1, "s88", (j % 3)*1024, toks, t, UFL if t < opt.get("u_nt_steps", 0) else ""))
        out.append(f"s_add_u32 s88, s88, {32*2752}")
        if t % 4 == 3:
            out.append(lambda: (e(f"s_cmp_eq_u32 s88, {16*32*2752}"), e("s_cselect_b32 s88, 0, s88")))
        return out

    def u_wread(t):
        out = []
        for fb in range(6):
            r = 72 + (t % UNWB)*24 + fb*4
            o = (t % UL)*6144 + (fb >> 1)*64
            out.append(f"ds_read_b64_tr_b16 {A(r,2)}, v{16+(fb&1)} offset:{o}")
            out.append(f"ds_read_b64_tr_b16 {A(r+2,2)}, v{16+(fb&1)} offset:{o+768}")
        return out

    def u_fload(t, b, toks):
        def f():
            toks[(t, b)] = k.vmem(f"buffer_load_dwordx4 {V(32+(t%UFB)*16+4*b,4)}, v{12+b}, {WS}, s91 offen offset:{(t%4)*1024} sc1")
        out = [f]
        if t % 4 == 3 and b == 3:
            out.append("s_add_u32 s91, s91, 4096")
            out.append("s_and_b32 s91, s91, 0x3fff")
        return out

    def uacc(b, j):
        return A((b*6 + j)*4, 4) if b < 3 else V(160 + j*4, 4)

    def u_mm(t, b, j):
        d = uacc(b, j)
        return mf(d, A(72 + (t % UNWB)*24 + j*4, 4), V(32+(t % UFB)*16+4*b, 4), "0" if t == 0 else d)

    su = SK(k, 16, UL, UNWB, UFB, 6, u_wdma, u_wread, u_fload, u_mm)
    if not opt.get("pfw", 0):
        su.issue_w(2)
    for n_ in (WS, DBG, WO, W2, B2, OUT):
        srd(n_)
    diag_clear()
    e("v_lshrrev_b32 v16, 2, v2")
    e("v_lshl_add_u32 v16, v3, 3, v16")
    e("v_mul_u32_u24 v16, 192, v16")
    e("v_and_b32 v12, 3, v2")
    e("v_lshl_add_u32 v16, v12, 3, v16")
    e("v_add_u32 v16, s7, v16")
    e("v_and_b32 v12, 1, v3")
    e("v_lshlrev_b32 v12, 5, v12")
    e("v_xor_b32 v13, 32, v12")
    e("v_add_u32 v17, v16, v13")
    e("v_add_u32 v16, v16, v12")
    e(f"s_mul_i32 s13, s9, {4*HS}")
    e("s_lshl_b32 s12, s3, 14")
    e("s_add_u32 s13, s13, s12")
    if HF:
        e(f"s_add_u32 s13, s13, {HF}")
    for b in range(4):
        e(f"s_add_u32 s12, s3, {1+b}")
        e("s_and_b32 s12, s12, 3")
        e(f"s_mul_i32 s12, s12, {HS}")
        e("s_add_u32 s12, s12, s13")
        e(f"v_add_u32 v{12+b}, s12, v4")
    run_all(k, p3_setup())
    e(f"s_add_u32 s12, s7, {RB}")
    e("v_add_u32 v26, s12, v4")
    for o in range(1, 4):
        e(f"s_add_u32 s12, s3, {o}")
        e("s_and_b32 s12, s12, 3")
        e("s_mul_i32 s12, s12, 40960")
        e(f"s_add_u32 s12, s12, {RB + (3-o)*6144}")
        e(f"v_add_u32 v{26+o}, s12, v4")
    e("s_and_b32 s12, s2, 7")
    e("s_lshl_b32 s13, s3, 3")
    e("s_add_u32 s12, s12, s13")
    e("s_lshl_b32 s12, s12, 8")
    e(f"s_add_u32 s12, s12, {CNT + 96*256}")
    e("v_mov_b32 v196, s12")
    su.issue_w(4)
    tz_ = zload()
    su.issue_w(UL)
    hold = opt.get("u_hold", 2)
    k.stamp(5)
    su.to_regs(UR, hold)
    k.wait_vm(tz_)
    zcheck()
    k.stamp(1)
    drained = k.poll2("v196", WS, 32, lambda: su.issue_w(UR + UL))
    k.stamp(2)
    k.stamp(1, True)
    seq = [(t, b) for t in range(12) for b in range(4)] + [(t, b) for b in range(4) for t in range(12, 16)]

    def u_post(win):
        if win < 13:
            return []
        b = win - 13
        return [f"ds_write_b128 v26, {uacc(b, j)} offset:{(b*6+j)*1024}" for j in range(6)]
    ud = {}
    pe = p3_e1(ud)
    bias = []
    for j in range(6):
        bias += [f"v_lshlrev_b32 v{200+4*j}, 16, v{184+2*j}", f"v_and_b32 v{201+4*j}, 0xffff0000, v{184+2*j}",
                 f"v_lshlrev_b32 v{202+4*j}, 16, v{185+2*j}", f"v_and_b32 v{203+4*j}, 0xffff0000, v{185+2*j}"]
    c0 = -2.0 * 0.7978845608028654 * 1.4426950408889634
    c1 = c0 * 0.044715
    misc = [f"s_mov_b32 s92, {hex(f32bits(c1))}", f"s_mov_b32 s93, {hex(f32bits(c1))}",
            f"v_mov_b32 v198, {hex(f32bits(c0))}", f"v_mov_b32 v199, {hex(f32bits(c0))}",
            "s_lshl_b32 s15, s9, 2", "s_add_u32 s15, s15, s3", "s_mul_i32 s15, s15, 43", "s_mul_i32 s13, s8, 3",
            "s_add_u32 s15, s15, s13", "s_lshl_b32 s15, s15, 10", f"s_add_u32 s15, s15, {GUF}",
            lambda: (e("s_cmp_eq_u32 s8, 14"), e("s_cselect_b32 s13, 0x7ff00000, 0")), "v_or_b32 v197, s13, v4"]

    def u_extra(win):
        if win == 12:
            return bias[:12] + misc
        if win == 13:
            return bias[12:]
        return []

    UPW = opt.get("u_pw", 12)

    def u_extra2(win):
        out = u_extra(win)
        if win >= UPW:
            assert su.nread == 16 and su_rd_done[0] < win
            n3 = -(-len(pe) // (16 - UPW))
            out = out + pe[(win-UPW)*n3:(win-UPW+1)*n3]
        if su.nread == 16 and su_rd_done[0] == 99:
            su_rd_done[0] = win
        return out
    su_rd_done = [99]
    su.run(seq, opt.get("u_la", 12), drained, u_post, opt.get("u_wdelay", 0), u_extra2,
           wsplit=opt.get("u_wsplit", 1),
           prof=dict(zip((0, 1, 2, 3, 4, 6, 8, 10, 12, 14), (2, 3, 4, 5, 6, 7, 8, 0, 9, 10))))
    k.stamp(11, True)
    k.stamp(3)
    k.lgkm0()
    e("s_barrier")
    for p in range(3):
        for o in range(1, 4):
            for j in (2*p, 2*p+1):
                e(f"ds_read_b128 {V(8+24*o+4*j,4)}, v{26+o} offset:{j*1024}")
        if p == 1:
            for r in range(12):
                e(f"v_pk_add_f32 {V(160+2*r,2)}, {V(160+2*r,2)}, {V(200+2*r,2)}")
    oflag()
    k.lgkm0()
    e2d = p3_e2d()
    E2LATE = opt.get("u_e2late", 1)
    ne = 0 if E2LATE else 6 * opt.get("u_e2in", 2)
    tst = {}
    for p in range(3):
        R_ = range(4*p, 4*p+4)
        va = []
        va += [f"v_pk_add_f32 {V(32+2*r,2)}, {V(32+2*r,2)}, {V(56+2*r,2)}" for r in R_]
        va += [f"v_pk_add_f32 {V(160+2*r,2)}, {V(160+2*r,2)}, {V(80+2*r,2)}" for r in R_]
        va += [f"v_pk_add_f32 {V(32+2*r,2)}, {V(32+2*r,2)}, {V(160+2*r,2)}" for r in R_]
        va += [f"v_pk_mul_f32 {V(56+2*r,2)}, {V(32+2*r,2)}, {V(32+2*r,2)}" for r in R_]
        va += [f"v_pk_fma_f32 {V(56+2*r,2)}, {V(56+2*r,2)}, s[92:93], v[198:199]" for r in R_]
        va += [f"v_pk_mul_f32 {V(56+2*r,2)}, {V(56+2*r,2)}, {V(32+2*r,2)}" for r in R_]
        va += [f"v_exp_f32 v{56+r}, v{56+r}" for r in range(8*p, 8*p+8)]
        va += [f"v_add_f32 v{56+r}, 1.0, v{56+r}" for r in range(8*p, 8*p+8)]
        va += [f"v_rcp_f32 v{56+r}, v{56+r}" for r in range(8*p, 8*p+8)]
        va += [f"v_pk_mul_f32 {V(32+2*r,2)}, {V(32+2*r,2)}, {V(56+2*r,2)}" for r in R_]
        va += [f"v_cvt_pk_bf16_f32 v{112+4*p+q}, v{32+8*p+2*q}, v{33+8*p+2*q}" for q in range(4)]
        if E2LATE:
            fl_ = []
        elif p == 0:
            fl_ = p3_e2r(ud)
        else:
            fl_ = e2d[(p-1)*ne//2:p*ne//2]
        run_all(k, mix(va, fl_))
        tst[p] = k.vmem(f"buffer_store_dwordx4 {V(112+4*p,4)}, {'v4' if p == 0 else 'v197'}, {WS}, s15 offen offset:{p*1024} sc1")
        if p == 0:
            k.lgkm0()
    k.stamp(4)
    if E2LATE:
        run_all(k, p3_e2r(ud))
        k.lgkm0()
    ne2 = ne + 6 * opt.get("u_e2dr", 1)
    run_all(k, e2d[ne:ne2])
    e("s_lshl_b32 s12, s9, 10")
    e(f"s_add_u32 s12, s12, {CNT + 64*256}")
    k.wait_vm(tst[2])
    e("s_barrier")
    k.arrive(WS, "s12", 4)
    k.stamp(7)
    run_all(k, e2d[ne2:])
    e("s_branch L_p3")

    k.label("L_spare")
    for n_ in (WS, DBG):
        srd(n_)
    nz = k.newlab("L_nz")
    e("s_or_b32 s12, s9, s3")
    e("s_cmp_lg_u32 s12, 0")
    e(f"s_cbranch_scc1 {nz}")
    e("v_lshlrev_b32 v30, 8, v1")
    e(f"s_mov_b32 s12, {CNT}")
    e(f"s_mov_b32 s13, {CNT + 64*256}")
    e(f"buffer_store_dword v5, v30, {WS}, s12 offen sc1")
    e(f"buffer_store_dword v5, v30, {WS}, s13 offen sc1")
    e("v_mov_b32 v31, 1")
    k.wait_vm0()
    e(f"buffer_store_dword v31, v5, {DBG}, 0 offen sc1")
    k.label(nz)
    touch_w1()
    for n_ in (WO, W2, B2, OUT):
        srd(n_)
    diag_clear()
    run_all(k, p3_setup())
    k.poll("v5", DBG, 1)
    k.poll("v240", WS, 8, sleep=32)
    sd = {}
    run_all(k, p3_e1(sd))
    run_all(k, p3_e2r(sd))
    oflag()
    k.lgkm0()
    run_all(k, p3_e2d())

    k.label("L_p3")
    k.c("================= P3 =================")

    def freg(t, b):
        return A(128 + (t % PFB)*16 + 4*b, 4)

    def p_fload(t, b, toks):
        if t < 4:
            so, off, vr = "0", t*1024, 232 + b
        else:
            y = yblk(t)
            so, off, vr = ("s86" if y == 10 else ["0", "s84", "s85"][y // 4]), (0 if y == 10 else (y % 4)*1024), 236 + b

        def f():
            toks[(t, b)] = k.vmem(f"buffer_load_dwordx4 {freg(t,b)}, v{vr}, {WS}, {so} offen offset:{off} sc1")
        return [f]

    YA, AA = 64, 128

    def p_mm(t, b, j):
        wr = A((t % PNWB)*16 + j*4, 4)
        if t < 4:
            d = V(AA + (j*4 + b)*4, 4)
            return mf(d, wr, freg(t, b), "0" if t == 0 else d)
        d = V(YA + (b*4 + j)*4, 4)
        return mf(d, freg(t, b), wr, "0" if t == 4 else d)

    k.vm = 0
    sp = SK(k, 15, PL, PNWB, PFB, 4, p_wdma, p_wread, p_fload, p_mm)
    k.vm = 1
    for t in range(5, 10):
        k.vm += 4
        sp.wt[t] = k.vm
    sp.issued = 10
    sp.nread = 5
    if not opt.get("nowait"):
        k.wait_vm(1)
        dn = k.newlab("L_fo")
        e("v_cmp_gt_u32 vcc, 8, v250")
        e(f"s_cbranch_vccz {dn}")
        k.poll("v240", WS, 8)
        k.label(dn)
    k.stamp(8)
    seq_a = [(t, b) for t in range(4) for b in range(4)]
    for i in range(8):
        run_all(k, p_fload(*seq_a[i], sp.ft))
    for j in range(4):
        k.vmem(f"buffer_load_dword v{32+2*j}, v242, {WS}, 0 offen offset:{64*j} sc1")
        k.vmem(f"buffer_load_ushort v{40+2*j}, v243, {B2}, 0 offen offset:{32*j}")
    sp.issue_w(11)
    gt = {}

    def a_extra(win):
        if win == opt.get("p_gw", 3):
            def f():
                gt[0] = k.vmem(f"buffer_load_dword v251, v241, {WS}, 0 offen sc1")
            return [f]
        return []
    sp.run(seq_a, 8, pre_issued=8, extra=a_extra, rmax=1)
    assert sp.issued == 15
    seq_y = [(t, b) for t in range(4, 11) for b in range(4)] + [(t, b) for b in range(4) for t in range(11, 15)]
    PLA = opt.get("p_la", 12)

    def shadow():
        for j in range(4):
            e(f"v_lshlrev_b32 v{40+2*j}, 16, v{40+2*j}")
            e(f"v_sub_f32 v{48+2*j}, 1.0, v{32+2*j}")
        for j in range(4):
            e(f"v_mul_f32 v{40+2*j}, v{40+2*j}, v{48+2*j}")
        for b in range(4):
            for j in range(4):
                for h_ in range(2):
                    r = AA + (b*4 + j)*4 + 2*h_
                    if b < 3:
                        e(f"v_pk_mul_f32 {V(r,2)}, {V(r,2)}, {V(32+2*j,2)} op_sel_hi:[1,0]")
                    else:
                        e(f"v_pk_fma_f32 {V(r,2)}, {V(r,2)}, {V(32+2*j,2)}, {V(40+2*j,2)} op_sel_hi:[1,0,0]")

    def yfirst():
        for i in range(PLA):
            run_all(k, p_fload(*seq_y[i], sp.ft))
    k.stamp(0)
    if not opt.get("nowait"):
        fast = k.newlab("L_yf")
        jn = k.newlab("L_yj")
        k.wait_vm(gt[0])
        e("v_cmp_gt_u32 vcc, 15, v251")
        e(f"s_cbranch_vccz {fast}")
        vs = k.vm
        shadow()
        k.poll("v241", WS, 15)
        k.stamp(9)
        yfirst()
        e(f"s_branch {jn}")
        k.label(fast)
        k.vm = vs
        k.stamp(9)
        yfirst()
        shadow()
        k.label(jn)
    else:
        yfirst()
        shadow()

    def comb(b):
        out = []
        for j in range(4):
            for h_ in range(2):
                r = (b*4 + j)*4 + 2*h_
                out.append(f"v_pk_fma_f32 {V(YA+r,2)}, {V(YA+r,2)}, {V(48+2*j,2)}, {V(AA+r,2)} op_sel_hi:[1,0,1]")
            if b < 3:
                out.append(f"ds_write_b128 v244, {V(YA+(b*4+j)*4,4)} offset:{(b*4+j)*1024}")
        return out
    sp.run(seq_y, PLA, 0, lambda win: comb(win - 8) if win >= 8 else [], pre_issued=PLA, rmax=1,
           prof=(dict(zip(range(11), (1, 2, 3, 4, 5, 6, 7, 8, 0, 9, 10))) if opt.get("prof") == 2 else None))
    if opt.get("prof") == 2:
        k.stamp(11, True)
    k.stamp(10)
    k.lgkm0()
    e("s_barrier")
    for o in range(3):
        for j in range(4):
            e(f"ds_read_b128 {V(AA+16*o+4*j,4)}, v{245+o} offset:{j*1024}")
    run_all(k, comb(3))
    for o in range(3):
        e(f"s_waitcnt lgkmcnt({8-4*o})") if not opt.get("diag") else k.lgkm0()
        for r in range(8):
            e(f"v_pk_add_f32 {V(YA+48+2*r,2)}, {V(YA+48+2*r,2)}, {V(AA+16*o+2*r,2)}")
    for t in range(4):
        e(f"v_cvt_pk_bf16_f32 v{32+2*t}, v{YA+48+4*t}, v{YA+49+4*t}")
        e(f"v_cvt_pk_bf16_f32 v{33+2*t}, v{YA+50+4*t}, v{YA+51+4*t}")
    k.nop(2)
    for p in range(2):
        e(f"v_permlane16_swap_b32 v{32+4*p}, v{34+4*p}")
        e(f"v_permlane16_swap_b32 v{33+4*p}, v{35+4*p}")
    k.nop(1)
    for p in range(2):
        e(f"buffer_store_dwordx4 {V(32+4*p,4)}, v{248+p}, {OUT}, s87 offen {opt.get('oflags', '')}")
    if opt.get("diag"):
        e("s_waitcnt vmcnt(0)")
        k.stamp(11)
        k.lgkm0()
        for i in range(12):
            e(f"v_mov_b32 v{32+i}, s{16+2*i}")
        e("v_mov_b32 v44, s98")
        e("s_getreg_b32 s12, hwreg(HW_REG_XCC_ID)")
        e("v_mov_b32 v45, s12")
        e("s_lshl_b32 s12, s2, 2")
        e("s_add_u32 s12, s12, s3")
        e("s_lshl_b32 s12, s12, 6")
        e(f"s_add_u32 s12, s12, {DIAG}")
        e("v_mov_b32 v30, 0")
        e("s_mov_b64 exec, 1")
        for i in range(4):
            e(f"buffer_store_dwordx4 {V(32+4*i,4)}, v30, {WS}, s12 offen offset:{16*i}")
    k.label("L_end")
    e("s_endpgm")
    return "\n".join(k.l)


HEADER = open("cdna_kernels/" + NAME + ".s.ref").read().split("; Override launch geometry")[0]


def gen_meas(opt):
    mj, mk = opt["meas"], opt.get("mk", 1)
    l = []
    a = l.append
    a("s_cmp_ge_u32 s2, 1")
    a("s_cbranch_scc1 M_end")
    a("s_memrealtime s[30:31]")
    a("s_load_dwordx2 s[4:5], s[0:1], 88")
    a("v_lshlrev_b32 v1, 6, v0")
    a("v_mov_b32 v2, -1")
    a("v_mov_b32 v3, 0")
    a("s_waitcnt lgkmcnt(0)")
    a("s_mov_b32 s8, s4")
    a("s_mov_b32 s9, s5")
    a(f"s_mov_b32 s10, {WS_BYTES}")
    a("s_mov_b32 s11, 0x20000")
    lo, hi = {"Q": (0, 8), "U": (8, 16), "A": (0, 16)}[opt.get("mrole", "A")]
    for it in range(16):
        a(f"s_mov_b32 s12, {DIAG + it*4096}")
        a(f"buffer_load_dword v4, v1, s[8:11], s12 offen offset:48")
        a(f"buffer_load_dword v5, v1, s[8:11], s12 offen offset:{4*mj}")
        a("s_waitcnt vmcnt(0)")
        a("v_min_u32 v2, v2, v4")
        if lo <= it < hi:
            a("v_max_u32 v3, v3, v5")
    a("s_mov_b32 s14, -1")
    a("s_mov_b32 s15, 0")
    a("s_nop 4")
    for i in range(64):
        a(f"v_readlane_b32 s16, v2, {i}")
        a(f"v_readlane_b32 s17, v3, {i}")
        a("s_nop 3")
        a("s_min_u32 s14, s14, s16")
        a("s_max_u32 s15, s15, s17")
    if opt.get("mpost"):
        a("s_sub_u32 s15, s30, s15")
    else:
        a("s_sub_u32 s15, s15, s14")
    a("s_min_u32 s15, s15, 20000")
    a(f"s_mul_i32 s15, s15, {mk}")
    a("s_memrealtime s[20:21]")
    a("s_waitcnt lgkmcnt(0)")
    a("M_spin:")
    a("s_memrealtime s[22:23]")
    a("s_waitcnt lgkmcnt(0)")
    a("s_sub_u32 s24, s22, s20")
    a("s_cmp_lt_u32 s24, s15")
    a("s_cbranch_scc1 M_spin")
    a("M_end:")
    a("s_endpgm")
    return "\n".join(l)


def gen_file(opt):
    kn = NAME + "_kernel"
    nl = opt.get("launches", 1)
    s = HEADER
    for _ in range(opt.get("pre_empty", 0)):
        s += "; @launch kernel=empty_kernel grid=(1,1,1) block=(64,1,1) lds=0\n"
    if opt.get("pre_empty") and "meas" not in opt:
        s += f"; @launch kernel={kn} grid=(256,1,1) block=(256,1,1) lds=163840\n"
    elif "meas" in opt:
        s += f"; @launch kernel={kn} grid=(256,1,1) block=(256,1,1) lds=163840\n"
        s += f"; @launch kernel=meas_kernel grid=(1,1,1) block=(64,1,1) lds=0\n"
    elif nl == 1:
        s += "; @launch grid=(256,1,1) block=(256,1,1) lds=163840\n"
    else:
        for _ in range(nl):
            s += f"; @launch kernel={kn} grid=(256,1,1) block=(256,1,1) lds=163840\n"
    extra_code = ""
    if "meas" in opt:
        extra_code = ".globl meas_kernel\n.p2align 8\n.type meas_kernel,@function\nmeas_kernel:\n" + gen_meas(opt) + "\n"
    if opt.get("pre_empty"):
        extra_code += ".globl empty_kernel\n.p2align 8\n.type empty_kernel,@function\nempty_kernel:\n s_endpgm\n"
    s += f""".amdgcn_target "amdgcn-amd-amdhsa--gfx950"
.text
.globl {kn}
.p2align 8
.type {kn},@function
{kn}:
{gen_body(opt)}
{extra_code}.section .rodata,"a"
.p2align 6
.amdhsa_kernel {kn}
  .amdhsa_next_free_vgpr 512
  .amdhsa_next_free_sgpr 102
  .amdhsa_accum_offset 256
  .amdhsa_group_segment_fixed_size 0
  .amdhsa_kernarg_size 96
  .amdhsa_user_sgpr_count 2
  .amdhsa_user_sgpr_kernarg_segment_ptr 1
  .amdhsa_system_sgpr_workgroup_id_x 1
.end_amdhsa_kernel
"""
    if "meas" in opt:
        s += """.p2align 6
.amdhsa_kernel meas_kernel
  .amdhsa_next_free_vgpr 32
  .amdhsa_next_free_sgpr 102
  .amdhsa_accum_offset 32
  .amdhsa_group_segment_fixed_size 0
  .amdhsa_kernarg_size 96
  .amdhsa_user_sgpr_count 2
  .amdhsa_user_sgpr_kernarg_segment_ptr 1
  .amdhsa_system_sgpr_workgroup_id_x 1
.end_amdhsa_kernel
"""
    if opt.get("pre_empty"):
        s += """.p2align 6
.amdhsa_kernel empty_kernel
  .amdhsa_next_free_vgpr 32
  .amdhsa_next_free_sgpr 102
  .amdhsa_accum_offset 32
  .amdhsa_group_segment_fixed_size 0
  .amdhsa_kernarg_size 96
  .amdhsa_user_sgpr_count 2
  .amdhsa_user_sgpr_kernarg_segment_ptr 1
  .amdhsa_system_sgpr_workgroup_id_x 1
.end_amdhsa_kernel
"""
    return s


if __name__ == "__main__":
    opt = {}
    out = None
    for a in sys.argv[1:]:
        if "=" in a:
            kk, vv = a.split("=", 1)
            try:
                vv = int(vv)
            except ValueError:
                pass
            opt[kk] = vv
        else:
            out = a
    txt = gen_file(opt)
    open(out or ("cdna_kernels/" + NAME + ".s"), "w").write(txt)
```

```python
import sys

NAME = "gated_mix__linear_attn_block__mixer_token_mlp__prompt"

HF = 0x000000
GUF = 0x240000
OF = 0x400000
KVP = 0x600000
ZP = 0x680000
GG = 0x690000
CNT = 0x6A0000
DIAG = 0x700000
WS_BYTES = 0x800000

X, WQKV, WO, W1, B1, W2, B2, GW, OUT, DBG, WS = [f"s[{40+4*i}:{43+4*i}]" for i in range(11)]
SRD_INFO = [(40, 16, 2048*512*2), (44, 18, 512*1536*2), (48, 20, 512*512*2), (52, 24, 2048*1376*2),
            (56, 26, 1376*2), (60, 28, 1376*2048*2), (64, 30, 2048*2), (68, 32, 512*2),
            (72, 34, 2048*512*2), (76, 36, 256), (80, 38, WS_BYTES)]

LOG2E = 0x3fb8aa3b
HS = 65536


def f32bits(x):
    import struct
    return struct.unpack("<I", struct.pack("<f", x))[0]


def rr(kind, base, n):
    return f"{kind}{base}" if n == 1 else f"{kind}[{base}:{base+n-1}]"


def V(b, n=1):
    return rr("v", b, n)


def A(b, n=1):
    return rr("a", b, n)


class Em:
    def __init__(self, opt):
        self.l = []
        self.vm = 0
        self.lab = 0
        self.opt = opt
        self.nstamp = 0

    def e(self, s):
        self.l.append("    " + s)

    def c(self, s):
        self.l.append("    ; " + s)

    def label(self, s):
        self.l.append(s + ":")

    def newlab(self, p="L"):
        self.lab += 1
        return f"{p}_{self.lab}"

    def vmem(self, s):
        self.e(s)
        self.vm += 1
        return self.vm

    def wait_vm(self, tok):
        n = self.vm - tok
        assert n >= 0
        self.e(f"s_waitcnt vmcnt({min(n, 63)})")

    def wait_vm0(self):
        self.e("s_waitcnt vmcnt(0)")

    def lgkm0(self):
        self.e("s_waitcnt lgkmcnt(0)")

    def nop(self, n):
        while n > 0:
            k = min(n, 16)
            self.e(f"s_nop {k-1}")
            n -= k

    def stamp(self, i, prof=False):
        if bool(self.opt.get("prof")) != prof:
            return
        if self.opt.get("diag"):
            assert i < 12
            self.e(f"{'s_memtime' if self.opt.get('clk') else 's_memrealtime'} s[{16+2*i}:{17+2*i}]")

    def dma(self, voff, srd, soff, m0expr, flags=""):
        sreg, imm = m0expr
        if sreg is None:
            self.e(f"s_mov_b32 m0, {imm}")
        else:
            self.e(f"s_add_u32 m0, {sreg}, {imm}")
        sr, si = soff
        self.e(f"s_add_u32 s13, {sr}, {si}")
        return self.vmem(f"buffer_load_dwordx4 {voff}, {srd}, s13 offen {flags} lds".replace("  ", " "))

    def poll(self, voff, srd, expect, tmp="v31", sleep=None):
        if self.opt.get("nowait"):
            self.wait_vm0()
            return
        lp = self.newlab("L_poll")
        dn = self.newlab("L_polled")
        self.e("s_mov_b32 s14, 0")
        self.label(lp)
        self.e(f"buffer_load_dword {tmp}, {voff}, {srd}, 0 offen sc1")
        self.e("s_add_u32 s14, s14, 1")
        self.e("s_waitcnt vmcnt(0)")
        self.e(f"v_cmp_gt_u32 vcc, {expect}, {tmp}")
        self.e(f"s_cbranch_vccz {dn}")
        self.e(f"s_sleep {sleep or self.opt.get('sleep', 3)}")
        self.e("s_cmp_lt_u32 s14, 0x40000")
        self.e(f"s_cbranch_scc1 {lp}")
        self.label(dn)

    def poll2(self, voff, srd, expect, more, tmp="v31"):
        if self.opt.get("nowait"):
            more()
            return 0
        t = self.vmem(f"buffer_load_dword {tmp}, {voff}, {srd}, 0 offen sc1")
        more()
        self.wait_vm(t)
        dn = self.newlab("L_fast")
        self.e(f"v_cmp_gt_u32 vcc, {expect}, {tmp}")
        self.e(f"s_cbranch_vccz {dn}")
        self.poll(voff, srd, expect, tmp)
        self.label(dn)
        return t

    def arrive(self, srd, off_sreg, nrep):
        sk = self.newlab("L_arr")
        self.e("s_cmp_lg_u32 s3, 0")
        self.e(f"s_cbranch_scc1 {sk}")
        self.e("v_lshlrev_b32 v30, 8, v1")
        self.e("v_mov_b32 v31, 1")
        self.e(f"s_mov_b64 exec, {(1 << nrep) - 1}")
        self.e(f"buffer_atomic_add v31, v30, {srd}, {off_sreg} offen sc1")
        self.e("s_mov_b64 exec, -1")
        self.label(sk)


def mf(d, a, b, c):
    return f"v_mfma_f32_16x16x32_bf16 {d}, {a}, {b}, {c}"


def interleave(k, mfmas, fillers, tail=2, cap=2, late=()):
    nm = len(mfmas)
    if late:
        interleave(k, mfmas[:8], fillers[:len(fillers) * 8 // nm + 1], tail=0, cap=cap)
        interleave(k, mfmas[8:], mix(list(late), fillers[len(fillers) * 8 // nm + 1:]), tail=min(tail, 1), cap=cap)
        return
    nf = len(fillers)
    span = max(1, nm - tail)
    fi = 0
    for i, (pre, txt) in enumerate(mfmas):
        if pre:
            pre()
        k.e(txt)
        want = min(nf, -(-(i + 1) * nf // span))
        budget = cap - (1 if (i + 1 < nm and mfmas[i + 1][0]) else 0)
        while fi < want and budget > 0:
            f = fillers[fi]
            fi += 1
            budget -= 1
            if callable(f):
                f()
            else:
                k.e(f)
    while fi < nf:
        f = fillers[fi]
        fi += 1
        if callable(f):
            f()
        else:
            k.e(f)


def run_all(k, items):
    for f in items:
        if callable(f):
            f()
        else:
            k.e(f)


def mix(a, b):
    out = []
    ia = ib = 0
    while ia < len(a) or ib < len(b):
        if ib >= len(b) or (ia < len(a) and ia * len(b) <= ib * len(a)):
            out.append(a[ia])
            ia += 1
        else:
            out.append(b[ib])
            ib += 1
    return out


class SK:
    def __init__(self, k, n, L, NWB, FB, NF, wdma, wread, fload, mm):
        self.__dict__.update(locals())
        self.wt = {}
        self.ft = {}
        self.issued = 0
        self.nread = 0
        self.done = set()
        self.wdone = 0
        self.wq = []
        self.wtmp = {}
        self.wage = {}

    def issue_w(self, upto):
        while self.issued < min(upto, self.n):
            assert self.issued < self.nread + self.L
            run_all(self.k, self.wdma(self.issued, self.wt))
            self.issued += 1

    def assume_issued(self, e, per):
        for t in range(e):
            self.k.vm += per
            self.wt[t] = self.k.vm
        self.issued = e

    def to_regs(self, R, hold=0):
        k = self.k
        while self.nread < R:
            t = self.nread
            assert t < self.wdone + self.NWB
            k.wait_vm(self.wt[t])
            run_all(k, self.wread(t))
            k.lgkm0()
            self.nread += 1
            if self.nread <= R - hold:
                self.issue_w(t + self.L + 1)

    def run(self, seq, LA, drained=0, post=None, wdelay=0, extra=None, pre_issued=0, prof=None,
            wsplit=1, rmax=2, age=2):
        k, n, L = self.k, self.n, self.L
        fi = pre_issued

        def fl(i):
            t, b = seq[i]
            if t - self.FB >= 0:
                assert (t - self.FB, b) in self.done, (t, b)
            return self.fload(t, b, self.ft)
        while fi < min(LA, len(seq)):
            run_all(k, fl(fi))
            fi += 1
        for win in range(len(seq) // 4):
            if prof and win in prof:
                k.stamp(prof[win], True)
            grp = seq[4*win:4*win+4]
            assert max(t for t, b in grp) < self.nread, (grp, self.nread)
            vm = []
            for _ in range(4):
                if fi < len(seq):
                    vm += fl(fi)
                    fi += 1
            if not self.wq and win >= wdelay and self.issued < n and self.issued < self.nread + L:
                self.wq = self.wdma(self.issued, self.wtmp)
                self.wq_t = self.issued
                self.wq_n = -(-len(self.wq) // wsplit)
                self.issued += 1
            fin = None
            if self.wq:
                vm += self.wq[:self.wq_n]
                self.wq = self.wq[self.wq_n:]
                if not self.wq:
                    fin = self.wq_t
            rd = []
            nr = 0
            while nr < rmax:
                u = self.nread
                if not (u < n and u < self.wdone + self.NWB and u in self.wt):
                    break
                must = u <= max(t for t, b in seq[4*win:4*win+8])
                if not must and self.wage.get(u, -99) + age > win:
                    break
                if nr >= 1 and not must and self.issued < n:
                    break
                if self.wt[u] > drained:
                    rd.append(lambda u=u: k.wait_vm(self.wt[u]))
                rd += self.wread(u)
                self.nread += 1
                nr += 1
            mfmas = []
            for (t, b) in grp:
                for j in range(self.NF):
                    pre = (lambda t=t, b=b: k.wait_vm(self.ft[(t, b)])) if j == 0 else None
                    mfmas.append((pre, self.mm(t, b, j)))
            fill = mix(rd, vm)
            ps = post(win) if post else []
            if extra:
                fill = mix(fill, extra(win))
            interleave(k, mfmas, fill, tail=3, late=ps)
            if fin is not None:
                self.wt[fin] = self.wtmp[fin]
                self.wage[fin] = win
            for gb in grp:
                self.done.add(gb)
            while self.wdone < n and all((self.wdone, b) in self.done for b in range(4)):
                self.wdone += 1
            if rd:
                k.lgkm0()
        assert not self.wq
        self.wage = {}


def gen_body(opt):
    k = Em(opt)
    e = k.e
    WFL = opt.get("wflags", "")
    ROTQ = opt.get("rot_q", 0)
    ROTU = opt.get("rot_u", 2)
    ROTP = opt.get("rot_p", 1)
    UPART = opt.get("upart", 4)
    UFL = opt.get("u_wflags", "")
    global HS
    HS = opt.get("hs", 65536)
    PW = "s[84:87]"

    def srd(name):
        for (d, s, sz) in SRD_INFO:
            if f"s[{d}:{d+3}]" == name:
                e(f"s_mov_b32 s{d}, s{s}")
                e(f"s_mov_b32 s{d+1}, s{s+1}")
                e(f"s_mov_b32 s{d+2}, {sz}")
                e(f"s_mov_b32 s{d+3}, 0x20000")

    def dmai(voff, srd_, soff, off, toks=None, key=None, fl=""):
        def f():
            if " m0," in k.l[-1]:
                e("s_nop 0")
            t = k.vmem(f"buffer_load_dwordx4 {voff}, {srd_}, {soff} offen offset:{off} {fl} lds".replace("  ", " "))
            if toks is not None:
                toks[key] = t
        return f

    def diag_clear():
        if opt.get("diag"):
            for i in range(16, 40):
                e(f"s_mov_b32 s{i}, 0")

    e("s_cmp_ge_u32 s2, 256")
    e("s_cbranch_scc1 L_end")
    e("s_load_dwordx16 s[16:31], s[0:1], 0")
    e("s_load_dwordx8 s[32:39], s[0:1], 64")
    if opt.get("diag"):
        e(f"{'s_memtime' if opt.get('clk') else 's_memrealtime'} s[98:99]")
    e("v_lshrrev_b32 v2, 6, v0")
    e("v_and_b32 v1, 63, v0")
    e("v_readfirstlane_b32 s3, v2")
    e("s_and_b32 s4, s2, 7")
    e("s_lshr_b32 s6, s2, 3")
    e("s_and_b32 s5, s4, 1")
    e("s_lshr_b32 s4, s4, 1")
    k.c("role tile: s8 = a*4 + ((idx&15)>>2) (sb / ft), s9 = b*4 + (idx&3) (hg / dt)")
    e("s_bfe_u32 s8, s6, 0x20002")
    e("s_lshl_b32 s12, s4, 2")
    e("s_add_u32 s8, s8, s12")
    e("s_and_b32 s9, s6, 3")
    e("s_lshl_b32 s12, s5, 2")
    e("s_add_u32 s9, s9, s12")
    k.c("P3 tile: s10 = st = a*8 + (idx&7), s11 = dt3 = b*4 + 2*((idx>>3)&1) + ((idx ^ (idx>>4))&1)")
    e("s_and_b32 s10, s6, 7")
    e("s_lshr_b32 s11, s6, 4")
    e("s_xor_b32 s11, s11, s6")
    e("s_and_b32 s11, s11, 1")
    e("s_add_u32 s11, s11, s12")
    e("s_lshr_b32 s12, s6, 2")
    e("s_and_b32 s12, s12, 2")
    e("s_add_u32 s11, s11, s12")
    e("s_lshl_b32 s12, s4, 3")
    e("s_add_u32 s10, s10, s12")
    e("s_mul_i32 s7, s3, 40960")
    e("v_and_b32 v2, 15, v1")
    e("v_lshrrev_b32 v3, 4, v1")
    e("v_lshlrev_b32 v4, 4, v1")
    e("v_mov_b32 v5, 0")
    e("s_cmp_ge_u32 s6, 16")
    e("s_cbranch_scc1 L_urole")


    def touch_xw():
        if not opt.get("pfx", 2):
            return
        if opt.get("pfx", 2) == 2:
            return touch_xw_all()
        e("s_lshl_b32 s12, s6, 2")
        e("s_add_u32 s12, s12, s3")
        e("v_lshrrev_b32 v116, 2, v1")
        e("v_lshlrev_b32 v116, 10, v116")
        e("v_and_b32 v117, 3, v1")
        e("v_lshl_add_u32 v116, v117, 7, v116")
        e(f"s_mul_i32 s13, s12, {8*3072}")
        e("s_lshl_b32 s14, s5, 9")
        e("s_add_u32 s13, s13, s14")
        k.vmem(f"buffer_load_dword v157, v116, {WQKV}, s13 offen")
        e("v_lshlrev_b32 v117, 7, v1")
        e("s_lshl_b32 s12, s12, 13")
        e("s_lshl_b32 s14, s4, 19")
        e("s_add_u32 s12, s12, s14")
        k.vmem(f"buffer_load_dword v157, v117, {X}, s12 offen")
        e("s_add_u32 s13, s13, 16384")
        e("s_mov_b64 exec, 0xffffffff")
        k.vmem(f"buffer_load_dword v157, v116, {WQKV}, s13 offen")
        e("s_mov_b64 exec, -1")

    def touch_xw_all():
        e("s_lshl_b32 s12, s6, 2")
        e("s_add_u32 s12, s12, s3")
        e("v_lshrrev_b32 v116, 2, v1")
        e("v_lshlrev_b32 v116, 10, v116")
        e("v_and_b32 v117, 3, v1")
        e("v_lshl_add_u32 v116, v117, 7, v116")
        e(f"s_mul_i32 s13, s12, {4*3072}")
        e("s_lshl_b32 s14, s5, 9")
        e("s_add_u32 s13, s13, s14")
        e("s_mov_b32 s14, 0xffff")
        e("s_mov_b32 exec_hi, s14")
        k.vmem(f"buffer_load_dword v157, v116, {WQKV}, s13 offen")
        e("s_mov_b64 exec, -1")

    def touch_x_other():
        e("s_and_b32 s12, s6, 15")
        e("s_lshl_b32 s12, s12, 2")
        e("s_add_u32 s12, s12, s3")
        e("s_lshr_b32 s13, s12, 4")
        e("s_lshl_b32 s13, s13, 17")
        e("s_and_b32 s12, s12, 15")
        e("s_lshl_b32 s12, s12, 12")
        e("s_add_u32 s12, s12, s13")
        e("s_lshl_b32 s13, s4, 19")
        e("s_add_u32 s12, s12, s13")
        e("s_xor_b32 s13, s5, 1")
        e("s_lshl_b32 s13, s13, 16")
        e("s_add_u32 s12, s12, s13")
        e("v_lshlrev_b32 v117, 7, v1")
        e("s_mov_b64 exec, 0xffffffff")
        k.vmem(f"buffer_load_dword v157, v117, {X}, s12 offen")
        e("s_mov_b64 exec, -1")

    def touch_w1():
        if opt.get("pfx", 2) == 2:
            srd(X)
            srd(WQKV)
            touch_x_other()
            touch_xw_all()
        if not opt.get("pfw", 0):
            return
        bw = 768 if UPART == 4 else 384
        e("s_and_b32 s12, s6, 15")
        e("s_lshl_b32 s12, s12, 2")
        e("s_add_u32 s12, s12, s3")
        e(f"s_mul_i32 s12, s12, {32*2752}")
        if UPART == 4:
            e("s_mul_i32 s13, s4, 768")
            e("v_lshrrev_b32 v158, 3, v1")
            e("v_and_b32 v159, 7, v1")
        else:
            e("s_and_b32 s13, s2, 7")
            e("s_mul_i32 s13, s13, 384")
            e("v_lshrrev_b32 v158, 2, v1")
            e("v_and_b32 v159, 3, v1")
        e("s_add_u32 s12, s12, s13")
        e("v_lshlrev_b32 v159, 7, v159")
        e(f"v_min_u32 v159, {bw-4}, v159")
        e("v_mul_u32_u24 v158, 2752, v158")
        e("v_add_u32 v158, v158, v159")
        nrow = 8 if UPART == 4 else 16
        for j in range(32 // nrow):
            k.vmem(f"buffer_load_dword v157, v158, {W1}, s12 offen {UFL}")
            if j + 1 < 32 // nrow:
                e(f"s_add_u32 s12, s12, {nrow*2752}")

    PL, PNWB, PFB = 10, 8, 8

    def p3_setup():
        out = ["v_lshrrev_b32 v30, 3, v1", "v_and_b32 v31, 7, v1", "v_and_b32 v18, 6, v30", "v_xor_b32 v31, v31, v18",
               "v_lshlrev_b32 v31, 4, v31", "v_lshl_add_u32 v18, v30, 10, v31", "v_lshl_add_u32 v22, v30, 12, v31",
               "s_lshl_b32 s12, s3, 17", "s_lshl_b32 s13, s11, 7", "s_add_u32 s12, s12, s13", "v_add_u32 v18, s12, v18",
               "s_lshl_b32 s87, s3, 5", "s_add_u32 s87, s87, s13",
               f"s_mul_i32 s12, s3, {352*4096}", "s_lshl_b32 s13, s10, 7", "s_add_u32 s12, s12, s13", "v_add_u32 v22, s12, v22"]
        for j in range(1, 4):
            out.append(f"v_add_u32 v{18+j}, {j*(8*1024-1024)}, v18")
            out.append(f"v_add_u32 v{22+j}, {j*(8*4096-1024)}, v22")
        out += ["s_and_b32 s12, s10, 30", "s_add_u32 s12, s12, s5", "s_lshl_b32 s12, s12, 8",
                f"s_add_u32 s12, s12, {CNT + 32*256}", "v_mov_b32 v240, s12",
                "s_lshl_b32 s12, s11, 2", "s_add_u32 s12, s12, s4", "s_lshl_b32 s12, s12, 8",
                f"s_add_u32 s12, s12, {CNT + 64*256}", "v_mov_b32 v241, s12"]
        out += ["v_lshrrev_b32 v228, 2, v2", "v_lshl_add_u32 v228, v3, 2, v228", "v_lshrrev_b32 v229, 1, v228",
                "v_and_b32 v229, 3, v229", "v_lshlrev_b32 v228, 7, v228", "v_lshl_add_u32 v228, v229, 5, v228",
                "v_and_b32 v229, 3, v2", "v_lshl_add_u32 v228, v229, 3, v228", "v_add_u32 v228, s7, v228"]
        for j in range(1, 4):
            out.append(f"v_xor_b32 v{228+j}, {32*j}, v228")
        out += ["s_lshl_b32 s12, s10, 16", "s_lshl_b32 s13, s3, 12", "s_add_u32 s12, s12, s13",
                f"s_add_u32 s12, s12, {OF}", "v_add_u32 v232, s12, v4"]
        for b in range(1, 4):
            out.append(f"v_add_u32 v{232+b}, {b*16384}, v232")
        out += [f"s_mul_i32 s13, s11, {4*43*1024}", f"s_mul_i32 s12, s3, {11*1024}", "s_add_u32 s13, s13, s12",
                f"s_add_u32 s13, s13, {GUF}"]
        for b in range(4):
            out += [f"s_add_u32 s12, s3, {1+b}", "s_and_b32 s12, s12, 3", "s_lshl_b32 s14, s12, 5",
                    f"v_xor_b32 v{224+b}, s14, v228", "s_mul_i32 s14, s12, 40960"]
            if b < 3:
                out += [f"s_add_u32 s14, s14, {(2-b)*4096}", f"v_add_u32 v{245+b}, s14, v4"]
            else:
                out += ["v_add_u32 v244, s14, v4"]
            out += [f"s_mul_i32 s12, s12, {43*1024}", "s_add_u32 s12, s12, s13", f"v_add_u32 v{236+b}, s12, v4"]
        out += ["s_mov_b32 s84, 4096", "s_mov_b32 s85, 8192", "s_mov_b32 s86, 10240",
                lambda: (e("s_cmp_eq_u32 s3, 3"), e(f"s_cselect_b32 s86, {hex(WS_BYTES)}, s86")),
                "s_lshl_b32 s12, s10, 6", "v_add_u32 v248, s12, v2", "v_lshlrev_b32 v242, 2, v248",
                f"v_add_u32 v242, {GG}, v242", "v_lshlrev_b32 v243, 1, v248",
                "v_and_b32 v249, 1, v3", "v_lshl_add_u32 v248, v249, 4, v248", "v_lshlrev_b32 v248, 10, v248",
                "v_lshrrev_b32 v249, 1, v3", "v_lshl_add_u32 v248, v249, 4, v248", "v_add_u32 v249, 32768, v248"]
        return out

    def yblk(t):
        return (t - 4 + 10) % 11

    def pslot(t):
        return t % 5 if t < 10 else t - 5

    def p_wdma(t, toks):
        out = [f"s_add_u32 m0, s7, {pslot(t)*4096}",
               f"s_mov_b32 s101, {t*32*1024 if t < 4 else yblk(t)*32*4096}"]
        for j in range(4):
            out.append(dmai(f"v{(18 if t < 4 else 22)+j}", WO if t < 4 else W2, "s101", j*1024, toks, t, WFL))
        return out

    def p_wread(t):
        out = []
        for j in range(4):
            r = (t % PNWB)*16 + j*4
            o = pslot(t)*4096
            ar = (224 if t < 4 else 228) + j
            out.append(f"ds_read_b64_tr_b16 {A(r,2)}, v{ar} offset:{o}")
            out.append(f"ds_read_b64_tr_b16 {A(r+2,2)}, v{ar} offset:{o+2048}")
        return out

    def p3_e1(d):
        out = []
        for t in range(5):
            out += p_wdma(t, d)
        return out

    def p3_e2r(d):
        out = []
        for t in range(5):
            out.append(lambda t=t: k.wait_vm(d[t]))
            out += p_wread(t)
        return out

    def p3_e2d():
        out = []
        for t in range(5, 10):
            out += p_wdma(t, {})
        return out

    def oflag():
        k.vmem(f"buffer_load_dword v250, v240, {WS}, 0 offen sc1")

    def zload():
        return k.vmem(f"buffer_load_dword v31, v5, {DBG}, 0 offen sc1")

    def zcheck():
        if opt.get("nowait"):
            return
        dn = k.newlab("L_z")
        e("v_cmp_gt_u32 vcc, 1, v31")
        e(f"s_cbranch_vccz {dn}")
        k.poll("v5", DBG, 1)
        k.label(dn)

    k.c("================= Q role: LN =================")
    k.vm = 0
    e("s_lshl_b32 s15, s8, 7")
    e("s_lshl_b32 s12, s9, 4")
    e("s_add_u32 s15, s15, s12")
    e("s_lshl_b32 s12, s3, 2")
    e("s_add_u32 s12, s12, s15")
    e("s_lshl_b32 s12, s12, 10")
    e("v_lshlrev_b32 v7, 4, v2")
    e("v_lshl_add_u32 v6, v3, 10, v7")
    e("s_waitcnt lgkmcnt(0)")
    srd(X)
    tx = [k.vmem(f"buffer_load_dwordx4 {V(32+4*j,4)}, v6, {X}, s12 offen offset:{256*j}") for j in range(4)]
    srd(GW)
    tg = [k.vmem(f"buffer_load_dwordx4 {V(48+4*j,4)}, v7, {GW}, 0 offen offset:{256*j}") for j in range(4)]
    srd(WQKV)
    if not opt.get("q_late", 0):
        touch_xw()
    for n_ in (WS, DBG, WO, W2, B2, OUT):
        srd(n_)
    diag_clear()
    e("v_lshrrev_b32 v12, 3, v1")
    e("v_and_b32 v13, 7, v1")
    e("v_lshrrev_b32 v14, 1, v12")
    e("v_xor_b32 v14, v14, v13")
    e("v_lshlrev_b32 v14, 4, v14")
    e("v_lshl_add_u32 v14, v12, 10, v14")
    e("v_xor_b32 v15, 64, v14")
    e("s_lshl_b32 s13, s8, 17")
    e("s_lshl_b32 s12, s3, 15")
    e("s_add_u32 s13, s13, s12")
    e("v_add_u32 v144, s13, v14")
    e(f"s_add_u32 s13, s13, {7168}")
    e("v_add_u32 v145, s13, v15")
    e(f"v_add_u32 v146, {2*7168}, v144")
    e(f"v_add_u32 v147, {2*7168}, v145")
    e("v_and_b32 v16, 2, v12")
    e("v_xor_b32 v16, v16, v13")
    e("v_lshlrev_b32 v16, 4, v16")
    e("v_xor_b32 v17, 64, v16")
    e("v_mul_u32_u24 v12, 3072, v12")
    e("s_mul_i32 s13, s3, 49152")
    e("s_lshl_b32 s12, s9, 7")
    e("s_add_u32 s13, s13, s12")
    e("v_add3_u32 v148, v16, v12, s13")
    e(f"s_add_u32 s13, s13, {8*3072-1024}")
    e("v_add3_u32 v149, v17, v12, s13")
    for sec in (1, 2):
        e(f"v_add_u32 v{148+2*sec}, {1024*sec}, v148")
        e(f"v_add_u32 v{149+2*sec}, {1024*sec}, v149")
    e("s_lshl_b32 s90, s3, 12")
    e("s_lshl_b32 s91, s3, 11")
    if ROTQ:
        e("s_add_u32 s88, s8, s9")
        e("s_and_b32 s88, s88, 3")
        e("s_lshl_b32 s88, s88, 1")
        e("s_xor_b32 s12, s4, s5")
        e("s_and_b32 s12, s12, 1")
        e("s_add_u32 s88, s88, s12")
        e("s_lshl_b32 s88, s88, 7")
    else:
        e("s_mov_b32 s88, 0")
    ct = {}

    def qdma(c):
        slot = c % 4
        out = [f"s_add_u32 m0, s90, {slot*40960}", "s_mul_i32 s89, s88, 1536"]
        for j in range(4):
            out.append(dmai(f"v{144+j}", X, "s88", j*1024))
        for sec in range(3):
            out.append(f"s_add_u32 m0, s91, {slot*40960 + 16384 + sec*8192}")
            if sec == 0:
                out.append("s_add_u32 s88, s88, 128")
            if sec == 1:
                out.append("s_and_b32 s88, s88, 1023")
            for j in range(2):
                out.append(dmai(f"v{148+2*sec+j}", WQKV, "s89", j*1024, ct, c, WFL))
        out.append(lambda: ctd.add(c))
        return out
    ctd = set()
    nearly = opt.get("q_early", 0)
    for c in range(nearly):
        run_all(k, qdma(c))
    LNB = 3 * 40960
    e("s_mul_i32 s12, s3, 4352")
    e(f"s_add_u32 s12, s12, {LNB}")
    e("v_mul_u32_u24 v8, 1088, v3")
    e("v_add3_u32 v8, v8, v7, s12")
    e("v_and_b32 v9, 1, v3")
    e("v_lshlrev_b32 v9, 3, v9")
    e("v_lshrrev_b32 v10, 2, v2")
    e("v_add_u32 v9, v9, v10")
    e("v_mul_u32_u24 v9, 1088, v9")
    e("v_lshrrev_b32 v10, 1, v3")
    e("v_lshl_add_u32 v9, v10, 5, v9")
    e("v_and_b32 v11, 3, v2")
    e("v_lshl_add_u32 v9, v11, 3, v9")
    e("s_lshl_b32 s12, s3, 8")
    e(f"s_add_u32 s12, s12, {LNB}")
    e("v_add_u32 v9, s12, v9")
    e(f"v_mul_u32_u24 v10, {HS}, v10")
    e("v_and_b32 v11, 1, v3")
    e("v_lshl_add_u32 v10, v11, 8, v10")
    e("v_add_u32 v10, v10, v7")
    e(f"s_mul_i32 s84, s3, {8*HS}")
    e("s_lshl_b32 s12, s15, 5")
    e("s_add_u32 s84, s84, s12")
    if HF:
        e(f"s_add_u32 s84, s84, {HF}")
    e("s_lshl_b32 s12, s3, 2")
    e("s_add_u32 s12, s12, s15")
    e("s_lshl_b32 s12, s12, 2")
    e(f"s_add_u32 s12, s12, {GG}")
    e("v_lshl_add_u32 v11, v3, 2, s12")
    e("v_cmp_eq_u32 vcc, 0, v2")
    e("v_mov_b32 v12, 0x7ffffff0")
    e("s_mov_b32 s85, 0x3f803f80")
    e("v_cndmask_b32 v11, v12, v11, vcc")
    e("s_lshr_b32 s96, s3, 1")
    e("s_and_b32 s97, s3, 1")
    e("v_lshrrev_b32 v18, 1, v2")
    e("v_xor_b32 v18, v18, v3")
    e("v_lshlrev_b32 v18, 4, v18")
    e("v_lshl_add_u32 v18, v2, 7, v18")
    e("s_lshl_b32 s12, s96, 13")
    e("v_add_u32 v18, s12, v18")
    e("v_xor_b32 v19, 64, v18")
    e("v_add_u32 v20, 81920, v18")
    e("v_add_u32 v21, 81920, v19")
    e("v_lshrrev_b32 v22, 2, v2")
    e("v_lshrrev_b32 v23, 3, v2")
    e("v_and_b32 v24, 1, v3")
    e("v_lshl_add_u32 v23, v24, 1, v23")
    e("s_lshl_b32 s12, s97, 1")
    e("v_xor_b32 v23, s12, v23")
    e("v_lshl_add_u32 v22, v3, 3, v22")
    e("v_lshlrev_b32 v22, 7, v22")
    e("v_lshl_add_u32 v22, v23, 5, v22")
    e("v_and_b32 v24, 3, v2")
    e("v_lshl_add_u32 v22, v24, 3, v22")
    e("v_add_u32 v22, 16384, v22")
    e("v_xor_b32 v23, 32, v22")
    e("v_add_u32 v24, 81920, v22")
    e("v_add_u32 v25, 81920, v23")
    e("v_lshrrev_b32 v154, 3, v1")
    e("v_and_b32 v155, 7, v1")
    e("v_lshlrev_b32 v154, 12, v154")
    e("v_lshl_add_u32 v154, v155, 7, v154")
    e("s_lshl_b32 s12, s6, 2")
    e("s_add_u32 s12, s12, s3")
    if opt.get("pf_split", 1):
        e("s_lshl_b32 s13, s5, 5")
        e("s_xor_b32 s13, s13, s12")
    else:
        e("s_mov_b32 s13, s12")
    e(f"s_mul_i32 s13, s13, {24*4096}")
    e("s_lshl_b32 s14, s4, 10")
    e("s_add_u32 s13, s13, s14")
    e("v_add_u32 v154, s13, v154")
    e("v_lshrrev_b32 v155, 2, v1")
    e("v_lshlrev_b32 v155, 10, v155")
    e("v_and_b32 v156, 3, v1")
    e("v_lshl_add_u32 v155, v156, 7, v155")
    e("s_lshl_b32 s13, s12, 14")
    e("s_lshl_b32 s14, s5, 9")
    e("s_add_u32 s13, s13, s14")
    e("v_add_u32 v155, s13, v155")
    e("s_lshl_b32 s13, s5, 4")
    e("s_add_u32 s13, s13, s6")
    e(f"s_mul_i32 s13, s13, {HS}")
    e("s_lshl_b32 s14, s3, 14")
    e("s_add_u32 s13, s13, s14")
    if HF:
        e(f"s_add_u32 s13, s13, {HF}")
    e("v_lshl_add_u32 v156, v1, 7, s13")
    e("s_and_b32 s13, s2, 7")
    e("s_lshl_b32 s13, s13, 8")
    e(f"s_add_u32 s13, s13, {CNT + 96*256}")
    e("v_and_b32 v158, 3, v1")
    e("v_lshl_add_u32 v158, v158, 11, s13")

    k.wait_vm(tx[3])
    if opt.get("q_late", 0):
        touch_xw()
    QFAST = opt.get("q_fast", 1)
    ln_start = len(k.l)
    e("v_dot2_f32_bf16 v26, v32, s85, 0")
    e("v_dot2_f32_bf16 v27, v33, s85, 0")
    for j in range(2, 16):
        e(f"v_dot2_f32_bf16 v{26+(j&1)}, v{32+j}, s85, v{26+(j&1)}")
    unp = []
    for j in range(16):
        unp.append(f"v_lshlrev_b32 v{64+2*j}, 16, v{32+j}")
        unp.append(f"v_and_b32 v{65+2*j}, 0xffff0000, v{32+j}")
    for s in unp[:4]:
        e(s)
    e("v_add_f32 v26, v26, v27")
    ui = 4
    for rot in (8, 4, 2, 1):
        for s in unp[ui:ui+3]:
            e(s)
        ui += 3
        e(f"v_add_f32_dpp v26, v26, v26 row_ror:{rot} row_mask:0xf bank_mask:0xf")
    for s in unp[ui:]:
        e(s)
    e(f"v_mul_f32 v26, {hex(f32bits(-1.0/512))}, v26")
    for j in range(16):
        e(f"v_pk_add_f32 {V(64+2*j,2)}, {V(64+2*j,2)}, v[26:27] op_sel_hi:[1,0]")
    e("v_pk_mul_f32 v[96:97], v[64:65], v[64:65]")
    e("v_pk_mul_f32 v[98:99], v[66:67], v[66:67]")
    for j in range(2, 16):
        a_ = 96 + 2 * (j & 1)
        e(f"v_pk_fma_f32 {V(a_,2)}, {V(64+2*j,2)}, {V(64+2*j,2)}, {V(a_,2)}")
    e("v_pk_add_f32 v[96:97], v[96:97], v[98:99]")
    e("v_add_f32 v26, v96, v97")
    k.wait_vm(tg[3])
    gd = ["v_dot2_f32_bf16 v28, v32, v48, 0", "v_dot2_f32_bf16 v29, v33, v49, 0"]
    for j in range(2, 16):
        gd.append(f"v_dot2_f32_bf16 v{28+(j&1)}, v{32+j}, v{48+j}, v{28+(j&1)}")
    gi = 0
    for rot in (8, 4, 2, 1):
        e(gd[gi]); e(gd[gi+1]); gi += 2
        e(f"v_add_f32_dpp v26, v26, v26 row_ror:{rot} row_mask:0xf bank_mask:0xf")
    e(f"v_mov_b32 v27, {hex(f32bits(1e-5))}")
    e(f"v_fmac_f32 v27, {hex(f32bits(1.0/512))}, v26")
    e("v_rsq_f32 v26, v27")
    e(gd[gi]); gi += 1
    for j in range(16):
        e(f"v_pk_mul_f32 {V(64+2*j,2)}, {V(64+2*j,2)}, v[26:27] op_sel_hi:[1,0]")
    for j in range(16):
        e(f"v_cvt_pk_bf16_f32 v{100+j}, v{64+2*j}, v{65+2*j}")
        if j % 4 == 3:
            e(f"ds_write_b128 v8, {V(100+j-3,4)} offset:{256*(j//4)}")
    while gi < 16:
        e(gd[gi]); gi += 1
    if QFAST:
        body = [x.strip() for x in k.l[ln_start:]]
        del k.l[ln_start:]
        body = [(lambda: k.wait_vm(tg[3])) if x.startswith("s_waitcnt vmcnt") else x for x in body]
        skip = opt.get("q_skip", 0)
        run_all(k, body[:skip] + mix(body[skip:], qdma(0) + qdma(1)))
    k.lgkm0()
    e("s_barrier")
    for j in range(4):
        e(f"ds_read_b64_tr_b16 {V(64+4*j,2)}, v9 offset:{64*j}")
        e(f"ds_read_b64_tr_b16 {V(66+4*j,2)}, v9 offset:{64*j+4*1088}")
    e("v_add_f32 v28, v28, v29")
    th = None
    for j in range(4):
        e(f"s_waitcnt lgkmcnt({6-2*j})") if not opt.get("diag") else k.lgkm0()
        e(f"s_add_u32 s12, s84, {j*2*HS}")
        th = k.vmem(f"buffer_store_dwordx4 {V(64+4*j,4)}, v10, {WS}, s12 offen sc1")
    for rot in (8, 4, 2, 1):
        e(f"v_add_f32_dpp v28, v28, v28 row_ror:{rot} row_mask:0xf bank_mask:0xf")
        k.nop(2)
    e(f"v_mul_f32 v28, {hex(f32bits(-1.4426950408889634))}, v28")
    e("v_exp_f32 v28, v28")
    k.nop(1)
    e("v_add_f32 v28, 1.0, v28")
    e("v_rcp_f32 v28, v28")
    k.nop(1)
    th = k.vmem(f"buffer_store_dword v28, v11, {WS}, 0 offen sc1")
    k.stamp(1)

    th = zload()
    npre = 2 if QFAST else max(nearly, opt.get("q_pre", 2))

    def h_arrive():
        k.stamp(2)
        e("s_lshr_b32 s12, s8, 2")
        e("s_lshl_b32 s12, s12, 11")
        e(f"s_add_u32 s12, s12, {CNT + 96*256}")
        k.arrive(WS, "s12", 8)
    if not QFAST:
        for c in range(nearly, npre):
            run_all(k, qdma(c))
        k.wait_vm(th)
        zcheck()
        e("s_barrier")
        h_arrive()

    ACC = 160
    FR = [64, 104]

    def qreads(t):
        c, kk = t // 2, t % 2
        slot = c % 4
        hi = slot >= 2
        so = (slot % 2) * 40960
        base = FR[t % 2]
        out = []
        xa = 18 + kk + (2 if hi else 0)
        for i in range(4):
            out.append(f"ds_read_b128 {V(base+4*i,4)}, v{xa} offset:{so + i*2048}")
        for sec in range(3):
            for hh in range(2):
                wa = 22 + hh + (2 if hi else 0)
                r = base + 16 + (sec*2 + hh)*4
                o = so + sec*8192 + kk*4096
                out.append(f"ds_read_b64_tr_b16 {V(r,2)}, v{wa} offset:{o}")
                out.append(f"ds_read_b64_tr_b16 {V(r+2,2)}, v{wa} offset:{o+512}")
        return out

    k.wait_vm(ct[0])
    e("s_barrier")
    k.stamp(3)
    run_all(k, qreads(0))
    k.lgkm0()
    pend = []
    for c in range(npre, 4):
        pend += qdma(c)
    PFT = opt.get("pf_t", 11)
    HT = opt.get("h_t", 4)
    QPER = opt.get("q_per", 10)
    qdone = set(range(npre))
    for t in range(16):
        qp = dict(zip((0, 1, 2, 3, 4, 5, 6, 8, 10, 12, 14), (1, 2, 3, 4, 5, 6, 7, 8, 0, 9, 10)))
        if t in qp:
            k.stamp(qp[t], True)
        head = []
        if t % 2 == 1 and t + 1 < 16:
            c = (t + 1) // 2
            assert c in ctd, (t, c)
            head = [lambda c=c: k.wait_vm(ct[c]), "s_barrier"]
            if QFAST and c == 2:
                head = [lambda c=c: (k.wait_vm(ct[c]), zcheck()), "s_barrier", h_arrive]
            if c + 3 < 8:
                pend = pend + qdma(c + 3)
        vm = pend[:QPER]
        pend = pend[len(vm):]
        if t == HT - 1 and opt.get("pfh", 0):
            def hl():
                ct["h"] = k.vmem(f"buffer_load_dword v159, v158, {WS}, 0 offen sc1")
            vm = vm + [hl]
        if t == HT and opt.get("pfh", 0):
            vm = vm + [lambda: k.wait_vm(ct["h"]), "v_cmp_gt_u32 vcc, 32, v159", "s_nop 0",
                       lambda: (e("s_cmp_eq_u64 vcc, 0"), e(f"s_cselect_b32 s13, 0, {hex(WS_BYTES)}")),
                       lambda: k.vmem(f"buffer_load_dword v157, v156, {WS}, s13 offen sc1"),
                       "s_add_u32 s13, s13, 8192", f"s_min_u32 s13, s13, {hex(WS_BYTES)}",
                       lambda: k.vmem(f"buffer_load_dword v157, v156, {WS}, s13 offen sc1")]
        if t == PFT and opt.get("pf", 1):
            assert not pend and t >= 7
            for j in range(opt.get("pf_n", 2)):
                vm = vm + [f"s_mov_b32 s13, {j*8*4096}", lambda: k.vmem(f"buffer_load_dword v157, v154, {W2}, s13 offen")]
            vm = vm + [lambda: k.vmem(f"buffer_load_dword v157, v155, {WO}, 0 offen")]
        reads = qreads(t + 1) if t + 1 < 16 else []
        base = FR[t % 2]
        mfmas = []
        for sec in (1, 2, 0):
            for hh in range(2):
                for i in range(4):
                    d = ACC + sec*32 + (hh*4 + i)*4
                    xf = V(base + 4*i, 4)
                    wf = V(base + 16 + (sec*2 + hh)*4, 4)
                    cc = "0" if t == 0 else V(d, 4)
                    mfmas.append((None, mf(V(d, 4), wf, xf, cc) if sec == 0 else mf(V(d, 4), xf, wf, cc)))
        interleave(k, mfmas, head + mix(reads, vm), tail=4)
        if reads:
            k.lgkm0()
    k.stamp(4)
    k.stamp(11, True)

    e(f"s_mov_b32 s92, {hex(LOG2E)}")
    e(f"s_mov_b32 s93, {hex(LOG2E)}")
    e(f"s_mov_b32 s94, {hex(f32bits(1e-6))}")
    e(f"s_mov_b32 s95, {hex(f32bits(1e-6))}")
    e("v_mov_b32 v26, s85")
    e("v_mov_b32 v27, s85")
    e("v_mov_b32 v28, s85")
    e("v_mov_b32 v29, s85")

    def phi(src, dst):
        for j in range(16):
            e(f"v_pk_mul_f32 {V(64+2*j,2)}, {V(src+2*j,2)}, s[92:93]")
        for j in range(32):
            e(f"v_exp_f32 v{64+j}, v{64+j} clamp")
            e(f"v_max_f32 v{src+j}, 0, v{src+j}")
        for j in range(16):
            e(f"v_pk_add_f32 {V(64+2*j,2)}, {V(64+2*j,2)}, s[94:95]")
        for j in range(16):
            e(f"v_pk_add_f32 {V(64+2*j,2)}, {V(64+2*j,2)}, {V(src+2*j,2)}")
        for j in range(16):
            e(f"v_cvt_pk_bf16_f32 v{dst+j}, v{64+2*j}, v{65+2*j}")
    PK, PV, PQ = 96, 112, 128
    XB = 36864
    phi(ACC + 32, PK)
    for j in range(16):
        e(f"v_cvt_pk_bf16_f32 v{PV+j}, v{ACC+64+2*j}, v{ACC+65+2*j}")
    e("s_barrier")
    k.nop(1)
    for p in range(2):
        for hh in range(2):
            a_ = V(PK + hh*8 + p*4, 4)
            b_ = V(PV + hh*8 + p*4, 4)
            e(mf(V(32+8*hh, 4), a_, b_, "0" if p == 0 else V(32+8*hh, 4)))
            e(mf(V(36+8*hh, 4), a_, "v[26:29]", "0" if p == 0 else V(36+8*hh, 4)))
    e("v_add_u32 v6, s7, v4")
    e("s_xor_b32 s12, s3, 2")
    e("s_mul_i32 s12, s12, 40960")
    e("v_add_u32 v7, s12, v4")
    k.nop(4)
    l1 = k.newlab()
    l2 = k.newlab()
    e("s_cmp_eq_u32 s96, 0")
    e(f"s_cbranch_scc1 {l1}")
    e(f"ds_write_b128 v6, v[32:35] offset:{XB}")
    e(f"ds_write_b128 v6, v[36:39] offset:{XB+1024}")
    k.lgkm0()
    for j in range(8):
        e(f"v_mov_b32 v{32+j}, v{40+j}")
    e(f"s_branch {l2}")
    k.label(l1)
    e(f"ds_write_b128 v6, v[40:43] offset:{XB}")
    e(f"ds_write_b128 v6, v[44:47] offset:{XB+1024}")
    k.label(l2)
    k.lgkm0()
    e("s_barrier")
    e(f"ds_read_b128 v[40:43], v7 offset:{XB}")
    e(f"ds_read_b128 v[44:47], v7 offset:{XB+1024}")
    e("s_lshl_b32 s15, s9, 2")
    e("s_lshl_b32 s12, s97, 1")
    e("s_add_u32 s15, s15, s12")
    e("s_add_u32 s15, s15, s96")
    e("s_lshl_b32 s12, s15, 4")
    e("s_add_u32 s12, s12, s8")
    e("s_lshl_b32 s13, s12, 10")
    e(f"s_add_u32 s13, s13, {KVP}")
    e("s_lshl_b32 s12, s12, 6")
    e(f"s_add_u32 s12, s12, {ZP}")
    e("v_lshlrev_b32 v8, 4, v3")
    e("v_cmp_eq_u32 vcc, 0, v2")
    e("v_mov_b32 v9, 0x7ffffff0")
    k.nop(1)
    e("v_cndmask_b32 v8, v9, v8, vcc")
    k.lgkm0()
    for j in range(4):
        e(f"v_pk_add_f32 {V(32+2*j,2)}, {V(32+2*j,2)}, {V(40+2*j,2)}")
    k.vmem(f"buffer_store_dwordx4 v[32:35], v4, {WS}, s13 offen sc1")
    k.vmem(f"buffer_store_dwordx4 v[36:39], v8, {WS}, s12 offen sc1")
    run_all(k, p3_setup())
    k.wait_vm0()
    e("s_barrier")
    e(f"s_lshl_b32 s12, s9, 10")
    e(f"s_add_u32 s12, s12, {CNT}")
    k.arrive(WS, "s12", 4)
    e("s_lshl_b32 s13, s4, 8")
    e("s_add_u32 s12, s12, s13")
    e("v_mov_b32 v8, s12")
    k.stamp(5)
    if opt.get("pf", 1):
        for j in range(opt.get("pf_n", 2), 3):
            e(f"s_mov_b32 s13, {j*8*4096}")
            k.vmem(f"buffer_load_dword v157, v154, {W2}, s13 offen")
    qd = {}
    if opt.get("q_p3early", 0):
        run_all(k, p3_e1(qd))
    phi(ACC, PQ)
    k.poll("v8", WS, 16)
    k.stamp(6)
    e("s_lshl_b32 s13, s15, 14")
    e(f"s_add_u32 s13, s13, {KVP}")
    e("s_lshl_b32 s12, s15, 10")
    e(f"s_add_u32 s12, s12, {ZP}")
    e("v_lshlrev_b32 v8, 6, v2")
    e("v_lshl_add_u32 v8, v3, 4, v8")
    tz = k.vmem(f"buffer_load_dwordx4 v[36:39], v8, {WS}, s12 offen sc1")
    tp = []
    for j in range(16):
        if j % 4 == 0 and j:
            e(f"s_add_u32 s13, s13, 4096")
        tp.append(k.vmem(f"buffer_load_dwordx4 {V(160+4*j,4)}, v4, {WS}, s13 offen offset:{(j%4)*1024} sc1"))
    k.wait_vm(tz)
    for rot in (8, 4, 2, 1):
        for r in range(4):
            e(f"v_add_f32_dpp v{36+r}, v{36+r}, v{36+r} row_ror:{rot} row_mask:0xf bank_mask:0xf")
    for j in range(1, 16):
        k.wait_vm(tp[j])
        e(f"v_pk_add_f32 v[160:161], v[160:161], {V(160+4*j,2)}")
        e(f"v_pk_add_f32 v[162:163], v[162:163], {V(162+4*j,2)}")
    e("v_cvt_pk_bf16_f32 v32, v160, v161")
    e("v_cvt_pk_bf16_f32 v33, v162, v163")
    e("v_cvt_pk_bf16_f32 v34, v36, v37")
    e("v_cvt_pk_bf16_f32 v35, v38, v39")
    e(f"ds_write_b128 v6, v[32:35] offset:{XB+2048}")
    k.lgkm0()
    e("s_barrier")
    l1 = k.newlab()
    l2 = k.newlab()
    e("s_cmp_eq_u32 s96, 0")
    e(f"s_cbranch_scc1 {l1}")
    e(f"ds_read_b128 v[40:43], v7 offset:{XB+2048}")
    e(f"ds_read_b128 v[44:47], v6 offset:{XB+2048}")
    e(f"s_branch {l2}")
    k.label(l1)
    e(f"ds_read_b128 v[40:43], v6 offset:{XB+2048}")
    e(f"ds_read_b128 v[44:47], v7 offset:{XB+2048}")
    k.label(l2)
    e("s_lshl_b32 s15, s8, 3")
    e("s_lshl_b32 s12, s96, 2")
    e("s_add_u32 s15, s15, s12")
    e("s_lshl_b32 s15, s15, 4")
    e("s_lshl_b32 s12, s9, 1")
    e("s_add_u32 s15, s15, s12")
    e("s_add_u32 s15, s15, s97")
    e("s_lshl_b32 s15, s15, 10")
    e(f"s_add_u32 s15, s15, {OF}")
    k.lgkm0()
    for hh in range(2):
        for i in range(4):
            q_ = V(PQ + (hh*4+i)*2, 2)
            e(f"v_mfma_f32_16x16x16_bf16 {V(192+(hh*4+i)*4,4)}, {V(42+4*hh,2)}, {q_}, 0")
    for hh in range(2):
        for i in range(4):
            q_ = V(PQ + (hh*4+i)*2, 2)
            e(f"v_mfma_f32_16x16x16_bf16 {V(160+(hh*4+i)*4,4)}, {V(40+4*hh,2)}, {q_}, 0")
    k.nop(1)
    for n_ in range(8):
        e(f"v_add_f32 v{192+4*n_}, s94, v{192+4*n_}")
    for n_ in range(8):
        e(f"v_rcp_f32 v{192+4*n_}, v{192+4*n_}")
    for n_ in range(8):
        e(f"v_pk_mul_f32 {V(160+4*n_,2)}, {V(160+4*n_,2)}, {V(192+4*n_,2)} op_sel_hi:[1,0]")
        e(f"v_pk_mul_f32 {V(162+4*n_,2)}, {V(162+4*n_,2)}, {V(192+4*n_,2)} op_sel_hi:[1,0]")
    for i in range(4):
        for hh in range(2):
            s_ = 160 + (hh*4+i)*4
            e(f"v_cvt_pk_bf16_f32 v{64+4*i+2*hh}, v{s_}, v{s_+1}")
            e(f"v_cvt_pk_bf16_f32 v{65+4*i+2*hh}, v{s_+2}, v{s_+3}")
        e(f"s_add_u32 s12, s15, {i*16384}")
        tos = k.vmem(f"buffer_store_dwordx4 {V(64+4*i,4)}, v4, {WS}, s12 offen sc1")
    qe1 = p3_e1(qd) if not opt.get("q_p3early", 0) else []
    nq = 6 * opt.get("q_e1pre", 2)
    run_all(k, qe1[:nq])
    k.wait_vm(tos)
    e("s_barrier")
    e("s_lshl_b32 s12, s8, 9")
    e(f"s_add_u32 s12, s12, {CNT + 32*256}")
    k.arrive(WS, "s12", 2)
    k.stamp(7)
    run_all(k, qe1[nq:])
    run_all(k, p3_e2r(qd))
    oflag()
    k.lgkm0()
    run_all(k, p3_e2d())
    e("s_branch L_p3")

    k.label("L_urole")
    k.c("================= U role =================")
    k.vm = 0
    if UPART == 8:
        e("s_and_b32 s9, s6, 7")
        e("s_bfe_u32 s8, s6, 0x10003")
        e("s_and_b32 s12, s2, 7")
        e("s_lshl_b32 s12, s12, 1")
        e("s_add_u32 s8, s8, s12")
    e("v_lshrrev_b32 v12, 2, v1")
    e("v_and_b32 v13, 3, v1")
    e(f"s_mul_i32 s13, s3, {512*2752}")
    e("s_mul_i32 s12, s8, 192")
    e("s_add_u32 s13, s13, s12")
    for j in range(3):
        e(f"v_add_u32 v14, {16*j}, v12")
        e("v_mul_u32_u24 v15, 43, v14")
        e("v_lshrrev_b32 v15, 7, v15")
        e("v_mul_u32_u24 v16, 3, v15")
        e("v_sub_u32 v14, v14, v16")
        e("v_lshrrev_b32 v16, 2, v15")
        e("v_and_b32 v16, 2, v16")
        e("v_xor_b32 v16, v16, v13")
        e("v_lshlrev_b32 v16, 4, v16")
        e("v_lshl_add_u32 v16, v14, 6, v16")
        e("v_mul_u32_u24 v15, 2752, v15")
        e(f"v_add3_u32 v{6+j}, v15, v16, s13")
        if j:
            e(f"v_subrev_u32 v{6+j}, {j*1024}, v{6+j}")
        e(f"v_add_u32 v{9+j}, {16*2752}, v{6+j}")
    if ROTU:
        e("s_add_u32 s91, s9, s8" if ROTU == 1 else "s_mov_b32 s91, s9")
        e("s_and_b32 s91, s91, 3")
        e("s_lshl_b32 s91, s91, 2")
    else:
        e("s_mov_b32 s91, 0")
    e(f"s_mul_i32 s88, s91, {32*2752}")
    e("s_lshl_b32 s91, s91, 10")
    e("s_waitcnt lgkmcnt(0)")
    srd(W1)
    e("s_cmp_eq_u32 s8, 15")
    e("s_cbranch_scc1 L_spare")
    srd(B1)
    e("s_mul_i32 s12, s8, 192")
    e("v_lshlrev_b32 v30, 3, v3")
    for j in range(6):
        k.vmem(f"buffer_load_dwordx2 {V(184+2*j,2)}, v30, {B1}, s12 offen offset:{32*j}")
    if opt.get("u_late", 0):
        k.wait_vm0()
    touch_w1()
    UL, UNWB, UFB = 6, 7, 8
    UR = opt.get("u_r", 2)
    RB = 22528

    def u_wdma(t, toks):
        out = []
        for j in range(6):
            if j % 3 == 0:
                out.append(f"s_add_u32 m0, s7, {(t % UL)*6144 + j*1024}")
            out.append(dmai(f"v{6+j}", W1, "s88", (j % 3)*1024, toks, t, UFL if t < opt.get("u_nt_steps", 0) else ""))
        out.append(f"s_add_u32 s88, s88, {32*2752}")
        if t % 4 == 3:
            out.append(lambda: (e(f"s_cmp_eq_u32 s88, {16*32*2752}"), e("s_cselect_b32 s88, 0, s88")))
        return out

    def u_wread(t):
        out = []
        for fb in range(6):
            r = 72 + (t % UNWB)*24 + fb*4
            o = (t % UL)*6144 + (fb >> 1)*64
            out.append(f"ds_read_b64_tr_b16 {A(r,2)}, v{16+(fb&1)} offset:{o}")
            out.append(f"ds_read_b64_tr_b16 {A(r+2,2)}, v{16+(fb&1)} offset:{o+768}")
        return out

    def u_fload(t, b, toks):
        def f():
            toks[(t, b)] = k.vmem(f"buffer_load_dwordx4 {V(32+(t%UFB)*16+4*b,4)}, v{12+b}, {WS}, s91 offen offset:{(t%4)*1024} sc1")
        out = [f]
        if t % 4 == 3 and b == 3:
            out.append("s_add_u32 s91, s91, 4096")
            out.append("s_and_b32 s91, s91, 0x3fff")
        return out

    def uacc(b, j):
        return A((b*6 + j)*4, 4) if b < 3 else V(160 + j*4, 4)

    def u_mm(t, b, j):
        d = uacc(b, j)
        return mf(d, A(72 + (t % UNWB)*24 + j*4, 4), V(32+(t % UFB)*16+4*b, 4), "0" if t == 0 else d)

    su = SK(k, 16, UL, UNWB, UFB, 6, u_wdma, u_wread, u_fload, u_mm)
    if not opt.get("pfw", 0):
        su.issue_w(2)
    for n_ in (WS, DBG, WO, W2, B2, OUT):
        srd(n_)
    diag_clear()
    e("v_lshrrev_b32 v16, 2, v2")
    e("v_lshl_add_u32 v16, v3, 3, v16")
    e("v_mul_u32_u24 v16, 192, v16")
    e("v_and_b32 v12, 3, v2")
    e("v_lshl_add_u32 v16, v12, 3, v16")
    e("v_add_u32 v16, s7, v16")
    e("v_and_b32 v12, 1, v3")
    e("v_lshlrev_b32 v12, 5, v12")
    e("v_xor_b32 v13, 32, v12")
    e("v_add_u32 v17, v16, v13")
    e("v_add_u32 v16, v16, v12")
    e(f"s_mul_i32 s13, s9, {4*HS}")
    e("s_lshl_b32 s12, s3, 14")
    e("s_add_u32 s13, s13, s12")
    if HF:
        e(f"s_add_u32 s13, s13, {HF}")
    for b in range(4):
        e(f"s_add_u32 s12, s3, {1+b}")
        e("s_and_b32 s12, s12, 3")
        e(f"s_mul_i32 s12, s12, {HS}")
        e("s_add_u32 s12, s12, s13")
        e(f"v_add_u32 v{12+b}, s12, v4")
    run_all(k, p3_setup())
    e(f"s_add_u32 s12, s7, {RB}")
    e("v_add_u32 v26, s12, v4")
    for o in range(1, 4):
        e(f"s_add_u32 s12, s3, {o}")
        e("s_and_b32 s12, s12, 3")
        e("s_mul_i32 s12, s12, 40960")
        e(f"s_add_u32 s12, s12, {RB + (3-o)*6144}")
        e(f"v_add_u32 v{26+o}, s12, v4")
    e("s_and_b32 s12, s2, 7")
    e("s_lshl_b32 s13, s3, 3")
    e("s_add_u32 s12, s12, s13")
    e("s_lshl_b32 s12, s12, 8")
    e(f"s_add_u32 s12, s12, {CNT + 96*256}")
    e("v_mov_b32 v196, s12")
    su.issue_w(4)
    tz_ = zload()
    su.issue_w(UL)
    hold = opt.get("u_hold", 2)
    k.stamp(5)
    su.to_regs(UR, hold)
    k.wait_vm(tz_)
    zcheck()
    k.stamp(1)
    drained = k.poll2("v196", WS, 32, lambda: su.issue_w(UR + UL))
    k.stamp(2)
    k.stamp(1, True)
    seq = [(t, b) for t in range(12) for b in range(4)] + [(t, b) for b in range(4) for t in range(12, 16)]

    def u_post(win):
        if win < 13:
            return []
        b = win - 13
        return [f"ds_write_b128 v26, {uacc(b, j)} offset:{(b*6+j)*1024}" for j in range(6)]
    ud = {}
    pe = p3_e1(ud)
    bias = []
    for j in range(6):
        bias += [f"v_lshlrev_b32 v{200+4*j}, 16, v{184+2*j}", f"v_and_b32 v{201+4*j}, 0xffff0000, v{184+2*j}",
                 f"v_lshlrev_b32 v{202+4*j}, 16, v{185+2*j}", f"v_and_b32 v{203+4*j}, 0xffff0000, v{185+2*j}"]
    c0 = -2.0 * 0.7978845608028654 * 1.4426950408889634
    c1 = c0 * 0.044715
    misc = [f"s_mov_b32 s92, {hex(f32bits(c1))}", f"s_mov_b32 s93, {hex(f32bits(c1))}",
            f"v_mov_b32 v198, {hex(f32bits(c0))}", f"v_mov_b32 v199, {hex(f32bits(c0))}",
            "s_lshl_b32 s15, s9, 2", "s_add_u32 s15, s15, s3", "s_mul_i32 s15, s15, 43", "s_mul_i32 s13, s8, 3",
            "s_add_u32 s15, s15, s13", "s_lshl_b32 s15, s15, 10", f"s_add_u32 s15, s15, {GUF}",
            lambda: (e("s_cmp_eq_u32 s8, 14"), e("s_cselect_b32 s13, 0x7ff00000, 0")), "v_or_b32 v197, s13, v4"]

    def u_extra(win):
        if win == 12:
            return bias[:12] + misc
        if win == 13:
            return bias[12:]
        return []

    UPW = opt.get("u_pw", 12)

    def u_extra2(win):
        out = u_extra(win)
        if win >= UPW:
            assert su.nread == 16 and su_rd_done[0] < win
            n3 = -(-len(pe) // (16 - UPW))
            out = out + pe[(win-UPW)*n3:(win-UPW+1)*n3]
        if su.nread == 16 and su_rd_done[0] == 99:
            su_rd_done[0] = win
        return out
    su_rd_done = [99]
    su.run(seq, opt.get("u_la", 12), drained, u_post, opt.get("u_wdelay", 0), u_extra2,
           wsplit=opt.get("u_wsplit", 1),
           prof=dict(zip((0, 1, 2, 3, 4, 6, 8, 10, 12, 14), (2, 3, 4, 5, 6, 7, 8, 0, 9, 10))))
    k.stamp(11, True)
    k.stamp(3)
    k.lgkm0()
    e("s_barrier")
    for p in range(3):
        for o in range(1, 4):
            for j in (2*p, 2*p+1):
                e(f"ds_read_b128 {V(8+24*o+4*j,4)}, v{26+o} offset:{j*1024}")
        if p == 1:
            for r in range(12):
                e(f"v_pk_add_f32 {V(160+2*r,2)}, {V(160+2*r,2)}, {V(200+2*r,2)}")
    oflag()
    k.lgkm0()
    e2d = p3_e2d()
    E2LATE = opt.get("u_e2late", 1)
    ne = 0 if E2LATE else 6 * opt.get("u_e2in", 2)
    tst = {}
    for p in range(3):
        R_ = range(4*p, 4*p+4)
        va = []
        va += [f"v_pk_add_f32 {V(32+2*r,2)}, {V(32+2*r,2)}, {V(56+2*r,2)}" for r in R_]
        va += [f"v_pk_add_f32 {V(160+2*r,2)}, {V(160+2*r,2)}, {V(80+2*r,2)}" for r in R_]
        va += [f"v_pk_add_f32 {V(32+2*r,2)}, {V(32+2*r,2)}, {V(160+2*r,2)}" for r in R_]
        va += [f"v_pk_mul_f32 {V(56+2*r,2)}, {V(32+2*r,2)}, {V(32+2*r,2)}" for r in R_]
        va += [f"v_pk_fma_f32 {V(56+2*r,2)}, {V(56+2*r,2)}, s[92:93], v[198:199]" for r in R_]
        va += [f"v_pk_mul_f32 {V(56+2*r,2)}, {V(56+2*r,2)}, {V(32+2*r,2)}" for r in R_]
        va += [f"v_exp_f32 v{56+r}, v{56+r}" for r in range(8*p, 8*p+8)]
        va += [f"v_add_f32 v{56+r}, 1.0, v{56+r}" for r in range(8*p, 8*p+8)]
        va += [f"v_rcp_f32 v{56+r}, v{56+r}" for r in range(8*p, 8*p+8)]
        va += [f"v_pk_mul_f32 {V(32+2*r,2)}, {V(32+2*r,2)}, {V(56+2*r,2)}" for r in R_]
        va += [f"v_cvt_pk_bf16_f32 v{112+4*p+q}, v{32+8*p+2*q}, v{33+8*p+2*q}" for q in range(4)]
        if E2LATE:
            fl_ = []
        elif p == 0:
            fl_ = p3_e2r(ud)
        else:
            fl_ = e2d[(p-1)*ne//2:p*ne//2]
        run_all(k, mix(va, fl_))
        tst[p] = k.vmem(f"buffer_store_dwordx4 {V(112+4*p,4)}, {'v4' if p == 0 else 'v197'}, {WS}, s15 offen offset:{p*1024} sc1")
        if p == 0:
            k.lgkm0()
    k.stamp(4)
    if E2LATE:
        run_all(k, p3_e2r(ud))
        k.lgkm0()
    ne2 = ne + 6 * opt.get("u_e2dr", 1)
    run_all(k, e2d[ne:ne2])
    e("s_lshl_b32 s12, s9, 10")
    e(f"s_add_u32 s12, s12, {CNT + 64*256}")
    k.wait_vm(tst[2])
    e("s_barrier")
    k.arrive(WS, "s12", 4)
    k.stamp(7)
    run_all(k, e2d[ne2:])
    e("s_branch L_p3")

    k.label("L_spare")
    for n_ in (WS, DBG):
        srd(n_)
    nz = k.newlab("L_nz")
    e("s_or_b32 s12, s9, s3")
    e("s_cmp_lg_u32 s12, 0")
    e(f"s_cbranch_scc1 {nz}")
    e("v_lshlrev_b32 v30, 8, v1")
    e(f"s_mov_b32 s12, {CNT}")
    e(f"s_mov_b32 s13, {CNT + 64*256}")
    e(f"buffer_store_dword v5, v30, {WS}, s12 offen sc1")
    e(f"buffer_store_dword v5, v30, {WS}, s13 offen sc1")
    e("v_mov_b32 v31, 1")
    k.wait_vm0()
    e(f"buffer_store_dword v31, v5, {DBG}, 0 offen sc1")
    k.label(nz)
    touch_w1()
    for n_ in (WO, W2, B2, OUT):
        srd(n_)
    diag_clear()
    run_all(k, p3_setup())
    k.poll("v5", DBG, 1)
    k.poll("v240", WS, 8, sleep=32)
    sd = {}
    run_all(k, p3_e1(sd))
    run_all(k, p3_e2r(sd))
    oflag()
    k.lgkm0()
    run_all(k, p3_e2d())

    k.label("L_p3")
    k.c("================= P3 =================")

    def freg(t, b):
        return A(128 + (t % PFB)*16 + 4*b, 4)

    def p_fload(t, b, toks):
        if t < 4:
            so, off, vr = "0", t*1024, 232 + b
        else:
            y = yblk(t)
            so, off, vr = ("s86" if y == 10 else ["0", "s84", "s85"][y // 4]), (0 if y == 10 else (y % 4)*1024), 236 + b

        def f():
            toks[(t, b)] = k.vmem(f"buffer_load_dwordx4 {freg(t,b)}, v{vr}, {WS}, {so} offen offset:{off} sc1")
        return [f]

    YA, AA = 64, 128

    def p_mm(t, b, j):
        wr = A((t % PNWB)*16 + j*4, 4)
        if t < 4:
            d = V(YA + (j*4 + b)*4, 4)
            return mf(d, wr, freg(t, b), "0" if t == 0 else d)
        d = V(YA + (b*4 + j)*4, 4)
        return mf(d, freg(t, b), wr, d)

    k.vm = 0
    sp = SK(k, 15, PL, PNWB, PFB, 4, p_wdma, p_wread, p_fload, p_mm)
    k.vm = 1
    for t in range(5, 10):
        k.vm += 4
        sp.wt[t] = k.vm
    sp.issued = 10
    sp.nread = 5
    if not opt.get("nowait"):
        k.wait_vm(1)
        dn = k.newlab("L_fo")
        e("v_cmp_gt_u32 vcc, 8, v250")
        e(f"s_cbranch_vccz {dn}")
        k.poll("v240", WS, 8)
        k.label(dn)
    k.stamp(8)
    seq_a = [(t, b) for t in range(4) for b in range(4)]
    for i in range(8):
        run_all(k, p_fload(*seq_a[i], sp.ft))
    for j in range(4):
        k.vmem(f"buffer_load_dword v{32+2*j}, v242, {WS}, 0 offen offset:{64*j} sc1")
        k.vmem(f"buffer_load_ushort v{40+2*j}, v243, {B2}, 0 offen offset:{32*j}")
    sp.issue_w(11)
    gt = {}

    def a_extra(win):
        if win == opt.get("p_gw", 3):
            def f():
                gt[0] = k.vmem(f"buffer_load_dword v251, v241, {WS}, 0 offen sc1")
            return [f]
        return []
    sp.run(seq_a, 8, pre_issued=8, extra=a_extra, rmax=1)
    assert sp.issued == 15
    seq_y = [(t, b) for t in range(4, 11) for b in range(4)] + [(t, b) for b in range(4) for t in range(11, 15)]
    PLA = opt.get("p_la", 12)

    def shadow():
        for j in range(4):
            e(f"v_sub_f32 v{48+2*j}, 1.0, v{32+2*j}")
        for j in range(4):
            e(f"v_max_f32 v{48+2*j}, {hex(f32bits(1e-30))}, v{48+2*j}")
        for j in range(4):
            e(f"v_rcp_f32 v{56+j}, v{48+2*j}")
        for j in range(4):
            e(f"v_lshlrev_b32 v{40+2*j}, 16, v{40+2*j}")
        for j in range(4):
            e(f"v_mul_f32 v{32+2*j}, v{32+2*j}, v{56+j}")
        for b in range(4):
            for j in range(4):
                for h_ in range(2):
                    r = YA + (b*4 + j)*4 + 2*h_
                    if b < 3:
                        e(f"v_pk_mul_f32 {V(r,2)}, {V(r,2)}, {V(32+2*j,2)} op_sel_hi:[1,0]")
                    else:
                        e(f"v_pk_fma_f32 {V(r,2)}, {V(r,2)}, {V(32+2*j,2)}, {V(40+2*j,2)} op_sel_hi:[1,0,0]")
        k.nop(1)

    def yfirst():
        for i in range(PLA):
            run_all(k, p_fload(*seq_y[i], sp.ft))
    k.stamp(0)
    if not opt.get("nowait"):
        fast = k.newlab("L_yf")
        jn = k.newlab("L_yj")
        k.wait_vm(gt[0])
        e("v_cmp_gt_u32 vcc, 15, v251")
        e(f"s_cbranch_vccz {fast}")
        vs = k.vm
        shadow()
        k.poll("v241", WS, 15)
        k.stamp(9)
        yfirst()
        e(f"s_branch {jn}")
        k.label(fast)
        k.vm = vs
        k.stamp(9)
        yfirst()
        shadow()
        k.label(jn)
    else:
        yfirst()
        shadow()

    def comb(b):
        return [f"ds_write_b128 v244, {V(YA+(b*4+j)*4,4)} offset:{(b*4+j)*1024}" for j in range(4)]
    sp.run(seq_y, PLA, 0, lambda win: comb(win - 8) if win >= 8 else [], pre_issued=PLA, rmax=1,
           prof=(dict(zip(range(11), (1, 2, 3, 4, 5, 6, 7, 8, 0, 9, 10))) if opt.get("prof") == 2 else None))
    if opt.get("prof") == 2:
        k.stamp(11, True)
    k.stamp(10)
    k.lgkm0()
    e("s_barrier")
    for o in range(3):
        for j in range(4):
            e(f"ds_read_b128 {V(AA+16*o+4*j,4)}, v{245+o} offset:{j*1024}")
    for o in range(3):
        e(f"s_waitcnt lgkmcnt({8-4*o})") if not opt.get("diag") else k.lgkm0()
        for r in range(8):
            e(f"v_pk_add_f32 {V(YA+48+2*r,2)}, {V(YA+48+2*r,2)}, {V(AA+16*o+2*r,2)}")
    for r in range(8):
        e(f"v_pk_mul_f32 {V(YA+48+2*r,2)}, {V(YA+48+2*r,2)}, {V(48+2*(r//2),2)} op_sel_hi:[1,0]")
    for t in range(4):
        e(f"v_cvt_pk_bf16_f32 v{32+2*t}, v{YA+48+4*t}, v{YA+49+4*t}")
        e(f"v_cvt_pk_bf16_f32 v{33+2*t}, v{YA+50+4*t}, v{YA+51+4*t}")
    k.nop(2)
    for p in range(2):
        e(f"v_permlane16_swap_b32 v{32+4*p}, v{34+4*p}")
        e(f"v_permlane16_swap_b32 v{33+4*p}, v{35+4*p}")
    k.nop(1)
    for p in range(2):
        e(f"buffer_store_dwordx4 {V(32+4*p,4)}, v{248+p}, {OUT}, s87 offen {opt.get('oflags', '')}")
    if opt.get("diag"):
        e("s_waitcnt vmcnt(0)")
        k.stamp(11)
        k.lgkm0()
        for i in range(12):
            e(f"v_mov_b32 v{32+i}, s{16+2*i}")
        e("v_mov_b32 v44, s98")
        e("s_getreg_b32 s12, hwreg(HW_REG_XCC_ID)")
        e("v_mov_b32 v45, s12")
        e("s_lshl_b32 s12, s2, 2")
        e("s_add_u32 s12, s12, s3")
        e("s_lshl_b32 s12, s12, 6")
        e(f"s_add_u32 s12, s12, {DIAG}")
        e("v_mov_b32 v30, 0")
        e("s_mov_b64 exec, 1")
        for i in range(4):
            e(f"buffer_store_dwordx4 {V(32+4*i,4)}, v30, {WS}, s12 offen offset:{16*i}")
    k.label("L_end")
    e("s_endpgm")
    return "\n".join(k.l)


HEADER = open("cdna_kernels/" + NAME + ".s.ref").read().split("; Override launch geometry")[0]


def gen_meas(opt):
    mj, mk = opt["meas"], opt.get("mk", 1)
    l = []
    a = l.append
    a("s_cmp_ge_u32 s2, 1")
    a("s_cbranch_scc1 M_end")
    a("s_memrealtime s[30:31]")
    a("s_load_dwordx2 s[4:5], s[0:1], 88")
    a("v_lshlrev_b32 v1, 6, v0")
    a("v_mov_b32 v2, -1")
    a("v_mov_b32 v3, 0")
    a("s_waitcnt lgkmcnt(0)")
    a("s_mov_b32 s8, s4")
    a("s_mov_b32 s9, s5")
    a(f"s_mov_b32 s10, {WS_BYTES}")
    a("s_mov_b32 s11, 0x20000")
    lo, hi = {"Q": (0, 8), "U": (8, 16), "A": (0, 16)}[opt.get("mrole", "A")]
    for it in range(16):
        a(f"s_mov_b32 s12, {DIAG + it*4096}")
        a(f"buffer_load_dword v4, v1, s[8:11], s12 offen offset:48")
        a(f"buffer_load_dword v5, v1, s[8:11], s12 offen offset:{4*mj}")
        a("s_waitcnt vmcnt(0)")
        a("v_min_u32 v2, v2, v4")
        if lo <= it < hi:
            a("v_max_u32 v3, v3, v5")
    a("s_mov_b32 s14, -1")
    a("s_mov_b32 s15, 0")
    a("s_nop 4")
    for i in range(64):
        a(f"v_readlane_b32 s16, v2, {i}")
        a(f"v_readlane_b32 s17, v3, {i}")
        a("s_nop 3")
        a("s_min_u32 s14, s14, s16")
        a("s_max_u32 s15, s15, s17")
    if opt.get("mpost"):
        a("s_sub_u32 s15, s30, s15")
    else:
        a("s_sub_u32 s15, s15, s14")
    a("s_min_u32 s15, s15, 20000")
    a(f"s_mul_i32 s15, s15, {mk}")
    a("s_memrealtime s[20:21]")
    a("s_waitcnt lgkmcnt(0)")
    a("M_spin:")
    a("s_memrealtime s[22:23]")
    a("s_waitcnt lgkmcnt(0)")
    a("s_sub_u32 s24, s22, s20")
    a("s_cmp_lt_u32 s24, s15")
    a("s_cbranch_scc1 M_spin")
    a("M_end:")
    a("s_endpgm")
    return "\n".join(l)


def gen_file(opt):
    kn = NAME + "_kernel"
    nl = opt.get("launches", 1)
    s = HEADER
    for _ in range(opt.get("pre_empty", 0)):
        s += "; @launch kernel=empty_kernel grid=(1,1,1) block=(64,1,1) lds=0\n"
    if opt.get("pre_empty") and "meas" not in opt:
        s += f"; @launch kernel={kn} grid=(256,1,1) block=(256,1,1) lds=163840\n"
    elif "meas" in opt:
        s += f"; @launch kernel={kn} grid=(256,1,1) block=(256,1,1) lds=163840\n"
        s += f"; @launch kernel=meas_kernel grid=(1,1,1) block=(64,1,1) lds=0\n"
    elif nl == 1:
        s += "; @launch grid=(256,1,1) block=(256,1,1) lds=163840\n"
    else:
        for _ in range(nl):
            s += f"; @launch kernel={kn} grid=(256,1,1) block=(256,1,1) lds=163840\n"
    extra_code = ""
    if "meas" in opt:
        extra_code = ".globl meas_kernel\n.p2align 8\n.type meas_kernel,@function\nmeas_kernel:\n" + gen_meas(opt) + "\n"
    if opt.get("pre_empty"):
        extra_code += ".globl empty_kernel\n.p2align 8\n.type empty_kernel,@function\nempty_kernel:\n s_endpgm\n"
    s += f""".amdgcn_target "amdgcn-amd-amdhsa--gfx950"
.text
.globl {kn}
.p2align 8
.type {kn},@function
{kn}:
{gen_body(opt)}
{extra_code}.section .rodata,"a"
.p2align 6
.amdhsa_kernel {kn}
  .amdhsa_next_free_vgpr 512
  .amdhsa_next_free_sgpr 102
  .amdhsa_accum_offset 256
  .amdhsa_group_segment_fixed_size 0
  .amdhsa_kernarg_size 96
  .amdhsa_user_sgpr_count 2
  .amdhsa_user_sgpr_kernarg_segment_ptr 1
  .amdhsa_system_sgpr_workgroup_id_x 1
.end_amdhsa_kernel
"""
    if "meas" in opt:
        s += """.p2align 6
.amdhsa_kernel meas_kernel
  .amdhsa_next_free_vgpr 32
  .amdhsa_next_free_sgpr 102
  .amdhsa_accum_offset 32
  .amdhsa_group_segment_fixed_size 0
  .amdhsa_kernarg_size 96
  .amdhsa_user_sgpr_count 2
  .amdhsa_user_sgpr_kernarg_segment_ptr 1
  .amdhsa_system_sgpr_workgroup_id_x 1
.end_amdhsa_kernel
"""
    if opt.get("pre_empty"):
        s += """.p2align 6
.amdhsa_kernel empty_kernel
  .amdhsa_next_free_vgpr 32
  .amdhsa_next_free_sgpr 102
  .amdhsa_accum_offset 32
  .amdhsa_group_segment_fixed_size 0
  .amdhsa_kernarg_size 96
  .amdhsa_user_sgpr_count 2
  .amdhsa_user_sgpr_kernarg_segment_ptr 1
  .amdhsa_system_sgpr_workgroup_id_x 1
.end_amdhsa_kernel
"""
    return s


if __name__ == "__main__":
    opt = {}
    out = None
    for a in sys.argv[1:]:
        if "=" in a:
            kk, vv = a.split("=", 1)
            try:
                vv = int(vv)
            except ValueError:
                pass
            opt[kk] = vv
        else:
            out = a
    txt = gen_file(opt)
    open(out or ("cdna_kernels/" + NAME + ".s"), "w").write(txt)
```

```python
import sys

NAME = "gated_mix__linear_attn_block__mixer_token_mlp__prompt"

HF = 0x000000
GUF = 0x240000
OF = 0x400000
KVP = 0x600000
ZP = 0x608000
GG = 0x690000
CNT = 0x6A0000
AF = 0x6C0000
DIAG = 0x7E0000
WS_BYTES = 0x800000

X, WQKV, WO, W1, B1, W2, B2, GW, OUT, DBG, WS = [f"s[{40+4*i}:{43+4*i}]" for i in range(11)]
SRD_INFO = [(40, 16, 2048*512*2), (44, 18, 512*1536*2), (48, 20, 512*512*2), (52, 24, 2048*1376*2),
            (56, 26, 1376*2), (60, 28, 1376*2048*2), (64, 30, 2048*2), (68, 32, 512*2),
            (72, 34, 2048*512*2), (76, 36, 256), (80, 38, WS_BYTES)]

LOG2E = 0x3fb8aa3b
HS = 65536


def f32bits(x):
    import struct
    return struct.unpack("<I", struct.pack("<f", x))[0]


def rr(kind, base, n):
    return f"{kind}{base}" if n == 1 else f"{kind}[{base}:{base+n-1}]"


def V(b, n=1):
    return rr("v", b, n)


def A(b, n=1):
    return rr("a", b, n)


class Em:
    def __init__(self, opt):
        self.l = []
        self.vm = 0
        self.lab = 0
        self.opt = opt
        self.nstamp = 0

    def e(self, s):
        self.l.append("    " + s)

    def c(self, s):
        self.l.append("    ; " + s)

    def label(self, s):
        self.l.append(s + ":")

    def newlab(self, p="L"):
        self.lab += 1
        return f"{p}_{self.lab}"

    def vmem(self, s):
        self.e(s)
        self.vm += 1
        return self.vm

    def wait_vm(self, tok):
        n = self.vm - tok
        assert n >= 0
        self.e(f"s_waitcnt vmcnt({min(n, 63)})")

    def wait_vm0(self):
        self.e("s_waitcnt vmcnt(0)")

    def lgkm0(self):
        self.e("s_waitcnt lgkmcnt(0)")

    def nop(self, n):
        while n > 0:
            k = min(n, 16)
            self.e(f"s_nop {k-1}")
            n -= k

    def stamp(self, i, prof=False):
        if bool(self.opt.get("prof")) != prof:
            return
        if self.opt.get("diag"):
            assert i < 12
            self.e(f"{'s_memtime' if self.opt.get('clk') else 's_memrealtime'} s[{16+2*i}:{17+2*i}]")

    def dma(self, voff, srd, soff, m0expr, flags=""):
        sreg, imm = m0expr
        if sreg is None:
            self.e(f"s_mov_b32 m0, {imm}")
        else:
            self.e(f"s_add_u32 m0, {sreg}, {imm}")
        sr, si = soff
        self.e(f"s_add_u32 s13, {sr}, {si}")
        return self.vmem(f"buffer_load_dwordx4 {voff}, {srd}, s13 offen {flags} lds".replace("  ", " "))

    def poll(self, voff, srd, expect, tmp="v31", sleep=None):
        if self.opt.get("nowait"):
            self.wait_vm0()
            return
        lp = self.newlab("L_poll")
        dn = self.newlab("L_polled")
        self.e("s_mov_b32 s14, 0")
        self.label(lp)
        self.e(f"buffer_load_dword {tmp}, {voff}, {srd}, 0 offen sc1")
        self.e("s_add_u32 s14, s14, 1")
        self.e("s_waitcnt vmcnt(0)")
        self.e(f"v_cmp_gt_u32 vcc, {expect}, {tmp}")
        self.e(f"s_cbranch_vccz {dn}")
        self.e(f"s_sleep {sleep or self.opt.get('sleep', 3)}")
        self.e("s_cmp_lt_u32 s14, 0x40000")
        self.e(f"s_cbranch_scc1 {lp}")
        self.label(dn)

    def poll2(self, voff, srd, expect, more, tmp="v31"):
        if self.opt.get("nowait"):
            more()
            return 0
        t = self.vmem(f"buffer_load_dword {tmp}, {voff}, {srd}, 0 offen sc1")
        more()
        self.wait_vm(t)
        dn = self.newlab("L_fast")
        self.e(f"v_cmp_gt_u32 vcc, {expect}, {tmp}")
        self.e(f"s_cbranch_vccz {dn}")
        self.poll(voff, srd, expect, tmp)
        self.label(dn)
        return t

    def arrive(self, srd, off_sreg, nrep):
        sk = self.newlab("L_arr")
        self.e("s_cmp_lg_u32 s3, 0")
        self.e(f"s_cbranch_scc1 {sk}")
        self.e("v_lshlrev_b32 v30, 8, v1")
        self.e("v_mov_b32 v31, 1")
        self.e(f"s_mov_b64 exec, {(1 << nrep) - 1}")
        self.e(f"buffer_atomic_add v31, v30, {srd}, {off_sreg} offen sc1")
        self.e("s_mov_b64 exec, -1")
        self.label(sk)


def mf(d, a, b, c):
    return f"v_mfma_f32_16x16x32_bf16 {d}, {a}, {b}, {c}"


def interleave(k, mfmas, fillers, tail=2, cap=2, late=()):
    nm = len(mfmas)
    if late:
        interleave(k, mfmas[:8], fillers[:len(fillers) * 8 // nm + 1], tail=0, cap=cap)
        interleave(k, mfmas[8:], mix(list(late), fillers[len(fillers) * 8 // nm + 1:]), tail=min(tail, 1), cap=cap)
        return
    nf = len(fillers)
    span = max(1, nm - tail)
    fi = 0
    for i, (pre, txt) in enumerate(mfmas):
        if pre:
            pre()
        k.e(txt)
        want = min(nf, -(-(i + 1) * nf // span))
        budget = cap - (1 if (i + 1 < nm and mfmas[i + 1][0]) else 0)
        while fi < want and budget > 0:
            f = fillers[fi]
            fi += 1
            budget -= 1
            if callable(f):
                f()
            else:
                k.e(f)
    while fi < nf:
        f = fillers[fi]
        fi += 1
        if callable(f):
            f()
        else:
            k.e(f)


def run_all(k, items):
    for f in items:
        if callable(f):
            f()
        else:
            k.e(f)


def mix(a, b):
    out = []
    ia = ib = 0
    while ia < len(a) or ib < len(b):
        if ib >= len(b) or (ia < len(a) and ia * len(b) <= ib * len(a)):
            out.append(a[ia])
            ia += 1
        else:
            out.append(b[ib])
            ib += 1
    return out


class SK:
    def __init__(self, k, n, L, NWB, FB, NF, wdma, wread, fload, mm):
        self.__dict__.update(locals())
        self.wt = {}
        self.ft = {}
        self.issued = 0
        self.nread = 0
        self.done = set()
        self.wdone = 0
        self.wq = []
        self.wtmp = {}
        self.wage = {}

    def issue_w(self, upto):
        while self.issued < min(upto, self.n):
            assert self.issued < self.nread + self.L
            run_all(self.k, self.wdma(self.issued, self.wt))
            self.issued += 1

    def assume_issued(self, e, per):
        for t in range(e):
            self.k.vm += per
            self.wt[t] = self.k.vm
        self.issued = e

    def to_regs(self, R, hold=0):
        k = self.k
        while self.nread < R:
            t = self.nread
            assert t < self.wdone + self.NWB
            k.wait_vm(self.wt[t])
            run_all(k, self.wread(t))
            k.lgkm0()
            self.nread += 1
            if self.nread <= R - hold:
                self.issue_w(t + self.L + 1)

    def run(self, seq, LA, drained=0, post=None, wdelay=0, extra=None, pre_issued=0, prof=None,
            wsplit=1, rmax=2, age=2):
        k, n, L = self.k, self.n, self.L
        fi = pre_issued

        def fl(i):
            t, b = seq[i]
            if t - self.FB >= 0:
                assert (t - self.FB, b) in self.done, (t, b)
            return self.fload(t, b, self.ft)
        while fi < min(LA, len(seq)):
            run_all(k, fl(fi))
            fi += 1
        for win in range(len(seq) // 4):
            if prof and win in prof:
                k.stamp(prof[win], True)
            grp = seq[4*win:4*win+4]
            assert max(t for t, b in grp) < self.nread, (grp, self.nread)
            vm = []
            for _ in range(4):
                if fi < len(seq):
                    vm += fl(fi)
                    fi += 1
            if not self.wq and win >= wdelay and self.issued < n and self.issued < self.nread + L:
                self.wq = self.wdma(self.issued, self.wtmp)
                self.wq_t = self.issued
                self.wq_n = -(-len(self.wq) // wsplit)
                self.issued += 1
            fin = None
            if self.wq:
                vm += self.wq[:self.wq_n]
                self.wq = self.wq[self.wq_n:]
                if not self.wq:
                    fin = self.wq_t
            rd = []
            nr = 0
            while nr < rmax:
                u = self.nread
                if not (u < n and u < self.wdone + self.NWB and u in self.wt):
                    break
                must = u <= max(t for t, b in seq[4*win:4*win+8])
                if not must and self.wage.get(u, -99) + age > win:
                    break
                if nr >= 1 and not must and self.issued < n:
                    break
                if self.wt[u] > drained:
                    rd.append(lambda u=u: k.wait_vm(self.wt[u]))
                rd += self.wread(u)
                self.nread += 1
                nr += 1
            mfmas = []
            for (t, b) in grp:
                for j in range(self.NF):
                    pre = (lambda t=t, b=b: k.wait_vm(self.ft[(t, b)])) if j == 0 else None
                    mfmas.append((pre, self.mm(t, b, j)))
            fill = mix(rd, vm)
            ps = post(win) if post else []
            if extra:
                fill = mix(fill, extra(win))
            interleave(k, mfmas, fill, tail=3, late=ps)
            if fin is not None:
                self.wt[fin] = self.wtmp[fin]
                self.wage[fin] = win
            for gb in grp:
                self.done.add(gb)
            while self.wdone < n and all((self.wdone, b) in self.done for b in range(4)):
                self.wdone += 1
            if rd:
                k.lgkm0()
        assert not self.wq
        self.wage = {}


def gen_body(opt):
    k = Em(opt)
    e = k.e
    WFL = opt.get("wflags", "")
    ROTQ = opt.get("rot_q", 0)
    ROTU = opt.get("rot_u", 2)
    ROTP = opt.get("rot_p", 1)
    UPART = opt.get("upart", 4)
    UFL = opt.get("u_wflags", "")
    global HS
    HS = opt.get("hs", 65536)
    PW = "s[84:87]"

    def srd(name):
        for (d, s, sz) in SRD_INFO:
            if f"s[{d}:{d+3}]" == name:
                e(f"s_mov_b32 s{d}, s{s}")
                e(f"s_mov_b32 s{d+1}, s{s+1}")
                e(f"s_mov_b32 s{d+2}, {sz}")
                e(f"s_mov_b32 s{d+3}, 0x20000")

    def dmai(voff, srd_, soff, off, toks=None, key=None, fl=""):
        def f():
            if " m0," in k.l[-1]:
                e("s_nop 0")
            t = k.vmem(f"buffer_load_dwordx4 {voff}, {srd_}, {soff} offen offset:{off} {fl} lds".replace("  ", " "))
            if toks is not None:
                toks[key] = t
        return f

    def diag_clear():
        if opt.get("diag"):
            for i in range(16, 40):
                e(f"s_mov_b32 s{i}, 0")

    e("s_cmp_ge_u32 s2, 256")
    e("s_cbranch_scc1 L_end")
    e("s_load_dwordx16 s[16:31], s[0:1], 0")
    e("s_load_dwordx8 s[32:39], s[0:1], 64")
    if opt.get("diag"):
        e(f"{'s_memtime' if opt.get('clk') else 's_memrealtime'} s[98:99]")
    e("v_lshrrev_b32 v2, 6, v0")
    e("v_and_b32 v1, 63, v0")
    e("v_readfirstlane_b32 s3, v2")
    e("s_and_b32 s4, s2, 7")
    e("s_lshr_b32 s6, s2, 3")
    e("s_and_b32 s5, s4, 1")
    e("s_lshr_b32 s4, s4, 1")
    k.c("role tile: s8 = a*4 + ((idx&15)>>2) (sb / ft), s9 = b*4 + (idx&3) (hg / dt)")
    e("s_bfe_u32 s8, s6, 0x20002")
    e("s_lshl_b32 s12, s4, 2")
    e("s_add_u32 s8, s8, s12")
    e("s_and_b32 s9, s6, 3")
    e("s_lshl_b32 s12, s5, 2")
    e("s_add_u32 s9, s9, s12")
    k.c("P3 tile: s10 = st = a*8 + (idx&7), s11 = dt3 = b*4 + 2*((idx>>3)&1) + ((idx ^ (idx>>4))&1)")
    e("s_and_b32 s10, s6, 7")
    e("s_lshr_b32 s11, s6, 4")
    e("s_xor_b32 s11, s11, s6")
    e("s_and_b32 s11, s11, 1")
    e("s_add_u32 s11, s11, s12")
    e("s_lshr_b32 s12, s6, 2")
    e("s_and_b32 s12, s12, 2")
    e("s_add_u32 s11, s11, s12")
    e("s_lshl_b32 s12, s4, 3")
    e("s_add_u32 s10, s10, s12")
    e("s_mul_i32 s7, s3, 40960")
    e("v_and_b32 v2, 15, v1")
    e("v_lshrrev_b32 v3, 4, v1")
    e("v_lshlrev_b32 v4, 4, v1")
    e("v_mov_b32 v5, 0")
    e("s_cmp_ge_u32 s6, 16")
    e("s_cbranch_scc1 L_urole")


    def touch_xw():
        if not opt.get("pfx", 2):
            return
        if opt.get("pfx", 2) == 2:
            return touch_xw_all()
        e("s_lshl_b32 s12, s6, 2")
        e("s_add_u32 s12, s12, s3")
        e("v_lshrrev_b32 v116, 2, v1")
        e("v_lshlrev_b32 v116, 10, v116")
        e("v_and_b32 v117, 3, v1")
        e("v_lshl_add_u32 v116, v117, 7, v116")
        e(f"s_mul_i32 s13, s12, {8*3072}")
        e("s_lshl_b32 s14, s5, 9")
        e("s_add_u32 s13, s13, s14")
        k.vmem(f"buffer_load_dword v157, v116, {WQKV}, s13 offen")
        e("v_lshlrev_b32 v117, 7, v1")
        e("s_lshl_b32 s12, s12, 13")
        e("s_lshl_b32 s14, s4, 19")
        e("s_add_u32 s12, s12, s14")
        k.vmem(f"buffer_load_dword v157, v117, {X}, s12 offen")
        e("s_add_u32 s13, s13, 16384")
        e("s_mov_b64 exec, 0xffffffff")
        k.vmem(f"buffer_load_dword v157, v116, {WQKV}, s13 offen")
        e("s_mov_b64 exec, -1")

    def touch_xw_all():
        e("s_lshl_b32 s12, s6, 2")
        e("s_add_u32 s12, s12, s3")
        e("v_lshrrev_b32 v116, 2, v1")
        e("v_lshlrev_b32 v116, 10, v116")
        e("v_and_b32 v117, 3, v1")
        e("v_lshl_add_u32 v116, v117, 7, v116")
        e(f"s_mul_i32 s13, s12, {4*3072}")
        e("s_lshl_b32 s14, s5, 9")
        e("s_add_u32 s13, s13, s14")
        e("s_mov_b32 s14, 0xffff")
        e("s_mov_b32 exec_hi, s14")
        k.vmem(f"buffer_load_dword v157, v116, {WQKV}, s13 offen")
        e("s_mov_b64 exec, -1")

    def touch_x_other():
        e("s_and_b32 s12, s6, 15")
        e("s_lshl_b32 s12, s12, 2")
        e("s_add_u32 s12, s12, s3")
        e("s_lshr_b32 s13, s12, 4")
        e("s_lshl_b32 s13, s13, 17")
        e("s_and_b32 s12, s12, 15")
        e("s_lshl_b32 s12, s12, 12")
        e("s_add_u32 s12, s12, s13")
        e("s_lshl_b32 s13, s4, 19")
        e("s_add_u32 s12, s12, s13")
        e("s_xor_b32 s13, s5, 1")
        e("s_lshl_b32 s13, s13, 16")
        e("s_add_u32 s12, s12, s13")
        e("v_lshlrev_b32 v117, 7, v1")
        e("s_mov_b64 exec, 0xffffffff")
        k.vmem(f"buffer_load_dword v157, v117, {X}, s12 offen")
        e("s_mov_b64 exec, -1")

    def touch_w1():
        if opt.get("pfx", 2) == 2:
            srd(X)
            srd(WQKV)
            touch_x_other()
            touch_xw_all()
        if not opt.get("pfw", 0):
            return
        bw = 768 if UPART == 4 else 384
        e("s_and_b32 s12, s6, 15")
        e("s_lshl_b32 s12, s12, 2")
        e("s_add_u32 s12, s12, s3")
        e(f"s_mul_i32 s12, s12, {32*2752}")
        if UPART == 4:
            e("s_mul_i32 s13, s4, 768")
            e("v_lshrrev_b32 v158, 3, v1")
            e("v_and_b32 v159, 7, v1")
        else:
            e("s_and_b32 s13, s2, 7")
            e("s_mul_i32 s13, s13, 384")
            e("v_lshrrev_b32 v158, 2, v1")
            e("v_and_b32 v159, 3, v1")
        e("s_add_u32 s12, s12, s13")
        e("v_lshlrev_b32 v159, 7, v159")
        e(f"v_min_u32 v159, {bw-4}, v159")
        e("v_mul_u32_u24 v158, 2752, v158")
        e("v_add_u32 v158, v158, v159")
        nrow = 8 if UPART == 4 else 16
        for j in range(32 // nrow):
            k.vmem(f"buffer_load_dword v157, v158, {W1}, s12 offen {UFL}")
            if j + 1 < 32 // nrow:
                e(f"s_add_u32 s12, s12, {nrow*2752}")

    PL, PNWB, PFB = 10, 8, 8
    PE = opt.get("p_e", 5)
    YA, AA = 64, 128

    def p3_setup(isq):
        out = ["v_lshrrev_b32 v30, 3, v1", "v_and_b32 v31, 7, v1", "v_and_b32 v18, 6, v30", "v_xor_b32 v31, v31, v18",
               "v_lshlrev_b32 v31, 4, v31", "v_lshl_add_u32 v22, v30, 12, v31",
               "s_lshl_b32 s13, s11, 7", "s_lshl_b32 s87, s3, 5", "s_add_u32 s87, s87, s13"]
        if isq:
            out += ["v_lshl_add_u32 v18, v30, 10, v31", "s_lshl_b32 s12, s3, 17", "s_add_u32 s12, s12, s13",
                    "v_add_u32 v18, s12, v18"]
        out += [f"s_mul_i32 s12, s3, {352*4096}", "s_lshl_b32 s13, s10, 7", "s_add_u32 s12, s12, s13", "v_add_u32 v22, s12, v22"]
        for j in range(1, 4):
            if isq:
                out.append(f"v_add_u32 v{18+j}, {j*(8*1024-1024)}, v18")
            out.append(f"v_add_u32 v{22+j}, {j*(8*4096-1024)}, v22")
        if isq:
            out += ["s_and_b32 s12, s10, 30", "s_add_u32 s12, s12, s5", "s_lshl_b32 s12, s12, 8",
                    f"s_add_u32 s12, s12, {CNT + 32*256}", "v_mov_b32 v240, s12"]
        out += ["s_lshl_b32 s12, s11, 2", "s_add_u32 s12, s12, s4", "s_lshl_b32 s12, s12, 8",
                f"s_add_u32 s12, s12, {CNT + 64*256}", "v_mov_b32 v241, s12",
                "s_lshr_b32 s12, s10, 1", "s_lshl_b32 s12, s12, 3", "s_add_u32 s12, s12, s11",
                "s_lshl_b32 s13, s12, 8", f"s_add_u32 s13, s13, {CNT + 128*256}", "v_mov_b32 v250, s13",
                "s_lshl_b32 s12, s12, 13", "s_lshl_b32 s13, s3, 11", "s_add_u32 s12, s12, s13",
                f"s_add_u32 s12, s12, {AF}", "v_add_u32 v251, s12, v4",
                f"s_mov_b32 s100, {hex(WS_BYTES) if isq else 0}"]
        out += ["v_lshrrev_b32 v228, 2, v2", "v_lshl_add_u32 v228, v3, 2, v228", "v_lshrrev_b32 v229, 1, v228",
                "v_and_b32 v229, 3, v229", "v_lshlrev_b32 v228, 7, v228", "v_lshl_add_u32 v228, v229, 5, v228",
                "v_and_b32 v229, 3, v2", "v_lshl_add_u32 v228, v229, 3, v228", "v_add_u32 v228, s7, v228"]
        for j in range(1, 4):
            out.append(f"v_xor_b32 v{228+j}, {32*j}, v228")
        if isq:
            out += ["s_lshl_b32 s13, s3, 12", f"s_add_u32 s12, s13, {OF}", "v_add_u32 v232, s12, v4"]
            for b in range(1, 4):
                out.append(f"v_add_u32 v{232+b}, {b*16384}, v232")
        out += [f"s_mul_i32 s13, s11, {4*43*1024}", f"s_mul_i32 s12, s3, {11*1024}", "s_add_u32 s13, s13, s12",
                f"s_add_u32 s13, s13, {GUF}"]
        for b in range(4):
            out += [f"s_add_u32 s12, s3, {1+b}", "s_and_b32 s12, s12, 3"]
            if isq:
                out += ["s_lshl_b32 s14, s12, 5", f"v_xor_b32 v{224+b}, s14, v228"]
            out += ["s_mul_i32 s14, s12, 40960"]
            if b < 3:
                out += [f"s_add_u32 s14, s14, {(2-b)*4096}", f"v_add_u32 v{245+b}, s14, v4"]
            else:
                out += ["v_add_u32 v244, s14, v4"]
            out += [f"s_mul_i32 s12, s12, {43*1024}", "s_add_u32 s12, s12, s13", f"v_add_u32 v{236+b}, s12, v4"]
        out += ["s_mov_b32 s84, 4096", "s_mov_b32 s85, 8192", "s_mov_b32 s86, 10240",
                lambda: (e("s_cmp_eq_u32 s3, 3"), e(f"s_cselect_b32 s86, {hex(WS_BYTES)}, s86")),
                "s_lshl_b32 s12, s10, 6", "v_add_u32 v248, s12, v2", "v_lshlrev_b32 v242, 2, v248",
                f"v_add_u32 v242, {GG}, v242", "v_lshlrev_b32 v243, 1, v248",
                "v_and_b32 v249, 1, v3", "v_lshl_add_u32 v248, v249, 4, v248", "v_lshlrev_b32 v248, 10, v248",
                "v_lshrrev_b32 v249, 1, v3", "v_lshl_add_u32 v248, v249, 4, v248", "v_add_u32 v249, 32768, v248"]
        for j in range(4):
            out.append(lambda j=j: k.vmem(f"buffer_load_ushort v{252+j}, v243, {B2}, 0 offen offset:{32*j}"))
        return out

    def yblk(t):
        return (t + 10) % 11

    def p_wdma(t, toks):
        out = [f"s_add_u32 m0, s7, {(t % PL)*4096}", f"s_mov_b32 s101, {yblk(t)*32*4096}"]
        for j in range(4):
            out.append(dmai(f"v{22+j}", W2, "s101", j*1024, toks, t, WFL))
        return out

    def p_wread(t):
        out = []
        for j in range(4):
            r = (t % PNWB)*16 + j*4
            o = (t % PL)*4096
            out.append(f"ds_read_b64_tr_b16 {A(r,2)}, v{228+j} offset:{o}")
            out.append(f"ds_read_b64_tr_b16 {A(r+2,2)}, v{228+j} offset:{o+2048}")
        return out

    def p3_e1():
        out = []
        for t in range(PE):
            out += p_wdma(t, {})
        return out

    def acc_init():
        out = [f"v_mov_b32 v{YA+r}, 0" for r in range(48)]
        for j in range(4):
            out += [f"v_lshlrev_b32 v{YA+48+4*j+r}, 16, v{252+j}" for r in range(4)]
        return out

    def zload():
        return k.vmem(f"buffer_load_dword v31, v5, {DBG}, 0 offen sc1")

    def zcheck():
        if opt.get("nowait"):
            return
        dn = k.newlab("L_z")
        e("v_cmp_gt_u32 vcc, 1, v31")
        e(f"s_cbranch_vccz {dn}")
        k.poll("v5", DBG, 1)
        k.label(dn)

    k.c("================= Q role: LN =================")
    k.vm = 0
    e("s_lshl_b32 s15, s8, 7")
    e("s_lshl_b32 s12, s9, 4")
    e("s_add_u32 s15, s15, s12")
    e("s_lshl_b32 s12, s3, 2")
    e("s_add_u32 s12, s12, s15")
    e("s_lshl_b32 s12, s12, 10")
    e("v_lshlrev_b32 v7, 4, v2")
    e("v_lshl_add_u32 v6, v3, 10, v7")
    e("s_waitcnt lgkmcnt(0)")
    srd(X)
    tx = [k.vmem(f"buffer_load_dwordx4 {V(32+4*j,4)}, v6, {X}, s12 offen offset:{256*j}") for j in range(4)]
    srd(GW)
    tg = [k.vmem(f"buffer_load_dwordx4 {V(48+4*j,4)}, v7, {GW}, 0 offen offset:{256*j}") for j in range(4)]
    srd(WQKV)
    if not opt.get("q_late", 0):
        touch_xw()
    for n_ in (WS, DBG, WO, W2, B2, OUT):
        srd(n_)
    diag_clear()
    e("v_lshrrev_b32 v12, 3, v1")
    e("v_and_b32 v13, 7, v1")
    e("v_lshrrev_b32 v14, 1, v12")
    e("v_xor_b32 v14, v14, v13")
    e("v_lshlrev_b32 v14, 4, v14")
    e("v_lshl_add_u32 v14, v12, 10, v14")
    e("v_xor_b32 v15, 64, v14")
    e("s_lshl_b32 s13, s8, 17")
    e("s_lshl_b32 s12, s3, 15")
    e("s_add_u32 s13, s13, s12")
    e("v_add_u32 v144, s13, v14")
    e(f"s_add_u32 s13, s13, {7168}")
    e("v_add_u32 v145, s13, v15")
    e(f"v_add_u32 v146, {2*7168}, v144")
    e(f"v_add_u32 v147, {2*7168}, v145")
    e("v_and_b32 v16, 2, v12")
    e("v_xor_b32 v16, v16, v13")
    e("v_lshlrev_b32 v16, 4, v16")
    e("v_xor_b32 v17, 64, v16")
    e("v_mul_u32_u24 v12, 3072, v12")
    e("s_mul_i32 s13, s3, 49152")
    e("s_lshl_b32 s12, s9, 7")
    e("s_add_u32 s13, s13, s12")
    e("v_add3_u32 v148, v16, v12, s13")
    e(f"s_add_u32 s13, s13, {8*3072-1024}")
    e("v_add3_u32 v149, v17, v12, s13")
    for sec in (1, 2):
        e(f"v_add_u32 v{148+2*sec}, {1024*sec}, v148")
        e(f"v_add_u32 v{149+2*sec}, {1024*sec}, v149")
    e("s_lshl_b32 s90, s3, 12")
    e("s_lshl_b32 s91, s3, 11")
    ct = {}
    WQB = 98304

    def qdma(c):
        slot = c % 3
        out = [f"s_add_u32 m0, s90, {slot*32768}", f"s_mov_b32 s88, {c*128}"]
        for j in range(4):
            out.append(dmai(f"v{144+j}", X, "s88", j*1024))
        for sec in (1, 2):
            out.append(f"s_add_u32 m0, s91, {slot*32768 + 16384 + (sec-1)*8192}")
            if sec == 1:
                out.append(f"s_mov_b32 s89, {c*64*3072}")
            for j in range(2):
                out.append(dmai(f"v{148+2*sec+j}", WQKV, "s89", j*1024, ct, c, WFL))
        out.append(lambda: ctd.add(c))
        return out

    def wqdma(c):
        out = [f"s_add_u32 m0, s91, {WQB + c*8192}", f"s_mov_b32 s89, {c*64*3072}"]
        for j in range(2):
            out.append(dmai(f"v{148+j}", WQKV, "s89", j*1024, ct, "q", WFL))
        return out
    ctd = set()
    nearly = 0
    LNB = 163840 - 17408
    e("s_mul_i32 s12, s3, 4352")
    e(f"s_add_u32 s12, s12, {LNB}")
    e("v_mul_u32_u24 v8, 1088, v3")
    e("v_add3_u32 v8, v8, v7, s12")
    e("v_and_b32 v9, 1, v3")
    e("v_lshlrev_b32 v9, 3, v9")
    e("v_lshrrev_b32 v10, 2, v2")
    e("v_add_u32 v9, v9, v10")
    e("v_mul_u32_u24 v9, 1088, v9")
    e("v_lshrrev_b32 v10, 1, v3")
    e("v_lshl_add_u32 v9, v10, 5, v9")
    e("v_and_b32 v11, 3, v2")
    e("v_lshl_add_u32 v9, v11, 3, v9")
    e("s_lshl_b32 s12, s3, 8")
    e(f"s_add_u32 s12, s12, {LNB}")
    e("v_add_u32 v9, s12, v9")
    e(f"v_mul_u32_u24 v10, {HS}, v10")
    e("v_and_b32 v11, 1, v3")
    e("v_lshl_add_u32 v10, v11, 8, v10")
    e("v_add_u32 v10, v10, v7")
    e(f"s_mul_i32 s84, s3, {8*HS}")
    e("s_lshl_b32 s12, s15, 5")
    e("s_add_u32 s84, s84, s12")
    if HF:
        e(f"s_add_u32 s84, s84, {HF}")
    e("s_lshl_b32 s12, s3, 2")
    e("s_add_u32 s12, s12, s15")
    e("s_lshl_b32 s12, s12, 2")
    e(f"s_add_u32 s12, s12, {GG}")
    e("v_lshl_add_u32 v11, v3, 2, s12")
    e("v_cmp_eq_u32 vcc, 0, v2")
    e("v_mov_b32 v12, 0x7ffffff0")
    e("s_mov_b32 s85, 0x3f803f80")
    e("v_cndmask_b32 v11, v12, v11, vcc")
    e("s_lshr_b32 s96, s3, 1")
    e("s_and_b32 s97, s3, 1")
    e("v_lshrrev_b32 v18, 1, v2")
    e("v_xor_b32 v18, v18, v3")
    e("v_lshlrev_b32 v18, 4, v18")
    e("v_lshl_add_u32 v18, v2, 7, v18")
    e("s_lshl_b32 s12, s96, 13")
    e("v_add_u32 v18, s12, v18")
    e("v_xor_b32 v19, 64, v18")
    e("v_add_u32 v20, 65536, v18")
    e("v_add_u32 v21, 65536, v19")
    e("v_lshrrev_b32 v22, 2, v2")
    e("v_lshrrev_b32 v23, 3, v2")
    e("v_and_b32 v24, 1, v3")
    e("v_lshl_add_u32 v23, v24, 1, v23")
    e("s_lshl_b32 s12, s97, 1")
    e("v_xor_b32 v23, s12, v23")
    e("v_lshl_add_u32 v22, v3, 3, v22")
    e("v_lshlrev_b32 v22, 7, v22")
    e("v_lshl_add_u32 v22, v23, 5, v22")
    e("v_and_b32 v24, 3, v2")
    e("v_lshl_add_u32 v22, v24, 3, v22")
    e("v_add_u32 v22, 16384, v22")
    e(f"v_add_u32 v14, {WQB - 16384}, v22")
    e("v_xor_b32 v15, 32, v14")
    e("s_lshl_b32 s12, s96, 5")
    e("v_xor_b32 v23, s12, v22")
    e("v_xor_b32 v22, 32, v23")
    e("v_add_u32 v24, 65536, v22")
    e("v_add_u32 v25, 65536, v23")
    e("v_lshrrev_b32 v154, 3, v1")
    e("v_and_b32 v155, 7, v1")
    e("v_lshlrev_b32 v154, 12, v154")
    e("v_lshl_add_u32 v154, v155, 7, v154")
    e("s_lshl_b32 s12, s6, 2")
    e("s_add_u32 s12, s12, s3")
    if opt.get("pf_split", 1):
        e("s_lshl_b32 s13, s5, 5")
        e("s_xor_b32 s13, s13, s12")
    else:
        e("s_mov_b32 s13, s12")
    e(f"s_mul_i32 s13, s13, {24*4096}")
    e("s_lshl_b32 s14, s4, 10")
    e("s_add_u32 s13, s13, s14")
    e("v_add_u32 v154, s13, v154")
    e("v_lshrrev_b32 v155, 2, v1")
    e("v_lshlrev_b32 v155, 10, v155")
    e("v_and_b32 v156, 3, v1")
    e("v_lshl_add_u32 v155, v156, 7, v155")
    e("s_lshl_b32 s13, s12, 14")
    e("s_lshl_b32 s14, s5, 9")
    e("s_add_u32 s13, s13, s14")
    e("v_add_u32 v155, s13, v155")
    e("s_lshl_b32 s13, s5, 4")
    e("s_add_u32 s13, s13, s6")
    e(f"s_mul_i32 s13, s13, {HS}")
    e("s_lshl_b32 s14, s3, 14")
    e("s_add_u32 s13, s13, s14")
    if HF:
        e(f"s_add_u32 s13, s13, {HF}")
    e("v_lshl_add_u32 v156, v1, 7, s13")
    e("s_and_b32 s13, s2, 7")
    e("s_lshl_b32 s13, s13, 8")
    e(f"s_add_u32 s13, s13, {CNT + 96*256}")
    e("v_and_b32 v158, 3, v1")
    e("v_lshl_add_u32 v158, v158, 11, s13")

    k.wait_vm(tx[3])
    if opt.get("q_late", 0):
        touch_xw()
    QFAST = opt.get("q_fast", 1)
    QF = 2
    ln_start = len(k.l)
    e("v_dot2_f32_bf16 v26, v32, s85, 0")
    e("v_dot2_f32_bf16 v27, v33, s85, 0")
    for j in range(2, 16):
        e(f"v_dot2_f32_bf16 v{26+(j&1)}, v{32+j}, s85, v{26+(j&1)}")
    unp = []
    for j in range(16):
        unp.append(f"v_lshlrev_b32 v{64+2*j}, 16, v{32+j}")
        unp.append(f"v_and_b32 v{65+2*j}, 0xffff0000, v{32+j}")
    for s in unp[:4]:
        e(s)
    e("v_add_f32 v26, v26, v27")
    ui = 4
    for rot in (8, 4, 2, 1):
        for s in unp[ui:ui+3]:
            e(s)
        ui += 3
        e(f"v_add_f32_dpp v26, v26, v26 row_ror:{rot} row_mask:0xf bank_mask:0xf")
    for s in unp[ui:]:
        e(s)
    e(f"v_mul_f32 v26, {hex(f32bits(-1.0/512))}, v26")
    for j in range(16):
        e(f"v_pk_add_f32 {V(64+2*j,2)}, {V(64+2*j,2)}, v[26:27] op_sel_hi:[1,0]")
    e("v_pk_mul_f32 v[96:97], v[64:65], v[64:65]")
    e("v_pk_mul_f32 v[98:99], v[66:67], v[66:67]")
    for j in range(2, 16):
        a_ = 96 + 2 * (j & 1)
        e(f"v_pk_fma_f32 {V(a_,2)}, {V(64+2*j,2)}, {V(64+2*j,2)}, {V(a_,2)}")
    e("v_pk_add_f32 v[96:97], v[96:97], v[98:99]")
    e("v_add_f32 v26, v96, v97")
    k.wait_vm(tg[3])
    gd = ["v_dot2_f32_bf16 v28, v32, v48, 0", "v_dot2_f32_bf16 v29, v33, v49, 0"]
    for j in range(2, 16):
        gd.append(f"v_dot2_f32_bf16 v{28+(j&1)}, v{32+j}, v{48+j}, v{28+(j&1)}")
    gi = 0
    for rot in (8, 4, 2, 1):
        e(gd[gi]); e(gd[gi+1]); gi += 2
        e(f"v_add_f32_dpp v26, v26, v26 row_ror:{rot} row_mask:0xf bank_mask:0xf")
    e(f"v_mov_b32 v27, {hex(f32bits(1e-5))}")
    e(f"v_fmac_f32 v27, {hex(f32bits(1.0/512))}, v26")
    e("v_rsq_f32 v26, v27")
    e(gd[gi]); gi += 1
    for j in range(16):
        e(f"v_pk_mul_f32 {V(64+2*j,2)}, {V(64+2*j,2)}, v[26:27] op_sel_hi:[1,0]")
    for j in range(16):
        e(f"v_cvt_pk_bf16_f32 v{100+j}, v{64+2*j}, v{65+2*j}")
        if j % 4 == 3:
            e(f"ds_write_b128 v8, {V(100+j-3,4)} offset:{256*(j//4)}")
    while gi < 16:
        e(gd[gi]); gi += 1
    if QFAST:
        body = [x.strip() for x in k.l[ln_start:]]
        del k.l[ln_start:]
        body = [(lambda: k.wait_vm(tg[3])) if x.startswith("s_waitcnt vmcnt") else x for x in body]
        skip = opt.get("q_skip", 0)
        run_all(k, body[:skip] + mix(body[skip:], sum((qdma(c) for c in range(QF)), [])))
    k.lgkm0()
    e("s_barrier")
    for j in range(4):
        e(f"ds_read_b64_tr_b16 {V(64+4*j,2)}, v9 offset:{64*j}")
        e(f"ds_read_b64_tr_b16 {V(66+4*j,2)}, v9 offset:{64*j+4*1088}")
    e("v_add_f32 v28, v28, v29")
    th = None
    for j in range(4):
        e(f"s_waitcnt lgkmcnt({6-2*j})") if not opt.get("diag") else k.lgkm0()
        e(f"s_add_u32 s12, s84, {j*2*HS}")
        th = k.vmem(f"buffer_store_dwordx4 {V(64+4*j,4)}, v10, {WS}, s12 offen sc1")
    for rot in (8, 4, 2, 1):
        e(f"v_add_f32_dpp v28, v28, v28 row_ror:{rot} row_mask:0xf bank_mask:0xf")
        k.nop(2)
    e(f"v_mul_f32 v28, {hex(f32bits(-1.4426950408889634))}, v28")
    e("v_exp_f32 v28, v28")
    k.nop(1)
    e("v_add_f32 v28, 1.0, v28")
    e("v_rcp_f32 v28, v28")
    k.nop(1)
    th = k.vmem(f"buffer_store_dword v28, v11, {WS}, 0 offen sc1")
    k.stamp(1)

    th = zload()
    npre = QF if QFAST else max(nearly, opt.get("q_pre", 2))

    def h_arrive():
        k.stamp(2)
        e("s_lshr_b32 s12, s8, 2")
        e("s_lshl_b32 s12, s12, 11")
        e(f"s_add_u32 s12, s12, {CNT + 96*256}")
        k.arrive(WS, "s12", 8)
    if not QFAST:
        for c in range(nearly, npre):
            run_all(k, qdma(c))
        k.wait_vm(th)
        zcheck()
        e("s_barrier")
        h_arrive()

    ACC = 160
    FR = [96, 112]

    def qreads(t):
        c, kk = t // 2, t % 2
        slot = c % 3
        hi = slot >= 2
        so = (slot % 2) * 32768
        out = []
        xa = 18 + kk + (2 if hi else 0)
        for i in range(4):
            out.append(f"ds_read_b128 {A(16*t+4*i,4)}, v{xa} offset:{so + i*2048}")
        for sec in range(2):
            for hh in range(2):
                wa = 22 + hh + (2 if hi else 0)
                r = FR[t % 2] + (sec*2 + hh)*4
                o = so + sec*8192 + kk*4096
                out.append(f"ds_read_b64_tr_b16 {V(r,2)}, v{wa} offset:{o}")
                out.append(f"ds_read_b64_tr_b16 {V(r+2,2)}, v{wa} offset:{o+512}")
        return out

    pfl = []
    if opt.get("pf", 1):
        pfl.append([lambda: k.vmem(f"buffer_load_dword v157, v155, {WO}, 0 offen")])
        for j in range(3):
            pfl.append([lambda j=j: (e(f"s_mov_b32 s101, {j*8*4096}"), k.vmem(f"buffer_load_dword v157, v154, {W2}, s101 offen"))])
    PFA, PFB_ = opt.get("pf_a", 0), opt.get("pf_b", 0)

    k.wait_vm(ct[0])
    e("s_barrier")
    k.stamp(3)
    run_all(k, qreads(0))
    k.lgkm0()
    pend = qdma(2)
    QPER = opt.get("q_per", 7)
    consts = [f"s_mov_b32 s92, {hex(LOG2E)}", f"s_mov_b32 s93, {hex(LOG2E)}", f"s_mov_b32 s94, {hex(f32bits(1e-6))}",
              f"s_mov_b32 s95, {hex(f32bits(1e-6))}", "v_mov_b32 v26, s85", "v_mov_b32 v27, s85", "v_mov_b32 v28, s85",
              "v_mov_b32 v29, s85",
              "s_lshl_b32 s12, s3, 11", "s_add_u32 s12, s12, 65536", "v_add_u32 v6, s12, v4", "v_xor_b32 v7, 4096, v6",
              "s_lshl_b32 s15, s9, 2", "s_lshl_b32 s12, s97, 1", "s_add_u32 s15, s15, s12", "s_add_u32 s15, s15, s96",
              "s_lshl_b32 s13, s15, 10", f"s_add_u32 s13, s13, {KVP}", "s_lshl_b32 s12, s15, 6", f"s_add_u32 s12, s12, {ZP}",
              "v_lshlrev_b32 v10, 2, v1", "v_lshlrev_b32 v8, 4, v3", "v_lshl_add_u32 v8, v2, 2, v8",
              "v_cmp_gt_u32 vcc, 4, v2", "v_mov_b32 v9, 0x7ffffff0", "s_nop 0", "v_cndmask_b32 v8, v9, v8, vcc",
              "v_cmp_eq_u32 vcc, 3, v2"]
    for t in range(16):
        qp = dict(zip((0, 1, 2, 3, 4, 5, 6, 8, 10, 12, 14), (1, 2, 3, 4, 5, 6, 7, 8, 0, 9, 10)))
        if t in qp:
            k.stamp(qp[t], True)
        head = []
        if t % 2 == 1 and t + 1 < 16:
            c = (t + 1) // 2
            assert c in ctd, (t, c)
            head = [lambda c=c: k.wait_vm(ct[c]), "s_barrier"]
            if c == QF:
                head = [lambda c=c: (k.wait_vm(ct[c]), zcheck()), "s_barrier", h_arrive]
            if c + 2 < 8:
                pend = pend + qdma(c + 2)
            if c == 6:
                for cq in range(8):
                    pend = pend + wqdma(cq)
        nv = len(pend) if t == 15 else (13 if t == 0 else QPER if t < 11 else 8)
        vm = pend[:nv]
        pend = pend[len(vm):]
        if t == 15:
            vm = vm + sum(pfl[:PFA], []) + consts
        reads = qreads(t + 1) if t + 1 < 16 else []
        mfmas = []
        for sec in range(2):
            for hh in range(2):
                for i in range(4):
                    d = ACC + 32 + sec*32 + (hh*4 + i)*4
                    cc = "0" if t == 0 else V(d, 4)
                    mfmas.append((None, mf(V(d, 4), A(16*t + 4*i, 4), V(FR[t % 2] + (sec*2 + hh)*4, 4), cc)))
        interleave(k, mfmas, head + mix(reads, vm), tail=3)
        if reads:
            k.lgkm0()
    k.stamp(4)
    k.stamp(11, True)

    def phi(src, dst):
        for j in range(16):
            e(f"v_pk_mul_f32 {V(64+2*j,2)}, {V(src+2*j,2)}, s[92:93]")
        for j in range(32):
            e(f"v_exp_f32 v{64+j}, v{64+j} clamp")
            e(f"v_max_f32 v{src+j}, 0, v{src+j}")
        for j in range(16):
            e(f"v_pk_add_f32 {V(64+2*j,2)}, {V(64+2*j,2)}, s[94:95]")
        for j in range(16):
            e(f"v_pk_add_f32 {V(64+2*j,2)}, {V(64+2*j,2)}, {V(src+2*j,2)}")
        for j in range(16):
            e(f"v_cvt_pk_bf16_f32 v{dst+j}, v{64+2*j}, v{65+2*j}")
    PK, PV, PQ = 96, 112, 128
    phi(ACC + 32, PK)
    for j in range(16):
        e(f"v_cvt_pk_bf16_f32 v{PV+j}, v{ACC+64+2*j}, v{ACC+65+2*j}")
    e("v_cmp_eq_u32 s[88:89], 1, v2")
    e("v_cmp_eq_u32 s[90:91], 2, v2")
    for hh in range(2):
        for p in range(2):
            a_ = V(PK + hh*8 + p*4, 4)
            b_ = V(PV + hh*8 + p*4, 4)
            e(mf(V(32+8*hh, 4), a_, b_, "0" if p == 0 else V(32+8*hh, 4)))
            e(mf(V(36+8*hh, 4), a_, "v[26:29]", "0" if p == 0 else V(36+8*hh, 4)))
    k.nop(4)
    e("ds_write_b128 v6, v[32:35]")
    e("ds_write_b128 v6, v[36:39] offset:1024")
    k.wait_vm(ct["q"])
    k.lgkm0()
    e("s_barrier")
    e("ds_read_b128 v[32:35], v7")
    e("ds_read_b128 v[36:39], v7 offset:1024")

    def qq_reads(w_):
        out = []
        for kk in range(2):
            for hh in range(2):
                r = 64 + (w_ % 2)*16 + (kk*2 + hh)*4
                o = w_*8192 + kk*4096
                out.append(f"ds_read_b64_tr_b16 {V(r,2)}, v{14+hh} offset:{o}")
                out.append(f"ds_read_b64_tr_b16 {V(r+2,2)}, v{14+hh} offset:{o+512}")
        return out
    run_all(k, qq_reads(0))
    e("s_waitcnt lgkmcnt(8)") if not opt.get("diag") else k.lgkm0()
    for j in range(4):
        e(f"v_pk_add_f32 {V(32+2*j,2)}, {V(32+2*j,2)}, {V(40+2*j,2)}")
    for r in range(4):
        k.vmem(f"buffer_atomic_add_f32 v{32+r}, v10, {WS}, s13 offen offset:{256*r}")
    e("v_cndmask_b32 v36, v36, v37, s[88:89]")
    e("v_cndmask_b32 v36, v36, v38, s[90:91]")
    e("v_cndmask_b32 v36, v36, v39, vcc")
    tat = k.vmem(f"buffer_atomic_add_f32 v36, v8, {WS}, s12 offen")
    e(f"s_lshl_b32 s90, s9, 10")
    e(f"s_add_u32 s90, s90, {CNT}")
    e("s_lshl_b32 s13, s4, 8")
    e("s_add_u32 s13, s13, s90")
    e("v_mov_b32 v8, s13")
    k.lgkm0()
    ps = p3_setup(True)
    KAW = opt.get("kv_aw", 4)
    for w_ in range(8):
        mfmas = []
        for kk in range(2):
            for hh in range(2):
                for i in range(4):
                    d = ACC + (hh*4 + i)*4
                    t = 2*w_ + kk
                    mfmas.append((None, mf(V(d, 4), V(64 + (w_ % 2)*16 + (kk*2 + hh)*4, 4), A(16*t + 4*i, 4), "0" if t == 0 else V(d, 4))))
        head = []
        if w_ == KAW:
            head = [lambda: k.wait_vm(tat), "s_barrier", lambda: (k.arrive(WS, "s90", 4), k.stamp(5))] + sum(pfl[PFA:PFA+PFB_], [])
        n_ = -(-len(ps) // (8 - w_))
        fl_ = ps[:n_]
        ps = ps[n_:]
        interleave(k, mfmas, head + mix(qq_reads(w_ + 1) if w_ < 7 else [], fl_), tail=3)
        k.lgkm0()
    e("s_barrier")
    k.nop(6)
    wod = {}

    def wo_dma():
        out = []
        for t in range(4):
            out += [f"s_add_u32 m0, s7, {(5+t)*4096}", f"s_mov_b32 s101, {t*32*1024}"]
            out += [dmai(f"v{18+j}", WO, "s101", j*1024, wod, t, WFL) for j in range(4)]
        return out
    qpre = wo_dma() + p3_e1()
    n1 = 6 * opt.get("q_n1", 0)
    run_all(k, qpre[:n1])
    phi(ACC, PQ)
    k.poll("v8", WS, 16)
    k.stamp(6)
    e("s_and_b32 s15, s15, 30")
    e("s_lshl_b32 s13, s15, 10")
    e(f"s_add_u32 s13, s13, {KVP}")
    e("s_lshl_b32 s12, s15, 6")
    e(f"s_add_u32 s12, s12, {ZP}")
    e("v_lshlrev_b32 v8, 4, v3")
    for hh in range(2):
        k.vmem(f"buffer_load_dwordx4 {V(164+8*hh,4)}, v8, {WS}, s12 offen offset:{64*hh} sc1")
        for r in range(4):
            k.vmem(f"buffer_load_dword v{160+8*hh+r}, v10, {WS}, s13 offen offset:{1024*hh+256*r} sc1")
    e("s_lshl_b32 s15, s8, 3")
    e("s_lshl_b32 s12, s96, 2")
    e("s_add_u32 s15, s15, s12")
    e("s_lshl_b32 s15, s15, 4")
    e("s_lshl_b32 s12, s9, 1")
    e("s_add_u32 s15, s15, s12")
    e("s_add_u32 s15, s15, s97")
    e("s_lshl_b32 s15, s15, 10")
    e(f"s_add_u32 s15, s15, {OF}")
    k.wait_vm0()
    for q_ in range(8):
        e(f"v_cvt_pk_bf16_f32 v{40+q_}, v{160+2*q_}, v{161+2*q_}")
    k.nop(2)
    for hh in range(2):
        for i in range(4):
            q_ = V(PQ + (hh*4+i)*2, 2)
            e(f"v_mfma_f32_16x16x16_bf16 {V(192+(hh*4+i)*4,4)}, {V(42+4*hh,2)}, {q_}, 0")
    for hh in range(2):
        for i in range(4):
            q_ = V(PQ + (hh*4+i)*2, 2)
            e(f"v_mfma_f32_16x16x16_bf16 {V(160+(hh*4+i)*4,4)}, {V(40+4*hh,2)}, {q_}, 0")
    k.nop(1)
    for n_ in range(8):
        e(f"v_add_f32 v{192+4*n_}, s94, v{192+4*n_}")
    for n_ in range(8):
        e(f"v_rcp_f32 v{192+4*n_}, v{192+4*n_}")
    for n_ in range(8):
        e(f"v_pk_mul_f32 {V(160+4*n_,2)}, {V(160+4*n_,2)}, {V(192+4*n_,2)} op_sel_hi:[1,0]")
        e(f"v_pk_mul_f32 {V(162+4*n_,2)}, {V(162+4*n_,2)}, {V(192+4*n_,2)} op_sel_hi:[1,0]")
    for i in range(4):
        for hh in range(2):
            s_ = 160 + (hh*4+i)*4
            e(f"v_cvt_pk_bf16_f32 v{64+4*i+2*hh}, v{s_}, v{s_+1}")
            e(f"v_cvt_pk_bf16_f32 v{65+4*i+2*hh}, v{s_+2}, v{s_+3}")
        e(f"s_add_u32 s12, s15, {i*16384}")
        tos = k.vmem(f"buffer_store_dwordx4 {V(64+4*i,4)}, v4, {WS}, s12 offen sc1")
    n2 = n1 + 6 * opt.get("q_n2", 2)
    run_all(k, qpre[n1:n2])
    k.wait_vm(tos)
    e("s_barrier")
    e("s_lshl_b32 s12, s8, 9")
    e(f"s_add_u32 s12, s12, {CNT + 32*256}")
    k.arrive(WS, "s12", 2)
    k.stamp(7)
    run_all(k, sum(pfl[PFA+PFB_:], []))
    n3 = max(n2, 6 * opt.get("q_n3", 6))
    run_all(k, qpre[n2:n3])
    for t in range(4):
        k.wait_vm(wod[t])
        for j in range(4):
            e(f"ds_read_b64_tr_b16 {A(64+t*16+j*4,2)}, v{224+j} offset:{(5+t)*4096}")
            e(f"ds_read_b64_tr_b16 {A(66+t*16+j*4,2)}, v{224+j} offset:{(5+t)*4096+2048}")
    e("s_lshl_b32 s88, s10, 16")
    e("s_xor_b32 s89, s88, 0x10000")
    k.poll("v240", WS, 8)
    k.lgkm0()
    k.stamp(8)
    aft = {}
    seq8 = [(h_, t, b) for h_ in range(2) for t in range(4) for b in range(4)]

    def afl(h_, t, b):
        def f():
            aft[(h_, t, b)] = k.vmem(f"buffer_load_dwordx4 {A(128+h_*64+t*16+4*b,4)}, v{232+b}, {WS}, {'s89' if h_ == 0 else 's88'} offen offset:{t*1024} sc1")
        return f
    ALA = opt.get("a_la", 12)
    for i in range(ALA):
        afl(*seq8[i])()
    rest = [afl(*x) for x in seq8[ALA:]]
    rest += [lambda j=j: k.vmem(f"buffer_load_dword v{32+2*j}, v242, {WS}, 0 offen offset:{64*j} sc1") for j in range(4)]
    rest += qpre[n3:]
    RA = 5 * 4096
    for win in range(8):
        mfmas = []
        for (h_, t, b) in seq8[4*win:4*win+4]:
            for j in range(4):
                d = V((AA if h_ == 0 else YA) + (j*4 + b)*4, 4)
                pre = (lambda x=(h_, t, b): k.wait_vm(aft[x])) if j == 0 else None
                mfmas.append((pre, mf(d, A(64+t*16+j*4, 4), A(128+h_*64+t*16+4*b, 4), "0" if t == 0 else d)))
        nf_ = 4 if win < 5 else -(-len(rest) // (8 - win))
        fl_ = rest[:nf_]
        rest = rest[nf_:]
        late = []
        if 4 <= win < 7:
            b = win - 4
            late = [f"ds_write_b128 v244, {V(AA+(b*4+j)*4,4)} offset:{RA+(b*4+j)*1024}" for j in range(4)]
        interleave(k, mfmas, fl_, tail=2, late=late)
    tlast = k.vm
    k.lgkm0()
    e("s_barrier")
    for o in range(3):
        for j in range(4):
            e(f"ds_read_b128 {V(AA+16*o+4*j,4)}, v{245+o} offset:{RA+j*1024}")
    for o in range(3):
        e(f"s_waitcnt lgkmcnt({8-4*o})") if not opt.get("diag") else k.lgkm0()
        for r in range(8):
            e(f"v_pk_add_f32 {V(AA+48+2*r,2)}, {V(AA+48+2*r,2)}, {V(AA+16*o+2*r,2)}")
    e("s_barrier")
    for r in range(8):
        e(f"v_cvt_pk_bf16_f32 v{192+r}, v{AA+48+2*r}, v{AA+49+2*r}")
    for p in range(2):
        k.vmem(f"buffer_store_dwordx4 {V(192+4*p,4)}, v251, {WS}, 0 offen offset:{p*1024} sc1")
    k.wait_vm(tlast)
    for j in range(4):
        e(f"v_sub_f32 v{48+2*j}, 1.0, v{32+2*j}")
    for j in range(4):
        e(f"v_max_f32 v{48+2*j}, {hex(f32bits(1e-30))}, v{48+2*j}")
    for j in range(4):
        e(f"v_rcp_f32 v{56+j}, v{48+2*j}")
    for j in range(4):
        e(f"v_lshlrev_b32 v{40+2*j}, 16, v{252+j}")
    for j in range(4):
        e(f"v_mul_f32 v{32+2*j}, v{32+2*j}, v{56+j}")
    for b in range(4):
        for j in range(4):
            for h_ in range(2):
                r = YA + (b*4 + j)*4 + 2*h_
                if b < 3:
                    e(f"v_pk_mul_f32 {V(r,2)}, {V(r,2)}, {V(32+2*j,2)} op_sel_hi:[1,0]")
                else:
                    e(f"v_pk_fma_f32 {V(r,2)}, {V(r,2)}, {V(32+2*j,2)}, {V(40+2*j,2)} op_sel_hi:[1,0,0]")
    e("s_branch L_p3")

    k.label("L_urole")
    k.c("================= U role =================")
    k.vm = 0
    if UPART == 8:
        e("s_and_b32 s9, s6, 7")
        e("s_bfe_u32 s8, s6, 0x10003")
        e("s_and_b32 s12, s2, 7")
        e("s_lshl_b32 s12, s12, 1")
        e("s_add_u32 s8, s8, s12")
    e("v_lshrrev_b32 v12, 2, v1")
    e("v_and_b32 v13, 3, v1")
    e(f"s_mul_i32 s13, s3, {512*2752}")
    e("s_mul_i32 s12, s8, 192")
    e("s_add_u32 s13, s13, s12")
    for j in range(3):
        e(f"v_add_u32 v14, {16*j}, v12")
        e("v_mul_u32_u24 v15, 43, v14")
        e("v_lshrrev_b32 v15, 7, v15")
        e("v_mul_u32_u24 v16, 3, v15")
        e("v_sub_u32 v14, v14, v16")
        e("v_lshrrev_b32 v16, 2, v15")
        e("v_and_b32 v16, 2, v16")
        e("v_xor_b32 v16, v16, v13")
        e("v_lshlrev_b32 v16, 4, v16")
        e("v_lshl_add_u32 v16, v14, 6, v16")
        e("v_mul_u32_u24 v15, 2752, v15")
        e(f"v_add3_u32 v{6+j}, v15, v16, s13")
        if j:
            e(f"v_subrev_u32 v{6+j}, {j*1024}, v{6+j}")
        e(f"v_add_u32 v{9+j}, {16*2752}, v{6+j}")
    if ROTU:
        e("s_add_u32 s91, s9, s8" if ROTU == 1 else "s_mov_b32 s91, s9")
        e("s_and_b32 s91, s91, 3")
        e("s_lshl_b32 s91, s91, 2")
    else:
        e("s_mov_b32 s91, 0")
    e(f"s_mul_i32 s88, s91, {32*2752}")
    e("s_lshl_b32 s91, s91, 10")
    e("s_waitcnt lgkmcnt(0)")
    srd(W1)
    e("s_cmp_eq_u32 s8, 15")
    e("s_cbranch_scc1 L_spare")
    srd(B1)
    e("s_mul_i32 s12, s8, 192")
    e("v_lshlrev_b32 v30, 3, v3")
    for j in range(6):
        k.vmem(f"buffer_load_dwordx2 {V(184+2*j,2)}, v30, {B1}, s12 offen offset:{32*j}")
    if opt.get("u_late", 0):
        k.wait_vm0()
    touch_w1()
    UL, UNWB, UFB = 6, 7, 8
    UR = opt.get("u_r", 2)
    RB = 22528

    def u_wdma(t, toks):
        out = []
        for j in range(6):
            if j % 3 == 0:
                out.append(f"s_add_u32 m0, s7, {(t % UL)*6144 + j*1024}")
            out.append(dmai(f"v{6+j}", W1, "s88", (j % 3)*1024, toks, t, UFL if t < opt.get("u_nt_steps", 0) else ""))
        out.append(f"s_add_u32 s88, s88, {32*2752}")
        if t % 4 == 3:
            out.append(lambda: (e(f"s_cmp_eq_u32 s88, {16*32*2752}"), e("s_cselect_b32 s88, 0, s88")))
        return out

    def u_wread(t):
        out = []
        for fb in range(6):
            r = 72 + (t % UNWB)*24 + fb*4
            o = (t % UL)*6144 + (fb >> 1)*64
            out.append(f"ds_read_b64_tr_b16 {A(r,2)}, v{16+(fb&1)} offset:{o}")
            out.append(f"ds_read_b64_tr_b16 {A(r+2,2)}, v{16+(fb&1)} offset:{o+768}")
        return out

    def u_fload(t, b, toks):
        def f():
            toks[(t, b)] = k.vmem(f"buffer_load_dwordx4 {V(32+(t%UFB)*16+4*b,4)}, v{12+b}, {WS}, s91 offen offset:{(t%4)*1024} sc1")
        out = [f]
        if t % 4 == 3 and b == 3:
            out.append("s_add_u32 s91, s91, 4096")
            out.append("s_and_b32 s91, s91, 0x3fff")
        return out

    def uacc(b, j):
        return A((b*6 + j)*4, 4) if b < 3 else V(160 + j*4, 4)

    def u_mm(t, b, j):
        d = uacc(b, j)
        return mf(d, A(72 + (t % UNWB)*24 + j*4, 4), V(32+(t % UFB)*16+4*b, 4), "0" if t == 0 else d)

    su = SK(k, 16, UL, UNWB, UFB, 6, u_wdma, u_wread, u_fload, u_mm)
    if not opt.get("pfw", 0):
        su.issue_w(2)
    for n_ in (WS, DBG, WO, W2, B2, OUT):
        srd(n_)
    diag_clear()
    e("v_lshrrev_b32 v16, 2, v2")
    e("v_lshl_add_u32 v16, v3, 3, v16")
    e("v_mul_u32_u24 v16, 192, v16")
    e("v_and_b32 v12, 3, v2")
    e("v_lshl_add_u32 v16, v12, 3, v16")
    e("v_add_u32 v16, s7, v16")
    e("v_and_b32 v12, 1, v3")
    e("v_lshlrev_b32 v12, 5, v12")
    e("v_xor_b32 v13, 32, v12")
    e("v_add_u32 v17, v16, v13")
    e("v_add_u32 v16, v16, v12")
    e(f"s_mul_i32 s13, s9, {4*HS}")
    e("s_lshl_b32 s12, s3, 14")
    e("s_add_u32 s13, s13, s12")
    if HF:
        e(f"s_add_u32 s13, s13, {HF}")
    for b in range(4):
        e(f"s_add_u32 s12, s3, {1+b}")
        e("s_and_b32 s12, s12, 3")
        e(f"s_mul_i32 s12, s12, {HS}")
        e("s_add_u32 s12, s12, s13")
        e(f"v_add_u32 v{12+b}, s12, v4")
    run_all(k, p3_setup(False))
    e(f"s_add_u32 s12, s7, {RB}")
    e("v_add_u32 v26, s12, v4")
    for o in range(1, 4):
        e(f"s_add_u32 s12, s3, {o}")
        e("s_and_b32 s12, s12, 3")
        e("s_mul_i32 s12, s12, 40960")
        e(f"s_add_u32 s12, s12, {RB + (3-o)*6144}")
        e(f"v_add_u32 v{26+o}, s12, v4")
    e("s_and_b32 s12, s2, 7")
    e("s_lshl_b32 s13, s3, 3")
    e("s_add_u32 s12, s12, s13")
    e("s_lshl_b32 s12, s12, 8")
    e(f"s_add_u32 s12, s12, {CNT + 96*256}")
    e("v_mov_b32 v196, s12")
    su.issue_w(4)
    tz_ = zload()
    su.issue_w(UL)
    hold = opt.get("u_hold", 2)
    k.stamp(5)
    su.to_regs(UR, hold)
    k.wait_vm(tz_)
    zcheck()
    k.stamp(1)
    drained = k.poll2("v196", WS, 32, lambda: su.issue_w(UR + UL))
    k.stamp(2)
    k.stamp(1, True)
    seq = [(t, b) for t in range(12) for b in range(4)] + [(t, b) for b in range(4) for t in range(12, 16)]

    def u_post(win):
        if win < 13:
            return []
        b = win - 13
        return [f"ds_write_b128 v26, {uacc(b, j)} offset:{(b*6+j)*1024}" for j in range(6)]
    pe_all = p3_e1()
    pe = pe_all[:6*opt.get("u_e1", 5)]
    bias = []
    for j in range(6):
        bias += [f"v_lshlrev_b32 v{200+4*j}, 16, v{184+2*j}", f"v_and_b32 v{201+4*j}, 0xffff0000, v{184+2*j}",
                 f"v_lshlrev_b32 v{202+4*j}, 16, v{185+2*j}", f"v_and_b32 v{203+4*j}, 0xffff0000, v{185+2*j}"]
    c0 = -2.0 * 0.7978845608028654 * 1.4426950408889634
    c1 = c0 * 0.044715
    misc = [f"s_mov_b32 s92, {hex(f32bits(c1))}", f"s_mov_b32 s93, {hex(f32bits(c1))}",
            f"v_mov_b32 v198, {hex(f32bits(c0))}", f"v_mov_b32 v199, {hex(f32bits(c0))}",
            "s_lshl_b32 s15, s9, 2", "s_add_u32 s15, s15, s3", "s_mul_i32 s15, s15, 43", "s_mul_i32 s13, s8, 3",
            "s_add_u32 s15, s15, s13", "s_lshl_b32 s15, s15, 10", f"s_add_u32 s15, s15, {GUF}",
            lambda: (e("s_cmp_eq_u32 s8, 14"), e("s_cselect_b32 s13, 0x7ff00000, 0")), "v_or_b32 v197, s13, v4"]

    def u_extra(win):
        if win == 12:
            return bias[:12] + misc
        if win == 13:
            return bias[12:]
        return []

    UPW = opt.get("u_pw", 12)

    def u_extra2(win):
        out = u_extra(win)
        if win >= UPW:
            assert su.nread == 16 and su_rd_done[0] < win
            n3 = -(-len(pe) // (16 - UPW))
            out = out + pe[(win-UPW)*n3:(win-UPW+1)*n3]
        if su.nread == 16 and su_rd_done[0] == 99:
            su_rd_done[0] = win
        return out
    su_rd_done = [99]
    su.run(seq, opt.get("u_la", 12), drained, u_post, opt.get("u_wdelay", 0), u_extra2,
           wsplit=opt.get("u_wsplit", 1),
           prof=dict(zip((0, 1, 2, 3, 4, 6, 8, 10, 12, 14), (2, 3, 4, 5, 6, 7, 8, 0, 9, 10))))
    k.stamp(11, True)
    k.stamp(3)
    k.lgkm0()
    e("s_barrier")
    for p in range(3):
        for o in range(1, 4):
            for j in (2*p, 2*p+1):
                e(f"ds_read_b128 {V(8+24*o+4*j,4)}, v{26+o} offset:{j*1024}")
        if p == 1:
            for r in range(12):
                e(f"v_pk_add_f32 {V(160+2*r,2)}, {V(160+2*r,2)}, {V(200+2*r,2)}")
            e("s_waitcnt lgkmcnt(6)") if not opt.get("diag") else k.lgkm0()
    tst = {}
    for p in range(3):
        R_ = range(4*p, 4*p+4)
        va = []
        va += [f"v_pk_add_f32 {V(32+2*r,2)}, {V(32+2*r,2)}, {V(56+2*r,2)}" for r in R_]
        va += [f"v_pk_add_f32 {V(160+2*r,2)}, {V(160+2*r,2)}, {V(80+2*r,2)}" for r in R_]
        va += [f"v_pk_add_f32 {V(32+2*r,2)}, {V(32+2*r,2)}, {V(160+2*r,2)}" for r in R_]
        va += [f"v_pk_mul_f32 {V(56+2*r,2)}, {V(32+2*r,2)}, {V(32+2*r,2)}" for r in R_]
        va += [f"v_pk_fma_f32 {V(56+2*r,2)}, {V(56+2*r,2)}, s[92:93], v[198:199]" for r in R_]
        va += [f"v_pk_mul_f32 {V(56+2*r,2)}, {V(56+2*r,2)}, {V(32+2*r,2)}" for r in R_]
        va += [f"v_exp_f32 v{56+r}, v{56+r}" for r in range(8*p, 8*p+8)]
        va += [f"v_add_f32 v{56+r}, 1.0, v{56+r}" for r in range(8*p, 8*p+8)]
        va += [f"v_rcp_f32 v{56+r}, v{56+r}" for r in range(8*p, 8*p+8)]
        va += [f"v_pk_mul_f32 {V(32+2*r,2)}, {V(32+2*r,2)}, {V(56+2*r,2)}" for r in R_]
        va += [f"v_cvt_pk_bf16_f32 v{136+4*p+q}, v{32+8*p+2*q}, v{33+8*p+2*q}" for q in range(4)]
        if p == 1:
            e("s_waitcnt lgkmcnt(6)") if not opt.get("diag") else k.lgkm0()
        if p == 2:
            k.lgkm0()
        run_all(k, va)
        tst[p] = k.vmem(f"buffer_store_dwordx4 {V(136+4*p,4)}, {'v4' if p == 0 else 'v197'}, {WS}, s15 offen offset:{p*1024} sc1")
    k.stamp(4)
    run_all(k, mix(acc_init(), pe_all[len(pe):len(pe)+12]))
    e("s_lshl_b32 s12, s9, 10")
    e(f"s_add_u32 s12, s12, {CNT + 64*256}")
    k.wait_vm(tst[2])
    e("s_barrier")
    k.arrive(WS, "s12", 4)
    k.stamp(7)
    run_all(k, pe_all[len(pe)+12:])
    e("s_branch L_p3")

    k.label("L_spare")
    for n_ in (WS, DBG):
        srd(n_)
    nz = k.newlab("L_nz")
    e("s_cmp_lg_u32 s9, 0")
    e(f"s_cbranch_scc1 {nz}")
    e("v_lshlrev_b32 v30, 8, v0")
    e(f"s_mov_b32 s12, {CNT}")
    e(f"buffer_store_dword v5, v30, {WS}, s12 offen sc1")
    for r in range(4):
        e(f"v_mov_b32 v{32+r}, 0")
    e("v_lshlrev_b32 v30, 4, v0")
    for z_ in range(9):
        e(f"s_mov_b32 s12, {KVP + z_*4096}")
        e(f"buffer_store_dwordx4 v[32:35], v30, {WS}, s12 offen sc1")
    e("v_mov_b32 v31, 1")
    k.wait_vm0()
    e("s_barrier")
    e("s_cmp_lg_u32 s3, 0")
    e(f"s_cbranch_scc1 {nz}")
    e(f"buffer_store_dword v31, v5, {DBG}, 0 offen sc1")
    k.label(nz)
    touch_w1()
    for n_ in (WO, W2, B2, OUT):
        srd(n_)
    diag_clear()
    run_all(k, p3_setup(False))
    k.poll("v5", DBG, 1)
    run_all(k, acc_init())
    e(f"v_mov_b32 v30, {CNT + 32*256}")
    k.poll("v30", WS, 8, sleep=32)
    run_all(k, p3_e1())

    k.label("L_p3")
    k.c("================= P3 =================")

    def freg(t, b):
        return A(128 + (t % PFB)*16 + 4*b, 4)

    def p_fload(t, b, toks):
        y = yblk(t)
        so, off = ("s86" if y == 10 else ["0", "s84", "s85"][y // 4]), (0 if y == 10 else (y % 4)*1024)

        def f():
            toks[(t, b)] = k.vmem(f"buffer_load_dwordx4 {freg(t,b)}, v{236+b}, {WS}, {so} offen offset:{off} sc1")
        return [f]

    def p_mm(t, b, j):
        d = V(YA + (b*4 + j)*4, 4)
        return mf(d, freg(t, b), A((t % PNWB)*16 + j*4, 4), d)

    k.vm = 0
    sp = SK(k, 11, PL, PNWB, PFB, 4, p_wdma, p_wread, p_fload, p_mm)
    sp.assume_issued(PE, 4)
    tj = k.vm
    sp.issue_w(opt.get("p_w1", 8))
    sk = k.newlab("L_na")
    e("s_cmp_eq_u32 s100, 0")
    e(f"s_cbranch_scc1 {sk}")
    e("v_mov_b32 v30, 1")
    k.wait_vm(tj)
    e("s_mov_b64 exec, 1")
    e(f"buffer_atomic_add v30, v250, {WS}, 0 offen sc1")
    e("s_mov_b64 exec, -1")
    k.label(sk)
    k.stamp(0)
    drained = k.poll2("v241", WS, 15, lambda: (sp.issue_w(10), sp.to_regs(opt.get("p_r0", 4))))
    k.stamp(9)
    seq_y = [(t, b) for t in range(7) for b in range(4)] + [(t, b) for b in range(4) for t in range(7, 11)]
    PLA = opt.get("p_la", 12)
    at = {}

    def comb(b):
        return [f"ds_write_b128 v244, {V(YA+(b*4+j)*4,4)} offset:{(b*4+j)*1024}" for j in range(4)]

    def acheck():
        k.wait_vm(at[0])
        if not opt.get("nowait"):
            dn = k.newlab("L_af")
            e("v_cmp_gt_u32 vcc, 4, v31")
            e(f"s_cbranch_vccz {dn}")
            k.poll("v250", WS, 4)
            k.label(dn)
    AW = opt.get("p_aw", 6)

    def y_extra(win):
        if win == AW:
            return [lambda: at.__setitem__(0, k.vmem(f"buffer_load_dword v31, v250, {WS}, 0 offen sc1"))]
        if win == AW + 2:
            out = [acheck]
            out += [lambda p=p: k.vmem(f"buffer_load_dwordx4 {V(192+4*p,4)}, v251, {WS}, s100 offen offset:{p*1024} sc1") for p in range(2)]
            out += [lambda j=j: at.__setitem__(1, k.vmem(f"buffer_load_dword v{32+2*j}, v242, {WS}, 0 offen offset:{64*j} sc1")) for j in range(4)]
            return out
        return []
    sp.run(seq_y, PLA, drained, lambda win: comb(win - 8) if win >= 8 else [], rmax=1, extra=y_extra,
           prof=(dict(zip(range(11), (1, 2, 3, 4, 5, 6, 7, 8, 0, 9, 10))) if opt.get("prof") == 2 else None))
    if opt.get("prof") == 2:
        k.stamp(11, True)
    k.stamp(10)
    k.lgkm0()
    e("s_barrier")
    for o in range(3):
        for j in range(4):
            e(f"ds_read_b128 {V(AA+16*o+4*j,4)}, v{245+o} offset:{j*1024}")
    k.wait_vm(at[1])
    for j in range(4):
        e(f"v_sub_f32 v{48+2*j}, 1.0, v{32+2*j}")
    for j in range(4):
        e(f"v_max_f32 v{48+2*j}, {hex(f32bits(1e-30))}, v{48+2*j}")
    for r in range(8):
        e(f"v_lshlrev_b32 v{200+2*r}, 16, v{192+r}")
        e(f"v_and_b32 v{201+2*r}, 0xffff0000, v{192+r}")
    for r in range(8):
        e(f"v_pk_mul_f32 {V(200+2*r,2)}, {V(200+2*r,2)}, {V(32+2*(r//2),2)} op_sel_hi:[1,0]")
    for o in range(3):
        e(f"s_waitcnt lgkmcnt({8-4*o})") if not opt.get("diag") else k.lgkm0()
        for r in range(8):
            e(f"v_pk_add_f32 {V(YA+48+2*r,2)}, {V(YA+48+2*r,2)}, {V(AA+16*o+2*r,2)}")
    for r in range(8):
        e(f"v_pk_fma_f32 {V(YA+48+2*r,2)}, {V(YA+48+2*r,2)}, {V(48+2*(r//2),2)}, {V(200+2*r,2)} op_sel_hi:[1,0,1]")
    for t in range(4):
        e(f"v_cvt_pk_bf16_f32 v{32+2*t}, v{YA+48+4*t}, v{YA+49+4*t}")
        e(f"v_cvt_pk_bf16_f32 v{33+2*t}, v{YA+50+4*t}, v{YA+51+4*t}")
    k.nop(2)
    for p in range(2):
        e(f"v_permlane16_swap_b32 v{32+4*p}, v{34+4*p}")
        e(f"v_permlane16_swap_b32 v{33+4*p}, v{35+4*p}")
    k.nop(1)
    for p in range(2):
        e(f"buffer_store_dwordx4 {V(32+4*p,4)}, v{248+p}, {OUT}, s87 offen {opt.get('oflags', '')}")
    if opt.get("diag"):
        e("s_waitcnt vmcnt(0)")
        k.stamp(11)
        k.lgkm0()
        for i in range(12):
            e(f"v_mov_b32 v{32+i}, s{16+2*i}")
        e("v_mov_b32 v44, s98")
        e("s_getreg_b32 s12, hwreg(HW_REG_XCC_ID)")
        e("v_mov_b32 v45, s12")
        e("s_lshl_b32 s12, s2, 2")
        e("s_add_u32 s12, s12, s3")
        e("s_lshl_b32 s12, s12, 6")
        e(f"s_add_u32 s12, s12, {DIAG}")
        e("v_mov_b32 v30, 0")
        e("s_mov_b64 exec, 1")
        for i in range(4):
            e(f"buffer_store_dwordx4 {V(32+4*i,4)}, v30, {WS}, s12 offen offset:{16*i}")
    k.label("L_end")
    e("s_endpgm")
    return "\n".join(k.l)


HEADER = open("cdna_kernels/" + NAME + ".s.ref").read().split("; Override launch geometry")[0]


def gen_meas(opt):
    mj, mk = opt["meas"], opt.get("mk", 1)
    l = []
    a = l.append
    a("s_cmp_ge_u32 s2, 1")
    a("s_cbranch_scc1 M_end")
    a("s_memrealtime s[30:31]")
    a("s_load_dwordx2 s[4:5], s[0:1], 88")
    a("v_lshlrev_b32 v1, 6, v0")
    a("v_mov_b32 v2, -1")
    a("v_mov_b32 v3, 0")
    a("s_waitcnt lgkmcnt(0)")
    a("s_mov_b32 s8, s4")
    a("s_mov_b32 s9, s5")
    a(f"s_mov_b32 s10, {WS_BYTES}")
    a("s_mov_b32 s11, 0x20000")
    lo, hi = {"Q": (0, 8), "U": (8, 16), "A": (0, 16)}[opt.get("mrole", "A")]
    for it in range(16):
        a(f"s_mov_b32 s12, {DIAG + it*4096}")
        a(f"buffer_load_dword v4, v1, s[8:11], s12 offen offset:48")
        a(f"buffer_load_dword v5, v1, s[8:11], s12 offen offset:{4*mj}")
        a("s_waitcnt vmcnt(0)")
        a("v_min_u32 v2, v2, v4")
        if lo <= it < hi:
            a("v_max_u32 v3, v3, v5")
    a("s_mov_b32 s14, -1")
    a("s_mov_b32 s15, 0")
    a("s_nop 4")
    for i in range(64):
        a(f"v_readlane_b32 s16, v2, {i}")
        a(f"v_readlane_b32 s17, v3, {i}")
        a("s_nop 3")
        a("s_min_u32 s14, s14, s16")
        a("s_max_u32 s15, s15, s17")
    if opt.get("mpost"):
        a("s_sub_u32 s15, s30, s15")
    else:
        a("s_sub_u32 s15, s15, s14")
    a("s_min_u32 s15, s15, 20000")
    a(f"s_mul_i32 s15, s15, {mk}")
    a("s_memrealtime s[20:21]")
    a("s_waitcnt lgkmcnt(0)")
    a("M_spin:")
    a("s_memrealtime s[22:23]")
    a("s_waitcnt lgkmcnt(0)")
    a("s_sub_u32 s24, s22, s20")
    a("s_cmp_lt_u32 s24, s15")
    a("s_cbranch_scc1 M_spin")
    a("M_end:")
    a("s_endpgm")
    return "\n".join(l)


def gen_file(opt):
    kn = NAME + "_kernel"
    nl = opt.get("launches", 1)
    s = HEADER
    for _ in range(opt.get("pre_empty", 0)):
        s += "; @launch kernel=empty_kernel grid=(1,1,1) block=(64,1,1) lds=0\n"
    if opt.get("pre_empty") and "meas" not in opt:
        s += f"; @launch kernel={kn} grid=(256,1,1) block=(256,1,1) lds=163840\n"
    elif "meas" in opt:
        s += f"; @launch kernel={kn} grid=(256,1,1) block=(256,1,1) lds=163840\n"
        s += f"; @launch kernel=meas_kernel grid=(1,1,1) block=(64,1,1) lds=0\n"
    elif nl == 1:
        s += "; @launch grid=(256,1,1) block=(256,1,1) lds=163840\n"
    else:
        for _ in range(nl):
            s += f"; @launch kernel={kn} grid=(256,1,1) block=(256,1,1) lds=163840\n"
    extra_code = ""
    if "meas" in opt:
        extra_code = ".globl meas_kernel\n.p2align 8\n.type meas_kernel,@function\nmeas_kernel:\n" + gen_meas(opt) + "\n"
    if opt.get("pre_empty"):
        extra_code += ".globl empty_kernel\n.p2align 8\n.type empty_kernel,@function\nempty_kernel:\n s_endpgm\n"
    s += f""".amdgcn_target "amdgcn-amd-amdhsa--gfx950"
.text
.globl {kn}
.p2align 8
.type {kn},@function
{kn}:
{gen_body(opt)}
{extra_code}.section .rodata,"a"
.p2align 6
.amdhsa_kernel {kn}
  .amdhsa_next_free_vgpr 512
  .amdhsa_next_free_sgpr 102
  .amdhsa_accum_offset 256
  .amdhsa_group_segment_fixed_size 0
  .amdhsa_kernarg_size 96
  .amdhsa_user_sgpr_count 2
  .amdhsa_user_sgpr_kernarg_segment_ptr 1
  .amdhsa_system_sgpr_workgroup_id_x 1
.end_amdhsa_kernel
"""
    if "meas" in opt:
        s += """.p2align 6
.amdhsa_kernel meas_kernel
  .amdhsa_next_free_vgpr 32
  .amdhsa_next_free_sgpr 102
  .amdhsa_accum_offset 32
  .amdhsa_group_segment_fixed_size 0
  .amdhsa_kernarg_size 96
  .amdhsa_user_sgpr_count 2
  .amdhsa_user_sgpr_kernarg_segment_ptr 1
  .amdhsa_system_sgpr_workgroup_id_x 1
.end_amdhsa_kernel
"""
    if opt.get("pre_empty"):
        s += """.p2align 6
.amdhsa_kernel empty_kernel
  .amdhsa_next_free_vgpr 32
  .amdhsa_next_free_sgpr 102
  .amdhsa_accum_offset 32
  .amdhsa_group_segment_fixed_size 0
  .amdhsa_kernarg_size 96
  .amdhsa_user_sgpr_count 2
  .amdhsa_user_sgpr_kernarg_segment_ptr 1
  .amdhsa_system_sgpr_workgroup_id_x 1
.end_amdhsa_kernel
"""
    return s


if __name__ == "__main__":
    opt = {}
    out = None
    for a in sys.argv[1:]:
        if "=" in a:
            kk, vv = a.split("=", 1)
            try:
                vv = int(vv)
            except ValueError:
                pass
            opt[kk] = vv
        else:
            out = a
    txt = gen_file(opt)
    open(out or ("cdna_kernels/" + NAME + ".s"), "w").write(txt)
```

```python
import sys

NAME = "gated_mix__linear_attn_block__mixer_token_mlp__prompt"

HF = 0x000000
GUF = 0x240000
OF = 0x400000
KVP = 0x600000
ZP = 0x608000
GG = 0x690000
CNT = 0x6A0000
AF = 0x6C0000
DIAG = 0x7E0000
WS_BYTES = 0x800000

X, WQKV, WO, W1, B1, W2, B2, GW, OUT, DBG, WS = [f"s[{40+4*i}:{43+4*i}]" for i in range(11)]
SRD_INFO = [(40, 16, 2048*512*2), (44, 18, 512*1536*2), (48, 20, 512*512*2), (52, 24, 2048*1376*2),
            (56, 26, 1376*2), (60, 28, 1376*2048*2), (64, 30, 2048*2), (68, 32, 512*2),
            (72, 34, 2048*512*2), (76, 36, 256), (80, 38, WS_BYTES)]

LOG2E = 0x3fb8aa3b
HS = 65536


def f32bits(x):
    import struct
    return struct.unpack("<I", struct.pack("<f", x))[0]


def rr(kind, base, n):
    return f"{kind}{base}" if n == 1 else f"{kind}[{base}:{base+n-1}]"


def V(b, n=1):
    return rr("v", b, n)


def A(b, n=1):
    return rr("a", b, n)


class Em:
    def __init__(self, opt):
        self.l = []
        self.vm = 0
        self.lab = 0
        self.opt = opt
        self.nstamp = 0

    def e(self, s):
        self.l.append("    " + s)

    def c(self, s):
        self.l.append("    ; " + s)

    def label(self, s):
        self.l.append(s + ":")

    def newlab(self, p="L"):
        self.lab += 1
        return f"{p}_{self.lab}"

    def vmem(self, s):
        self.e(s)
        self.vm += 1
        return self.vm

    def wait_vm(self, tok):
        n = self.vm - tok
        assert n >= 0
        self.e(f"s_waitcnt vmcnt({min(n, 63)})")

    def wait_vm0(self):
        self.e("s_waitcnt vmcnt(0)")

    def lgkm0(self):
        self.e("s_waitcnt lgkmcnt(0)")

    def nop(self, n):
        while n > 0:
            k = min(n, 16)
            self.e(f"s_nop {k-1}")
            n -= k

    def stamp(self, i, prof=False):
        if prof is True:
            prof = self.opt.get("prof") if self.opt.get("prof") in (1, 2) else -1
        if (self.opt.get("prof") or False) != prof:
            return
        if self.opt.get("diag"):
            assert i < 12
            self.e(f"{'s_memtime' if self.opt.get('clk') else 's_memrealtime'} s[{16+2*i}:{17+2*i}]")

    def dma(self, voff, srd, soff, m0expr, flags=""):
        sreg, imm = m0expr
        if sreg is None:
            self.e(f"s_mov_b32 m0, {imm}")
        else:
            self.e(f"s_add_u32 m0, {sreg}, {imm}")
        sr, si = soff
        self.e(f"s_add_u32 s13, {sr}, {si}")
        return self.vmem(f"buffer_load_dwordx4 {voff}, {srd}, s13 offen {flags} lds".replace("  ", " "))

    def poll(self, voff, srd, expect, tmp="v31", sleep=None):
        if self.opt.get("nowait"):
            self.wait_vm0()
            return
        lp = self.newlab("L_poll")
        dn = self.newlab("L_polled")
        self.e("s_mov_b32 s14, 0")
        self.label(lp)
        self.e(f"buffer_load_dword {tmp}, {voff}, {srd}, 0 offen sc1")
        self.e("s_add_u32 s14, s14, 1")
        self.e("s_waitcnt vmcnt(0)")
        self.e(f"v_cmp_gt_u32 vcc, {expect}, {tmp}")
        self.e(f"s_cbranch_vccz {dn}")
        self.e(f"s_sleep {sleep or self.opt.get('sleep', 1)}")
        self.e("s_cmp_lt_u32 s14, 0x40000")
        self.e(f"s_cbranch_scc1 {lp}")
        self.label(dn)

    def poll2(self, voff, srd, expect, more, tmp="v31"):
        if self.opt.get("nowait"):
            more()
            return 0
        t = self.vmem(f"buffer_load_dword {tmp}, {voff}, {srd}, 0 offen sc1")
        more()
        self.wait_vm(t)
        dn = self.newlab("L_fast")
        self.e(f"v_cmp_gt_u32 vcc, {expect}, {tmp}")
        self.e(f"s_cbranch_vccz {dn}")
        self.poll(voff, srd, expect, tmp)
        self.label(dn)
        return t

    def arrive(self, srd, off_sreg, nrep):
        sk = self.newlab("L_arr")
        self.e("s_cmp_lg_u32 s3, 0")
        self.e(f"s_cbranch_scc1 {sk}")
        self.e("v_lshlrev_b32 v30, 8, v1")
        self.e("v_mov_b32 v31, 1")
        self.e(f"s_mov_b64 exec, {(1 << nrep) - 1}")
        self.e(f"buffer_atomic_add v31, v30, {srd}, {off_sreg} offen sc1")
        self.e("s_mov_b64 exec, -1")
        self.label(sk)


def mf(d, a, b, c):
    return f"v_mfma_f32_16x16x32_bf16 {d}, {a}, {b}, {c}"


def interleave(k, mfmas, fillers, tail=2, cap=2, late=()):
    nm = len(mfmas)
    if late:
        interleave(k, mfmas[:8], fillers[:len(fillers) * 8 // nm + 1], tail=0, cap=cap)
        interleave(k, mfmas[8:], mix(list(late), fillers[len(fillers) * 8 // nm + 1:]), tail=min(tail, 1), cap=cap)
        return
    nf = len(fillers)
    span = max(1, nm - tail)
    fi = 0
    for i, (pre, txt) in enumerate(mfmas):
        if pre:
            pre()
        k.e(txt)
        want = min(nf, -(-(i + 1) * nf // span))
        budget = cap - (1 if (i + 1 < nm and mfmas[i + 1][0]) else 0)
        while fi < want and budget > 0:
            f = fillers[fi]
            fi += 1
            budget -= 1
            if callable(f):
                f()
            else:
                k.e(f)
    while fi < nf:
        f = fillers[fi]
        fi += 1
        if callable(f):
            f()
        else:
            k.e(f)


def run_all(k, items):
    for f in items:
        if callable(f):
            f()
        else:
            k.e(f)


def mix(a, b):
    out = []
    ia = ib = 0
    while ia < len(a) or ib < len(b):
        if ib >= len(b) or (ia < len(a) and ia * len(b) <= ib * len(a)):
            out.append(a[ia])
            ia += 1
        else:
            out.append(b[ib])
            ib += 1
    return out


class SK:
    def __init__(self, k, n, L, NWB, FB, NF, wdma, wread, fload, mm):
        self.__dict__.update(locals())
        self.wt = {}
        self.ft = {}
        self.issued = 0
        self.nread = 0
        self.done = set()
        self.wdone = 0
        self.wq = []
        self.wtmp = {}
        self.wage = {}

    def issue_w(self, upto):
        while self.issued < min(upto, self.n):
            assert self.issued < self.nread + self.L
            run_all(self.k, self.wdma(self.issued, self.wt))
            self.issued += 1

    def assume_issued(self, e, per):
        for t in range(e):
            self.k.vm += per
            self.wt[t] = self.k.vm
        self.issued = e

    def to_regs(self, R, hold=0):
        k = self.k
        while self.nread < R:
            t = self.nread
            assert t < self.wdone + self.NWB
            k.wait_vm(self.wt[t])
            run_all(k, self.wread(t))
            k.lgkm0()
            self.nread += 1
            if self.nread <= R - hold:
                self.issue_w(t + self.L + 1)

    def run(self, seq, LA, drained=0, post=None, wdelay=0, extra=None, pre_issued=0, prof=None,
            wsplit=1, rmax=2, age=2):
        k, n, L = self.k, self.n, self.L
        fi = pre_issued

        def fl(i):
            t, b = seq[i]
            if t - self.FB >= 0:
                assert (t - self.FB, b) in self.done, (t, b)
            return self.fload(t, b, self.ft)
        while fi < min(LA, len(seq)):
            run_all(k, fl(fi))
            fi += 1
        for win in range(len(seq) // 4):
            if prof and win in prof:
                k.stamp(prof[win], True)
            grp = seq[4*win:4*win+4]
            assert max(t for t, b in grp) < self.nread, (grp, self.nread)
            vm = []
            for _ in range(4):
                if fi < len(seq):
                    vm += fl(fi)
                    fi += 1
            if not self.wq and win >= wdelay and self.issued < n and self.issued < self.nread + L:
                self.wq = self.wdma(self.issued, self.wtmp)
                self.wq_t = self.issued
                self.wq_n = -(-len(self.wq) // wsplit)
                self.issued += 1
            fin = None
            if self.wq:
                vm += self.wq[:self.wq_n]
                self.wq = self.wq[self.wq_n:]
                if not self.wq:
                    fin = self.wq_t
            rd = []
            nr = 0
            while nr < rmax:
                u = self.nread
                if not (u < n and u < self.wdone + self.NWB and u in self.wt):
                    break
                must = u <= max(t for t, b in seq[4*win:4*win+8])
                if not must and self.wage.get(u, -99) + age > win:
                    break
                if nr >= 1 and not must and self.issued < n:
                    break
                if self.wt[u] > drained:
                    rd.append(lambda u=u: k.wait_vm(self.wt[u]))
                rd += self.wread(u)
                self.nread += 1
                nr += 1
            mfmas = []
            for (t, b) in grp:
                for j in range(self.NF):
                    pre = (lambda t=t, b=b: k.wait_vm(self.ft[(t, b)])) if j == 0 else None
                    mfmas.append((pre, self.mm(t, b, j)))
            fill = mix(rd, vm)
            ps = post(win) if post else []
            if extra:
                fill = mix(fill, extra(win))
            interleave(k, mfmas, fill, tail=3, late=ps)
            if fin is not None:
                self.wt[fin] = self.wtmp[fin]
                self.wage[fin] = win
            for gb in grp:
                self.done.add(gb)
            while self.wdone < n and all((self.wdone, b) in self.done for b in range(4)):
                self.wdone += 1
            if rd:
                k.lgkm0()
        assert not self.wq
        self.wage = {}


def gen_body(opt):
    k = Em(opt)
    e = k.e
    WFL = opt.get("wflags", "")
    ROTQ = opt.get("rot_q", 0)
    ROTU = opt.get("rot_u", 2)
    ROTP = opt.get("rot_p", 1)
    UPART = opt.get("upart", 4)
    UFL = opt.get("u_wflags", "")
    global HS
    HS = opt.get("hs", 65536)
    PW = "s[84:87]"

    def srd(name):
        for (d, s, sz) in SRD_INFO:
            if f"s[{d}:{d+3}]" == name:
                e(f"s_mov_b32 s{d}, s{s}")
                e(f"s_mov_b32 s{d+1}, s{s+1}")
                e(f"s_mov_b32 s{d+2}, {sz}")
                e(f"s_mov_b32 s{d+3}, 0x20000")

    def dmai(voff, srd_, soff, off, toks=None, key=None, fl=""):
        def f():
            if " m0," in k.l[-1]:
                e("s_nop 0")
            t = k.vmem(f"buffer_load_dwordx4 {voff}, {srd_}, {soff} offen offset:{off} {fl} lds".replace("  ", " "))
            if toks is not None:
                toks[key] = t
        return f

    def diag_clear():
        if opt.get("diag"):
            for i in range(16, 40):
                e(f"s_mov_b32 s{i}, 0")

    k.label("L_code0")
    e("s_cmp_ge_u32 s2, 256")
    e("s_cbranch_scc1 L_end")
    e("s_load_dwordx16 s[16:31], s[0:1], 0")
    e("s_load_dwordx8 s[32:39], s[0:1], 64")
    if opt.get("diag"):
        e(f"{'s_memtime' if opt.get('clk') else 's_memrealtime'} s[98:99]")
    e("v_lshrrev_b32 v2, 6, v0")
    e("v_and_b32 v1, 63, v0")
    e("v_readfirstlane_b32 s3, v2")
    e("s_and_b32 s4, s2, 7")
    e("s_lshr_b32 s6, s2, 3")
    e("s_and_b32 s5, s4, 1")
    e("s_lshr_b32 s4, s4, 1")
    k.c("role tile: s8 = a*4 + ((idx&15)>>2) (sb / ft), s9 = b*4 + (idx&3) (hg / dt)")
    e("s_bfe_u32 s8, s6, 0x20002")
    e("s_lshl_b32 s12, s4, 2")
    e("s_add_u32 s8, s8, s12")
    e("s_and_b32 s9, s6, 3")
    e("s_lshl_b32 s12, s5, 2")
    e("s_add_u32 s9, s9, s12")
    k.c("P3 tile: s10 = st = a*8 + (idx&7), s11 = dt3 = b*4 + 2*((idx>>3)&1) + ((idx ^ (idx>>4))&1)")
    e("s_and_b32 s10, s6, 7")
    if opt.get("stx"):
        e(f"s_xor_b32 s10, s10, {opt['stx']}")
    e("s_lshr_b32 s11, s6, 4")
    e("s_xor_b32 s11, s11, s6")
    e("s_and_b32 s11, s11, 1")
    e("s_add_u32 s11, s11, s12")
    e("s_lshr_b32 s12, s6, 2")
    e("s_and_b32 s12, s12, 2")
    e("s_add_u32 s11, s11, s12")
    e("s_lshl_b32 s12, s4, 3")
    e("s_add_u32 s10, s10, s12")
    e("s_mul_i32 s7, s3, 40960")
    e("v_and_b32 v2, 15, v1")
    e("v_lshrrev_b32 v3, 4, v1")
    e("v_lshlrev_b32 v4, 4, v1")
    e("v_mov_b32 v5, 0")
    e("s_cmp_ge_u32 s6, 16")
    e("s_cbranch_scc1 L_urole")


    def touch_xw():
        if not opt.get("pfx", 2):
            return
        if opt.get("pfx", 2) == 2:
            return touch_xw_all()
        e("s_lshl_b32 s12, s6, 2")
        e("s_add_u32 s12, s12, s3")
        e("v_lshrrev_b32 v116, 2, v1")
        e("v_lshlrev_b32 v116, 10, v116")
        e("v_and_b32 v117, 3, v1")
        e("v_lshl_add_u32 v116, v117, 7, v116")
        e(f"s_mul_i32 s13, s12, {8*3072}")
        e("s_lshl_b32 s14, s5, 9")
        e("s_add_u32 s13, s13, s14")
        k.vmem(f"buffer_load_dword v157, v116, {WQKV}, s13 offen")
        e("v_lshlrev_b32 v117, 7, v1")
        e("s_lshl_b32 s12, s12, 13")
        e("s_lshl_b32 s14, s4, 19")
        e("s_add_u32 s12, s12, s14")
        k.vmem(f"buffer_load_dword v157, v117, {X}, s12 offen")
        e("s_add_u32 s13, s13, 16384")
        e("s_mov_b64 exec, 0xffffffff")
        k.vmem(f"buffer_load_dword v157, v116, {WQKV}, s13 offen")
        e("s_mov_b64 exec, -1")

    def touch_xw_all():
        e("s_lshl_b32 s12, s6, 2")
        e("s_add_u32 s12, s12, s3")
        e("v_lshrrev_b32 v116, 2, v1")
        e("v_lshlrev_b32 v116, 10, v116")
        e("v_and_b32 v117, 3, v1")
        e("v_lshl_add_u32 v116, v117, 7, v116")
        e(f"s_mul_i32 s13, s12, {4*3072}")
        e("s_lshl_b32 s14, s5, 9")
        e("s_add_u32 s13, s13, s14")
        e("s_mov_b32 s14, 0xffff")
        e("s_mov_b32 exec_hi, s14")
        k.vmem(f"buffer_load_dword v157, v116, {WQKV}, s13 offen")
        e("s_mov_b64 exec, -1")

    def touch_x_other():
        e("s_and_b32 s12, s6, 15")
        e("s_lshl_b32 s12, s12, 2")
        e("s_add_u32 s12, s12, s3")
        e("s_lshr_b32 s13, s12, 4")
        e("s_lshl_b32 s13, s13, 17")
        e("s_and_b32 s12, s12, 15")
        e("s_lshl_b32 s12, s12, 12")
        e("s_add_u32 s12, s12, s13")
        e("s_lshl_b32 s13, s4, 19")
        e("s_add_u32 s12, s12, s13")
        e("s_xor_b32 s13, s5, 1")
        e("s_lshl_b32 s13, s13, 16")
        e("s_add_u32 s12, s12, s13")
        e("v_lshlrev_b32 v117, 7, v1")
        e("s_mov_b64 exec, 0xffffffff")
        k.vmem(f"buffer_load_dword v157, v117, {X}, s12 offen")
        e("s_mov_b64 exec, -1")

    def touch_w1():
        if opt.get("pfx", 2) == 2:
            srd(X)
            srd(WQKV)
            touch_x_other()
            touch_xw_all()
        if not opt.get("pfw", 0):
            return
        bw = 768 if UPART == 4 else 384
        e("s_and_b32 s12, s6, 15")
        e("s_lshl_b32 s12, s12, 2")
        e("s_add_u32 s12, s12, s3")
        e(f"s_mul_i32 s12, s12, {32*2752}")
        if UPART == 4:
            e("s_mul_i32 s13, s4, 768")
            e("v_lshrrev_b32 v158, 3, v1")
            e("v_and_b32 v159, 7, v1")
        else:
            e("s_and_b32 s13, s2, 7")
            e("s_mul_i32 s13, s13, 384")
            e("v_lshrrev_b32 v158, 2, v1")
            e("v_and_b32 v159, 3, v1")
        e("s_add_u32 s12, s12, s13")
        e("v_lshlrev_b32 v159, 7, v159")
        e(f"v_min_u32 v159, {bw-4}, v159")
        e("v_mul_u32_u24 v158, 2752, v158")
        e("v_add_u32 v158, v158, v159")
        nrow = 8 if UPART == 4 else 16
        for j in range(32 // nrow):
            k.vmem(f"buffer_load_dword v157, v158, {W1}, s12 offen {UFL}")
            if j + 1 < 32 // nrow:
                e(f"s_add_u32 s12, s12, {nrow*2752}")

    PL, PNWB, PFB = 10, 8, 8
    PE = 6
    YA, AA = 64, 128

    def p3_setup(isq):
        LOS = 24576 if isq else 40960
        out = (["s_mul_i32 s7, s3, 24576", "s_lshl_b32 s99, s3, 14", "s_add_u32 s99, s99, 98304"] if isq
               else ["s_add_u32 s99, s7, 24576"])
        out += ["v_lshrrev_b32 v30, 3, v1", "v_and_b32 v31, 7, v1", "v_and_b32 v18, 6, v30", "v_xor_b32 v31, v31, v18",
               "v_lshlrev_b32 v31, 4, v31", "v_lshl_add_u32 v22, v30, 12, v31",
               "s_lshl_b32 s13, s11, 7", "s_lshl_b32 s87, s3, 5", "s_add_u32 s87, s87, s13"]
        if isq:
            out += ["v_lshl_add_u32 v18, v30, 10, v31", "s_lshl_b32 s12, s3, 17", "s_add_u32 s12, s12, s13",
                    "v_add_u32 v18, s12, v18"]
        out += [f"s_mul_i32 s12, s3, {352*4096}", "s_lshl_b32 s13, s10, 7", "s_add_u32 s12, s12, s13", "v_add_u32 v22, s12, v22"]
        for j in range(1, 4):
            if isq:
                out.append(f"v_add_u32 v{18+j}, {j*(8*1024-1024)}, v18")
            out.append(f"v_add_u32 v{22+j}, {j*(8*4096-1024)}, v22")
        if isq:
            out += ["s_and_b32 s12, s10, 30", "s_add_u32 s12, s12, s5", "s_lshl_b32 s12, s12, 8",
                    f"s_add_u32 s12, s12, {CNT + 32*256}", "v_mov_b32 v240, s12"]
        out += ["s_lshl_b32 s12, s11, 2", "s_add_u32 s12, s12, s4", "s_lshl_b32 s12, s12, 8",
                f"s_add_u32 s12, s12, {CNT + 64*256}", "v_mov_b32 v241, s12",
                "s_lshr_b32 s12, s10, 1", "s_lshl_b32 s12, s12, 3", "s_add_u32 s12, s12, s11",
                "s_lshl_b32 s13, s12, 8", f"s_add_u32 s13, s13, {CNT + 128*256}", "v_mov_b32 v250, s13",
                "s_lshl_b32 s12, s12, 13", "s_lshl_b32 s13, s3, 11", "s_add_u32 s12, s12, s13",
                f"s_add_u32 s12, s12, {AF}", "v_add_u32 v251, s12, v4",
                f"s_mov_b32 s100, {hex(WS_BYTES) if isq else 0}"]
        out += ["v_lshrrev_b32 v228, 2, v2", "v_lshl_add_u32 v228, v3, 2, v228", "v_lshrrev_b32 v229, 1, v228",
                "v_and_b32 v229, 3, v229", "v_lshlrev_b32 v228, 7, v228", "v_lshl_add_u32 v228, v229, 5, v228",
                "v_and_b32 v229, 3, v2", "v_lshl_add_u32 v228, v229, 3, v228", "v_add_u32 v26, s99, v228" if isq else "v_add_u32 v224, s99, v228",
                "v_add_u32 v228, s7, v228"]
        for j in range(1, 4):
            out.append(f"v_xor_b32 v{228+j}, {32*j}, v228")
            if not isq:
                out.append(f"v_xor_b32 v{224+j}, {32*j}, v224")
        if isq:
            out += ["s_lshl_b32 s13, s3, 12", f"s_add_u32 s12, s13, {OF}", "v_add_u32 v232, s12, v4"]
            for b in range(1, 4):
                out.append(f"v_add_u32 v{232+b}, {b*16384}, v232")
        out += [f"s_mul_i32 s13, s11, {4*43*1024}", f"s_mul_i32 s12, s3, {11*1024}", "s_add_u32 s13, s13, s12",
                f"s_add_u32 s13, s13, {GUF}"]
        for b in range(4):
            out += [f"s_add_u32 s12, s3, {1+b}", "s_and_b32 s12, s12, 3"]
            if isq:
                out += ["s_lshl_b32 s14, s12, 5", f"v_xor_b32 v{224+b}, s14, v26"]
                out += ["s_lshl_b32 s14, s12, 14", f"s_add_u32 s14, s14, {98304 + ((2-b)*4096 if b < 3 else 0)}",
                        f"v_add_u32 v{144+b}, s14, v4"]
            out += [f"s_mul_i32 s14, s12, {LOS}"]
            if b < 3:
                out += [f"s_add_u32 s14, s14, {(2-b)*4096}", f"v_add_u32 v{245+b}, s14, v4"]
            else:
                out += ["v_add_u32 v244, s14, v4"]
            out += [f"s_mul_i32 s12, s12, {43*1024}", "s_add_u32 s12, s12, s13", f"v_add_u32 v{236+b}, s12, v4"]
        out += ["s_mov_b32 s84, 4096", "s_mov_b32 s85, 8192", "s_mov_b32 s86, 10240",
                lambda: (e("s_cmp_eq_u32 s3, 3"), e(f"s_cselect_b32 s86, {hex(WS_BYTES)}, s86")),
                "s_lshl_b32 s12, s10, 6", "v_add_u32 v248, s12, v2", "v_lshlrev_b32 v242, 2, v248",
                f"v_add_u32 v242, {GG}, v242", "v_lshlrev_b32 v243, 1, v248",
                "v_and_b32 v249, 1, v3", "v_lshl_add_u32 v248, v249, 4, v248", "v_lshlrev_b32 v248, 10, v248",
                "v_lshrrev_b32 v249, 1, v3", "v_lshl_add_u32 v248, v249, 4, v248", "v_add_u32 v249, 32768, v248"]
        for j in range(4):
            out.append(lambda j=j: k.vmem(f"buffer_load_ushort v{252+j}, v243, {B2}, 0 offen offset:{32*j}"))
        return out

    def yblk(t):
        return (t + 10) % 11

    def p_wdma(t, toks):
        sl = t % PL
        out = [f"s_add_u32 m0, s7, {sl*4096}" if sl < 6 else f"s_add_u32 m0, s99, {(sl-6)*4096}",
               f"s_mov_b32 s101, {yblk(t)*32*4096}"]
        for j in range(4):
            out.append(dmai(f"v{22+j}", W2, "s101", j*1024, toks, t, WFL))
        return out

    def p_wread(t):
        out = []
        for j in range(4):
            r = (t % PNWB)*16 + j*4
            sl = t % PL
            o = (sl if sl < 6 else sl - 6)*4096
            ar = (228 if sl < 6 else 224) + j
            out.append(f"ds_read_b64_tr_b16 {A(r,2)}, v{ar} offset:{o}")
            out.append(f"ds_read_b64_tr_b16 {A(r+2,2)}, v{ar} offset:{o+2048}")
        return out

    def p3_e1():
        out = []
        for t in range(PE):
            out += p_wdma(t, {})
        return out

    def acc_init():
        out = [f"v_mov_b32 v{YA+r}, 0" for r in range(48)]
        for j in range(4):
            out += [f"v_lshlrev_b32 v{YA+48+4*j+r}, 16, v{252+j}" for r in range(4)]
        return out

    def zload():
        return k.vmem(f"buffer_load_dword v31, v5, {DBG}, 0 offen sc1")

    def zcheck():
        if opt.get("nowait"):
            return
        dn = k.newlab("L_z")
        e("v_cmp_gt_u32 vcc, 1, v31")
        e(f"s_cbranch_vccz {dn}")
        k.poll("v5", DBG, 1)
        k.label(dn)

    k.c("================= Q role: LN =================")
    k.vm = 0
    e("s_lshl_b32 s15, s8, 7")
    e("s_lshl_b32 s12, s9, 4")
    e("s_add_u32 s15, s15, s12")
    e("s_lshl_b32 s12, s3, 2")
    e("s_add_u32 s12, s12, s15")
    e("s_lshl_b32 s12, s12, 10")
    e("v_lshlrev_b32 v7, 4, v2")
    e("v_lshl_add_u32 v6, v3, 10, v7")
    e("s_waitcnt lgkmcnt(0)")
    srd(X)
    tx = [k.vmem(f"buffer_load_dwordx4 {V(32+4*j,4)}, v6, {X}, s12 offen offset:{256*j}") for j in range(4)]
    srd(GW)
    tg = [k.vmem(f"buffer_load_dwordx4 {V(48+4*j,4)}, v7, {GW}, 0 offen offset:{256*j}") for j in range(4)]
    srd(WQKV)
    if not opt.get("q_late", 0):
        touch_xw()
    for n_ in (WS, DBG, WO, W2, B2, OUT):
        srd(n_)
    diag_clear()
    e("v_lshrrev_b32 v12, 3, v1")
    e("v_and_b32 v13, 7, v1")
    e("v_lshrrev_b32 v14, 1, v12")
    e("v_xor_b32 v14, v14, v13")
    e("v_lshlrev_b32 v14, 4, v14")
    e("v_lshl_add_u32 v14, v12, 10, v14")
    e("v_xor_b32 v15, 64, v14")
    e("s_lshl_b32 s13, s8, 17")
    e("s_lshl_b32 s12, s3, 15")
    e("s_add_u32 s13, s13, s12")
    e("v_add_u32 v144, s13, v14")
    e(f"s_add_u32 s13, s13, {7168}")
    e("v_add_u32 v145, s13, v15")
    e(f"v_add_u32 v146, {2*7168}, v144")
    e(f"v_add_u32 v147, {2*7168}, v145")
    e("v_and_b32 v16, 2, v12")
    e("v_xor_b32 v16, v16, v13")
    e("v_lshlrev_b32 v16, 4, v16")
    e("v_xor_b32 v17, 64, v16")
    e("v_mul_u32_u24 v12, 3072, v12")
    e("s_mul_i32 s13, s3, 49152")
    e("s_lshl_b32 s12, s9, 7")
    e("s_add_u32 s13, s13, s12")
    e("v_add3_u32 v148, v16, v12, s13")
    e(f"s_add_u32 s13, s13, {8*3072-1024}")
    e("v_add3_u32 v149, v17, v12, s13")
    for sec in (1, 2):
        e(f"v_add_u32 v{148+2*sec}, {1024*sec}, v148")
        e(f"v_add_u32 v{149+2*sec}, {1024*sec}, v149")
    e("s_lshl_b32 s90, s3, 12")
    e("s_lshl_b32 s91, s3, 11")
    ct = {}
    WQB = 98304

    def qdma(c):
        slot = c % 3
        out = [f"s_add_u32 m0, s90, {slot*32768}", f"s_mov_b32 s88, {c*128}"]
        for j in range(4):
            out.append(dmai(f"v{144+j}", X, "s88", j*1024))
        for sec in (1, 2):
            out.append(f"s_add_u32 m0, s91, {slot*32768 + 16384 + (sec-1)*8192}")
            if sec == 1:
                out.append(f"s_mov_b32 s89, {c*64*3072}")
            for j in range(2):
                out.append(dmai(f"v{148+2*sec+j}", WQKV, "s89", j*1024, ct, c, WFL))
        out.append(lambda: ctd.add(c))
        return out

    def wqdma(c):
        out = [f"s_add_u32 m0, s91, {WQB + c*8192}", f"s_mov_b32 s89, {c*64*3072}"]
        for j in range(2):
            out.append(dmai(f"v{148+j}", WQKV, "s89", j*1024, ct, "q", WFL))
        return out
    ctd = set()
    nearly = 0
    LNB = 163840 - 17408
    e("s_mul_i32 s12, s3, 4352")
    e(f"s_add_u32 s12, s12, {LNB}")
    e("v_mul_u32_u24 v8, 1088, v3")
    e("v_add3_u32 v8, v8, v7, s12")
    e("v_and_b32 v9, 1, v3")
    e("v_lshlrev_b32 v9, 3, v9")
    e("v_lshrrev_b32 v10, 2, v2")
    e("v_add_u32 v9, v9, v10")
    e("v_mul_u32_u24 v9, 1088, v9")
    e("v_lshrrev_b32 v10, 1, v3")
    e("v_lshl_add_u32 v9, v10, 5, v9")
    e("v_and_b32 v11, 3, v2")
    e("v_lshl_add_u32 v9, v11, 3, v9")
    e("s_lshl_b32 s12, s3, 8")
    e(f"s_add_u32 s12, s12, {LNB}")
    e("v_add_u32 v9, s12, v9")
    e(f"v_mul_u32_u24 v10, {HS}, v10")
    e("v_and_b32 v11, 1, v3")
    e("v_lshl_add_u32 v10, v11, 8, v10")
    e("v_add_u32 v10, v10, v7")
    e(f"s_mul_i32 s84, s3, {8*HS}")
    e("s_lshl_b32 s12, s15, 5")
    e("s_add_u32 s84, s84, s12")
    if HF:
        e(f"s_add_u32 s84, s84, {HF}")
    e("s_lshl_b32 s12, s3, 2")
    e("s_add_u32 s12, s12, s15")
    e("s_lshl_b32 s12, s12, 2")
    e(f"s_add_u32 s12, s12, {GG}")
    e("v_lshl_add_u32 v11, v3, 2, s12")
    e("v_cmp_eq_u32 vcc, 0, v2")
    e("v_mov_b32 v12, 0x7ffffff0")
    e("s_mov_b32 s85, 0x3f803f80")
    e("v_cndmask_b32 v11, v12, v11, vcc")
    e("s_lshr_b32 s96, s3, 1")
    e("s_and_b32 s97, s3, 1")
    e("v_lshrrev_b32 v18, 1, v2")
    e("v_xor_b32 v18, v18, v3")
    e("v_lshlrev_b32 v18, 4, v18")
    e("v_lshl_add_u32 v18, v2, 7, v18")
    e("s_lshl_b32 s12, s96, 13")
    e("v_add_u32 v18, s12, v18")
    e("v_xor_b32 v19, 64, v18")
    e("v_add_u32 v20, 65536, v18")
    e("v_add_u32 v21, 65536, v19")
    e("v_lshrrev_b32 v22, 2, v2")
    e("v_lshrrev_b32 v23, 3, v2")
    e("v_and_b32 v24, 1, v3")
    e("v_lshl_add_u32 v23, v24, 1, v23")
    e("s_lshl_b32 s12, s97, 1")
    e("v_xor_b32 v23, s12, v23")
    e("v_lshl_add_u32 v22, v3, 3, v22")
    e("v_lshlrev_b32 v22, 7, v22")
    e("v_lshl_add_u32 v22, v23, 5, v22")
    e("v_and_b32 v24, 3, v2")
    e("v_lshl_add_u32 v22, v24, 3, v22")
    e("v_add_u32 v22, 16384, v22")
    e(f"v_add_u32 v14, {WQB - 16384}, v22")
    e("v_xor_b32 v15, 32, v14")
    e("s_lshl_b32 s12, s96, 5")
    e("v_xor_b32 v23, s12, v22")
    e("v_xor_b32 v22, 32, v23")
    e("v_add_u32 v24, 65536, v22")
    e("v_add_u32 v25, 65536, v23")
    e("v_lshrrev_b32 v154, 3, v1")
    e("v_and_b32 v155, 7, v1")
    e("v_lshlrev_b32 v154, 12, v154")
    e("v_lshl_add_u32 v154, v155, 7, v154")
    e(f"s_mul_i32 s13, s3, {352*4096}")
    e("s_lshl_b32 s14, s6, 15")
    e("s_add_u32 s13, s13, s14")
    e("s_lshl_b32 s14, s4, 10")
    e("s_add_u32 s13, s13, s14")
    e("v_add_u32 v154, s13, v154")

    k.wait_vm(tx[3])
    if opt.get("q_late", 0):
        touch_xw()
    QFAST = opt.get("q_fast", 1)
    QF = 2
    ln_start = len(k.l)
    e("v_dot2_f32_bf16 v26, v32, s85, 0")
    e("v_dot2_f32_bf16 v27, v33, s85, 0")
    for j in range(2, 16):
        e(f"v_dot2_f32_bf16 v{26+(j&1)}, v{32+j}, s85, v{26+(j&1)}")
    unp = []
    for j in range(16):
        unp.append(f"v_lshlrev_b32 v{64+2*j}, 16, v{32+j}")
        unp.append(f"v_and_b32 v{65+2*j}, 0xffff0000, v{32+j}")
    for s in unp[:4]:
        e(s)
    e("v_add_f32 v26, v26, v27")
    ui = 4
    for rot in (8, 4, 2, 1):
        for s in unp[ui:ui+3]:
            e(s)
        ui += 3
        e(f"v_add_f32_dpp v26, v26, v26 row_ror:{rot} row_mask:0xf bank_mask:0xf")
    for s in unp[ui:]:
        e(s)
    e(f"v_mul_f32 v26, {hex(f32bits(-1.0/512))}, v26")
    for j in range(16):
        e(f"v_pk_add_f32 {V(64+2*j,2)}, {V(64+2*j,2)}, v[26:27] op_sel_hi:[1,0]")
    e("v_pk_mul_f32 v[96:97], v[64:65], v[64:65]")
    e("v_pk_mul_f32 v[98:99], v[66:67], v[66:67]")
    for j in range(2, 16):
        a_ = 96 + 2 * (j & 1)
        e(f"v_pk_fma_f32 {V(a_,2)}, {V(64+2*j,2)}, {V(64+2*j,2)}, {V(a_,2)}")
    e("v_pk_add_f32 v[96:97], v[96:97], v[98:99]")
    e("v_add_f32 v26, v96, v97")
    k.wait_vm(tg[3])
    gd = ["v_dot2_f32_bf16 v28, v32, v48, 0", "v_dot2_f32_bf16 v29, v33, v49, 0"]
    for j in range(2, 16):
        gd.append(f"v_dot2_f32_bf16 v{28+(j&1)}, v{32+j}, v{48+j}, v{28+(j&1)}")
    gi = 0
    for rot in (8, 4, 2, 1):
        e(gd[gi]); e(gd[gi+1]); gi += 2
        e(f"v_add_f32_dpp v26, v26, v26 row_ror:{rot} row_mask:0xf bank_mask:0xf")
    e(f"v_mov_b32 v27, {hex(f32bits(1e-5))}")
    e(f"v_fmac_f32 v27, {hex(f32bits(1.0/512))}, v26")
    e("v_rsq_f32 v26, v27")
    e(gd[gi]); gi += 1
    for j in range(16):
        e(f"v_pk_mul_f32 {V(64+2*j,2)}, {V(64+2*j,2)}, v[26:27] op_sel_hi:[1,0]")
    for j in range(16):
        e(f"v_cvt_pk_bf16_f32 v{100+j}, v{64+2*j}, v{65+2*j}")
        if j % 4 == 3:
            e(f"ds_write_b128 v8, {V(100+j-3,4)} offset:{256*(j//4)}")
    while gi < 16:
        e(gd[gi]); gi += 1
    if QFAST:
        body = [x.strip() for x in k.l[ln_start:]]
        del k.l[ln_start:]
        body = [(lambda: k.wait_vm(tg[3])) if x.startswith("s_waitcnt vmcnt") else x for x in body]
        skip = opt.get("q_skip", 0)
        run_all(k, body[:skip] + mix(body[skip:], sum((qdma(c) for c in range(QF)), [])))
    k.lgkm0()
    e("s_barrier")
    for j in range(4):
        e(f"ds_read_b64_tr_b16 {V(64+4*j,2)}, v9 offset:{64*j}")
        e(f"ds_read_b64_tr_b16 {V(66+4*j,2)}, v9 offset:{64*j+4*1088}")
    e("v_add_f32 v28, v28, v29")
    th = None
    for j in range(4):
        e(f"s_waitcnt lgkmcnt({6-2*j})") if not opt.get("diag") else k.lgkm0()
        e(f"s_add_u32 s12, s84, {j*2*HS}")
        th = k.vmem(f"buffer_store_dwordx4 {V(64+4*j,4)}, v10, {WS}, s12 offen sc1")
    for rot in (8, 4, 2, 1):
        e(f"v_add_f32_dpp v28, v28, v28 row_ror:{rot} row_mask:0xf bank_mask:0xf")
        k.nop(2)
    e(f"v_mul_f32 v28, {hex(f32bits(-1.4426950408889634))}, v28")
    e("v_exp_f32 v28, v28")
    k.nop(1)
    e("v_add_f32 v28, 1.0, v28")
    e("v_rcp_f32 v28, v28")
    k.nop(1)
    th = k.vmem(f"buffer_store_dword v28, v11, {WS}, 0 offen sc1")
    k.stamp(1)

    th = zload()
    npre = 2

    def h_arrive():
        k.stamp(2)
        e("s_lshr_b32 s12, s8, 2")
        e("s_lshl_b32 s12, s12, 11")
        e(f"s_add_u32 s12, s12, {CNT + 96*256}")
        k.arrive(WS, "s12", 8)
    if not QFAST:
        q0 = opt.get("q_pre", 0)
        for c in range(q0):
            run_all(k, qdma(c))
        k.wait_vm(th)
        zcheck()
        e("s_barrier")
        h_arrive()
        for c in range(q0, 2):
            run_all(k, qdma(c))

    ACC = 160
    FR = [96, 112]

    def qreads(t):
        c, kk = t // 2, t % 2
        slot = c % 3
        hi = slot >= 2
        so = (slot % 2) * 32768
        out = []
        xa = 18 + kk + (2 if hi else 0)
        for i in range(4):
            out.append(f"ds_read_b128 {A(16*t+4*i,4)}, v{xa} offset:{so + i*2048}")
        for sec in range(2):
            for hh in range(2):
                wa = 22 + hh + (2 if hi else 0)
                r = FR[t % 2] + (sec*2 + hh)*4
                o = so + sec*8192 + kk*4096
                out.append(f"ds_read_b64_tr_b16 {V(r,2)}, v{wa} offset:{o}")
                out.append(f"ds_read_b64_tr_b16 {V(r+2,2)}, v{wa} offset:{o+512}")
        return out

    pfl = []
    for r0 in ([192, 64][:opt.get("pf", 1)]):
        pfl.append([lambda r0=r0: (e(f"s_mov_b32 s101, {r0*4096}"), k.vmem(f"buffer_load_dword v157, v154, {W2}, s101 offen"))])
    PFA, PFB_ = opt.get("pf_a", 1), opt.get("pf_b", 1)

    k.wait_vm(ct[0])
    e("s_barrier")
    k.stamp(3)
    run_all(k, qreads(0))
    k.lgkm0()
    pend = qdma(2)
    QPER = opt.get("q_per", 7)
    consts = [f"s_mov_b32 s92, {hex(LOG2E)}", f"s_mov_b32 s93, {hex(LOG2E)}", f"s_mov_b32 s94, {hex(f32bits(1e-6))}",
              f"s_mov_b32 s95, {hex(f32bits(1e-6))}", "v_mov_b32 v26, s85", "v_mov_b32 v27, s85", "v_mov_b32 v28, s85",
              "v_mov_b32 v29, s85",
              "s_lshl_b32 s12, s3, 11", "s_add_u32 s12, s12, 65536", "v_add_u32 v6, s12, v4", "v_xor_b32 v7, 4096, v6",
              "s_lshl_b32 s15, s9, 2", "s_lshl_b32 s12, s97, 1", "s_add_u32 s15, s15, s12", "s_add_u32 s15, s15, s96",
              "s_lshl_b32 s13, s15, 10", f"s_add_u32 s13, s13, {KVP}", "s_lshl_b32 s12, s15, 6", f"s_add_u32 s12, s12, {ZP}",
              "v_lshlrev_b32 v10, 2, v1", "v_lshlrev_b32 v8, 4, v3", "v_lshl_add_u32 v8, v2, 2, v8",
              "v_cmp_gt_u32 vcc, 4, v2", "v_mov_b32 v9, 0x7ffffff0", "s_nop 0", "v_cndmask_b32 v8, v9, v8, vcc",
              "v_cmp_eq_u32 vcc, 3, v2"]
    for t in range(16):
        qp = dict(zip((0, 1, 2, 3, 4, 5, 6, 8, 10, 12, 14), (1, 2, 3, 4, 5, 6, 7, 8, 0, 9, 10)))
        if t in qp:
            k.stamp(qp[t], True)
        head = []
        if t % 2 == 1 and t + 1 < 16:
            c = (t + 1) // 2
            assert c in ctd, (t, c)
            head = [lambda c=c: k.wait_vm(ct[c]), "s_barrier"]
            if QFAST and c == QF:
                head = [lambda c=c: (k.wait_vm(ct[c]), zcheck()), "s_barrier", h_arrive]
            if c + 2 < 8:
                pend = pend + qdma(c + 2)
            if c == 6:
                for cq in range(8):
                    pend = pend + wqdma(cq)
        nv = len(pend) if t == 15 else (13 if t == 0 else QPER if t < 11 else 8)
        vm = pend[:nv]
        pend = pend[len(vm):]
        if t == 15:
            vm = vm + sum(pfl[:PFA], []) + consts
        reads = qreads(t + 1) if t + 1 < 16 else []
        mfmas = []
        for sec in range(2):
            for hh in range(2):
                for i in range(4):
                    d = ACC + 32 + sec*32 + (hh*4 + i)*4
                    cc = "0" if t == 0 else V(d, 4)
                    mfmas.append((None, mf(V(d, 4), A(16*t + 4*i, 4), V(FR[t % 2] + (sec*2 + hh)*4, 4), cc)))
        interleave(k, mfmas, head + mix(reads, vm), tail=3)
        if reads:
            k.lgkm0()
    k.stamp(4)
    k.stamp(11, True)

    def phi(src, dst):
        for j in range(16):
            e(f"v_pk_mul_f32 {V(64+2*j,2)}, {V(src+2*j,2)}, s[92:93]")
        for j in range(32):
            e(f"v_exp_f32 v{64+j}, v{64+j} clamp")
            e(f"v_max_f32 v{src+j}, 0, v{src+j}")
        for j in range(16):
            e(f"v_pk_add_f32 {V(64+2*j,2)}, {V(64+2*j,2)}, s[94:95]")
        for j in range(16):
            e(f"v_pk_add_f32 {V(64+2*j,2)}, {V(64+2*j,2)}, {V(src+2*j,2)}")
        for j in range(16):
            e(f"v_cvt_pk_bf16_f32 v{dst+j}, v{64+2*j}, v{65+2*j}")
    PK, PV, PQ = 96, 112, 128
    phi(ACC + 32, PK)
    for j in range(16):
        e(f"v_cvt_pk_bf16_f32 v{PV+j}, v{ACC+64+2*j}, v{ACC+65+2*j}")
    e("v_cmp_eq_u32 s[88:89], 1, v2")
    e("v_cmp_eq_u32 s[90:91], 2, v2")
    for hh in range(2):
        for p in range(2):
            a_ = V(PK + hh*8 + p*4, 4)
            b_ = V(PV + hh*8 + p*4, 4)
            e(mf(V(32+8*hh, 4), a_, b_, "0" if p == 0 else V(32+8*hh, 4)))
            e(mf(V(36+8*hh, 4), a_, "v[26:29]", "0" if p == 0 else V(36+8*hh, 4)))
    k.nop(4)
    e("ds_write_b128 v6, v[32:35]")
    e("ds_write_b128 v6, v[36:39] offset:1024")
    k.wait_vm(ct["q"])
    k.lgkm0()
    e("s_barrier")
    e("ds_read_b128 v[32:35], v7")
    e("ds_read_b128 v[36:39], v7 offset:1024")

    def qq_reads(w_):
        out = []
        for kk in range(2):
            for hh in range(2):
                r = 64 + (w_ % 2)*16 + (kk*2 + hh)*4
                o = w_*8192 + kk*4096
                out.append(f"ds_read_b64_tr_b16 {V(r,2)}, v{14+hh} offset:{o}")
                out.append(f"ds_read_b64_tr_b16 {V(r+2,2)}, v{14+hh} offset:{o+512}")
        return out
    run_all(k, qq_reads(0))
    e("s_waitcnt lgkmcnt(8)") if not opt.get("diag") else k.lgkm0()
    for j in range(4):
        e(f"v_pk_add_f32 {V(32+2*j,2)}, {V(32+2*j,2)}, {V(40+2*j,2)}")
    for r in range(4):
        k.vmem(f"buffer_atomic_add_f32 v{32+r}, v10, {WS}, s13 offen offset:{256*r}")
    e("v_cndmask_b32 v36, v36, v37, s[88:89]")
    e("v_cndmask_b32 v36, v36, v38, s[90:91]")
    e("v_cndmask_b32 v36, v36, v39, vcc")
    tat = k.vmem(f"buffer_atomic_add_f32 v36, v8, {WS}, s12 offen")
    e(f"s_lshl_b32 s90, s9, 10")
    e(f"s_add_u32 s90, s90, {CNT}")
    e("s_lshl_b32 s13, s4, 8")
    e("s_add_u32 s13, s13, s90")
    e("v_mov_b32 v8, s13")
    k.lgkm0()
    ps = p3_setup(True)
    KAW = opt.get("kv_aw", 4)
    e1_all = p3_e1()
    QW = 6 * opt.get("q_w", 2)
    qw = e1_all[:QW]
    kvt = {}
    for w_ in range(8):
        mfmas = []
        for kk in range(2):
            for hh in range(2):
                for i in range(4):
                    d = ACC + (hh*4 + i)*4
                    t = 2*w_ + kk
                    mfmas.append((None, mf(V(d, 4), V(64 + (w_ % 2)*16 + (kk*2 + hh)*4, 4), A(16*t + 4*i, 4), "0" if t == 0 else V(d, 4))))
        head = []
        if w_ == KAW:
            head = [lambda: k.wait_vm(tat), "s_barrier", lambda: (k.arrive(WS, "s90", 4), k.stamp(5))] + sum(pfl[PFA:PFA+PFB_], [])
        n_ = -(-len(ps) // (8 - w_))
        fl_ = ps[:n_]
        ps = ps[n_:]
        if w_ >= KAW:
            n_ = -(-len(qw) // (8 - w_))
            fl_ = mix(fl_, qw[:n_])
            qw = qw[n_:]
        if w_ == 7:
            fl_ = fl_ + [lambda: kvt.__setitem__(0, k.vmem(f"buffer_load_dword v31, v8, {WS}, 0 offen sc1"))]
        interleave(k, mfmas, head + mix(qq_reads(w_ + 1) if w_ < 7 else [], fl_), tail=3)
        k.lgkm0()
    e("s_barrier")
    k.nop(6)
    wod = {}

    def wo_dma():
        out = []
        for t in range(4):
            out += [f"s_add_u32 m0, s99, {t*4096}", f"s_mov_b32 s101, {t*32*1024}"]
            out += [dmai(f"v{18+j}", WO, "s101", j*1024, wod, t, WFL) for j in range(4)]
        return out
    qpre = wo_dma() + e1_all[QW:]
    mark = len(k.l)
    phi(ACC, PQ)
    ph = [x.strip() for x in k.l[mark:]]
    del k.l[mark:]
    cut = opt.get("q_cut", 48)
    run_all(k, ph[:cut])
    e("s_and_b32 s15, s15, 30")
    e("s_lshl_b32 s13, s15, 10")
    e(f"s_add_u32 s13, s13, {KVP}")
    e("s_lshl_b32 s12, s15, 6")
    e(f"s_add_u32 s12, s12, {ZP}")
    e("v_lshlrev_b32 v9, 4, v3")
    if not opt.get("nowait"):
        k.wait_vm(kvt[0])
        dn = k.newlab("L_kf")
        e("v_cmp_gt_u32 vcc, 16, v31")
        e(f"s_cbranch_vccz {dn}")
        k.poll("v8", WS, 16)
        k.label(dn)
    k.stamp(6)
    k.stamp(1, 3)
    for hh in range(2):
        k.vmem(f"buffer_load_dwordx4 {V(196+8*hh,4)}, v9, {WS}, s12 offen offset:{64*hh} sc1")
        for r in range(4):
            tkv = k.vmem(f"buffer_load_dword v{192+8*hh+r}, v10, {WS}, s13 offen offset:{1024*hh+256*r} sc1")
    n1 = 6 * opt.get("q_n1", 2)
    run_all(k, mix(ph[cut:], qpre[:n1]))
    e("s_lshl_b32 s15, s8, 3")
    e("s_lshl_b32 s12, s96, 2")
    e("s_add_u32 s15, s15, s12")
    e("s_lshl_b32 s15, s15, 4")
    e("s_lshl_b32 s12, s9, 1")
    e("s_add_u32 s15, s15, s12")
    e("s_add_u32 s15, s15, s97")
    e("s_lshl_b32 s15, s15, 10")
    e(f"s_add_u32 s15, s15, {OF}")
    k.wait_vm(tkv)
    k.stamp(2, 3)
    for q_ in range(8):
        e(f"v_cvt_pk_bf16_f32 v{40+q_}, v{192+2*q_}, v{193+2*q_}")
    k.nop(2)
    for hh in range(2):
        for i in range(4):
            q_ = V(PQ + (hh*4+i)*2, 2)
            e(f"v_mfma_f32_16x16x16_bf16 {V(192+(hh*4+i)*4,4)}, {V(42+4*hh,2)}, {q_}, 0")
    for hh in range(2):
        for i in range(4):
            q_ = V(PQ + (hh*4+i)*2, 2)
            e(f"v_mfma_f32_16x16x16_bf16 {V(160+(hh*4+i)*4,4)}, {V(40+4*hh,2)}, {q_}, 0")
    k.nop(1)
    for n_ in range(8):
        e(f"v_add_f32 v{192+4*n_}, s94, v{192+4*n_}")
    for n_ in range(8):
        e(f"v_rcp_f32 v{192+4*n_}, v{192+4*n_}")
    for n_ in range(8):
        e(f"v_pk_mul_f32 {V(160+4*n_,2)}, {V(160+4*n_,2)}, {V(192+4*n_,2)} op_sel_hi:[1,0]")
        e(f"v_pk_mul_f32 {V(162+4*n_,2)}, {V(162+4*n_,2)}, {V(192+4*n_,2)} op_sel_hi:[1,0]")
    for i in range(4):
        for hh in range(2):
            s_ = 160 + (hh*4+i)*4
            e(f"v_cvt_pk_bf16_f32 v{64+4*i+2*hh}, v{s_}, v{s_+1}")
            e(f"v_cvt_pk_bf16_f32 v{65+4*i+2*hh}, v{s_+2}, v{s_+3}")
        e(f"s_add_u32 s12, s15, {i*16384}")
        tos = k.vmem(f"buffer_store_dwordx4 {V(64+4*i,4)}, v4, {WS}, s12 offen sc1")
    k.stamp(3, 3)
    n2 = n1 + 6 * opt.get("q_n2", 0)
    run_all(k, qpre[n1:n2])
    k.wait_vm(tos)
    e("s_barrier")
    e("s_lshl_b32 s12, s8, 9")
    e(f"s_add_u32 s12, s12, {CNT + 32*256}")
    k.arrive(WS, "s12", 2)
    k.stamp(7)
    k.stamp(4, 3)
    run_all(k, sum(pfl[PFA+PFB_:], []))
    n3 = max(n2, 6 * opt.get("q_n3", 6))
    run_all(k, qpre[n2:n3])
    for t in range(4):
        k.wait_vm(wod[t])
        for j in range(4):
            e(f"ds_read_b64_tr_b16 {A(64+t*16+j*4,2)}, v{224+j} offset:{t*4096}")
            e(f"ds_read_b64_tr_b16 {A(66+t*16+j*4,2)}, v{224+j} offset:{t*4096+2048}")
    for j in range(4):
        e(f"v_mov_b32 v{6+j}, v{144+j}")
        e(f"v_xor_b32 v{224+j}, {32*j}, v26")
    e("s_lshl_b32 s88, s10, 16")
    e("s_xor_b32 s89, s88, 0x10000")
    k.poll("v240", WS, 8)
    k.lgkm0()
    k.stamp(8)
    k.stamp(5, 3)
    aft = {}
    seq8 = [(h_, t, b) for h_ in range(2) for t in range(4) for b in range(4)]

    def afl(h_, t, b):
        def f():
            aft[(h_, t, b)] = k.vmem(f"buffer_load_dwordx4 {A(128+h_*64+t*16+4*b,4)}, v{232+b}, {WS}, {'s89' if h_ == 0 else 's88'} offen offset:{t*1024} sc1")
        return f
    ALA = opt.get("a_la", 12)
    for i in range(ALA):
        afl(*seq8[i])()
    rest = [afl(*x) for x in seq8[ALA:]]
    rest += [lambda j=j: k.vmem(f"buffer_load_dword v{32+2*j}, v242, {WS}, 0 offen offset:{64*j} sc1") for j in range(4)]
    rest += qpre[n3:]
    for win in range(8):
        if win in (0, 1, 4):
            k.stamp({0: 6, 1: 7, 4: 8}[win], 3)
        mfmas = []
        for (h_, t, b) in seq8[4*win:4*win+4]:
            for j in range(4):
                d = V((AA if h_ == 0 else YA) + (j*4 + b)*4, 4)
                pre = (lambda x=(h_, t, b): k.wait_vm(aft[x])) if j == 0 else None
                mfmas.append((pre, mf(d, A(64+t*16+j*4, 4), A(128+h_*64+t*16+4*b, 4), "0" if t == 0 else d)))
        nf_ = 4 if win < 5 else -(-len(rest) // (8 - win))
        fl_ = rest[:nf_]
        rest = rest[nf_:]
        late = []
        wr_ = [f"ds_write_b128 v9, {V(AA+n_*4,4)} offset:{n_*1024}" for n_ in range(12)]
        if win == 4:
            late = wr_[:5]
        if win == 5:
            fl_ = mix(wr_[5:], fl_)
        if win == 6:
            fl_ = [k.lgkm0, "s_barrier"] + mix([f"ds_read_b128 {V(AA+16*o+4*j,4)}, v{6+o} offset:{j*1024}" for o in range(3) for j in range(4)], fl_)
        if win == 7:
            fl_ = fl_ + [k.lgkm0, "s_barrier"]
            fl_ += [f"v_pk_add_f32 {V(AA+48+2*r,2)}, {V(AA+48+2*r,2)}, {V(AA+16*o+2*r,2)}" for o in range(3) for r in range(8)]
        interleave(k, mfmas, fl_, tail=2, late=late)
    tlast = k.vm
    k.stamp(0, 3)
    for r in range(8):
        e(f"v_cvt_pk_bf16_f32 v{192+r}, v{AA+48+2*r}, v{AA+49+2*r}")
    for p in range(2):
        k.vmem(f"buffer_store_dwordx4 {V(192+4*p,4)}, v251, {WS}, 0 offen offset:{p*1024} sc1")
    k.stamp(9, 3)
    k.wait_vm(tlast)
    for j in range(4):
        e(f"v_sub_f32 v{48+2*j}, 1.0, v{32+2*j}")
    for j in range(4):
        e(f"v_max_f32 v{48+2*j}, {hex(f32bits(1e-30))}, v{48+2*j}")
    for j in range(4):
        e(f"v_rcp_f32 v{56+j}, v{48+2*j}")
    for j in range(4):
        e(f"v_lshlrev_b32 v{40+2*j}, 16, v{252+j}")
    for j in range(4):
        e(f"v_mul_f32 v{32+2*j}, v{32+2*j}, v{56+j}")
    for b in range(4):
        for j in range(4):
            for h_ in range(2):
                r = YA + (b*4 + j)*4 + 2*h_
                if b < 3:
                    e(f"v_pk_mul_f32 {V(r,2)}, {V(r,2)}, {V(32+2*j,2)} op_sel_hi:[1,0]")
                else:
                    e(f"v_pk_fma_f32 {V(r,2)}, {V(r,2)}, {V(32+2*j,2)}, {V(40+2*j,2)} op_sel_hi:[1,0,0]")
    e("s_branch L_p3")

    k.label("L_urole")
    k.c("================= U role =================")
    k.vm = 0
    if UPART == 8:
        e("s_and_b32 s9, s6, 7")
        e("s_bfe_u32 s8, s6, 0x10003")
        e("s_and_b32 s12, s2, 7")
        e("s_lshl_b32 s12, s12, 1")
        e("s_add_u32 s8, s8, s12")
    e("v_lshrrev_b32 v12, 2, v1")
    e("v_and_b32 v13, 3, v1")
    e(f"s_mul_i32 s13, s3, {512*2752}")
    e("s_mul_i32 s12, s8, 192")
    e("s_add_u32 s13, s13, s12")
    for j in range(3):
        e(f"v_add_u32 v14, {16*j}, v12")
        e("v_mul_u32_u24 v15, 43, v14")
        e("v_lshrrev_b32 v15, 7, v15")
        e("v_mul_u32_u24 v16, 3, v15")
        e("v_sub_u32 v14, v14, v16")
        e("v_lshrrev_b32 v16, 2, v15")
        e("v_and_b32 v16, 2, v16")
        e("v_xor_b32 v16, v16, v13")
        e("v_lshlrev_b32 v16, 4, v16")
        e("v_lshl_add_u32 v16, v14, 6, v16")
        e("v_mul_u32_u24 v15, 2752, v15")
        e(f"v_add3_u32 v{6+j}, v15, v16, s13")
        if j:
            e(f"v_subrev_u32 v{6+j}, {j*1024}, v{6+j}")
        e(f"v_add_u32 v{9+j}, {16*2752}, v{6+j}")
    if ROTU:
        e("s_add_u32 s91, s9, s8" if ROTU == 1 else "s_mov_b32 s91, s9")
        e("s_and_b32 s91, s91, 3")
        e("s_lshl_b32 s91, s91, 2")
    else:
        e("s_mov_b32 s91, 0")
    X2 = opt.get("x2", 1)
    e("s_mov_b32 s89, s91")
    e("s_lshl_b32 s90, s5, 1" if X2 else "s_mov_b32 s90, 0")
    e("s_xor_b32 s91, s91, s90")
    e(f"s_mul_i32 s88, s91, {32*2752}")
    e("s_lshl_b32 s91, s91, 10")
    e("s_xor_b32 s96, s91, 2048")
    e("s_waitcnt lgkmcnt(0)")
    srd(W1)
    e("s_cmp_eq_u32 s8, 15")
    e("s_cbranch_scc1 L_spare")
    if opt.get("cpf", 1):
        e("s_getpc_b64 s[92:93]")
        k.label("L_pc")
        e("s_sub_u32 s92, s92, L_pc-L_code0")
        e("s_subb_u32 s93, s93, 0")
        e("s_and_b32 s12, s6, 15")
        e("s_lshl_b32 s12, s12, 2")
        e("s_add_u32 s12, s12, s3")
        e("s_lshl_b32 s12, s12, 13")
        e("v_lshl_add_u32 v30, v1, 7, s12")
        e("v_cmp_gt_u32 vcc, L_end-L_code0, v30")
        e("s_and_saveexec_b64 s[94:95], vcc")
        cs = k.newlab("L_cs")
        e(f"s_cbranch_execz {cs}")
        e("global_load_dword v157, v30, s[92:93]")
        k.label(cs)
        e("s_mov_b64 exec, -1")
    srd(B1)
    e("s_mul_i32 s12, s8, 192")
    e("v_lshlrev_b32 v30, 3, v3")
    for j in range(6):
        k.vmem(f"buffer_load_dwordx2 {V(184+2*j,2)}, v30, {B1}, s12 offen offset:{32*j}")
    TWA = opt.get("tw_after", 1)
    if TWA == 0:
        touch_w1()
    UL, UNWB, UFB = 6, 7, 8
    UR = opt.get("u_r", 1)
    RB = 22528

    def u_wdma(t, toks):
        out = []
        for j in range(6):
            if j % 3 == 0:
                out.append(f"s_add_u32 m0, s7, {(t % UL)*6144 + j*1024}")
            out.append(dmai(f"v{6+j}", W1, "s88", (j % 3)*1024, toks, t, UFL if t < opt.get("u_nt_steps", 0) else ""))
        if t % 2 == 0:
            out.append(f"s_add_u32 s88, s88, {32*2752}")
        else:
            out += ["s_add_u32 s89, s89, 2", "s_and_b32 s89, s89, 15", "s_xor_b32 s88, s89, s90", f"s_mul_i32 s88, s88, {32*2752}"]
        return out

    def u_wread(t):
        out = []
        for fb in range(6):
            r = 72 + (t % UNWB)*24 + fb*4
            o = (t % UL)*6144 + (fb >> 1)*64
            out.append(f"ds_read_b64_tr_b16 {A(r,2)}, v{16+(fb&1)} offset:{o}")
            out.append(f"ds_read_b64_tr_b16 {A(r+2,2)}, v{16+(fb&1)} offset:{o+768}")
        return out

    def u_fload(t, b, toks):
        def f():
            toks[(t, b)] = k.vmem(f"buffer_load_dwordx4 {V(32+(t%UFB)*16+4*b,4)}, v{12+b}, {WS}, {'s91' if t % 4 < 2 else 's96'} offen offset:{(t%2)*1024} sc1")
        out = [f]
        if t % 4 == 3 and b == 3:
            out.append("s_add_u32 s91, s91, 4096")
            out.append("s_and_b32 s91, s91, 0x3fff")
            out.append("s_xor_b32 s96, s91, 2048")
        return out

    def uacc(b, j):
        return A((b*6 + j)*4, 4) if b < 3 else V(160 + j*4, 4)

    def u_mm(t, b, j):
        d = uacc(b, j)
        return mf(d, A(72 + (t % UNWB)*24 + j*4, 4), V(32+(t % UFB)*16+4*b, 4), "0" if t == 0 else d)

    su = SK(k, 16, UL, UNWB, UFB, 6, u_wdma, u_wread, u_fload, u_mm)
    if not opt.get("pfw", 0):
        su.issue_w(max(2, TWA) if TWA != 1 else 1)
    if TWA:
        touch_w1()
        su.issue_w(2)
    for n_ in (WS, DBG, WO, W2, B2, OUT):
        srd(n_)
    diag_clear()
    e("v_lshrrev_b32 v16, 2, v2")
    e("v_lshl_add_u32 v16, v3, 3, v16")
    e("v_mul_u32_u24 v16, 192, v16")
    e("v_and_b32 v12, 3, v2")
    e("v_lshl_add_u32 v16, v12, 3, v16")
    e("v_add_u32 v16, s7, v16")
    e("v_and_b32 v12, 1, v3")
    e("v_lshlrev_b32 v12, 5, v12")
    e("v_xor_b32 v13, 32, v12")
    e("v_add_u32 v17, v16, v13")
    e("v_add_u32 v16, v16, v12")
    e(f"s_mul_i32 s13, s9, {4*HS}")
    e("s_lshl_b32 s12, s3, 14")
    e("s_add_u32 s13, s13, s12")
    if HF:
        e(f"s_add_u32 s13, s13, {HF}")
    for b in range(4):
        e(f"s_add_u32 s12, s3, {1+b}")
        e("s_and_b32 s12, s12, 3")
        e(f"s_mul_i32 s12, s12, {HS}")
        e("s_add_u32 s12, s12, s13")
        e(f"v_add_u32 v{12+b}, s12, v4")
    run_all(k, p3_setup(False))
    e(f"s_add_u32 s12, s7, {RB}")
    e("v_add_u32 v26, s12, v4")
    for o in range(1, 4):
        e(f"s_add_u32 s12, s3, {o}")
        e("s_and_b32 s12, s12, 3")
        e("s_mul_i32 s12, s12, 40960")
        e(f"s_add_u32 s12, s12, {RB + (3-o)*6144}")
        e(f"v_add_u32 v{26+o}, s12, v4")
    e("s_and_b32 s12, s2, 7")
    e("s_lshl_b32 s13, s3, 3")
    e("s_add_u32 s12, s12, s13")
    e("s_lshl_b32 s12, s12, 8")
    e(f"s_add_u32 s12, s12, {CNT + 96*256}")
    e("v_mov_b32 v196, s12")
    su.issue_w(4)
    tz_ = zload()
    su.issue_w(UL)
    hold = opt.get("u_hold", 1)
    k.stamp(5)
    su.to_regs(UR, hold)
    k.wait_vm(tz_)
    zcheck()
    k.stamp(1)
    drained = k.poll2("v196", WS, 32, lambda: su.issue_w(UR + UL))
    k.stamp(2)
    k.stamp(1, True)
    seq = [(t, b) for t in range(12) for b in range(4)] + [(t, b) for b in range(4) for t in range(12, 16)]

    def u_post(win):
        if win < 13:
            return []
        b = win - 13
        return [f"ds_write_b128 v26, {uacc(b, j)} offset:{(b*6+j)*1024}" for j in range(6)]
    pe_all = p3_e1()
    pe = pe_all[:6*opt.get("u_e1", 3)]
    bias = []
    for j in range(6):
        bias += [f"v_lshlrev_b32 v{200+4*j}, 16, v{184+2*j}", f"v_and_b32 v{201+4*j}, 0xffff0000, v{184+2*j}",
                 f"v_lshlrev_b32 v{202+4*j}, 16, v{185+2*j}", f"v_and_b32 v{203+4*j}, 0xffff0000, v{185+2*j}"]
    c0 = -2.0 * 0.7978845608028654 * 1.4426950408889634
    c1 = c0 * 0.044715
    misc = [f"s_mov_b32 s92, {hex(f32bits(c1))}", f"s_mov_b32 s93, {hex(f32bits(c1))}",
            f"v_mov_b32 v198, {hex(f32bits(c0))}", f"v_mov_b32 v199, {hex(f32bits(c0))}",
            "s_lshl_b32 s15, s9, 2", "s_add_u32 s15, s15, s3", "s_mul_i32 s15, s15, 43", "s_mul_i32 s13, s8, 3",
            "s_add_u32 s15, s15, s13", "s_lshl_b32 s15, s15, 10", f"s_add_u32 s15, s15, {GUF}",
            lambda: (e("s_cmp_eq_u32 s8, 14"), e("s_cselect_b32 s13, 0x7ff00000, 0")), "v_or_b32 v197, s13, v4"]

    def u_extra(win):
        if win == 12:
            return bias[:12] + misc
        if win == 13:
            return bias[12:]
        return []

    UPW = opt.get("u_pw", 13)

    def u_extra2(win):
        out = u_extra(win)
        if win >= UPW:
            assert su.nread == 16 and su_rd_done[0] < win
            n3 = -(-len(pe) // (16 - UPW))
            out = out + pe[(win-UPW)*n3:(win-UPW+1)*n3]
        if su.nread == 16 and su_rd_done[0] == 99:
            su_rd_done[0] = win
        return out
    su_rd_done = [99]
    su.run(seq, opt.get("u_la", 12), drained, u_post, opt.get("u_wdelay", 0), u_extra2,
           wsplit=opt.get("u_wsplit", 1),
           prof=dict(zip((0, 1, 2, 3, 4, 6, 8, 10, 12, 14), (2, 3, 4, 5, 6, 7, 8, 0, 9, 10))))
    k.stamp(11, True)
    k.stamp(3)
    k.lgkm0()
    e("s_barrier")
    for p in range(3):
        for o in range(1, 4):
            for j in (2*p, 2*p+1):
                e(f"ds_read_b128 {V(8+24*o+4*j,4)}, v{26+o} offset:{j*1024}")
        if p == 1:
            for r in range(12):
                e(f"v_pk_add_f32 {V(160+2*r,2)}, {V(160+2*r,2)}, {V(200+2*r,2)}")
            e("s_waitcnt lgkmcnt(6)") if not opt.get("diag") else k.lgkm0()
    tst = {}
    for p in range(3):
        R_ = range(4*p, 4*p+4)
        va = []
        va += [f"v_pk_add_f32 {V(32+2*r,2)}, {V(32+2*r,2)}, {V(56+2*r,2)}" for r in R_]
        va += [f"v_pk_add_f32 {V(160+2*r,2)}, {V(160+2*r,2)}, {V(80+2*r,2)}" for r in R_]
        va += [f"v_pk_add_f32 {V(32+2*r,2)}, {V(32+2*r,2)}, {V(160+2*r,2)}" for r in R_]
        va += [f"v_pk_mul_f32 {V(56+2*r,2)}, {V(32+2*r,2)}, {V(32+2*r,2)}" for r in R_]
        va += [f"v_pk_fma_f32 {V(56+2*r,2)}, {V(56+2*r,2)}, s[92:93], v[198:199]" for r in R_]
        va += [f"v_pk_mul_f32 {V(56+2*r,2)}, {V(56+2*r,2)}, {V(32+2*r,2)}" for r in R_]
        va += [f"v_exp_f32 v{56+r}, v{56+r}" for r in range(8*p, 8*p+8)]
        va += [f"v_add_f32 v{56+r}, 1.0, v{56+r}" for r in range(8*p, 8*p+8)]
        va += [f"v_rcp_f32 v{56+r}, v{56+r}" for r in range(8*p, 8*p+8)]
        va += [f"v_pk_mul_f32 {V(32+2*r,2)}, {V(32+2*r,2)}, {V(56+2*r,2)}" for r in R_]
        va += [f"v_cvt_pk_bf16_f32 v{136+4*p+q}, v{32+8*p+2*q}, v{33+8*p+2*q}" for q in range(4)]
        if p == 1:
            e("s_waitcnt lgkmcnt(6)") if not opt.get("diag") else k.lgkm0()
        if p == 2:
            k.lgkm0()
        run_all(k, va)
        tst[p] = k.vmem(f"buffer_store_dwordx4 {V(136+4*p,4)}, {'v4' if p == 0 else 'v197'}, {WS}, s15 offen offset:{p*1024} sc1")
    k.stamp(4)
    ncut = min(30, len(pe) + 6*opt.get("u_e2", 2))
    run_all(k, mix(acc_init(), pe_all[len(pe):ncut]))
    e("s_lshl_b32 s12, s9, 10")
    e(f"s_add_u32 s12, s12, {CNT + 64*256}")
    k.wait_vm(tst[2])
    e("s_barrier")
    k.arrive(WS, "s12", 4)
    k.stamp(7)
    run_all(k, pe_all[ncut:])
    e("s_branch L_p3")

    k.label("L_spare")
    for n_ in (WS, DBG):
        srd(n_)
    nz = k.newlab("L_nz")
    e("s_cmp_lg_u32 s9, 0")
    e(f"s_cbranch_scc1 {nz}")
    e("v_lshlrev_b32 v30, 8, v0")
    e(f"s_mov_b32 s12, {CNT}")
    e(f"buffer_store_dword v5, v30, {WS}, s12 offen sc1")
    for r in range(4):
        e(f"v_mov_b32 v{32+r}, 0")
    e("v_lshlrev_b32 v30, 4, v0")
    for z_ in range(9):
        e(f"s_mov_b32 s12, {KVP + z_*4096}")
        e(f"buffer_store_dwordx4 v[32:35], v30, {WS}, s12 offen sc1")
    e("v_mov_b32 v31, 1")
    k.wait_vm0()
    e("s_barrier")
    e("s_cmp_lg_u32 s3, 0")
    e(f"s_cbranch_scc1 {nz}")
    e(f"buffer_store_dword v31, v5, {DBG}, 0 offen sc1")
    k.label(nz)
    touch_w1()
    for n_ in (WO, W2, B2, OUT):
        srd(n_)
    diag_clear()
    run_all(k, p3_setup(False))
    if opt.get("spf", 1):
        e("v_lshlrev_b32 v30, 7, v1")
        e("s_lshl_b32 s12, s9, 2")
        e("s_add_u32 s12, s12, s3")
        e("s_lshl_b32 s12, s12, 14")
        e(f"buffer_load_dword v31, v30, {WO}, s12 offen")
        e("s_add_u32 s12, s12, 8192")
        e(f"buffer_load_dword v31, v30, {WO}, s12 offen")
        e(f"s_mul_i32 s12, s3, {352*4096}")
        e("s_lshl_b32 s13, s9, 13")
        e("s_add_u32 s12, s12, s13")
        e(f"s_add_u32 s13, s12, {320*4096}")
        for z_ in range(2):
            e(f"buffer_load_dword v31, v30, {W2}, s13 offen")
            e("s_add_u32 s13, s13, 65536")
        e("s_mov_b32 s14, 0")
        lp = k.newlab("L_spf")
        k.label(lp)
        e(f"buffer_load_dword v31, v30, {W2}, s12 offen")
        e("s_add_u32 s12, s12, 65536")
        e("s_add_u32 s14, s14, 1")
        e("s_waitcnt vmcnt(2)")
        e(f"s_cmp_lt_u32 s14, {opt.get('spf_n', 11)}")
        e(f"s_cbranch_scc1 {lp}")
        k.wait_vm0()
        k.stamp(6)
    k.poll("v5", DBG, 1)
    run_all(k, acc_init())
    e(f"v_mov_b32 v30, {CNT + 32*256}")
    k.poll("v30", WS, 8, sleep=32)
    run_all(k, p3_e1())

    k.label("L_p3")
    k.c("================= P3 =================")

    def freg(t, b):
        return A(128 + (t % PFB)*16 + 4*b, 4)

    def p_fload(t, b, toks):
        y = yblk(t)
        so, off = ("s86" if y == 10 else ["0", "s84", "s85"][y // 4]), (0 if y == 10 else (y % 4)*1024)

        def f():
            toks[(t, b)] = k.vmem(f"buffer_load_dwordx4 {freg(t,b)}, v{236+b}, {WS}, {so} offen offset:{off} sc1")
        return [f]

    def p_mm(t, b, j):
        d = V(YA + (b*4 + j)*4, 4)
        return mf(d, freg(t, b), A((t % PNWB)*16 + j*4, 4), d)

    k.vm = 0
    sp = SK(k, 11, PL, PNWB, PFB, 4, p_wdma, p_wread, p_fload, p_mm)
    sp.assume_issued(PE, 4)
    k.stamp(10, 3)
    tj = k.vm
    sp.issue_w(opt.get("p_w1", 8))
    sk = k.newlab("L_na")
    e("s_cmp_eq_u32 s100, 0")
    e(f"s_cbranch_scc1 {sk}")
    e("v_mov_b32 v30, 1")
    k.wait_vm(tj)
    e("s_mov_b64 exec, 1")
    e(f"buffer_atomic_add v30, v250, {WS}, 0 offen sc1")
    e("s_mov_b64 exec, -1")
    k.label(sk)
    k.stamp(11, 3)
    k.stamp(0)
    drained = k.poll2("v241", WS, 15, lambda: (sp.issue_w(10), sp.to_regs(opt.get("p_r0", 4))))
    k.stamp(9)
    seq_y = [(t, b) for t in range(7) for b in range(4)] + [(t, b) for b in range(4) for t in range(7, 11)]
    PLA = opt.get("p_la", 12)
    at = {}

    def comb(b):
        return [f"ds_write_b128 v244, {V(YA+(b*4+j)*4,4)} offset:{(b*4+j)*1024}" for j in range(4)]

    def acheck():
        k.wait_vm(at[0])
        if not opt.get("nowait"):
            dn = k.newlab("L_af")
            e("v_cmp_gt_u32 vcc, 4, v31")
            e(f"s_cbranch_vccz {dn}")
            k.poll("v250", WS, 4)
            k.label(dn)
    AW = opt.get("p_aw", 6)

    def y_extra(win):
        if win == AW:
            return [lambda: at.__setitem__(0, k.vmem(f"buffer_load_dword v31, v250, {WS}, 0 offen sc1"))]
        if win == opt.get("p_aw2", 9):
            out = [acheck]
            out += [lambda p=p: k.vmem(f"buffer_load_dwordx4 {V(192+4*p,4)}, v251, {WS}, s100 offen offset:{p*1024} sc1") for p in range(2)]
            out += [lambda j=j: at.__setitem__(1, k.vmem(f"buffer_load_dword v{32+2*j}, v242, {WS}, 0 offen offset:{64*j} sc1")) for j in range(4)]
            return out
        return []
    sp.run(seq_y, PLA, drained, lambda win: comb(win - 8) if win >= 8 else [], rmax=1, extra=y_extra,
           prof=(dict(zip(range(11), (1, 2, 3, 4, 5, 6, 7, 8, 0, 9, 10))) if opt.get("prof") == 2 else None))
    if opt.get("prof") == 2:
        k.stamp(11, True)
    k.stamp(10)
    k.lgkm0()
    e("s_barrier")
    for o in range(3):
        for j in range(4):
            e(f"ds_read_b128 {V(AA+16*o+4*j,4)}, v{245+o} offset:{j*1024}")
    k.wait_vm(at[1])
    for j in range(4):
        e(f"v_sub_f32 v{48+2*j}, 1.0, v{32+2*j}")
    for j in range(4):
        e(f"v_max_f32 v{48+2*j}, {hex(f32bits(1e-30))}, v{48+2*j}")
    for r in range(8):
        e(f"v_lshlrev_b32 v{200+2*r}, 16, v{192+r}")
        e(f"v_and_b32 v{201+2*r}, 0xffff0000, v{192+r}")
    for r in range(8):
        e(f"v_pk_mul_f32 {V(200+2*r,2)}, {V(200+2*r,2)}, {V(32+2*(r//2),2)} op_sel_hi:[1,0]")
    for o in range(3):
        e(f"s_waitcnt lgkmcnt({8-4*o})") if not opt.get("diag") else k.lgkm0()
        for r in range(8):
            e(f"v_pk_add_f32 {V(YA+48+2*r,2)}, {V(YA+48+2*r,2)}, {V(AA+16*o+2*r,2)}")
    for r in range(8):
        e(f"v_pk_fma_f32 {V(YA+48+2*r,2)}, {V(YA+48+2*r,2)}, {V(48+2*(r//2),2)}, {V(200+2*r,2)} op_sel_hi:[1,0,1]")
    for t in range(4):
        e(f"v_cvt_pk_bf16_f32 v{32+2*t}, v{YA+48+4*t}, v{YA+49+4*t}")
        e(f"v_cvt_pk_bf16_f32 v{33+2*t}, v{YA+50+4*t}, v{YA+51+4*t}")
    k.nop(2)
    for p in range(2):
        e(f"v_permlane16_swap_b32 v{32+4*p}, v{34+4*p}")
        e(f"v_permlane16_swap_b32 v{33+4*p}, v{35+4*p}")
    k.nop(1)
    for p in range(2):
        e(f"buffer_store_dwordx4 {V(32+4*p,4)}, v{248+p}, {OUT}, s87 offen {opt.get('oflags', '')}")
    if opt.get("diag"):
        e("s_waitcnt vmcnt(0)")
        k.stamp(11)
        k.lgkm0()
        for i in range(12):
            e(f"v_mov_b32 v{32+i}, s{16+2*i}")
        e("v_mov_b32 v44, s98")
        e("s_getreg_b32 s12, hwreg(HW_REG_XCC_ID)")
        e("v_mov_b32 v45, s12")
        e("s_lshl_b32 s12, s2, 2")
        e("s_add_u32 s12, s12, s3")
        e("s_lshl_b32 s12, s12, 6")
        e(f"s_add_u32 s12, s12, {DIAG}")
        e("v_mov_b32 v30, 0")
        e("s_mov_b64 exec, 1")
        for i in range(4):
            e(f"buffer_store_dwordx4 {V(32+4*i,4)}, v30, {WS}, s12 offen offset:{16*i}")
    k.label("L_end")
    e("s_endpgm")
    return "\n".join(k.l)


HEADER = open("cdna_kernels/" + NAME + ".s.ref").read().split("; Override launch geometry")[0]


def gen_meas(opt):
    mj, mk = opt["meas"], opt.get("mk", 1)
    l = []
    a = l.append
    a("s_cmp_ge_u32 s2, 1")
    a("s_cbranch_scc1 M_end")
    a("s_memrealtime s[30:31]")
    a("s_load_dwordx2 s[4:5], s[0:1], 88")
    a("v_lshlrev_b32 v1, 6, v0")
    a("v_mov_b32 v2, -1")
    a("v_mov_b32 v3, 0")
    a("s_waitcnt lgkmcnt(0)")
    a("s_mov_b32 s8, s4")
    a("s_mov_b32 s9, s5")
    a(f"s_mov_b32 s10, {WS_BYTES}")
    a("s_mov_b32 s11, 0x20000")
    lo, hi = {"Q": (0, 8), "U": (8, 16), "A": (0, 16)}[opt.get("mrole", "A")]
    for it in range(16):
        a(f"s_mov_b32 s12, {DIAG + it*4096}")
        a(f"buffer_load_dword v4, v1, s[8:11], s12 offen offset:48")
        a(f"buffer_load_dword v5, v1, s[8:11], s12 offen offset:{4*mj}")
        a("s_waitcnt vmcnt(0)")
        a("v_min_u32 v2, v2, v4")
        if lo <= it < hi:
            a("v_max_u32 v3, v3, v5")
    a("s_mov_b32 s14, -1")
    a("s_mov_b32 s15, 0")
    a("s_nop 4")
    for i in range(64):
        a(f"v_readlane_b32 s16, v2, {i}")
        a(f"v_readlane_b32 s17, v3, {i}")
        a("s_nop 3")
        a("s_min_u32 s14, s14, s16")
        a("s_max_u32 s15, s15, s17")
    if opt.get("mpost"):
        a("s_sub_u32 s15, s30, s15")
    else:
        a("s_sub_u32 s15, s15, s14")
    a("s_min_u32 s15, s15, 20000")
    a(f"s_mul_i32 s15, s15, {mk}")
    a("s_memrealtime s[20:21]")
    a("s_waitcnt lgkmcnt(0)")
    a("M_spin:")
    a("s_memrealtime s[22:23]")
    a("s_waitcnt lgkmcnt(0)")
    a("s_sub_u32 s24, s22, s20")
    a("s_cmp_lt_u32 s24, s15")
    a("s_cbranch_scc1 M_spin")
    a("M_end:")
    a("s_endpgm")
    return "\n".join(l)


def gen_file(opt):
    kn = NAME + "_kernel"
    nl = opt.get("launches", 1)
    s = HEADER
    for _ in range(opt.get("pre_empty", 0)):
        s += "; @launch kernel=empty_kernel grid=(1,1,1) block=(64,1,1) lds=0\n"
    if opt.get("pre_empty") and "meas" not in opt:
        s += f"; @launch kernel={kn} grid=(256,1,1) block=(256,1,1) lds=163840\n"
    elif "meas" in opt:
        s += f"; @launch kernel={kn} grid=(256,1,1) block=(256,1,1) lds=163840\n"
        s += f"; @launch kernel=meas_kernel grid=(1,1,1) block=(64,1,1) lds=0\n"
    elif nl == 1:
        s += "; @launch grid=(256,1,1) block=(256,1,1) lds=163840\n"
    else:
        for _ in range(nl):
            s += f"; @launch kernel={kn} grid=(256,1,1) block=(256,1,1) lds=163840\n"
    extra_code = ""
    if "meas" in opt:
        extra_code = ".globl meas_kernel\n.p2align 8\n.type meas_kernel,@function\nmeas_kernel:\n" + gen_meas(opt) + "\n"
    if opt.get("pre_empty"):
        extra_code += ".globl empty_kernel\n.p2align 8\n.type empty_kernel,@function\nempty_kernel:\n s_endpgm\n"
    s += f""".amdgcn_target "amdgcn-amd-amdhsa--gfx950"
.text
.globl {kn}
.p2align 8
.type {kn},@function
{kn}:
{gen_body(opt)}
{extra_code}.section .rodata,"a"
.p2align 6
.amdhsa_kernel {kn}
  .amdhsa_next_free_vgpr 512
  .amdhsa_next_free_sgpr 102
  .amdhsa_accum_offset 256
  .amdhsa_group_segment_fixed_size 0
  .amdhsa_kernarg_size 96
  .amdhsa_user_sgpr_count 2
  .amdhsa_user_sgpr_kernarg_segment_ptr 1
  .amdhsa_system_sgpr_workgroup_id_x 1
.end_amdhsa_kernel
"""
    if "meas" in opt:
        s += """.p2align 6
.amdhsa_kernel meas_kernel
  .amdhsa_next_free_vgpr 32
  .amdhsa_next_free_sgpr 102
  .amdhsa_accum_offset 32
  .amdhsa_group_segment_fixed_size 0
  .amdhsa_kernarg_size 96
  .amdhsa_user_sgpr_count 2
  .amdhsa_user_sgpr_kernarg_segment_ptr 1
  .amdhsa_system_sgpr_workgroup_id_x 1
.end_amdhsa_kernel
"""
    if opt.get("pre_empty"):
        s += """.p2align 6
.amdhsa_kernel empty_kernel
  .amdhsa_next_free_vgpr 32
  .amdhsa_next_free_sgpr 102
  .amdhsa_accum_offset 32
  .amdhsa_group_segment_fixed_size 0
  .amdhsa_kernarg_size 96
  .amdhsa_user_sgpr_count 2
  .amdhsa_user_sgpr_kernarg_segment_ptr 1
  .amdhsa_system_sgpr_workgroup_id_x 1
.end_amdhsa_kernel
"""
    return s


if __name__ == "__main__":
    opt = {}
    out = None
    for a in sys.argv[1:]:
        if "=" in a:
            kk, vv = a.split("=", 1)
            try:
                vv = int(vv)
            except ValueError:
                pass
            opt[kk] = vv
        else:
            out = a
    txt = gen_file(opt)
    open(out or ("cdna_kernels/" + NAME + ".s"), "w").write(txt)
```

```python
import sys

NAME = "gated_mix__linear_attn_block__mixer_token_mlp__prompt"

HF = 0x000000
GUF = 0x240000
OF = 0x400000
KVP = 0x600000
ZP = 0x608000
GG = 0x690000
CNT = 0x6A0000
AF = 0x6C0000
DIAG = 0x7E0000
UX = 0x800000
WS_BYTES = 0xC00000

X, WQKV, WO, W1, B1, W2, B2, GW, OUT, DBG, WS = [f"s[{40+4*i}:{43+4*i}]" for i in range(11)]
SRD_INFO = [(40, 16, 2048*512*2), (44, 18, 512*1536*2), (48, 20, 512*512*2), (52, 24, 2048*1376*2),
            (56, 26, 1376*2), (60, 28, 1376*2048*2), (64, 30, 2048*2), (68, 32, 512*2),
            (72, 34, 2048*512*2), (76, 36, 256), (80, 38, WS_BYTES)]

LOG2E = 0x3fb8aa3b
HS = 65536
HQ = 0


def f32bits(x):
    import struct
    return struct.unpack("<I", struct.pack("<f", x))[0]


def rr(kind, base, n):
    return f"{kind}{base}" if n == 1 else f"{kind}[{base}:{base+n-1}]"


def V(b, n=1):
    return rr("v", b, n)


def A(b, n=1):
    return rr("a", b, n)


class Em:
    def __init__(self, opt):
        self.l = []
        self.vm = 0
        self.lab = 0
        self.opt = opt
        self.nstamp = 0

    def e(self, s):
        self.l.append("    " + s)

    def c(self, s):
        self.l.append("    ; " + s)

    def label(self, s):
        self.l.append(s + ":")

    def newlab(self, p="L"):
        self.lab += 1
        return f"{p}_{self.lab}"

    def vmem(self, s):
        self.e(s)
        self.vm += 1
        return self.vm

    def wait_vm(self, tok):
        n = self.vm - tok
        assert n >= 0
        self.e(f"s_waitcnt vmcnt({min(n, 63)})")

    def wait_vm0(self):
        self.e("s_waitcnt vmcnt(0)")

    def lgkm0(self):
        self.e("s_waitcnt lgkmcnt(0)")

    def nop(self, n):
        while n > 0:
            k = min(n, 16)
            self.e(f"s_nop {k-1}")
            n -= k

    def stamp(self, i, prof=False):
        if prof is True:
            prof = self.opt.get("prof") if self.opt.get("prof") in (1, 2) else -1
        if (self.opt.get("prof") or False) != prof:
            return
        if self.opt.get("diag"):
            assert i < 12
            self.e(f"{'s_memtime' if self.opt.get('clk') else 's_memrealtime'} s[{16+2*i}:{17+2*i}]")

    def dma(self, voff, srd, soff, m0expr, flags=""):
        sreg, imm = m0expr
        if sreg is None:
            self.e(f"s_mov_b32 m0, {imm}")
        else:
            self.e(f"s_add_u32 m0, {sreg}, {imm}")
        sr, si = soff
        self.e(f"s_add_u32 s13, {sr}, {si}")
        return self.vmem(f"buffer_load_dwordx4 {voff}, {srd}, s13 offen {flags} lds".replace("  ", " "))

    def poll(self, voff, srd, expect, tmp="v31", sleep=None):
        if self.opt.get("nowait"):
            self.wait_vm0()
            return
        lp = self.newlab("L_poll")
        dn = self.newlab("L_polled")
        self.e("s_mov_b32 s14, 0")
        self.label(lp)
        self.e(f"buffer_load_dword {tmp}, {voff}, {srd}, 0 offen sc1")
        self.e("s_add_u32 s14, s14, 1")
        self.e("s_waitcnt vmcnt(0)")
        self.e(f"v_cmp_gt_u32 vcc, {expect}, {tmp}")
        self.e(f"s_cbranch_vccz {dn}")
        self.e(f"s_sleep {sleep or self.opt.get('sleep', 1)}")
        self.e("s_cmp_lt_u32 s14, 0x40000")
        self.e(f"s_cbranch_scc1 {lp}")
        self.label(dn)

    def poll2(self, voff, srd, expect, more, tmp="v31"):
        if self.opt.get("nowait"):
            more()
            return 0
        t = self.vmem(f"buffer_load_dword {tmp}, {voff}, {srd}, 0 offen sc1")
        more()
        self.wait_vm(t)
        dn = self.newlab("L_fast")
        self.e(f"v_cmp_gt_u32 vcc, {expect}, {tmp}")
        self.e(f"s_cbranch_vccz {dn}")
        self.poll(voff, srd, expect, tmp)
        self.label(dn)
        return t

    def arrive(self, srd, off_sreg, nrep):
        sk = self.newlab("L_arr")
        self.e("s_cmp_lg_u32 s3, 0")
        self.e(f"s_cbranch_scc1 {sk}")
        self.e("v_lshlrev_b32 v30, 8, v1")
        self.e("v_mov_b32 v31, 1")
        self.e(f"s_mov_b64 exec, {(1 << nrep) - 1}")
        self.e(f"buffer_atomic_add v31, v30, {srd}, {off_sreg} offen sc1")
        self.e("s_mov_b64 exec, -1")
        self.label(sk)


def mf(d, a, b, c):
    return f"v_mfma_f32_16x16x32_bf16 {d}, {a}, {b}, {c}"


def interleave(k, mfmas, fillers, tail=2, cap=2, late=()):
    nm = len(mfmas)
    if late:
        interleave(k, mfmas[:8], fillers[:len(fillers) * 8 // nm + 1], tail=0, cap=cap)
        interleave(k, mfmas[8:], mix(list(late), fillers[len(fillers) * 8 // nm + 1:]), tail=min(tail, 1), cap=cap)
        return
    nf = len(fillers)
    span = max(1, nm - tail)
    fi = 0
    for i, (pre, txt) in enumerate(mfmas):
        if pre:
            pre()
        k.e(txt)
        want = min(nf, -(-(i + 1) * nf // span))
        budget = cap - (1 if (i + 1 < nm and mfmas[i + 1][0]) else 0)
        while fi < want and budget > 0:
            f = fillers[fi]
            fi += 1
            budget -= 1
            if callable(f):
                f()
            else:
                k.e(f)
    while fi < nf:
        f = fillers[fi]
        fi += 1
        if callable(f):
            f()
        else:
            k.e(f)


def run_all(k, items):
    for f in items:
        if callable(f):
            f()
        else:
            k.e(f)


def mix(a, b):
    out = []
    ia = ib = 0
    while ia < len(a) or ib < len(b):
        if ib >= len(b) or (ia < len(a) and ia * len(b) <= ib * len(a)):
            out.append(a[ia])
            ia += 1
        else:
            out.append(b[ib])
            ib += 1
    return out


class SK:
    def __init__(self, k, n, L, NWB, FB, NF, wdma, wread, fload, mm):
        self.__dict__.update(locals())
        self.wt = {}
        self.ft = {}
        self.issued = 0
        self.nread = 0
        self.done = set()
        self.wdone = 0
        self.wq = []
        self.wtmp = {}
        self.wage = {}

    def issue_w(self, upto):
        while self.issued < min(upto, self.n):
            assert self.issued < self.nread + self.L
            run_all(self.k, self.wdma(self.issued, self.wt))
            self.issued += 1

    def assume_issued(self, e, per):
        for t in range(e):
            self.k.vm += per
            self.wt[t] = self.k.vm
        self.issued = e

    def to_regs(self, R, hold=0):
        k = self.k
        while self.nread < R:
            t = self.nread
            assert t < self.wdone + self.NWB
            k.wait_vm(self.wt[t])
            run_all(k, self.wread(t))
            k.lgkm0()
            self.nread += 1
            if self.nread <= R - hold:
                self.issue_w(t + self.L + 1)

    def run(self, seq, LA, drained=0, post=None, wdelay=0, extra=None, pre_issued=0, prof=None,
            wsplit=1, rmax=2, age=2, burst=0, prewin=None):
        k, n, L = self.k, self.n, self.L
        fi = pre_issued

        def fl(i):
            t, b = seq[i]
            if t - self.FB >= 0:
                assert (t - self.FB, b) in self.done, (t, b)
            return self.fload(t, b, self.ft)
        while fi < min(LA, len(seq)):
            run_all(k, fl(fi))
            fi += 1
        for win in range(len(seq) // 4):
            if prof and win in prof:
                k.stamp(prof[win], True)
            if prewin:
                prewin(win)
            grp = seq[4*win:4*win+4]
            assert max(t % n for t, b in grp) < self.nread, (grp, self.nread)
            vm = []
            bursty = burst and (self.issued < n or self.wq)
            nfl = 4
            if bursty:
                ph = win % burst
                nfl = 0 if ph < burst // 2 else 8
            elif burst:
                nfl = max(0, min(8, 4*win + LA + 4 - fi))
            for _ in range(nfl):
                if fi < len(seq):
                    vm += fl(fi)
                    fi += 1
            assert fi >= min(len(seq), 4*win + 8), (win, fi)
            extra_fin = []
            if bursty:
                if nfl == 0:
                    for _ in range(2):
                        if self.issued < n and self.issued < self.nread + L:
                            vm += self.wdma(self.issued, self.wtmp)
                            extra_fin.append(self.issued)
                            self.issued += 1
            if not burst and not self.wq and win >= wdelay and self.issued < n and self.issued < self.nread + L:
                self.wq = self.wdma(self.issued, self.wtmp)
                self.wq_t = self.issued
                self.wq_n = -(-len(self.wq) // wsplit)
                self.issued += 1
            fin = None
            if self.wq:
                vm += self.wq[:self.wq_n]
                self.wq = self.wq[self.wq_n:]
                if not self.wq:
                    fin = self.wq_t
            rd = []
            nr = 0
            while nr < rmax:
                u = self.nread
                if not (u < n and u < self.wdone + self.NWB and u in self.wt):
                    break
                must = u <= max(t % n for t, b in seq[4*win:4*win+8])
                if not must and self.wage.get(u, -99) + age > win:
                    break
                if nr >= 1 and not must and self.issued < n:
                    break
                if self.wt[u] > drained:
                    rd.append(lambda u=u: k.wait_vm(self.wt[u]))
                rd += self.wread(u)
                self.nread += 1
                nr += 1
            mfmas = []
            for (t, b) in grp:
                for j in range(self.NF):
                    pre = (lambda t=t, b=b: k.wait_vm(self.ft[(t, b)])) if j == 0 else None
                    mfmas.append((pre, self.mm(t, b, j)))
            fill = mix(rd, vm)
            ps = post(win) if post else []
            if extra:
                fill = mix(fill, extra(win))
            interleave(k, mfmas, fill, tail=3, late=ps)
            for fin_ in ([fin] if fin is not None else []) + extra_fin:
                self.wt[fin_] = self.wtmp[fin_]
                self.wage[fin_] = win
            for gb in grp:
                self.done.add(gb)
            while self.wdone < n and all((self.wdone, b) in self.done for b in range(4)):
                self.wdone += 1
            if rd:
                k.lgkm0()
        assert not self.wq
        self.wage = {}


def gen_body(opt):
    k = Em(opt)
    e = k.e
    WFL = opt.get("wflags", "")
    ROTQ = opt.get("rot_q", 0)
    ROTU = opt.get("rot_u", 2)
    ROTP = opt.get("rot_p", 1)
    UPART = opt.get("upart", 4)
    UFL = opt.get("u_wflags", "")
    global HS
    global HQ
    HQ = opt.get("hq", 0)
    HS = opt.get("hs", 65536)
    assert HS >= 65536 + 4*HQ
    PW = "s[84:87]"

    def srd(name):
        for (d, s, sz) in SRD_INFO:
            if f"s[{d}:{d+3}]" == name:
                e(f"s_mov_b32 s{d}, s{s}")
                e(f"s_mov_b32 s{d+1}, s{s+1}")
                e(f"s_mov_b32 s{d+2}, {sz}")
                e(f"s_mov_b32 s{d+3}, 0x20000")

    def dmai(voff, srd_, soff, off, toks=None, key=None, fl=""):
        def f():
            if " m0," in k.l[-1]:
                e("s_nop 0")
            t = k.vmem(f"buffer_load_dwordx4 {voff}, {srd_}, {soff} offen offset:{off} {fl} lds".replace("  ", " "))
            if toks is not None:
                toks[key] = t
        return f

    def diag_clear():
        if opt.get("diag"):
            for i in range(16, 40):
                e(f"s_mov_b32 s{i}, 0")

    k.label("L_code0")
    e("s_cmp_ge_u32 s2, 256")
    e("s_cbranch_scc1 L_end")
    e("s_load_dwordx16 s[16:31], s[0:1], 0")
    e("s_load_dwordx8 s[32:39], s[0:1], 64")
    if opt.get("diag"):
        e(f"{'s_memtime' if opt.get('clk') else 's_memrealtime'} s[98:99]")
    e("v_lshrrev_b32 v2, 6, v0")
    e("v_and_b32 v1, 63, v0")
    e("v_readfirstlane_b32 s3, v2")
    e("s_and_b32 s4, s2, 7")
    e("s_lshr_b32 s6, s2, 3")
    e("s_and_b32 s5, s4, 1")
    e("s_lshr_b32 s4, s4, 1")
    k.c("role tile: s8 = a*4 + ((idx&15)>>2) (sb / ft), s9 = b*4 + (idx&3) (hg / dt)")
    e("s_bfe_u32 s8, s6, 0x20002")
    e("s_lshl_b32 s12, s4, 2")
    e("s_add_u32 s8, s8, s12")
    e("s_and_b32 s9, s6, 3")
    e("s_lshl_b32 s12, s5, 2")
    e("s_add_u32 s9, s9, s12")
    k.c("P3 tile: s10 = st = a*8 + (idx&7), s11 = dt3 = b*4 + 2*((idx>>3)&1) + ((idx ^ (idx>>4))&1)")
    e("s_and_b32 s10, s6, 7")
    if opt.get("stx"):
        e(f"s_xor_b32 s10, s10, {opt['stx']}")
    e("s_lshr_b32 s11, s6, 4")
    e("s_xor_b32 s11, s11, s6")
    e("s_and_b32 s11, s11, 1")
    e("s_add_u32 s11, s11, s12")
    e("s_lshr_b32 s12, s6, 2")
    e("s_and_b32 s12, s12, 2")
    e("s_add_u32 s11, s11, s12")
    e("s_lshl_b32 s12, s4, 3")
    e("s_add_u32 s10, s10, s12")
    e("s_mul_i32 s7, s3, 40960")
    e("v_and_b32 v2, 15, v1")
    e("v_lshrrev_b32 v3, 4, v1")
    e("v_lshlrev_b32 v4, 4, v1")
    e("v_mov_b32 v5, 0")
    e("s_cmp_lt_u32 s6, 16")
    e("s_cbranch_scc1 L_qrole")
    nz = k.newlab("L_nz")
    n1_ = k.newlab("L_n1")
    e("s_and_b32 s12, s2, 0xf7")
    e("s_cmp_lg_u32 s12, 230")
    e("s_cbranch_scc1 L_urole")
    e("v_mov_b32 v31, 1")
    e("v_lshlrev_b32 v30, 8, v0")
    e("s_waitcnt lgkmcnt(0)")
    srd(WS)
    srd(DBG)
    e("s_cmp_lg_u32 s2, 230")
    e(f"s_cbranch_scc1 {n1_}")
    e("s_cmp_lg_u32 s3, 0")
    e(f"s_cbranch_scc1 {nz}")
    e(f"s_mov_b32 s12, {CNT + 96*256}")
    e("s_mov_b64 exec, 0xffffffff")
    e(f"buffer_store_dword v5, v30, {WS}, s12 offen sc1")
    e("s_mov_b64 exec, -1")
    k.wait_vm0()
    e(f"buffer_store_dword v31, v5, {DBG}, 0 offen sc1")
    e(f"s_branch {nz}")
    k.label(n1_)
    e("v_lshrrev_b32 v29, 5, v0")
    e("v_cmp_ne_u32 vcc, 3, v29")
    e(f"s_mov_b32 s12, {CNT}")
    e("s_and_b64 exec, exec, vcc")
    e(f"buffer_store_dword v5, v30, {WS}, s12 offen sc1")
    e("s_mov_b64 exec, -1")
    e("v_lshlrev_b32 v30, 6, v0")
    for z_ in range(2):
        e(f"s_mov_b32 s12, {CNT + 256*256 + z_*16384}")
        e(f"buffer_store_dword v5, v30, {WS}, s12 offen sc1")
    for r in range(4):
        e(f"v_mov_b32 v{32+r}, 0")
    e("v_lshlrev_b32 v30, 4, v0")
    for z_ in range(9):
        e(f"s_mov_b32 s12, {KVP + z_*4096}")
        e(f"buffer_store_dwordx4 v[32:35], v30, {WS}, s12 offen sc1")
    k.wait_vm0()
    e("s_barrier")
    e("s_cmp_lg_u32 s3, 0")
    e(f"s_cbranch_scc1 {nz}")
    e(f"buffer_store_dword v31, v5, {DBG}, 0 offen offset:128 sc1")
    k.label(nz)
    e("s_branch L_urole")
    k.label("L_qrole")


    def touch_xw():
        if not opt.get("pfx", 2):
            return
        if opt.get("pfx", 2) == 2:
            return touch_xw_all()
        e("s_lshl_b32 s12, s6, 2")
        e("s_add_u32 s12, s12, s3")
        e("v_lshrrev_b32 v116, 2, v1")
        e("v_lshlrev_b32 v116, 10, v116")
        e("v_and_b32 v117, 3, v1")
        e("v_lshl_add_u32 v116, v117, 7, v116")
        e(f"s_mul_i32 s13, s12, {8*3072}")
        e("s_lshl_b32 s14, s5, 9")
        e("s_add_u32 s13, s13, s14")
        k.vmem(f"buffer_load_dword v157, v116, {WQKV}, s13 offen")
        e("v_lshlrev_b32 v117, 7, v1")
        e("s_lshl_b32 s12, s12, 13")
        e("s_lshl_b32 s14, s4, 19")
        e("s_add_u32 s12, s12, s14")
        k.vmem(f"buffer_load_dword v157, v117, {X}, s12 offen")
        e("s_add_u32 s13, s13, 16384")
        e("s_mov_b64 exec, 0xffffffff")
        k.vmem(f"buffer_load_dword v157, v116, {WQKV}, s13 offen")
        e("s_mov_b64 exec, -1")

    def touch_xw_all():
        e("s_lshl_b32 s12, s6, 2")
        e("s_add_u32 s12, s12, s3")
        e("v_lshrrev_b32 v116, 2, v1")
        e("v_lshlrev_b32 v116, 10, v116")
        e("v_and_b32 v117, 3, v1")
        e("v_lshl_add_u32 v116, v117, 7, v116")
        e(f"s_mul_i32 s13, s12, {4*3072}")
        e("s_lshl_b32 s14, s5, 9")
        e("s_add_u32 s13, s13, s14")
        e("s_mov_b32 s14, 0xffff")
        e("s_mov_b32 exec_hi, s14")
        k.vmem(f"buffer_load_dword v157, v116, {WQKV}, s13 offen")
        e("s_mov_b64 exec, -1")

    def touch_x_other():
        e("s_and_b32 s12, s6, 15")
        e("s_lshl_b32 s12, s12, 2")
        e("s_add_u32 s12, s12, s3")
        e("s_lshr_b32 s13, s12, 4")
        e("s_lshl_b32 s13, s13, 17")
        e("s_and_b32 s12, s12, 15")
        e("s_lshl_b32 s12, s12, 12")
        e("s_add_u32 s12, s12, s13")
        e("s_lshl_b32 s13, s4, 19")
        e("s_add_u32 s12, s12, s13")
        e("s_xor_b32 s13, s5, 1")
        e("s_lshl_b32 s13, s13, 16")
        e("s_add_u32 s12, s12, s13")
        e("v_lshlrev_b32 v117, 7, v1")
        e("s_mov_b64 exec, 0xffffffff")
        k.vmem(f"buffer_load_dword v157, v117, {X}, s12 offen")
        e("s_mov_b64 exec, -1")

    def touch_w1():
        if opt.get("pfx", 2) == 2:
            srd(X)
            srd(WQKV)
            touch_x_other()
            touch_xw_all()
        if not opt.get("pfw", 0):
            return
        bw = 768 if UPART == 4 else 384
        e("s_and_b32 s12, s6, 15")
        e("s_lshl_b32 s12, s12, 2")
        e("s_add_u32 s12, s12, s3")
        e(f"s_mul_i32 s12, s12, {32*2752}")
        if UPART == 4:
            e("s_mul_i32 s13, s4, 768")
            e("v_lshrrev_b32 v158, 3, v1")
            e("v_and_b32 v159, 7, v1")
        else:
            e("s_and_b32 s13, s2, 7")
            e("s_mul_i32 s13, s13, 384")
            e("v_lshrrev_b32 v158, 2, v1")
            e("v_and_b32 v159, 3, v1")
        e("s_add_u32 s12, s12, s13")
        e("v_lshlrev_b32 v159, 7, v159")
        e(f"v_min_u32 v159, {bw-4}, v159")
        e("v_mul_u32_u24 v158, 2752, v158")
        e("v_add_u32 v158, v158, v159")
        nrow = 8 if UPART == 4 else 16
        for j in range(32 // nrow):
            k.vmem(f"buffer_load_dword v157, v158, {W1}, s12 offen {UFL}")
            if j + 1 < 32 // nrow:
                e(f"s_add_u32 s12, s12, {nrow*2752}")

    PL, PNWB, PFB = 6, 8, 8
    PE = 6
    YA, AA = 64, 128

    def p3_setup(isq):
        LOS = 24576 if isq else 40960
        out = (["s_mul_i32 s7, s3, 24576", "s_lshl_b32 s99, s3, 14", "s_add_u32 s99, s99, 98304"] if isq
               else ["s_add_u32 s99, s7, 24576", "s_mov_b32 s91, 0"])
        out += ["v_lshrrev_b32 v30, 3, v1", "v_and_b32 v31, 7, v1", "v_and_b32 v18, 6, v30", "v_xor_b32 v31, v31, v18",
               "v_lshlrev_b32 v31, 4, v31", "v_lshl_add_u32 v22, v30, 12, v31",
               "s_lshl_b32 s13, s11, 7", "s_lshl_b32 s87, s3, 5", "s_add_u32 s87, s87, s13"]
        if isq:
            out += ["v_lshl_add_u32 v18, v30, 10, v31", "s_lshl_b32 s12, s3, 17", "s_add_u32 s12, s12, s13",
                    "v_add_u32 v18, s12, v18"]
        out += [f"s_mul_i32 s12, s3, {352*4096}", "s_lshl_b32 s13, s10, 7", "s_add_u32 s12, s12, s13", "v_add_u32 v22, s12, v22"]
        for j in range(1, 4):
            if isq:
                out.append(f"v_add_u32 v{18+j}, {j*(8*1024-1024)}, v18")
            out.append(f"v_add_u32 v{22+j}, {j*(8*4096-1024)}, v22")
        if isq:
            out += ["s_and_b32 s12, s10, 30", "s_add_u32 s12, s12, s5", "s_lshl_b32 s12, s12, 8",
                    f"s_add_u32 s12, s12, {CNT + 32*256}", "v_mov_b32 v240, s12"]
        out += ["s_lshl_b32 s12, s11, 2", "s_add_u32 s12, s12, s4", "s_lshl_b32 s12, s12, 8",
                f"s_add_u32 s12, s12, {CNT + 64*256}", "v_mov_b32 v241, s12",
                "s_lshr_b32 s12, s10, 1", "s_lshl_b32 s12, s12, 3", "s_add_u32 s12, s12, s11",
                "s_lshl_b32 s13, s12, 8", f"s_add_u32 s13, s13, {CNT + 128*256}", "v_mov_b32 v250, s13",
                "s_lshl_b32 s12, s12, 13", "s_lshl_b32 s13, s3, 11", "s_add_u32 s12, s12, s13",
                f"s_add_u32 s12, s12, {AF}", "v_add_u32 v251, s12, v4",
                f"s_mov_b32 s100, {hex(WS_BYTES) if isq else 0}"]
        out += ["v_lshrrev_b32 v228, 2, v2", "v_lshl_add_u32 v228, v3, 2, v228", "v_lshrrev_b32 v229, 1, v228",
                "v_and_b32 v229, 3, v229", "v_lshlrev_b32 v228, 7, v228", "v_lshl_add_u32 v228, v229, 5, v228",
                "v_and_b32 v229, 3, v2", "v_lshl_add_u32 v228, v229, 3, v228", "v_add_u32 v26, s99, v228" if isq else "v_add_u32 v224, s99, v228",
                "v_add_u32 v228, s7, v228"]
        for j in range(1, 4):
            out.append(f"v_xor_b32 v{228+j}, {32*j}, v228")
            if not isq:
                out.append(f"v_xor_b32 v{224+j}, {32*j}, v224")
        if isq:
            out += ["s_lshl_b32 s13, s3, 12", f"s_add_u32 s12, s13, {OF}", "v_add_u32 v232, s12, v4"]
            for b in range(1, 4):
                out.append(f"v_add_u32 v{232+b}, {b*16384}, v232")
        out += [f"s_mul_i32 s13, s11, {4*43*1024}", f"s_mul_i32 s12, s3, {11*1024}", "s_add_u32 s13, s13, s12",
                f"s_add_u32 s13, s13, {GUF}"]
        for b in range(4):
            out += [f"s_add_u32 s12, s3, {1+b}", "s_and_b32 s12, s12, 3"]
            if isq:
                out += ["s_lshl_b32 s14, s12, 5", f"v_xor_b32 v{224+b}, s14, v26"]
                out += ["s_lshl_b32 s14, s12, 14", f"s_add_u32 s14, s14, {98304 + ((2-b)*4096 if b < 3 else 0)}",
                        f"v_add_u32 v{144+b}, s14, v4"]
            out += [f"s_mul_i32 s14, s12, {LOS}"]
            if b < 3:
                out += [f"s_add_u32 s14, s14, {(2-b)*4096}", f"v_add_u32 v{245+b}, s14, v4"]
            else:
                out += ["v_add_u32 v244, s14, v4"]
            out += [f"s_mul_i32 s12, s12, {43*1024}", "s_add_u32 s12, s12, s13", f"v_add_u32 v{236+b}, s12, v4"]
        out += ["s_mov_b32 s84, 4096", "s_mov_b32 s85, 8192", "s_mov_b32 s86, 10240",
                lambda: (e("s_cmp_eq_u32 s3, 3"), e(f"s_cselect_b32 s86, {hex(WS_BYTES)}, s86")),
                "s_lshl_b32 s12, s10, 6", "v_add_u32 v248, s12, v2", "v_lshlrev_b32 v242, 2, v248",
                f"v_add_u32 v242, {GG}, v242", "v_lshlrev_b32 v243, 1, v248",
                "v_and_b32 v249, 1, v3", "v_lshl_add_u32 v248, v249, 4, v248", "v_lshlrev_b32 v248, 10, v248",
                "v_lshrrev_b32 v249, 1, v3", "v_lshl_add_u32 v248, v249, 4, v248", "v_add_u32 v249, 32768, v248"]
        for j in range(4):
            out.append(lambda j=j: k.vmem(f"buffer_load_ushort v{252+j}, v243, {B2}, 0 offen offset:{32*j}"))
        return out

    def yblk(t):
        return (t + 10) % 11

    def p_wdma(t, toks):
        sl = t % PL
        out = [f"s_add_u32 m0, s7, {sl*4096}" if sl < 6 else f"s_add_u32 m0, s99, {(sl-6)*4096}",
               f"s_mov_b32 s101, {yblk(t)*32*4096}"]
        for j in range(4):
            out.append(dmai(f"v{22+j}", W2, "s101", j*1024, toks, t, WFL))
        return out

    def p_wread(t):
        out = []
        for j in range(4):
            r = (t % PNWB)*16 + j*4
            sl = t % PL
            o = (sl if sl < 6 else sl - 6)*4096
            ar = (228 if sl < 6 else 224) + j
            out.append(f"ds_read_b64_tr_b16 {A(r,2)}, v{ar} offset:{o}")
            out.append(f"ds_read_b64_tr_b16 {A(r+2,2)}, v{ar} offset:{o+2048}")
        return out

    def p3_e1(d=None):
        out = []
        for t in range(PE):
            out += p_wdma(t, {} if d is None else d)
        return out

    def freg(t, b):
        return A(128 + (t % PFB)*16 + 4*b, 4)

    def p_fload(t, b, toks, early=False):
        y = yblk(t)
        so, off = ("s86" if y == 10 else ["0", "s84", "s85"][y // 4]), (0 if y == 10 else (y % 4)*1024)

        if early:
            so = {"s86": "s90", "0": "s91"}[so]

        def f():
            toks[(t, b)] = k.vmem(f"buffer_load_dwordx4 {freg(t,b)}, v{236+b}, {WS}, {so} offen offset:{off} sc1")
        return [f]

    def acc_init():
        out = [f"v_mov_b32 v{YA+r}, 0" for r in range(48)]
        for j in range(4):
            out += [f"v_lshlrev_b32 v{YA+48+4*j+r}, 16, v{252+j}" for r in range(4)]
        return out

    def zload(va="v5", vd="v31"):
        return k.vmem(f"buffer_load_dword {vd}, {va}, {DBG}, 0 offen sc1")

    def zcheck(va="v5", vd="v31"):
        if opt.get("nowait"):
            return
        dn = k.newlab("L_z")
        e(f"v_cmp_gt_u32 vcc, 1, {vd}")
        e(f"s_cbranch_vccz {dn}")
        k.poll(va, DBG, 1)
        k.label(dn)

    k.c("================= Q role: LN =================")
    k.vm = 0
    e("s_lshl_b32 s15, s8, 7")
    e("s_lshl_b32 s12, s9, 4")
    e("s_add_u32 s15, s15, s12")
    e("s_lshl_b32 s12, s3, 2")
    e("s_add_u32 s12, s12, s15")
    e("s_lshl_b32 s12, s12, 10")
    e("v_lshlrev_b32 v7, 4, v2")
    e("v_lshl_add_u32 v6, v3, 10, v7")
    e("s_waitcnt lgkmcnt(0)")
    srd(X)
    tx = [k.vmem(f"buffer_load_dwordx4 {V(32+4*j,4)}, v6, {X}, s12 offen offset:{256*j}") for j in range(4)]
    srd(GW)
    tg = [k.vmem(f"buffer_load_dwordx4 {V(48+4*j,4)}, v7, {GW}, 0 offen offset:{256*j}") for j in range(4)]
    srd(WQKV)
    if not opt.get("q_late", 0):
        touch_xw()
    for n_ in (WS, DBG, WO, W2, B2, OUT):
        srd(n_)
    diag_clear()
    e("v_lshrrev_b32 v12, 3, v1")
    e("v_and_b32 v13, 7, v1")
    e("v_lshrrev_b32 v14, 1, v12")
    e("v_xor_b32 v14, v14, v13")
    e("v_lshlrev_b32 v14, 4, v14")
    e("v_lshl_add_u32 v14, v12, 10, v14")
    e("v_xor_b32 v15, 64, v14")
    e("s_lshl_b32 s13, s8, 17")
    e("s_lshl_b32 s12, s3, 15")
    e("s_add_u32 s13, s13, s12")
    e("v_add_u32 v144, s13, v14")
    e(f"s_add_u32 s13, s13, {7168}")
    e("v_add_u32 v145, s13, v15")
    e(f"v_add_u32 v146, {2*7168}, v144")
    e(f"v_add_u32 v147, {2*7168}, v145")
    e("v_and_b32 v16, 2, v12")
    e("v_xor_b32 v16, v16, v13")
    e("v_lshlrev_b32 v16, 4, v16")
    e("v_xor_b32 v17, 64, v16")
    e("v_mul_u32_u24 v12, 3072, v12")
    e("s_mul_i32 s13, s3, 49152")
    e("s_lshl_b32 s12, s9, 7")
    e("s_add_u32 s13, s13, s12")
    e("v_add3_u32 v148, v16, v12, s13")
    e(f"s_add_u32 s13, s13, {8*3072-1024}")
    e("v_add3_u32 v149, v17, v12, s13")
    for sec in (1, 2):
        e(f"v_add_u32 v{148+2*sec}, {1024*sec}, v148")
        e(f"v_add_u32 v{149+2*sec}, {1024*sec}, v149")
    e("s_lshl_b32 s90, s3, 12")
    e("s_lshl_b32 s91, s3, 11")
    ct = {}
    WQB = 98304

    def qdma(c):
        slot = c % 3
        out = [f"s_add_u32 m0, s90, {slot*32768}", f"s_mov_b32 s88, {c*128}"]
        for j in range(4):
            out.append(dmai(f"v{144+j}", X, "s88", j*1024))
        for sec in (1, 2):
            out.append(f"s_add_u32 m0, s91, {slot*32768 + 16384 + (sec-1)*8192}")
            if sec == 1:
                out.append(f"s_mov_b32 s89, {c*64*3072}")
            for j in range(2):
                out.append(dmai(f"v{148+2*sec+j}", WQKV, "s89", j*1024, ct, c, WFL))
        out.append(lambda: ctd.add(c))
        return out

    def wqdma(c):
        out = [f"s_add_u32 m0, s91, {WQB + c*8192}", f"s_mov_b32 s89, {c*64*3072}"]
        for j in range(2):
            out.append(dmai(f"v{148+j}", WQKV, "s89", j*1024, ct, "q", WFL))
        return out
    ctd = set()
    nearly = 0
    LNB = 163840 - 17408
    e("s_mul_i32 s12, s3, 4352")
    e(f"s_add_u32 s12, s12, {LNB}")
    e("v_mul_u32_u24 v8, 1088, v3")
    e("v_add3_u32 v8, v8, v7, s12")
    e("v_and_b32 v9, 1, v3")
    e("v_lshlrev_b32 v9, 3, v9")
    e("v_lshrrev_b32 v10, 2, v2")
    e("v_add_u32 v9, v9, v10")
    e("v_mul_u32_u24 v9, 1088, v9")
    e("v_lshrrev_b32 v10, 1, v3")
    e("v_lshl_add_u32 v9, v10, 5, v9")
    e("v_and_b32 v11, 3, v2")
    e("v_lshl_add_u32 v9, v11, 3, v9")
    e("s_lshl_b32 s12, s3, 8")
    e(f"s_add_u32 s12, s12, {LNB}")
    e("v_add_u32 v9, s12, v9")
    e(f"v_mul_u32_u24 v10, {HS}, v10")
    e("v_and_b32 v11, 1, v3")
    e("v_lshl_add_u32 v10, v11, 8, v10")
    e("v_add_u32 v10, v10, v7")
    e(f"s_mul_i32 s84, s3, {8*HS}")
    e("s_lshl_b32 s12, s15, 5")
    e("s_add_u32 s84, s84, s12")
    if HQ:
        e("s_lshr_b32 s12, s15, 9")
        e(f"s_mul_i32 s12, s12, {HQ}")
        e("s_add_u32 s84, s84, s12")
    if HF:
        e(f"s_add_u32 s84, s84, {HF}")
    e("s_lshl_b32 s12, s3, 2")
    e("s_add_u32 s12, s12, s15")
    e("s_lshl_b32 s12, s12, 2")
    e(f"s_add_u32 s12, s12, {GG}")
    e("v_lshl_add_u32 v11, v3, 2, s12")
    e("v_cmp_eq_u32 vcc, 0, v2")
    e("v_mov_b32 v12, 0x7ffffff0")
    e("s_mov_b32 s85, 0x3f803f80")
    e("v_cndmask_b32 v11, v12, v11, vcc")
    e("s_lshr_b32 s96, s3, 1")
    e("s_and_b32 s97, s3, 1")
    e("v_lshrrev_b32 v18, 1, v2")
    e("v_xor_b32 v18, v18, v3")
    e("v_lshlrev_b32 v18, 4, v18")
    e("v_lshl_add_u32 v18, v2, 7, v18")
    e("s_lshl_b32 s12, s96, 13")
    e("v_add_u32 v18, s12, v18")
    e("v_xor_b32 v19, 64, v18")
    e("v_add_u32 v20, 65536, v18")
    e("v_add_u32 v21, 65536, v19")
    e("v_lshrrev_b32 v22, 2, v2")
    e("v_lshrrev_b32 v23, 3, v2")
    e("v_and_b32 v24, 1, v3")
    e("v_lshl_add_u32 v23, v24, 1, v23")
    e("s_lshl_b32 s12, s97, 1")
    e("v_xor_b32 v23, s12, v23")
    e("v_lshl_add_u32 v22, v3, 3, v22")
    e("v_lshlrev_b32 v22, 7, v22")
    e("v_lshl_add_u32 v22, v23, 5, v22")
    e("v_and_b32 v24, 3, v2")
    e("v_lshl_add_u32 v22, v24, 3, v22")
    e("v_add_u32 v22, 16384, v22")
    e(f"v_add_u32 v14, {WQB - 16384}, v22")
    e("v_xor_b32 v15, 32, v14")
    e("s_lshl_b32 s12, s96, 5")
    e("v_xor_b32 v23, s12, v22")
    e("v_xor_b32 v22, 32, v23")
    e("v_add_u32 v24, 65536, v22")
    e("v_add_u32 v25, 65536, v23")
    e("v_lshrrev_b32 v154, 3, v1")
    e("v_and_b32 v155, 7, v1")
    e("v_lshlrev_b32 v154, 12, v154")
    e("v_lshl_add_u32 v154, v155, 7, v154")
    e(f"s_mul_i32 s13, s3, {352*4096}")
    e("s_lshl_b32 s14, s6, 15")
    e("s_add_u32 s13, s13, s14")
    e("s_lshl_b32 s14, s4, 10")
    e("s_add_u32 s13, s13, s14")
    e("v_add_u32 v154, s13, v154")

    k.wait_vm(tx[3])
    if opt.get("q_late", 0):
        touch_xw()
    QFAST = opt.get("q_fast", 1)
    QF = opt.get("q_f", 2)
    ln_start = len(k.l)
    e("v_dot2_f32_bf16 v26, v32, s85, 0")
    e("v_dot2_f32_bf16 v27, v33, s85, 0")
    for j in range(2, 16):
        e(f"v_dot2_f32_bf16 v{26+(j&1)}, v{32+j}, s85, v{26+(j&1)}")
    unp = []
    for j in range(16):
        unp.append(f"v_lshlrev_b32 v{64+2*j}, 16, v{32+j}")
        unp.append(f"v_and_b32 v{65+2*j}, 0xffff0000, v{32+j}")
    for s in unp[:4]:
        e(s)
    e("v_add_f32 v26, v26, v27")
    ui = 4
    for rot in (8, 4, 2, 1):
        for s in unp[ui:ui+3]:
            e(s)
        ui += 3
        e(f"v_add_f32_dpp v26, v26, v26 row_ror:{rot} row_mask:0xf bank_mask:0xf")
    for s in unp[ui:]:
        e(s)
    e(f"v_mul_f32 v26, {hex(f32bits(-1.0/512))}, v26")
    for j in range(16):
        e(f"v_pk_add_f32 {V(64+2*j,2)}, {V(64+2*j,2)}, v[26:27] op_sel_hi:[1,0]")
    e("v_pk_mul_f32 v[96:97], v[64:65], v[64:65]")
    e("v_pk_mul_f32 v[98:99], v[66:67], v[66:67]")
    for j in range(2, 16):
        a_ = 96 + 2 * (j & 1)
        e(f"v_pk_fma_f32 {V(a_,2)}, {V(64+2*j,2)}, {V(64+2*j,2)}, {V(a_,2)}")
    e("v_pk_add_f32 v[96:97], v[96:97], v[98:99]")
    e("v_add_f32 v26, v96, v97")
    k.wait_vm(tg[3])
    gd = ["v_dot2_f32_bf16 v28, v32, v48, 0", "v_dot2_f32_bf16 v29, v33, v49, 0"]
    for j in range(2, 16):
        gd.append(f"v_dot2_f32_bf16 v{28+(j&1)}, v{32+j}, v{48+j}, v{28+(j&1)}")
    gi = 0
    for rot in (8, 4, 2, 1):
        e(gd[gi]); e(gd[gi+1]); gi += 2
        e(f"v_add_f32_dpp v26, v26, v26 row_ror:{rot} row_mask:0xf bank_mask:0xf")
    e(f"v_mov_b32 v27, {hex(f32bits(1e-5))}")
    e(f"v_fmac_f32 v27, {hex(f32bits(1.0/512))}, v26")
    e("v_rsq_f32 v26, v27")
    e(gd[gi]); gi += 1
    for j in range(16):
        e(f"v_pk_mul_f32 {V(64+2*j,2)}, {V(64+2*j,2)}, v[26:27] op_sel_hi:[1,0]")
    for j in range(16):
        e(f"v_cvt_pk_bf16_f32 v{100+j}, v{64+2*j}, v{65+2*j}")
        if j % 4 == 3:
            e(f"ds_write_b128 v8, {V(100+j-3,4)} offset:{256*(j//4)}")
    while gi < 16:
        e(gd[gi]); gi += 1
    if QFAST:
        body = [x.strip() for x in k.l[ln_start:]]
        del k.l[ln_start:]
        body = [(lambda: k.wait_vm(tg[3])) if x.startswith("s_waitcnt vmcnt") else x for x in body]
        skip = opt.get("q_skip", 0)
        run_all(k, body[:skip] + mix(body[skip:], sum((qdma(c) for c in range(QF)), [])))
    k.lgkm0()
    e("s_barrier")
    for j in range(4):
        e(f"ds_read_b64_tr_b16 {V(64+4*j,2)}, v9 offset:{64*j}")
        e(f"ds_read_b64_tr_b16 {V(66+4*j,2)}, v9 offset:{64*j+4*1088}")
    e("v_add_f32 v28, v28, v29")
    th = None
    for j in range(4):
        e(f"s_waitcnt lgkmcnt({6-2*j})") if not opt.get("diag") else k.lgkm0()
        e(f"s_add_u32 s12, s84, {j*2*HS}")
        th = k.vmem(f"buffer_store_dwordx4 {V(64+4*j,4)}, v10, {WS}, s12 offen sc1")
    for rot in (8, 4, 2, 1):
        e(f"v_add_f32_dpp v28, v28, v28 row_ror:{rot} row_mask:0xf bank_mask:0xf")
        k.nop(2)
    e(f"v_mul_f32 v28, {hex(f32bits(-1.4426950408889634))}, v28")
    e("v_exp_f32 v28, v28")
    k.nop(1)
    e("v_add_f32 v28, 1.0, v28")
    e("v_rcp_f32 v28, v28")
    k.nop(1)
    th = k.vmem(f"buffer_store_dword v28, v11, {WS}, 0 offen sc1")
    k.stamp(1)

    th = zload()
    npre = 2

    def h_arrive():
        k.stamp(2)
        e("s_lshr_b32 s12, s8, 2")
        e("s_lshl_b32 s12, s12, 11")
        e(f"s_add_u32 s12, s12, {CNT + 96*256}")
        k.arrive(WS, "s12", 8)
    if not QFAST:
        q0 = opt.get("q_pre", 0)
        for c in range(q0):
            run_all(k, qdma(c))
        k.wait_vm(th)
        zcheck()
        e("s_barrier")
        h_arrive()
        for c in range(q0, 2):
            run_all(k, qdma(c))

    ACC = 160
    FR = [96, 112]

    def qreads(t):
        c, kk = t // 2, t % 2
        slot = c % 3
        hi = slot >= 2
        so = (slot % 2) * 32768
        out = []
        xa = 18 + kk + (2 if hi else 0)
        for i in range(4):
            out.append(f"ds_read_b128 {A(16*t+4*i,4)}, v{xa} offset:{so + i*2048}")
        for sec in range(2):
            for hh in range(2):
                wa = 22 + hh + (2 if hi else 0)
                r = FR[t % 2] + (sec*2 + hh)*4
                o = so + sec*8192 + kk*4096
                out.append(f"ds_read_b64_tr_b16 {V(r,2)}, v{wa} offset:{o}")
                out.append(f"ds_read_b64_tr_b16 {V(r+2,2)}, v{wa} offset:{o+512}")
        return out

    pfl = []
    for r0 in ([192, 64][:opt.get("pf", 2)]):
        pfl.append([lambda r0=r0: (e(f"s_mov_b32 s101, {r0*4096}"), k.vmem(f"buffer_load_dword v157, v154, {W2}, s101 offen"))])
    PFA, PFB_ = opt.get("pf_a", 1), opt.get("pf_b", 1)

    k.wait_vm(ct[0])
    e("s_barrier")
    k.stamp(3)
    run_all(k, qreads(0))
    k.lgkm0()
    pend = qdma(2) if not (QFAST and QF == 3) else []
    QPER = opt.get("q_per", 7)
    consts = [f"s_mov_b32 s92, {hex(LOG2E)}", f"s_mov_b32 s93, {hex(LOG2E)}", f"s_mov_b32 s94, {hex(f32bits(1e-6))}",
              f"s_mov_b32 s95, {hex(f32bits(1e-6))}", "v_mov_b32 v26, s85", "v_mov_b32 v27, s85", "v_mov_b32 v28, s85",
              "v_mov_b32 v29, s85",
              "s_lshl_b32 s12, s3, 11", "s_add_u32 s12, s12, 65536", "v_add_u32 v6, s12, v4", "v_xor_b32 v7, 4096, v6",
              "s_lshl_b32 s15, s9, 2", "s_lshl_b32 s12, s97, 1", "s_add_u32 s15, s15, s12", "s_add_u32 s15, s15, s96",
              "s_lshl_b32 s13, s15, 10", f"s_add_u32 s13, s13, {KVP}", "s_lshl_b32 s12, s15, 6", f"s_add_u32 s12, s12, {ZP}",
              "v_lshlrev_b32 v10, 2, v1", "v_lshlrev_b32 v8, 4, v3", "v_lshl_add_u32 v8, v2, 2, v8",
              "v_cmp_gt_u32 vcc, 4, v2", "v_mov_b32 v9, 0x7ffffff0", "s_nop 0", "v_cndmask_b32 v8, v9, v8, vcc",
              "s_nop 0"]
    for t in range(16):
        qp = dict(zip((0, 1, 2, 3, 4, 5, 6, 8, 10, 12, 14), (1, 2, 3, 4, 5, 6, 7, 8, 0, 9, 10)))
        if t in qp:
            k.stamp(qp[t], True)
        head = []
        if t % 2 == 1 and t + 1 < 16:
            c = (t + 1) // 2
            assert c in ctd, (t, c)
            head = [lambda c=c: k.wait_vm(ct[c]), "s_barrier"]
            if QFAST and c == QF:
                head = [lambda c=c: (k.wait_vm(ct[c]), zcheck()), "s_barrier", h_arrive]
            if c + 2 < 8:
                pend = pend + qdma(c + 2)
            if c == 6:
                for cq in range(8):
                    pend = pend + wqdma(cq)
        nv = len(pend) if t == 15 else (13 if t == 0 else QPER if t < 11 else 8)
        vm = pend[:nv]
        pend = pend[len(vm):]
        if t == 10:
            vm = vm + ["v_mov_b32 v158, 128", lambda: zload("v158", "v159")]
        if t == 15:
            vm = vm + sum(pfl[:PFA], []) + consts
        reads = qreads(t + 1) if t + 1 < 16 else []
        mfmas = []
        for sec in range(2):
            for hh in range(2):
                for i in range(4):
                    d = ACC + 32 + sec*32 + (hh*4 + i)*4
                    cc = "0" if t == 0 else V(d, 4)
                    mfmas.append((None, mf(V(d, 4), A(16*t + 4*i, 4), V(FR[t % 2] + (sec*2 + hh)*4, 4), cc)))
        interleave(k, mfmas, head + mix(reads, vm), tail=3)
        if reads:
            k.lgkm0()
    k.stamp(4)
    k.stamp(11, True)

    def phi(src, dst):
        for j in range(16):
            e(f"v_pk_mul_f32 {V(64+2*j,2)}, {V(src+2*j,2)}, s[92:93]")
        for j in range(32):
            e(f"v_exp_f32 v{64+j}, v{64+j} clamp")
            e(f"v_max_f32 v{src+j}, 0, v{src+j}")
        for j in range(16):
            e(f"v_pk_add_f32 {V(64+2*j,2)}, {V(64+2*j,2)}, s[94:95]")
        for j in range(16):
            e(f"v_pk_add_f32 {V(64+2*j,2)}, {V(64+2*j,2)}, {V(src+2*j,2)}")
        for j in range(16):
            e(f"v_cvt_pk_bf16_f32 v{dst+j}, v{64+2*j}, v{65+2*j}")
    PK, PV, PQ = 96, 112, 128
    phi(ACC + 32, PK)
    for j in range(16):
        e(f"v_cvt_pk_bf16_f32 v{PV+j}, v{ACC+64+2*j}, v{ACC+65+2*j}")
    e("v_cmp_eq_u32 s[88:89], 1, v2")
    e("v_cmp_eq_u32 s[90:91], 2, v2")
    for hh in range(2):
        for p in range(2):
            a_ = V(PK + hh*8 + p*4, 4)
            b_ = V(PV + hh*8 + p*4, 4)
            e(mf(V(32+8*hh, 4), a_, b_, "0" if p == 0 else V(32+8*hh, 4)))
            e(mf(V(36+8*hh, 4), a_, "v[26:29]", "0" if p == 0 else V(36+8*hh, 4)))
    k.nop(4)
    e("ds_write_b128 v6, v[32:35]")
    e("ds_write_b128 v6, v[36:39] offset:1024")
    k.wait_vm(ct["q"])
    zcheck("v158", "v159")
    e("v_cmp_eq_u32 vcc, 3, v2")
    k.lgkm0()
    e("s_barrier")
    e("ds_read_b128 v[32:35], v7")
    e("ds_read_b128 v[36:39], v7 offset:1024")

    def qq_reads(w_):
        out = []
        for kk in range(2):
            for hh in range(2):
                r = 64 + (w_ % 2)*16 + (kk*2 + hh)*4
                o = w_*8192 + kk*4096
                out.append(f"ds_read_b64_tr_b16 {V(r,2)}, v{14+hh} offset:{o}")
                out.append(f"ds_read_b64_tr_b16 {V(r+2,2)}, v{14+hh} offset:{o+512}")
        return out
    run_all(k, qq_reads(0))
    e("s_waitcnt lgkmcnt(8)") if not opt.get("diag") else k.lgkm0()
    for j in range(4):
        e(f"v_pk_add_f32 {V(32+2*j,2)}, {V(32+2*j,2)}, {V(40+2*j,2)}")
    for r in range(4):
        k.vmem(f"buffer_atomic_add_f32 v{32+r}, v10, {WS}, s13 offen offset:{256*r}")
    e("v_cndmask_b32 v36, v36, v37, s[88:89]")
    e("v_cndmask_b32 v36, v36, v38, s[90:91]")
    e("v_cndmask_b32 v36, v36, v39, vcc")
    tat = k.vmem(f"buffer_atomic_add_f32 v36, v8, {WS}, s12 offen")
    e(f"s_lshl_b32 s90, s9, 10")
    e(f"s_add_u32 s90, s90, {CNT}")
    e("s_lshl_b32 s13, s4, 8")
    e("s_add_u32 s13, s13, s90")
    e("v_mov_b32 v8, s13")
    k.lgkm0()
    ps = p3_setup(True)
    KAW = opt.get("kv_aw", 3)
    e1t = {}
    e1_all = p3_e1(e1t)
    QW = 6 * opt.get("q_w", 2)
    qw = e1_all[:QW]
    kvt = {}
    for w_ in range(8):
        mfmas = []
        for kk in range(2):
            for hh in range(2):
                for i in range(4):
                    d = ACC + (hh*4 + i)*4
                    t = 2*w_ + kk
                    mfmas.append((None, mf(V(d, 4), V(64 + (w_ % 2)*16 + (kk*2 + hh)*4, 4), A(16*t + 4*i, 4), "0" if t == 0 else V(d, 4))))
        head = []
        if w_ == KAW:
            head = [lambda: k.wait_vm(tat), "s_barrier", lambda: (k.arrive(WS, "s90", 4), k.stamp(5))] + sum(pfl[PFA:PFA+PFB_], [])
        n_ = -(-len(ps) // (8 - w_))
        fl_ = ps[:n_]
        ps = ps[n_:]
        if w_ >= opt.get("q_ws", KAW):
            n_ = -(-len(qw) // max(1, opt.get("q_we", 8) - w_))
            fl_ = mix(fl_, qw[:n_])
            qw = qw[n_:]
        if w_ == 7:
            fl_ = fl_ + [lambda: kvt.__setitem__(0, k.vmem(f"buffer_load_dword v31, v8, {WS}, 0 offen sc1"))]
        interleave(k, mfmas, head + mix(qq_reads(w_ + 1) if w_ < 7 else [], fl_), tail=3)
        k.lgkm0()
    e("s_barrier")
    k.nop(6)
    wod = {}

    def wo_dma():
        out = []
        for t in range(4):
            out += [f"s_add_u32 m0, s99, {t*4096}", f"s_mov_b32 s101, {t*32*1024}"]
            out += [dmai(f"v{18+j}", WO, "s101", j*1024, wod, t, WFL) for j in range(4)]
        return out
    qpre = wo_dma() + e1_all[QW:]
    mark = len(k.l)
    phi(ACC, PQ)
    ph = [x.strip() for x in k.l[mark:]]
    del k.l[mark:]
    cut = opt.get("q_cut", 48)
    run_all(k, ph[:cut])
    e("s_and_b32 s15, s15, 30")
    e("s_lshl_b32 s13, s15, 10")
    e(f"s_add_u32 s13, s13, {KVP}")
    e("s_lshl_b32 s12, s15, 6")
    e(f"s_add_u32 s12, s12, {ZP}")
    e("v_lshlrev_b32 v9, 4, v3")
    if not opt.get("nowait"):
        k.wait_vm(kvt[0])
        dn = k.newlab("L_kf")
        e("v_cmp_gt_u32 vcc, 16, v31")
        e(f"s_cbranch_vccz {dn}")
        k.poll("v8", WS, 16)
        k.label(dn)
    k.stamp(6)
    k.stamp(1, 3)
    for hh in range(2):
        k.vmem(f"buffer_load_dwordx4 {V(196+8*hh,4)}, v9, {WS}, s12 offen offset:{64*hh} sc1")
        for r in range(4):
            tkv = k.vmem(f"buffer_load_dword v{192+8*hh+r}, v10, {WS}, s13 offen offset:{1024*hh+256*r} sc1")
    n1 = 6 * opt.get("q_n1", 2)
    run_all(k, mix(ph[cut:], qpre[:n1]))
    e("s_lshl_b32 s15, s8, 3")
    e("s_lshl_b32 s12, s96, 2")
    e("s_add_u32 s15, s15, s12")
    e("s_lshl_b32 s15, s15, 4")
    e("s_lshl_b32 s12, s9, 1")
    e("s_add_u32 s15, s15, s12")
    e("s_add_u32 s15, s15, s97")
    e("s_lshl_b32 s15, s15, 10")
    e(f"s_add_u32 s15, s15, {OF}")
    k.wait_vm(tkv)
    k.stamp(2, 3)
    for q_ in range(8):
        e(f"v_cvt_pk_bf16_f32 v{40+q_}, v{192+2*q_}, v{193+2*q_}")
    k.nop(2)
    for hh in range(2):
        for i in range(4):
            q_ = V(PQ + (hh*4+i)*2, 2)
            e(f"v_mfma_f32_16x16x16_bf16 {V(192+(hh*4+i)*4,4)}, {V(42+4*hh,2)}, {q_}, 0")
    for hh in range(2):
        for i in range(4):
            q_ = V(PQ + (hh*4+i)*2, 2)
            e(f"v_mfma_f32_16x16x16_bf16 {V(160+(hh*4+i)*4,4)}, {V(40+4*hh,2)}, {q_}, 0")
    k.nop(1)
    for n_ in range(8):
        e(f"v_add_f32 v{192+4*n_}, s94, v{192+4*n_}")
    for n_ in range(8):
        e(f"v_rcp_f32 v{192+4*n_}, v{192+4*n_}")
    for n_ in range(8):
        e(f"v_pk_mul_f32 {V(160+4*n_,2)}, {V(160+4*n_,2)}, {V(192+4*n_,2)} op_sel_hi:[1,0]")
        e(f"v_pk_mul_f32 {V(162+4*n_,2)}, {V(162+4*n_,2)}, {V(192+4*n_,2)} op_sel_hi:[1,0]")
    for i in range(4):
        for hh in range(2):
            s_ = 160 + (hh*4+i)*4
            e(f"v_cvt_pk_bf16_f32 v{64+4*i+2*hh}, v{s_}, v{s_+1}")
            e(f"v_cvt_pk_bf16_f32 v{65+4*i+2*hh}, v{s_+2}, v{s_+3}")
        e(f"s_add_u32 s12, s15, {i*16384}")
        tos = k.vmem(f"buffer_store_dwordx4 {V(64+4*i,4)}, v4, {WS}, s12 offen sc1")
    k.stamp(3, 3)
    n2 = n1 + 6 * opt.get("q_n2", 2)
    run_all(k, qpre[n1:n2])
    k.wait_vm(tos)
    e("s_barrier")
    e("s_lshl_b32 s12, s8, 9")
    e(f"s_add_u32 s12, s12, {CNT + 32*256}")
    k.arrive(WS, "s12", 2)
    k.stamp(7)
    k.stamp(4, 3)
    run_all(k, sum(pfl[PFA+PFB_:], []))
    n3 = max(n2, len(qpre) - 6*opt.get("q_left", 0))
    assert len(qpre) - n3 <= 12
    run_all(k, qpre[n2:n3])
    for t in range(4):
        k.wait_vm(wod[t])
        for j in range(4):
            e(f"ds_read_b64_tr_b16 {A(64+t*16+j*4,2)}, v{224+j} offset:{t*4096}")
            e(f"ds_read_b64_tr_b16 {A(66+t*16+j*4,2)}, v{224+j} offset:{t*4096+2048}")
    for t in range(4):
        k.wait_vm(e1t[t])
        run_all(k, p_wread(t))
    for j in range(4):
        e(f"v_mov_b32 v{6+j}, v{144+j}")
        e(f"v_xor_b32 v{224+j}, {32*j}, v26")
    e("s_lshl_b32 s88, s10, 16")
    e("s_xor_b32 s89, s88, 0x10000")
    k.poll("v240", WS, 8)
    k.lgkm0()
    k.stamp(8)
    k.stamp(5, 3)
    aft = {}
    seq8 = [(h_, t, b) for h_ in range(2) for t in range(4) for b in range(4)]

    def afl(h_, t, b):
        def f():
            aft[(h_, t, b)] = k.vmem(f"buffer_load_dwordx4 {A(128+h_*64+t*16+4*b,4)}, v{232+b}, {WS}, {'s89' if h_ == 0 else 's88'} offen offset:{t*1024} sc1")
        return f
    ALA = opt.get("a_la", 12)
    for i in range(ALA):
        afl(*seq8[i])()
    rest = [afl(*x) for x in seq8[ALA:]]
    rest += [lambda j=j: aft.__setitem__("g", k.vmem(f"buffer_load_dword v{32+2*j}, v242, {WS}, 0 offen offset:{64*j} sc1")) for j in range(4)]
    yd = qpre[n3:]
    for t in range(6, 10):
        yd += p_wdma(t, {})
    for win in range(8):
        if win in (0, 1, 4):
            k.stamp({0: 6, 1: 7, 4: 8}[win], 3)
        mfmas = []
        for (h_, t, b) in seq8[4*win:4*win+4]:
            for j in range(4):
                d = V((AA if h_ == 0 else YA) + (j*4 + b)*4, 4)
                pre = (lambda x=(h_, t, b): k.wait_vm(aft[x])) if j == 0 else None
                mfmas.append((pre, mf(d, A(64+t*16+j*4, 4), A(128+h_*64+t*16+4*b, 4), "0" if t == 0 else d)))
        nf_ = 4
        fl_ = rest[:nf_]
        rest = rest[nf_:]
        YW = opt.get("q_yw", 3)
        if win >= YW:
            n_ = -(-len(yd) // max(1, 7 - win))
            fl_ = mix(fl_, yd[:n_])
            yd = yd[n_:]
        if win == opt.get("q_gw", 7):
            fl_ = [lambda: aft.__setitem__("gu", k.vmem(f"buffer_load_dword v31, v241, {WS}, 0 offen sc1"))] + fl_
        late = []
        wr_ = [f"ds_write_b128 v9, {V(AA+n_*4,4)} offset:{n_*1024}" for n_ in range(12)]
        if win == 4:
            late = wr_[:8]
        if win == 5:
            fl_ = mix(wr_[8:] + [k.lgkm0, "s_barrier"] + [f"ds_read_b128 {V(AA+16*o+4*j,4)}, v{6+o} offset:{j*1024}" for o in range(3) for j in range(4)], fl_)
        if win == 6:
            fl_ = mix(fl_, [k.lgkm0] + [f"v_pk_add_f32 {V(AA+48+2*r,2)}, {V(AA+48+2*r,2)}, {V(AA+16*o+2*r,2)}" for o in range(3) for r in range(8)])
        if win == 7:
            fl_ = fl_ + [f"v_cvt_pk_bf16_f32 v{192+r}, v{AA+48+2*r}, v{AA+49+2*r}" for r in range(8)]
            fl_ += [lambda p=p: k.vmem(f"buffer_store_dwordx4 {V(192+4*p,4)}, v251, {WS}, 0 offen offset:{p*1024} sc1") for p in range(2)]
        interleave(k, mfmas, fl_, tail=2 if win < 7 else 8, late=late)
    k.stamp(0, 3)
    k.stamp(9, 3)
    sc = [f"v_sub_f32 v{48+2*j}, 1.0, v{32+2*j}" for j in range(4)]
    sc += [f"v_max_f32 v{48+2*j}, {hex(f32bits(1e-30))}, v{48+2*j}" for j in range(4)]
    sc += [f"v_rcp_f32 v{56+j}, v{48+2*j}" for j in range(4)]
    sc += [f"v_lshlrev_b32 v{40+2*j}, 16, v{252+j}" for j in range(4)]
    sc += [f"v_mul_f32 v{32+2*j}, v{32+2*j}, v{56+j}" for j in range(4)]
    for b in range(4):
        for j in range(4):
            for h_ in range(2):
                r = YA + (b*4 + j)*4 + 2*h_
                if b < 3:
                    sc.append(f"v_pk_mul_f32 {V(r,2)}, {V(r,2)}, {V(32+2*j,2)} op_sel_hi:[1,0]")
                else:
                    sc.append(f"v_pk_fma_f32 {V(r,2)}, {V(r,2)}, {V(32+2*j,2)}, {V(40+2*j,2)} op_sel_hi:[1,0,0]")
    k.wait_vm(max(aft["gu"], aft["g"]))
    k.stamp(0)
    slow = k.newlab("L_qs")
    if not opt.get("nowait"):
        e("v_cmp_gt_u32 vcc, 15, v31")
        e(f"s_cbranch_vccnz {slow}")
    run_all(k, mix(sum((p_fload(t, b, {}) for t in range(3) for b in range(4)), []), sc))
    e("s_mov_b32 s91, 1")
    e("s_branch L_p3c")
    k.label(slow)
    run_all(k, sc)
    e("v_mov_b32 v30, 1")
    k.wait_vm0()
    e("s_mov_b64 exec, 1")
    e(f"buffer_atomic_add v30, v250, {WS}, 0 offen sc1")
    e("s_mov_b64 exec, -1")
    e("s_mov_b32 s91, 0")
    e("s_branch L_p3b")

    k.label("L_urole")
    k.c("================= U role =================")
    k.vm = 0
    assert HS == 65536 and HQ == 0
    e("s_and_b32 s97, s9, 1")
    e("s_lshl_b32 s97, s97, 2")
    e("s_add_u32 s97, s97, s3")
    e("v_lshrrev_b32 v12, 2, v1")
    e("v_and_b32 v13, 3, v1")
    e(f"s_mul_i32 s13, s97, {256*2752}")
    e("s_mul_i32 s12, s8, 192")
    e("s_add_u32 s13, s13, s12")
    for j in range(3):
        e(f"v_add_u32 v14, {16*j}, v12")
        e("v_mul_u32_u24 v15, 43, v14")
        e("v_lshrrev_b32 v15, 7, v15")
        e("v_mul_u32_u24 v16, 3, v15")
        e("v_sub_u32 v14, v14, v16")
        e("v_lshrrev_b32 v16, 2, v15")
        e("v_and_b32 v16, 2, v16")
        e("v_xor_b32 v16, v16, v13")
        e("v_lshlrev_b32 v16, 4, v16")
        e("v_lshl_add_u32 v16, v14, 6, v16")
        e("v_mul_u32_u24 v15, 2752, v15")
        e(f"v_add3_u32 v{6+j}, v15, v16, s13")
        if j:
            e(f"v_subrev_u32 v{6+j}, {j*1024}, v{6+j}")
        e(f"v_add_u32 v{9+j}, {16*2752}, v{6+j}")
    e("s_and_b32 s90, s9, 2")
    e("s_add_u32 s90, s90, s5")
    e(f"s_mul_i32 s88, s90, {64*2752}")
    e("s_waitcnt lgkmcnt(0)")
    srd(W1)
    e("s_cmp_eq_u32 s8, 15")
    e("s_cbranch_scc1 L_spare")
    UL, UFB = 6, 7
    RB = 22528

    def u_wdma(t, toks):
        out = []
        for j in range(6):
            if j % 3 == 0:
                out.append(f"s_add_u32 m0, s7, {(t % UL)*6144 + j*1024}")
            out.append(dmai(f"v{6+j}", W1, "s88", (j % 3)*1024, toks, t))
        if t % 2 == 0:
            out.append(f"s_add_u32 s88, s88, {32*2752}")
        elif t < 7:
            out += [f"s_xor_b32 s88, s90, {(t+1)//2}", f"s_mul_i32 s88, s88, {64*2752}"]
        return out

    def u_wread(t):
        out = []
        for fb in range(6):
            r = 64 + t*24 + fb*4
            o = (t % UL)*6144 + (fb >> 1)*64
            out.append(f"ds_read_b64_tr_b16 {A(r,2)}, v{16+(fb&1)} offset:{o}")
            out.append(f"ds_read_b64_tr_b16 {A(r+2,2)}, v{16+(fb&1)} offset:{o+768}")
        return out

    def u_fload(t, b, toks):
        def f():
            toks[(t, b)] = k.vmem(f"buffer_load_dwordx4 {V(32+(t%UFB)*16+4*b,4)}, v{12+b}, {WS}, s{92+(t%8)//2} offen offset:{(t%2)*1024} sc1")
        out = [f]
        if t == 7 and b == 3:
            out += [f"s_xor_b32 s{92+q}, s{92+q}, {4*HS}" for q in range(4)]
        return out

    def uacc(ps_, b, j):
        n_ = b*6 + j
        if b == 3:
            return V(152 + 24*ps_ + j*4, 4)
        return A(n_*4, 4) if n_ < 16 else V(144 + (n_-16)*4, 4)

    def u_mm(t, b, j):
        d = uacc(t // 8, b, j)
        first = t % 8 == 0 and not (t == 8 and b == 3)
        return mf(d, A(64 + (t % 8)*24 + j*4, 4), V(32+(t % UFB)*16+4*b, 4), "0" if first else d)

    su = SK(k, 8, UL, 8, UFB, 6, u_wdma, u_wread, u_fload, u_mm)
    TWA = opt.get("tw_after", 1)
    su.issue_w(TWA)
    if opt.get("cpf", 0):
        e("s_getpc_b64 s[92:93]")
        k.label("L_pc")
        e("s_and_b32 s12, s6, 15")
        e("s_lshl_b32 s12, s12, 2")
        e("s_add_u32 s12, s12, s3")
        e(f"s_mul_i32 s12, s12, {9*128}")
        e("v_lshl_add_u32 v30, v1, 7, s12")
        e("v_cmp_gt_u32 vcc, L_end-L_code0, v30")
        e("s_sub_u32 s92, s92, L_pc-L_code0")
        e("s_subb_u32 s93, s93, 0")
        e("s_and_b64 s[94:95], vcc, 0x1ff")
        e("v_mov_b32 v31, s93")
        e("v_add_co_u32 v30, vcc, s92, v30")
        e("s_nop 1")
        e("v_addc_co_u32 v31, vcc, 0, v31, vcc")
        e("s_mov_b64 exec, s[94:95]")
        cs = k.newlab("L_cs")
        e(f"s_cbranch_execz {cs}")
        e("global_load_dword v157, v[30:31], off")
        k.label(cs)
        e("s_mov_b64 exec, -1")
    touch_w1()
    su.issue_w(2)
    srd(B1)
    e("s_mul_i32 s12, s8, 192")
    e("v_lshlrev_b32 v30, 3, v3")
    for j in range(6):
        k.vmem(f"buffer_load_dwordx2 {V(200+2*j,2)}, v30, {B1}, s12 offen offset:{32*j}")
    for n_ in (WS, DBG, WO, W2, B2, OUT):
        srd(n_)
    diag_clear()
    e("v_lshrrev_b32 v16, 2, v2")
    e("v_lshl_add_u32 v16, v3, 3, v16")
    e("v_mul_u32_u24 v16, 192, v16")
    e("v_and_b32 v12, 3, v2")
    e("v_lshl_add_u32 v16, v12, 3, v16")
    e("v_add_u32 v16, s7, v16")
    e("v_and_b32 v12, 1, v3")
    e("v_lshlrev_b32 v12, 5, v12")
    e("v_xor_b32 v13, 32, v12")
    e("v_add_u32 v17, v16, v13")
    e("v_add_u32 v16, v16, v12")
    e("s_and_b32 s13, s9, 6")
    e(f"s_mul_i32 s13, s13, {4*HS}")
    e("s_lshl_b32 s12, s97, 13")
    e("s_add_u32 s13, s13, s12")
    if HF:
        e(f"s_add_u32 s13, s13, {HF}")
    for b in range(4):
        e(f"s_add_u32 s12, s3, {1+b}")
        e("s_and_b32 s12, s12, 3")
        e(f"s_mul_i32 s12, s12, {HS}")
        e("s_add_u32 s12, s12, s13")
        e(f"v_add_u32 v{12+b}, s12, v4")
    e("s_and_b32 s12, s9, 1")
    e("s_xor_b32 s12, s12, 1")
    e("s_lshl_b32 s12, s12, 18")
    for q in range(4):
        e(f"s_xor_b32 s{92+q}, s90, {q}")
        e(f"s_lshl_b32 s{92+q}, s{92+q}, 11")
        e(f"s_add_u32 s{92+q}, s{92+q}, s12")
    run_all(k, p3_setup(False))
    e(f"s_add_u32 s12, s7, {RB}")
    e("v_add_u32 v26, s12, v4")
    for o in range(1, 4):
        e(f"s_add_u32 s12, s3, {o}")
        e("s_and_b32 s12, s12, 3")
        e("s_mul_i32 s12, s12, 40960")
        e(f"s_add_u32 s12, s12, {RB + (3-o)*6144}")
        e(f"v_add_u32 v{26+o}, s12, v4")
    e("s_and_b32 s12, s2, 7")
    e("s_lshr_b32 s13, s97, 1")
    e("s_lshl_b32 s13, s13, 3")
    e("s_add_u32 s12, s12, s13")
    e("s_lshl_b32 s12, s12, 8")
    e(f"s_add_u32 s12, s12, {CNT + 96*256}")
    e("v_mov_b32 v18, s12")
    for snd in range(2):
        e("s_lshl_b32 s12, s8, 3")
        e("s_add_u32 s12, s12, s9")
        if snd:
            e("s_xor_b32 s12, s12, 1")
        e("s_lshl_b32 s13, s12, 8")
        e("s_lshl_b32 s14, s3, 6")
        e("s_add_u32 s13, s13, s14")
        e(f"s_add_u32 s13, s13, {CNT + 256*256}")
        e(f"v_mov_b32 v{235-2*snd}, s13")
        e("s_lshl_b32 s12, s12, 2")
        e("s_add_u32 s12, s12, s3")
        e("s_mul_i32 s12, s12, 6144")
        e(f"s_add_u32 s12, s12, {UX}")
        e(f"v_add_u32 v{234-2*snd}, s12, v4")
    c0 = -2.0 * 0.7978845608028654 * 1.4426950408889634
    c1 = c0 * 0.044715
    e(f"v_mov_b32 v20, {hex(f32bits(c0))}")
    e(f"v_mov_b32 v21, {hex(f32bits(c0))}")
    e("s_lshl_b32 s15, s9, 2")
    e("s_add_u32 s15, s15, s3")
    e("s_mul_i32 s15, s15, 43")
    e("s_mul_i32 s13, s8, 3")
    e("s_add_u32 s15, s15, s13")
    e("s_lshl_b32 s15, s15, 10")
    e(f"s_add_u32 s15, s15, {GUF}")
    e("s_cmp_eq_u32 s8, 14")
    e("s_cselect_b32 s13, 0x7ff00000, 0")
    e("v_or_b32 v19, s13, v4")
    e("v_mov_b32 v240, 1")
    su.issue_w(4)
    tz_ = zload()
    su.issue_w(UL)
    k.stamp(5)
    su.to_regs(2, opt.get("u_hold", 1))
    k.wait_vm(tz_)
    for j in range(6):
        e(f"v_lshlrev_b32 v{176+4*j}, 16, v{200+2*j}")
        e(f"v_and_b32 v{177+4*j}, 0xffff0000, v{200+2*j}")
        e(f"v_lshlrev_b32 v{178+4*j}, 16, v{201+2*j}")
        e(f"v_and_b32 v{179+4*j}, 0xffff0000, v{201+2*j}")
    zcheck()
    k.stamp(1)
    drained = k.poll2("v18", WS, 32, lambda: (su.issue_w(8), su.to_regs(opt.get("u_r", 4))))
    k.stamp(2)
    k.stamp(1, True)
    seq = []
    for ps_ in range(2):
        seq += [(8*ps_ + t, b) for t in range(4) for b in range(4)] + [(8*ps_ + t, b) for b in range(4) for t in range(4, 8)]

    def u_post(win):
        if win % 8 < 5:
            return []
        b = win % 8 - 5
        return [f"ds_write_b128 v26, {uacc(0, b, j)} offset:{(b*6+j)*1024}" for j in range(6)]
    pe_all = p3_e1()
    pe = pe_all[:6*opt.get("u_e1", 0)]
    UPW, UPN = opt.get("u_pw", 10), opt.get("u_pn", 5)
    xt = {}

    def rd_(c):
        o, hf = 1 + c // 2, c % 2
        return [f"ds_read_b128 {V(200+12*hf+4*j,4)}, v{26+o} offset:{(3*hf+j)*1024}" for j in range(3)]

    def ad_(c):
        hf = c % 2
        if opt.get("u_pk", 0):
            return [f"v_pk_add_f32 {V(152+12*hf+2*r,2)}, {V(152+12*hf+2*r,2)}, {V(200+12*hf+2*r,2)}" for r in range(6)]
        return [f"v_add_f32 v{152+12*hf+r}, v{152+12*hf+r}, v{200+12*hf+r}" for r in range(12)]

    def st_(j):
        return lambda: xt.__setitem__(0, k.vmem(f"buffer_store_dwordx4 {V(152+4*j,4)}, v232, {WS}, {'0' if j < 4 else 's84'} offen offset:{(j%4)*1024} sc1"))
    red = ["s_barrier"] + rd_(0) + rd_(1) + ["s_nop 0"] * 6
    for c in range(6):
        red += ["s_waitcnt lgkmcnt(3)" if c < 5 else "s_waitcnt lgkmcnt(0)"]
        if c == 5:
            red += mix(ad_(c), [st_(j) for j in range(3)]) + [st_(j) for j in range(3, 6)]
        else:
            red += ad_(c)
        if c + 2 < 6:
            red += rd_(c + 2)
    RN = opt.get("u_rn", 2)
    XF = opt.get("u_xf", 11)

    def u_extra(win):
        out = []
        if 8 <= win < 8 + RN:
            n_ = -(-len(red) // RN)
            out = red[(win-8)*n_:(win-7)*n_]
        if win == 12:
            out = out + ["s_barrier"]
        if win == 3:
            out = out + ["v_mov_b32 v5, 128", lambda: zload()]
        UPF = [int(x) for x in str(opt.get("u_pf", "")).split(",") if x != ""]
        if UPF and win == 1:
            out = out + ["v_lshrrev_b32 v6, 3, v1", "v_and_b32 v7, 7, v1", "v_lshlrev_b32 v6, 12, v6", "v_lshl_add_u32 v6, v7, 7, v6",
                         f"s_mul_i32 s13, s3, {352*4096}", "s_and_b32 s14, s6, 15", "s_lshl_b32 s14, s14, 15", "s_add_u32 s13, s13, s14",
                         "s_lshl_b32 s14, s4, 10", "s_add_u32 s13, s13, s14", "v_add_u32 v6, s13, v6"]
        if win in UPF:
            r0 = [192, 64, 0][UPF.index(win)]
            out = out + [lambda r0=r0: (e(f"s_mov_b32 s13, {r0*4096}"), k.vmem(f"buffer_load_dword v7, v6, {W2}, s13 offen"))]
        if win == XF:
            out = out + [lambda: (k.wait_vm(xt[0]), zcheck()), lambda: k.vmem(f"buffer_store_dword v240, v233, {WS}, 0 offen sc1")]
        if UPW <= win < UPW + UPN:
            n3 = -(-len(pe) // UPN)
            out = out + pe[(win-UPW)*n3:(win-UPW+1)*n3]
        if win == 15:
            out = out + [f"s_mov_b32 s92, {hex(f32bits(c1))}", f"s_mov_b32 s93, {hex(f32bits(c1))}",
                         lambda: xt.__setitem__(1, k.vmem(f"buffer_load_dword v31, v235, {WS}, 0 offen sc1"))]
        return out
    su.run(seq, opt.get("u_la", 12), drained, u_post, 0, u_extra, prewin=lambda win: k.lgkm0() if win == 8 else None,
           prof=dict(zip((0, 1, 2, 3, 4, 6, 8, 10, 12, 14), (2, 3, 4, 5, 6, 7, 8, 0, 9, 10))))
    k.stamp(11, True)
    k.stamp(3)
    k.wait_vm(xt[1])
    if not opt.get("nowait"):
        dn = k.newlab("L_xf")
        e("v_cmp_gt_u32 vcc, 1, v31")
        e(f"s_cbranch_vccz {dn}")
        k.poll("v235", WS, 1)
        k.label(dn)
    tx_ = [k.vmem(f"buffer_load_dwordx4 {V(200+4*j,4)}, v234, {WS}, {'0' if j < 4 else 's84'} offen offset:{(j%4)*1024} sc1") for j in range(6)]
    k.lgkm0()
    e("s_barrier")
    for p in range(3):
        for o in range(1, 4):
            for j in (2*p, 2*p+1):
                e(f"ds_read_b128 {V(8+24*o+4*j,4)}, v{26+o} offset:{j*1024}")
        if p == 1:
            e("s_waitcnt lgkmcnt(6)") if not opt.get("diag") else k.lgkm0()
    for p in range(3):
        R_ = range(4*p, 4*p+4)
        if p == 1:
            e("s_waitcnt lgkmcnt(6)") if not opt.get("diag") else k.lgkm0()
        if p == 2:
            k.lgkm0()
        run_all(k, [f"v_pk_add_f32 {V(32+2*r,2)}, {V(32+2*r,2)}, {V(56+2*r,2)}" for r in R_])
        run_all(k, [f"v_pk_add_f32 {V(176+2*r,2)}, {V(176+2*r,2)}, {V(80+2*r,2)}" for r in R_])
        run_all(k, [f"v_pk_add_f32 {V(32+2*r,2)}, {V(32+2*r,2)}, {V(176+2*r,2)}" for r in R_])
    tst = {}
    for p in range(3):
        R_ = range(4*p, 4*p+4)
        k.wait_vm(tx_[2*p+1])
        va = []
        va += [f"v_pk_add_f32 {V(32+2*r,2)}, {V(32+2*r,2)}, {V(200+2*r,2)}" for r in R_]
        va += [f"v_pk_mul_f32 {V(56+2*r,2)}, {V(32+2*r,2)}, {V(32+2*r,2)}" for r in R_]
        va += [f"v_pk_fma_f32 {V(56+2*r,2)}, {V(56+2*r,2)}, s[92:93], v[20:21]" for r in R_]
        va += [f"v_pk_mul_f32 {V(56+2*r,2)}, {V(56+2*r,2)}, {V(32+2*r,2)}" for r in R_]
        va += [f"v_exp_f32 v{56+r}, v{56+r}" for r in range(8*p, 8*p+8)]
        va += [f"v_add_f32 v{56+r}, 1.0, v{56+r}" for r in range(8*p, 8*p+8)]
        va += [f"v_rcp_f32 v{56+r}, v{56+r}" for r in range(8*p, 8*p+8)]
        va += [f"v_pk_mul_f32 {V(32+2*r,2)}, {V(32+2*r,2)}, {V(56+2*r,2)}" for r in R_]
        va += [f"v_cvt_pk_bf16_f32 v{136+4*p+q}, v{32+8*p+2*q}, v{33+8*p+2*q}" for q in range(4)]
        run_all(k, va)
        tst[p] = k.vmem(f"buffer_store_dwordx4 {V(136+4*p,4)}, {'v4' if p == 0 else 'v19'}, {WS}, s15 offen offset:{p*1024} sc1")
    k.stamp(4)
    ncut = min(30, len(pe) + 6*opt.get("u_e2", 2))
    run_all(k, mix(acc_init(), pe_all[len(pe):ncut]))
    e("s_lshl_b32 s12, s9, 10")
    e(f"s_add_u32 s12, s12, {CNT + 64*256}")
    k.wait_vm(tst[2])
    e("s_barrier")
    k.arrive(WS, "s12", 4)
    k.stamp(7)
    run_all(k, pe_all[ncut:])
    e("s_branch L_p3")

    k.label("L_spare")
    for n_ in (WS, DBG):
        srd(n_)
    touch_w1()
    for n_ in (WO, W2, B2, OUT):
        srd(n_)
    diag_clear()
    run_all(k, p3_setup(False))
    if opt.get("spf", 1):
        e("v_lshlrev_b32 v30, 7, v1")
        e("s_lshl_b32 s12, s9, 2")
        e("s_add_u32 s12, s12, s3")
        e("s_lshl_b32 s12, s12, 14")
        e(f"buffer_load_dword v31, v30, {WO}, s12 offen")
        e("s_add_u32 s12, s12, 8192")
        e(f"buffer_load_dword v31, v30, {WO}, s12 offen")
        e(f"s_mul_i32 s12, s3, {352*4096}")
        e("s_lshl_b32 s13, s9, 13")
        e("s_add_u32 s12, s12, s13")
        e(f"s_add_u32 s13, s12, {320*4096}")
        for z_ in range(2):
            e(f"buffer_load_dword v31, v30, {W2}, s13 offen")
            e("s_add_u32 s13, s13, 65536")
        e("s_mov_b32 s14, 0")
        lp = k.newlab("L_spf")
        k.label(lp)
        e(f"buffer_load_dword v31, v30, {W2}, s12 offen")
        e("s_add_u32 s12, s12, 65536")
        e("s_add_u32 s14, s14, 1")
        e("s_waitcnt vmcnt(2)")
        e(f"s_cmp_lt_u32 s14, {opt.get('spf_n', 5)}")
        e(f"s_cbranch_scc1 {lp}")
        k.wait_vm0()
        k.stamp(6)
    e("v_mov_b32 v5, 128")
    k.poll("v5", DBG, 1)
    run_all(k, acc_init())
    e(f"v_mov_b32 v30, {CNT + 32*256}")
    k.poll("v30", WS, 8, sleep=32)
    run_all(k, p3_e1())

    k.label("L_p3")
    k.c("================= P3 =================")

    def p_mm(t, b, j):
        d = V(YA + (b*4 + j)*4, 4)
        return mf(d, freg(t, b), A((t % PNWB)*16 + j*4, 4), d)

    k.vm = 0
    sp = SK(k, 11, PL, PNWB, PFB, 4, p_wdma, p_wread, p_fload, p_mm)
    sp.assume_issued(PE, 4)
    k.stamp(0)
    PH = opt.get("p_hold", 2)
    sp.to_regs(4 - PH)
    tgu = k.vmem(f"buffer_load_dword v31, v241, {WS}, 0 offen sc1")
    sp.to_regs(4)
    assert sp.issued == 10
    k.wait_vm(tgu)
    k.label("L_p3b")
    if not opt.get("nowait"):
        dn = k.newlab("L_gf")
        e("v_cmp_gt_u32 vcc, 15, v31")
        e(f"s_cbranch_vccz {dn}")
        k.poll("v241", WS, 15)
        k.label(dn)
    drained = tgu
    k.stamp(9)
    PLA = 12
    seq_y = [(t, b) for t in range(7) for b in range(4)] + [(t, b) for b in range(4) for t in range(7, 11)]
    for i in range(PLA):
        run_all(k, p_fload(*seq_y[i], sp.ft))
    k.label("L_p3c")
    at = {}

    def comb(b):
        return [f"ds_write_b128 v244, {V(YA+(b*4+j)*4,4)} offset:{(b*4+j)*1024}" for j in range(4)]

    def acheck():
        k.wait_vm(at[0])
        if not opt.get("nowait"):
            dn = k.newlab("L_af")
            e("v_cmp_gt_u32 vcc, 4, v31")
            e(f"s_cbranch_vccz {dn}")
            k.poll("v250", WS, 4)
            k.label(dn)
    AW = opt.get("p_aw", 6)

    def asig():
        sk = k.newlab("L_na")
        e("s_cmp_eq_u32 s91, 0")
        e(f"s_cbranch_scc1 {sk}")
        e("v_mov_b32 v30, 1")
        e("s_mov_b64 exec, 1")
        e(f"buffer_atomic_add v30, v250, {WS}, 0 offen sc1")
        e("s_mov_b64 exec, -1")
        k.label(sk)

    def y_extra(win):
        if win == 0:
            return [asig]
        if win == AW:
            return [lambda: at.__setitem__(0, k.vmem(f"buffer_load_dword v31, v250, {WS}, 0 offen sc1"))]
        if win == opt.get("p_aw2", 9):
            out = [acheck]
            out += [lambda p=p: k.vmem(f"buffer_load_dwordx4 {V(192+4*p,4)}, v251, {WS}, s100 offen offset:{p*1024} sc1") for p in range(2)]
            out += [lambda j=j: at.__setitem__(1, k.vmem(f"buffer_load_dword v{32+2*j}, v242, {WS}, 0 offen offset:{64*j} sc1")) for j in range(4)]
            return out
        return []
    sp.run(seq_y, PLA, drained, lambda win: comb(win - 8) if win >= 8 else [], rmax=1, extra=y_extra, pre_issued=PLA,
           prof=(dict(zip(range(11), (1, 2, 3, 4, 5, 6, 7, 8, 0, 9, 10))) if opt.get("prof") == 2 else None))
    if opt.get("prof") == 2:
        k.stamp(11, True)
    k.stamp(10)
    k.lgkm0()
    e("s_barrier")
    for o in range(3):
        for j in range(4):
            e(f"ds_read_b128 {V(AA+16*o+4*j,4)}, v{245+o} offset:{j*1024}")
    k.wait_vm(at[1])
    for j in range(4):
        e(f"v_sub_f32 v{48+2*j}, 1.0, v{32+2*j}")
    for j in range(4):
        e(f"v_max_f32 v{48+2*j}, {hex(f32bits(1e-30))}, v{48+2*j}")
    for r in range(8):
        e(f"v_lshlrev_b32 v{200+2*r}, 16, v{192+r}")
        e(f"v_and_b32 v{201+2*r}, 0xffff0000, v{192+r}")
    for r in range(8):
        e(f"v_pk_mul_f32 {V(200+2*r,2)}, {V(200+2*r,2)}, {V(32+2*(r//2),2)} op_sel_hi:[1,0]")
    for o in range(3):
        e(f"s_waitcnt lgkmcnt({8-4*o})") if not opt.get("diag") else k.lgkm0()
        for r in range(8):
            e(f"v_pk_add_f32 {V(YA+48+2*r,2)}, {V(YA+48+2*r,2)}, {V(AA+16*o+2*r,2)}")
    for r in range(8):
        e(f"v_pk_fma_f32 {V(YA+48+2*r,2)}, {V(YA+48+2*r,2)}, {V(48+2*(r//2),2)}, {V(200+2*r,2)} op_sel_hi:[1,0,1]")
    for t in range(4):
        e(f"v_cvt_pk_bf16_f32 v{32+2*t}, v{YA+48+4*t}, v{YA+49+4*t}")
        e(f"v_cvt_pk_bf16_f32 v{33+2*t}, v{YA+50+4*t}, v{YA+51+4*t}")
    k.nop(2)
    for p in range(2):
        e(f"v_permlane16_swap_b32 v{32+4*p}, v{34+4*p}")
        e(f"v_permlane16_swap_b32 v{33+4*p}, v{35+4*p}")
    k.nop(1)
    for p in range(2):
        e(f"buffer_store_dwordx4 {V(32+4*p,4)}, v{248+p}, {OUT}, s87 offen {opt.get('oflags', '')}")
    if opt.get("diag"):
        e("s_waitcnt vmcnt(0)")
        k.stamp(11)
        k.lgkm0()
        for i in range(12):
            e(f"v_mov_b32 v{32+i}, s{16+2*i}")
        e("v_mov_b32 v44, s98")
        e("s_getreg_b32 s12, hwreg(HW_REG_XCC_ID)")
        e("v_mov_b32 v45, s12")
        e("s_lshl_b32 s12, s2, 2")
        e("s_add_u32 s12, s12, s3")
        e("s_lshl_b32 s12, s12, 6")
        e(f"s_add_u32 s12, s12, {DIAG}")
        e("v_mov_b32 v30, 0")
        e("s_mov_b64 exec, 1")
        for i in range(4):
            e(f"buffer_store_dwordx4 {V(32+4*i,4)}, v30, {WS}, s12 offen offset:{16*i}")
    k.label("L_end")
    e("s_endpgm")
    return "\n".join(k.l)


HEADER = open("cdna_kernels/" + NAME + ".s.ref").read().split("; Override launch geometry")[0]


def gen_meas(opt):
    mj, mk = opt["meas"], opt.get("mk", 1)
    l = []
    a = l.append
    a("s_cmp_ge_u32 s2, 1")
    a("s_cbranch_scc1 M_end")
    a("s_memrealtime s[30:31]")
    a("s_load_dwordx2 s[4:5], s[0:1], 88")
    a("v_lshlrev_b32 v1, 6, v0")
    a("v_mov_b32 v2, -1")
    a("v_mov_b32 v3, 0")
    a("s_waitcnt lgkmcnt(0)")
    a("s_mov_b32 s8, s4")
    a("s_mov_b32 s9, s5")
    a(f"s_mov_b32 s10, {WS_BYTES}")
    a("s_mov_b32 s11, 0x20000")
    lo, hi = {"Q": (0, 8), "U": (8, 16), "A": (0, 16)}[opt.get("mrole", "A")]
    for it in range(16):
        a(f"s_mov_b32 s12, {DIAG + it*4096}")
        a(f"buffer_load_dword v4, v1, s[8:11], s12 offen offset:48")
        a(f"buffer_load_dword v5, v1, s[8:11], s12 offen offset:{4*mj}")
        a("s_waitcnt vmcnt(0)")
        a("v_min_u32 v2, v2, v4")
        if lo <= it < hi:
            a("v_max_u32 v3, v3, v5")
    a("s_mov_b32 s14, -1")
    a("s_mov_b32 s15, 0")
    a("s_nop 4")
    for i in range(64):
        a(f"v_readlane_b32 s16, v2, {i}")
        a(f"v_readlane_b32 s17, v3, {i}")
        a("s_nop 3")
        a("s_min_u32 s14, s14, s16")
        a("s_max_u32 s15, s15, s17")
    if opt.get("mpost"):
        a("s_sub_u32 s15, s30, s15")
    else:
        a("s_sub_u32 s15, s15, s14")
    a("s_min_u32 s15, s15, 20000")
    a(f"s_mul_i32 s15, s15, {mk}")
    a("s_memrealtime s[20:21]")
    a("s_waitcnt lgkmcnt(0)")
    a("M_spin:")
    a("s_memrealtime s[22:23]")
    a("s_waitcnt lgkmcnt(0)")
    a("s_sub_u32 s24, s22, s20")
    a("s_cmp_lt_u32 s24, s15")
    a("s_cbranch_scc1 M_spin")
    a("M_end:")
    a("s_endpgm")
    return "\n".join(l)


def gen_file(opt):
    kn = NAME + "_kernel"
    nl = opt.get("launches", 1)
    s = HEADER
    for _ in range(opt.get("pre_empty", 0)):
        s += "; @launch kernel=empty_kernel grid=(1,1,1) block=(64,1,1) lds=0\n"
    if opt.get("pre_empty") and "meas" not in opt:
        s += f"; @launch kernel={kn} grid=(256,1,1) block=(256,1,1) lds=163840\n"
    elif "meas" in opt:
        s += f"; @launch kernel={kn} grid=(256,1,1) block=(256,1,1) lds=163840\n"
        s += f"; @launch kernel=meas_kernel grid=(1,1,1) block=(64,1,1) lds=0\n"
    elif nl == 1:
        s += "; @launch grid=(256,1,1) block=(256,1,1) lds=163840\n"
    else:
        for _ in range(nl):
            s += f"; @launch kernel={kn} grid=(256,1,1) block=(256,1,1) lds=163840\n"
    extra_code = ""
    if "meas" in opt:
        extra_code = ".globl meas_kernel\n.p2align 8\n.type meas_kernel,@function\nmeas_kernel:\n" + gen_meas(opt) + "\n"
    if opt.get("pre_empty"):
        extra_code += ".globl empty_kernel\n.p2align 8\n.type empty_kernel,@function\nempty_kernel:\n s_endpgm\n"
    s += f""".amdgcn_target "amdgcn-amd-amdhsa--gfx950"
.text
.globl {kn}
.p2align 8
.type {kn},@function
{kn}:
{gen_body(opt)}
{extra_code}.section .rodata,"a"
.p2align 6
.amdhsa_kernel {kn}
  .amdhsa_next_free_vgpr 512
  .amdhsa_next_free_sgpr 102
  .amdhsa_accum_offset 256
  .amdhsa_group_segment_fixed_size 0
  .amdhsa_kernarg_size 96
  .amdhsa_user_sgpr_count 2
  .amdhsa_user_sgpr_kernarg_segment_ptr 1
  .amdhsa_system_sgpr_workgroup_id_x 1
.end_amdhsa_kernel
"""
    if "meas" in opt:
        s += """.p2align 6
.amdhsa_kernel meas_kernel
  .amdhsa_next_free_vgpr 32
  .amdhsa_next_free_sgpr 102
  .amdhsa_accum_offset 32
  .amdhsa_group_segment_fixed_size 0
  .amdhsa_kernarg_size 96
  .amdhsa_user_sgpr_count 2
  .amdhsa_user_sgpr_kernarg_segment_ptr 1
  .amdhsa_system_sgpr_workgroup_id_x 1
.end_amdhsa_kernel
"""
    if opt.get("pre_empty"):
        s += """.p2align 6
.amdhsa_kernel empty_kernel
  .amdhsa_next_free_vgpr 32
  .amdhsa_next_free_sgpr 102
  .amdhsa_accum_offset 32
  .amdhsa_group_segment_fixed_size 0
  .amdhsa_kernarg_size 96
  .amdhsa_user_sgpr_count 2
  .amdhsa_user_sgpr_kernarg_segment_ptr 1
  .amdhsa_system_sgpr_workgroup_id_x 1
.end_amdhsa_kernel
"""
    return s


if __name__ == "__main__":
    opt = {}
    out = None
    for a in sys.argv[1:]:
        if "=" in a:
            kk, vv = a.split("=", 1)
            try:
                vv = int(vv)
            except ValueError:
                pass
            opt[kk] = vv
        else:
            out = a
    txt = gen_file(opt)
    open(out or ("cdna_kernels/" + NAME + ".s"), "w").write(txt)
```

```python
import sys

NAME = "gated_mix__linear_attn_block__mixer_token_mlp__prompt"

HF = 0x000000
GUF = 0x240000
OF = 0x400000
KVP = 0x600000
ZP = 0x608000
GG = 0x690000
CNT = 0x6A0000
AF = 0x6C0000
DIAG = 0x7E0000
UX = 0x800000
WS_BYTES = 0xC00000

X, WQKV, WO, W1, B1, W2, B2, GW, OUT, DBG, WS = [f"s[{40+4*i}:{43+4*i}]" for i in range(11)]
SRD_INFO = [(40, 16, 2048*512*2), (44, 18, 512*1536*2), (48, 20, 512*512*2), (52, 24, 2048*1376*2),
            (56, 26, 1376*2), (60, 28, 1376*2048*2), (64, 30, 2048*2), (68, 32, 512*2),
            (72, 34, 2048*512*2), (76, 36, 256), (80, 38, WS_BYTES)]

LOG2E = 0x3fb8aa3b
HS = 65536
HQ = 0


def f32bits(x):
    import struct
    return struct.unpack("<I", struct.pack("<f", x))[0]


def rr(kind, base, n):
    return f"{kind}{base}" if n == 1 else f"{kind}[{base}:{base+n-1}]"


def V(b, n=1):
    return rr("v", b, n)


def A(b, n=1):
    return rr("a", b, n)


class Em:
    def __init__(self, opt):
        self.l = []
        self.vm = 0
        self.lab = 0
        self.opt = opt
        self.nstamp = 0

    def e(self, s):
        self.l.append("    " + s)

    def c(self, s):
        self.l.append("    ; " + s)

    def label(self, s):
        self.l.append(s + ":")

    def newlab(self, p="L"):
        self.lab += 1
        return f"{p}_{self.lab}"

    def vmem(self, s):
        self.e(s)
        self.vm += 1
        return self.vm

    def wait_vm(self, tok):
        n = self.vm - tok
        assert n >= 0
        self.e(f"s_waitcnt vmcnt({min(n, 63)})")

    def wait_vm0(self):
        self.e("s_waitcnt vmcnt(0)")

    def lgkm0(self):
        self.e("s_waitcnt lgkmcnt(0)")

    def nop(self, n):
        while n > 0:
            k = min(n, 16)
            self.e(f"s_nop {k-1}")
            n -= k

    def stamp(self, i, prof=False):
        if prof is True:
            prof = self.opt.get("prof") if self.opt.get("prof") in (1, 2) else -1
        if (self.opt.get("prof") or False) != prof:
            return
        if self.opt.get("diag"):
            assert i < 12
            self.e(f"{'s_memtime' if self.opt.get('clk') else 's_memrealtime'} s[{16+2*i}:{17+2*i}]")

    def dma(self, voff, srd, soff, m0expr, flags=""):
        sreg, imm = m0expr
        if sreg is None:
            self.e(f"s_mov_b32 m0, {imm}")
        else:
            self.e(f"s_add_u32 m0, {sreg}, {imm}")
        sr, si = soff
        self.e(f"s_add_u32 s13, {sr}, {si}")
        return self.vmem(f"buffer_load_dwordx4 {voff}, {srd}, s13 offen {flags} lds".replace("  ", " "))

    def poll(self, voff, srd, expect, tmp="v31", sleep=None):
        if self.opt.get("nowait"):
            self.wait_vm0()
            return
        lp = self.newlab("L_poll")
        dn = self.newlab("L_polled")
        self.e("s_mov_b32 s14, 0")
        self.label(lp)
        self.e(f"buffer_load_dword {tmp}, {voff}, {srd}, 0 offen sc1")
        self.e("s_add_u32 s14, s14, 1")
        self.e("s_waitcnt vmcnt(0)")
        self.e(f"v_cmp_gt_u32 vcc, {expect}, {tmp}")
        self.e(f"s_cbranch_vccz {dn}")
        self.e(f"s_sleep {sleep or self.opt.get('sleep', 1)}")
        self.e("s_cmp_lt_u32 s14, 0x40000")
        self.e(f"s_cbranch_scc1 {lp}")
        self.label(dn)

    def poll2(self, voff, srd, expect, more, tmp="v31"):
        if self.opt.get("nowait"):
            more()
            return 0
        t = self.vmem(f"buffer_load_dword {tmp}, {voff}, {srd}, 0 offen sc1")
        more()
        self.wait_vm(t)
        dn = self.newlab("L_fast")
        self.e(f"v_cmp_gt_u32 vcc, {expect}, {tmp}")
        self.e(f"s_cbranch_vccz {dn}")
        self.poll(voff, srd, expect, tmp)
        self.label(dn)
        return t

    def arrive(self, srd, off_sreg, nrep):
        sk = self.newlab("L_arr")
        self.e("s_cmp_lg_u32 s3, 0")
        self.e(f"s_cbranch_scc1 {sk}")
        self.e("v_lshlrev_b32 v30, 8, v1")
        self.e("v_mov_b32 v31, 1")
        self.e(f"s_mov_b64 exec, {(1 << nrep) - 1}")
        self.e(f"buffer_atomic_add v31, v30, {srd}, {off_sreg} offen sc1")
        self.e("s_mov_b64 exec, -1")
        self.label(sk)


def mf(d, a, b, c):
    return f"v_mfma_f32_16x16x32_bf16 {d}, {a}, {b}, {c}"


def interleave(k, mfmas, fillers, tail=2, cap=2, late=()):
    nm = len(mfmas)
    if late:
        interleave(k, mfmas[:8], fillers[:len(fillers) * 8 // nm + 1], tail=0, cap=cap)
        interleave(k, mfmas[8:], mix(list(late), fillers[len(fillers) * 8 // nm + 1:]), tail=min(tail, 1), cap=cap)
        return
    nf = len(fillers)
    span = max(1, nm - tail)
    fi = 0
    for i, (pre, txt) in enumerate(mfmas):
        if pre:
            pre()
        k.e(txt)
        want = min(nf, -(-(i + 1) * nf // span))
        budget = cap - (1 if (i + 1 < nm and mfmas[i + 1][0]) else 0)
        while fi < want and budget > 0:
            f = fillers[fi]
            fi += 1
            budget -= 1
            if callable(f):
                f()
            else:
                k.e(f)
    while fi < nf:
        f = fillers[fi]
        fi += 1
        if callable(f):
            f()
        else:
            k.e(f)


def run_all(k, items):
    for f in items:
        if callable(f):
            f()
        else:
            k.e(f)


def mix(a, b):
    out = []
    ia = ib = 0
    while ia < len(a) or ib < len(b):
        if ib >= len(b) or (ia < len(a) and ia * len(b) <= ib * len(a)):
            out.append(a[ia])
            ia += 1
        else:
            out.append(b[ib])
            ib += 1
    return out


class SK:
    def __init__(self, k, n, L, NWB, FB, NF, wdma, wread, fload, mm):
        self.__dict__.update(locals())
        self.wt = {}
        self.ft = {}
        self.issued = 0
        self.nread = 0
        self.done = set()
        self.wdone = 0
        self.wq = []
        self.wtmp = {}
        self.wage = {}

    def issue_w(self, upto):
        while self.issued < min(upto, self.n):
            assert self.issued < self.nread + self.L
            run_all(self.k, self.wdma(self.issued, self.wt))
            self.issued += 1

    def assume_issued(self, e, per):
        for t in range(e):
            self.k.vm += per
            self.wt[t] = self.k.vm
        self.issued = e

    def to_regs(self, R, hold=0):
        k = self.k
        while self.nread < R:
            t = self.nread
            assert t < self.wdone + self.NWB
            k.wait_vm(self.wt[t])
            run_all(k, self.wread(t))
            k.lgkm0()
            self.nread += 1
            if self.nread <= R - hold:
                self.issue_w(t + self.L + 1)

    def run(self, seq, LA, drained=0, post=None, wdelay=0, extra=None, pre_issued=0, prof=None,
            wsplit=1, rmax=2, age=2, burst=0, prewin=None):
        k, n, L = self.k, self.n, self.L
        fi = pre_issued

        def fl(i):
            t, b = seq[i]
            if t - self.FB >= 0:
                assert (t - self.FB, b) in self.done, (t, b)
            return self.fload(t, b, self.ft)
        while fi < min(LA, len(seq)):
            run_all(k, fl(fi))
            fi += 1
        for win in range(len(seq) // 4):
            if prof and win in prof:
                k.stamp(prof[win], True)
            if prewin:
                prewin(win)
            grp = seq[4*win:4*win+4]
            assert max(t % n for t, b in grp) < self.nread, (grp, self.nread)
            vm = []
            bursty = burst and (self.issued < n or self.wq)
            nfl = 4
            if bursty:
                ph = win % burst
                nfl = 0 if ph < burst // 2 else 8
            elif burst:
                nfl = max(0, min(8, 4*win + LA + 4 - fi))
            for _ in range(nfl):
                if fi < len(seq):
                    vm += fl(fi)
                    fi += 1
            assert fi >= min(len(seq), 4*win + 8), (win, fi)
            extra_fin = []
            if bursty:
                if nfl == 0:
                    for _ in range(2):
                        if self.issued < n and self.issued < self.nread + L:
                            vm += self.wdma(self.issued, self.wtmp)
                            extra_fin.append(self.issued)
                            self.issued += 1
            if not burst and not self.wq and win >= wdelay and self.issued < n and self.issued < self.nread + L:
                self.wq = self.wdma(self.issued, self.wtmp)
                self.wq_t = self.issued
                self.wq_n = -(-len(self.wq) // wsplit)
                self.issued += 1
            fin = None
            if self.wq:
                vm += self.wq[:self.wq_n]
                self.wq = self.wq[self.wq_n:]
                if not self.wq:
                    fin = self.wq_t
            rd = []
            nr = 0
            while nr < rmax:
                u = self.nread
                if not (u < n and u < self.wdone + self.NWB and u in self.wt):
                    break
                must = u <= max(t % n for t, b in seq[4*win:4*win+8])
                if not must and self.wage.get(u, -99) + age > win:
                    break
                if nr >= 1 and not must and self.issued < n:
                    break
                if self.wt[u] > drained:
                    rd.append(lambda u=u: k.wait_vm(self.wt[u]))
                rd += self.wread(u)
                self.nread += 1
                nr += 1
            mfmas = []
            for (t, b) in grp:
                for j in range(self.NF):
                    pre = (lambda t=t, b=b: k.wait_vm(self.ft[(t, b)])) if j == 0 else None
                    mfmas.append((pre, self.mm(t, b, j)))
            fill = mix(rd, vm)
            ps = post(win) if post else []
            if extra:
                fill = mix(fill, extra(win))
            interleave(k, mfmas, fill, tail=3, late=ps)
            for fin_ in ([fin] if fin is not None else []) + extra_fin:
                self.wt[fin_] = self.wtmp[fin_]
                self.wage[fin_] = win
            for gb in grp:
                self.done.add(gb)
            while self.wdone < n and all((self.wdone, b) in self.done for b in range(4)):
                self.wdone += 1
            if rd:
                k.lgkm0()
        assert not self.wq
        self.wage = {}


def gen_body(opt):
    k = Em(opt)
    e = k.e
    WFL = opt.get("wflags", "")
    ROTQ = opt.get("rot_q", 0)
    ROTU = opt.get("rot_u", 2)
    ROTP = opt.get("rot_p", 1)
    UPART = opt.get("upart", 4)
    UFL = opt.get("u_wflags", "")
    global HS
    global HQ
    HQ = opt.get("hq", 0)
    HS = opt.get("hs", 65536)
    assert HS >= 65536 + 4*HQ
    PW = "s[84:87]"

    def srd(name):
        for (d, s, sz) in SRD_INFO:
            if f"s[{d}:{d+3}]" == name:
                e(f"s_mov_b32 s{d}, s{s}")
                e(f"s_mov_b32 s{d+1}, s{s+1}")
                e(f"s_mov_b32 s{d+2}, {sz}")
                e(f"s_mov_b32 s{d+3}, 0x20000")

    def dmai(voff, srd_, soff, off, toks=None, key=None, fl=""):
        def f():
            if " m0," in k.l[-1]:
                e("s_nop 0")
            t = k.vmem(f"buffer_load_dwordx4 {voff}, {srd_}, {soff} offen offset:{off} {fl} lds".replace("  ", " "))
            if toks is not None:
                toks[key] = t
        return f

    def diag_clear():
        if opt.get("diag"):
            for i in range(16, 40):
                e(f"s_mov_b32 s{i}, 0")

    k.label("L_code0")
    e("s_cmp_ge_u32 s2, 256")
    e("s_cbranch_scc1 L_end")
    e("s_load_dwordx16 s[16:31], s[0:1], 0")
    e("s_load_dwordx8 s[32:39], s[0:1], 64")
    if opt.get("diag"):
        e(f"{'s_memtime' if opt.get('clk') else 's_memrealtime'} s[98:99]")
    e("v_lshrrev_b32 v2, 6, v0")
    e("v_and_b32 v1, 63, v0")
    e("v_readfirstlane_b32 s3, v2")
    e("s_and_b32 s4, s2, 7")
    e("s_lshr_b32 s6, s2, 3")
    e("s_and_b32 s5, s4, 1")
    e("s_lshr_b32 s4, s4, 1")
    k.c("role tile: s8 = a*4 + ((idx&15)>>2) (sb / ft), s9 = b*4 + (idx&3) (hg / dt)")
    e("s_bfe_u32 s8, s6, 0x20002")
    e("s_lshl_b32 s12, s4, 2")
    e("s_add_u32 s8, s8, s12")
    e("s_and_b32 s9, s6, 3")
    e("s_lshl_b32 s12, s5, 2")
    e("s_add_u32 s9, s9, s12")
    k.c("P3 tile: s10 = st = a*8 + (idx&7), s11 = dt3 = b*4 + 2*((idx>>3)&1) + ((idx ^ (idx>>4))&1)")
    e("s_and_b32 s10, s6, 7")
    if opt.get("stx"):
        e(f"s_xor_b32 s10, s10, {opt['stx']}")
    e("s_lshr_b32 s11, s6, 4")
    e("s_xor_b32 s11, s11, s6")
    e("s_and_b32 s11, s11, 1")
    e("s_add_u32 s11, s11, s12")
    e("s_lshr_b32 s12, s6, 2")
    e("s_and_b32 s12, s12, 2")
    e("s_add_u32 s11, s11, s12")
    e("s_lshl_b32 s12, s4, 3")
    e("s_add_u32 s10, s10, s12")
    e("s_mul_i32 s7, s3, 40960")
    e("v_and_b32 v2, 15, v1")
    e("v_lshrrev_b32 v3, 4, v1")
    e("v_lshlrev_b32 v4, 4, v1")
    e("v_mov_b32 v5, 0")
    e("s_cmp_lt_u32 s6, 16")
    e("s_cbranch_scc1 L_qrole")
    nz = k.newlab("L_nz")
    n1_ = k.newlab("L_n1")
    e("s_and_b32 s12, s2, 0xf7")
    e("s_cmp_lg_u32 s12, 230")
    e("s_cbranch_scc1 L_urole")
    e("v_mov_b32 v31, 1")
    e("v_lshlrev_b32 v30, 8, v0")
    e("s_waitcnt lgkmcnt(0)")
    srd(WS)
    srd(DBG)
    e("s_cmp_lg_u32 s2, 230")
    e(f"s_cbranch_scc1 {n1_}")
    e("s_cmp_lg_u32 s3, 0")
    e(f"s_cbranch_scc1 {nz}")
    e(f"s_mov_b32 s12, {CNT + 96*256}")
    e("s_mov_b64 exec, 0xffffffff")
    e(f"buffer_store_dword v5, v30, {WS}, s12 offen sc1")
    e("s_mov_b64 exec, -1")
    k.wait_vm0()
    e(f"buffer_store_dword v31, v5, {DBG}, 0 offen sc1")
    e(f"s_branch {nz}")
    k.label(n1_)
    e("v_lshrrev_b32 v29, 5, v0")
    e("v_cmp_ne_u32 vcc, 3, v29")
    e(f"s_mov_b32 s12, {CNT}")
    e("s_and_b64 exec, exec, vcc")
    e(f"buffer_store_dword v5, v30, {WS}, s12 offen sc1")
    e("s_mov_b64 exec, -1")
    e("v_lshlrev_b32 v30, 6, v0")
    for z_ in range(2):
        e(f"s_mov_b32 s12, {CNT + 256*256 + z_*16384}")
        e(f"buffer_store_dword v5, v30, {WS}, s12 offen sc1")
    for r in range(4):
        e(f"v_mov_b32 v{32+r}, 0")
    e("v_lshlrev_b32 v30, 4, v0")
    for z_ in range(9):
        e(f"s_mov_b32 s12, {KVP + z_*4096}")
        e(f"buffer_store_dwordx4 v[32:35], v30, {WS}, s12 offen sc1")
    k.wait_vm0()
    e("s_barrier")
    e("s_cmp_lg_u32 s3, 0")
    e(f"s_cbranch_scc1 {nz}")
    e(f"buffer_store_dword v31, v5, {DBG}, 0 offen offset:128 sc1")
    k.label(nz)
    e("s_branch L_urole")
    k.label("L_qrole")


    def touch_xw():
        if not opt.get("pfx", 2):
            return
        if opt.get("pfx", 2) == 2:
            return touch_xw_all()
        e("s_lshl_b32 s12, s6, 2")
        e("s_add_u32 s12, s12, s3")
        e("v_lshrrev_b32 v116, 2, v1")
        e("v_lshlrev_b32 v116, 10, v116")
        e("v_and_b32 v117, 3, v1")
        e("v_lshl_add_u32 v116, v117, 7, v116")
        e(f"s_mul_i32 s13, s12, {8*3072}")
        e("s_lshl_b32 s14, s5, 9")
        e("s_add_u32 s13, s13, s14")
        k.vmem(f"buffer_load_dword v157, v116, {WQKV}, s13 offen")
        e("v_lshlrev_b32 v117, 7, v1")
        e("s_lshl_b32 s12, s12, 13")
        e("s_lshl_b32 s14, s4, 19")
        e("s_add_u32 s12, s12, s14")
        k.vmem(f"buffer_load_dword v157, v117, {X}, s12 offen")
        e("s_add_u32 s13, s13, 16384")
        e("s_mov_b64 exec, 0xffffffff")
        k.vmem(f"buffer_load_dword v157, v116, {WQKV}, s13 offen")
        e("s_mov_b64 exec, -1")

    def touch_xw_all():
        e("s_lshl_b32 s12, s6, 2")
        e("s_add_u32 s12, s12, s3")
        e("v_lshrrev_b32 v116, 2, v1")
        e("v_lshlrev_b32 v116, 10, v116")
        e("v_and_b32 v117, 3, v1")
        e("v_lshl_add_u32 v116, v117, 7, v116")
        e(f"s_mul_i32 s13, s12, {4*3072}")
        e("s_lshl_b32 s14, s5, 9")
        e("s_add_u32 s13, s13, s14")
        e("s_mov_b32 s14, 0xffff")
        e("s_mov_b32 exec_hi, s14")
        k.vmem(f"buffer_load_dword v157, v116, {WQKV}, s13 offen")
        e("s_mov_b64 exec, -1")

    def touch_x_other():
        e("s_and_b32 s12, s6, 15")
        e("s_lshl_b32 s12, s12, 2")
        e("s_add_u32 s12, s12, s3")
        e("s_lshr_b32 s13, s12, 4")
        e("s_lshl_b32 s13, s13, 17")
        e("s_and_b32 s12, s12, 15")
        e("s_lshl_b32 s12, s12, 12")
        e("s_add_u32 s12, s12, s13")
        e("s_lshl_b32 s13, s4, 19")
        e("s_add_u32 s12, s12, s13")
        e("s_xor_b32 s13, s5, 1")
        e("s_lshl_b32 s13, s13, 16")
        e("s_add_u32 s12, s12, s13")
        e("v_lshlrev_b32 v117, 7, v1")
        e("s_mov_b64 exec, 0xffffffff")
        k.vmem(f"buffer_load_dword v157, v117, {X}, s12 offen")
        e("s_mov_b64 exec, -1")

    def touch_w1():
        if opt.get("pfx", 2) == 2:
            srd(X)
            srd(WQKV)
            touch_x_other()
            touch_xw_all()
        if not opt.get("pfw", 0):
            return
        bw = 768 if UPART == 4 else 384
        e("s_and_b32 s12, s6, 15")
        e("s_lshl_b32 s12, s12, 2")
        e("s_add_u32 s12, s12, s3")
        e(f"s_mul_i32 s12, s12, {32*2752}")
        if UPART == 4:
            e("s_mul_i32 s13, s4, 768")
            e("v_lshrrev_b32 v158, 3, v1")
            e("v_and_b32 v159, 7, v1")
        else:
            e("s_and_b32 s13, s2, 7")
            e("s_mul_i32 s13, s13, 384")
            e("v_lshrrev_b32 v158, 2, v1")
            e("v_and_b32 v159, 3, v1")
        e("s_add_u32 s12, s12, s13")
        e("v_lshlrev_b32 v159, 7, v159")
        e(f"v_min_u32 v159, {bw-4}, v159")
        e("v_mul_u32_u24 v158, 2752, v158")
        e("v_add_u32 v158, v158, v159")
        nrow = 8 if UPART == 4 else 16
        for j in range(32 // nrow):
            k.vmem(f"buffer_load_dword v157, v158, {W1}, s12 offen {UFL}")
            if j + 1 < 32 // nrow:
                e(f"s_add_u32 s12, s12, {nrow*2752}")

    PL, PNWB, PFB = 6, 8, 8
    PE = 6
    YA, AA = 64, 128

    def p3_setup(isq):
        out = (["s_mul_i32 s100, s3, 24576", "s_lshl_b32 s99, s3, 14", "s_add_u32 s99, s99, 98304"] if isq
               else ["s_add_u32 s100, s7, 16384", "s_mov_b32 s99, s7"])
        out += ["v_lshrrev_b32 v30, 3, v1", "v_and_b32 v31, 7, v1", "v_and_b32 v22, 6, v30", "v_xor_b32 v31, v31, v22",
                "v_lshlrev_b32 v31, 4, v31", "v_lshl_add_u32 v22, v30, 12, v31", "v_lshl_add_u32 v250, v30, 10, v31",
                "s_lshl_b32 s13, s11, 7", "s_lshl_b32 s87, s3, 5", "s_add_u32 s87, s87, s13",
                "s_lshl_b32 s12, s3, 17", "s_add_u32 s12, s12, s13", "v_add_u32 v250, s12, v250",
                f"s_mul_i32 s12, s3, {352*4096}", "s_lshl_b32 s13, s10, 7", "s_add_u32 s12, s12, s13", "v_add_u32 v22, s12, v22"]
        for j in range(1, 4):
            out.append(f"v_add_u32 v{22+j}, {j*(8*4096-1024)}, v22")
        out += [f"v_add_u32 v251, {8*1024-1024}, v250"]
        out += ["s_and_b32 s12, s10, 30", "s_add_u32 s12, s12, s5", "s_lshl_b32 s12, s12, 8",
                f"s_add_u32 s12, s12, {CNT + 32*256}", "v_mov_b32 v240, s12",
                "s_lshl_b32 s12, s11, 2", "s_add_u32 s12, s12, s4", "s_lshl_b32 s12, s12, 8",
                f"s_add_u32 s12, s12, {CNT + 64*256}", "v_mov_b32 v241, s12"]
        out += ["v_lshrrev_b32 v228, 2, v2", "v_lshl_add_u32 v228, v3, 2, v228", "v_lshrrev_b32 v229, 1, v228",
                "v_and_b32 v229, 3, v229", "v_lshlrev_b32 v228, 7, v228", "v_lshl_add_u32 v228, v229, 5, v228",
                "v_and_b32 v229, 3, v2", "v_lshl_add_u32 v228, v229, 3, v228", "v_add_u32 v227, s99, v228",
                "v_add_u32 v228, s100, v228"]
        for j in range(1, 4):
            out.append(f"v_xor_b32 v{228+j}, {32*j}, v228")
        out += ["s_lshl_b32 s12, s10, 16", "s_lshl_b32 s13, s3, 12", "s_add_u32 s12, s12, s13",
                f"s_add_u32 s12, s12, {OF}", "v_add_u32 v232, s12, v4", "v_add_u32 v233, 16384, v232",
                f"s_mul_i32 s13, s11, {4*43*1024}", f"s_mul_i32 s12, s3, {11*1024}", "s_add_u32 s13, s13, s12",
                f"s_add_u32 s13, s13, {GUF}"]
        for b in range(4):
            out += [f"s_add_u32 s12, s3, {1+b}", "s_and_b32 s12, s12, 3",
                    "s_lshl_b32 s14, s12, 5", f"v_xor_b32 v{224+b}, s14, v227",
                    f"s_mul_i32 s14, s12, {24576 if isq else 40960}"]
            base = 0 if isq else 16384
            if b < 3:
                out += [f"s_add_u32 s14, s14, {base + (2-b)*4096}", f"v_add_u32 v{245+b}, s14, v4"]
            else:
                out += ["v_add_u32 v244, s100, v4"]
            out += [f"s_mul_i32 s12, s12, {43*1024}", "s_add_u32 s12, s12, s13", f"v_add_u32 v{236+b}, s12, v4"]
        out += ["s_mov_b32 s84, 4096", "s_mov_b32 s85, 8192", "s_mov_b32 s86, 10240", "s_mov_b32 s91, 32768",
                lambda: (e("s_cmp_eq_u32 s3, 3"), e(f"s_cselect_b32 s86, {hex(WS_BYTES)}, s86")),
                "s_lshl_b32 s12, s10, 6", "v_add_u32 v248, s12, v2", "v_lshlrev_b32 v242, 2, v248",
                f"v_add_u32 v242, {GG}, v242", "v_lshlrev_b32 v243, 1, v248",
                "v_and_b32 v249, 1, v3", "v_lshl_add_u32 v248, v249, 4, v248", "v_lshlrev_b32 v248, 10, v248",
                "v_lshrrev_b32 v249, 1, v3", "v_lshl_add_u32 v248, v249, 4, v248", "v_add_u32 v249, 32768, v248"]
        for j in range(4):
            out.append(lambda j=j: k.vmem(f"buffer_load_ushort v{252+j}, v243, {B2}, 0 offen offset:{32*j}"))
        return out

    def wo_dma(d=None):
        out = []
        for t in range(4):
            for h_ in range(2):
                out += [f"s_add_u32 m0, s99, {t*4096 + h_*2048}", f"s_mov_b32 s101, {t*32*1024 + h_*16384}"]
                out += [dmai(f"v{250+j}", WO, "s101", j*1024, {} if d is None else d, t, WFL) for j in range(2)]
        return out

    def yblk(t):
        return (t + 10) % 11

    def p_wdma(t, toks):
        sl = t % PL
        out = [f"s_add_u32 m0, s100, {sl*4096}",
               f"s_mov_b32 s101, {yblk(t)*32*4096}"]
        for j in range(4):
            out.append(dmai(f"v{22+j}", W2, "s101", j*1024, toks, t, WFL))
        return out

    def p_wread(t):
        out = []
        for j in range(4):
            r = (t % PNWB)*16 + j*4
            sl = t % PL
            o = (sl if sl < 6 else sl - 6)*4096
            ar = (228 if sl < 6 else 224) + j
            out.append(f"ds_read_b64_tr_b16 {A(r,2)}, v{ar} offset:{o}")
            out.append(f"ds_read_b64_tr_b16 {A(r+2,2)}, v{ar} offset:{o+2048}")
        return out

    def p3_e1(d=None):
        out = []
        for t in range(PE):
            out += p_wdma(t, {} if d is None else d)
        return out

    def freg(t, b):
        return A(128 + (t % PFB)*16 + 4*b, 4)

    def p_fload(t, b, toks, early=False):
        y = yblk(t)
        so, off = ("s86" if y == 10 else ["0", "s84", "s85"][y // 4]), (0 if y == 10 else (y % 4)*1024)

        if early:
            so = {"s86": "s90", "0": "s91"}[so]

        def f():
            toks[(t, b)] = k.vmem(f"buffer_load_dwordx4 {freg(t,b)}, v{236+b}, {WS}, {so} offen offset:{off} sc1")
        return [f]

    def acc_init():
        out = [f"v_mov_b32 v{YA+r}, 0" for r in range(48)]
        for j in range(4):
            out += [f"v_lshlrev_b32 v{YA+48+4*j+r}, 16, v{252+j}" for r in range(4)]
        return out

    def zload(va="v5", vd="v31"):
        return k.vmem(f"buffer_load_dword {vd}, {va}, {DBG}, 0 offen sc1")

    def zcheck(va="v5", vd="v31"):
        if opt.get("nowait"):
            return
        dn = k.newlab("L_z")
        e(f"v_cmp_gt_u32 vcc, 1, {vd}")
        e(f"s_cbranch_vccz {dn}")
        k.poll(va, DBG, 1)
        k.label(dn)

    k.c("================= Q role: LN =================")
    k.vm = 0
    e("s_lshl_b32 s15, s8, 7")
    e("s_lshl_b32 s12, s9, 4")
    e("s_add_u32 s15, s15, s12")
    e("s_lshl_b32 s12, s3, 2")
    e("s_add_u32 s12, s12, s15")
    e("s_lshl_b32 s12, s12, 10")
    e("v_lshlrev_b32 v7, 4, v2")
    e("v_lshl_add_u32 v6, v3, 10, v7")
    e("s_waitcnt lgkmcnt(0)")
    srd(X)
    tx = [k.vmem(f"buffer_load_dwordx4 {V(32+4*j,4)}, v6, {X}, s12 offen offset:{256*j}") for j in range(4)]
    srd(GW)
    tg = [k.vmem(f"buffer_load_dwordx4 {V(48+4*j,4)}, v7, {GW}, 0 offen offset:{256*j}") for j in range(4)]
    srd(WQKV)
    if not opt.get("q_late", 0):
        touch_xw()
    for n_ in (WS, DBG, WO, W2, B2, OUT):
        srd(n_)
    diag_clear()
    e("v_lshrrev_b32 v12, 3, v1")
    e("v_and_b32 v13, 7, v1")
    e("v_lshrrev_b32 v14, 1, v12")
    e("v_xor_b32 v14, v14, v13")
    e("v_lshlrev_b32 v14, 4, v14")
    e("v_lshl_add_u32 v14, v12, 10, v14")
    e("v_xor_b32 v15, 64, v14")
    e("s_lshl_b32 s13, s8, 17")
    e("s_lshl_b32 s12, s3, 15")
    e("s_add_u32 s13, s13, s12")
    e("v_add_u32 v144, s13, v14")
    e(f"s_add_u32 s13, s13, {7168}")
    e("v_add_u32 v145, s13, v15")
    e(f"v_add_u32 v146, {2*7168}, v144")
    e(f"v_add_u32 v147, {2*7168}, v145")
    e("v_and_b32 v16, 2, v12")
    e("v_xor_b32 v16, v16, v13")
    e("v_lshlrev_b32 v16, 4, v16")
    e("v_xor_b32 v17, 64, v16")
    e("v_mul_u32_u24 v12, 3072, v12")
    e("s_mul_i32 s13, s3, 49152")
    e("s_lshl_b32 s12, s9, 7")
    e("s_add_u32 s13, s13, s12")
    e("v_add3_u32 v148, v16, v12, s13")
    e(f"s_add_u32 s13, s13, {8*3072-1024}")
    e("v_add3_u32 v149, v17, v12, s13")
    for sec in (1, 2):
        e(f"v_add_u32 v{148+2*sec}, {1024*sec}, v148")
        e(f"v_add_u32 v{149+2*sec}, {1024*sec}, v149")
    e("s_lshl_b32 s90, s3, 12")
    e("s_lshl_b32 s91, s3, 11")
    ct = {}
    WQB = 98304

    def qdma(c):
        slot = c % 3
        out = [f"s_add_u32 m0, s90, {slot*32768}", f"s_mov_b32 s88, {c*128}"]
        for j in range(4):
            out.append(dmai(f"v{144+j}", X, "s88", j*1024))
        for sec in (1, 2):
            out.append(f"s_add_u32 m0, s91, {slot*32768 + 16384 + (sec-1)*8192}")
            if sec == 1:
                out.append(f"s_mov_b32 s89, {c*64*3072}")
            for j in range(2):
                out.append(dmai(f"v{148+2*sec+j}", WQKV, "s89", j*1024, ct, c, WFL))
        out.append(lambda: ctd.add(c))
        return out

    def wqdma(c):
        out = [f"s_add_u32 m0, s91, {WQB + c*8192}", f"s_mov_b32 s89, {c*64*3072}"]
        for j in range(2):
            out.append(dmai(f"v{148+j}", WQKV, "s89", j*1024, ct, "q", WFL))
        return out
    ctd = set()
    nearly = 0
    LNB = 163840 - 17408
    e("s_mul_i32 s12, s3, 4352")
    e(f"s_add_u32 s12, s12, {LNB}")
    e("v_mul_u32_u24 v8, 1088, v3")
    e("v_add3_u32 v8, v8, v7, s12")
    e("v_and_b32 v9, 1, v3")
    e("v_lshlrev_b32 v9, 3, v9")
    e("v_lshrrev_b32 v10, 2, v2")
    e("v_add_u32 v9, v9, v10")
    e("v_mul_u32_u24 v9, 1088, v9")
    e("v_lshrrev_b32 v10, 1, v3")
    e("v_lshl_add_u32 v9, v10, 5, v9")
    e("v_and_b32 v11, 3, v2")
    e("v_lshl_add_u32 v9, v11, 3, v9")
    e("s_lshl_b32 s12, s3, 8")
    e(f"s_add_u32 s12, s12, {LNB}")
    e("v_add_u32 v9, s12, v9")
    e(f"v_mul_u32_u24 v10, {HS}, v10")
    e("v_and_b32 v11, 1, v3")
    e("v_lshl_add_u32 v10, v11, 8, v10")
    e("v_add_u32 v10, v10, v7")
    e(f"s_mul_i32 s84, s3, {8*HS}")
    e("s_lshl_b32 s12, s15, 5")
    e("s_add_u32 s84, s84, s12")
    if HQ:
        e("s_lshr_b32 s12, s15, 9")
        e(f"s_mul_i32 s12, s12, {HQ}")
        e("s_add_u32 s84, s84, s12")
    if HF:
        e(f"s_add_u32 s84, s84, {HF}")
    e("s_lshl_b32 s12, s3, 2")
    e("s_add_u32 s12, s12, s15")
    e("s_lshl_b32 s12, s12, 2")
    e(f"s_add_u32 s12, s12, {GG}")
    e("v_lshl_add_u32 v11, v3, 2, s12")
    e("v_cmp_eq_u32 vcc, 0, v2")
    e("v_mov_b32 v12, 0x7ffffff0")
    e("s_mov_b32 s85, 0x3f803f80")
    e("v_cndmask_b32 v11, v12, v11, vcc")
    e("s_lshr_b32 s96, s3, 1")
    e("s_and_b32 s97, s3, 1")
    e("v_lshrrev_b32 v18, 1, v2")
    e("v_xor_b32 v18, v18, v3")
    e("v_lshlrev_b32 v18, 4, v18")
    e("v_lshl_add_u32 v18, v2, 7, v18")
    e("s_lshl_b32 s12, s96, 13")
    e("v_add_u32 v18, s12, v18")
    e("v_xor_b32 v19, 64, v18")
    e("v_add_u32 v20, 65536, v18")
    e("v_add_u32 v21, 65536, v19")
    e("v_lshrrev_b32 v22, 2, v2")
    e("v_lshrrev_b32 v23, 3, v2")
    e("v_and_b32 v24, 1, v3")
    e("v_lshl_add_u32 v23, v24, 1, v23")
    e("s_lshl_b32 s12, s97, 1")
    e("v_xor_b32 v23, s12, v23")
    e("v_lshl_add_u32 v22, v3, 3, v22")
    e("v_lshlrev_b32 v22, 7, v22")
    e("v_lshl_add_u32 v22, v23, 5, v22")
    e("v_and_b32 v24, 3, v2")
    e("v_lshl_add_u32 v22, v24, 3, v22")
    e("v_add_u32 v22, 16384, v22")
    e(f"v_add_u32 v14, {WQB - 16384}, v22")
    e("v_xor_b32 v15, 32, v14")
    e("s_lshl_b32 s12, s96, 5")
    e("v_xor_b32 v23, s12, v22")
    e("v_xor_b32 v22, 32, v23")
    e("v_add_u32 v24, 65536, v22")
    e("v_add_u32 v25, 65536, v23")
    e("v_lshrrev_b32 v154, 3, v1")
    e("v_and_b32 v155, 7, v1")
    e("v_lshlrev_b32 v154, 12, v154")
    e("v_lshl_add_u32 v154, v155, 7, v154")
    e(f"s_mul_i32 s13, s3, {352*4096}")
    e("s_lshl_b32 s14, s6, 15")
    e("s_add_u32 s13, s13, s14")
    e("s_lshl_b32 s14, s4, 10")
    e("s_add_u32 s13, s13, s14")
    e("v_add_u32 v154, s13, v154")

    k.wait_vm(tx[3])
    if opt.get("q_late", 0):
        touch_xw()
    QFAST = opt.get("q_fast", 1)
    QF = opt.get("q_f", 2)
    ln_start = len(k.l)
    e("v_dot2_f32_bf16 v26, v32, s85, 0")
    e("v_dot2_f32_bf16 v27, v33, s85, 0")
    for j in range(2, 16):
        e(f"v_dot2_f32_bf16 v{26+(j&1)}, v{32+j}, s85, v{26+(j&1)}")
    unp = []
    for j in range(16):
        unp.append(f"v_lshlrev_b32 v{64+2*j}, 16, v{32+j}")
        unp.append(f"v_and_b32 v{65+2*j}, 0xffff0000, v{32+j}")
    for s in unp[:4]:
        e(s)
    e("v_add_f32 v26, v26, v27")
    ui = 4
    for rot in (8, 4, 2, 1):
        for s in unp[ui:ui+3]:
            e(s)
        ui += 3
        e(f"v_add_f32_dpp v26, v26, v26 row_ror:{rot} row_mask:0xf bank_mask:0xf")
    for s in unp[ui:]:
        e(s)
    e(f"v_mul_f32 v26, {hex(f32bits(-1.0/512))}, v26")
    for j in range(16):
        e(f"v_pk_add_f32 {V(64+2*j,2)}, {V(64+2*j,2)}, v[26:27] op_sel_hi:[1,0]")
    e("v_pk_mul_f32 v[96:97], v[64:65], v[64:65]")
    e("v_pk_mul_f32 v[98:99], v[66:67], v[66:67]")
    for j in range(2, 16):
        a_ = 96 + 2 * (j & 1)
        e(f"v_pk_fma_f32 {V(a_,2)}, {V(64+2*j,2)}, {V(64+2*j,2)}, {V(a_,2)}")
    e("v_pk_add_f32 v[96:97], v[96:97], v[98:99]")
    e("v_add_f32 v26, v96, v97")
    k.wait_vm(tg[3])
    gd = ["v_dot2_f32_bf16 v28, v32, v48, 0", "v_dot2_f32_bf16 v29, v33, v49, 0"]
    for j in range(2, 16):
        gd.append(f"v_dot2_f32_bf16 v{28+(j&1)}, v{32+j}, v{48+j}, v{28+(j&1)}")
    gi = 0
    for rot in (8, 4, 2, 1):
        e(gd[gi]); e(gd[gi+1]); gi += 2
        e(f"v_add_f32_dpp v26, v26, v26 row_ror:{rot} row_mask:0xf bank_mask:0xf")
    e(f"v_mov_b32 v27, {hex(f32bits(1e-5))}")
    e(f"v_fmac_f32 v27, {hex(f32bits(1.0/512))}, v26")
    e("v_rsq_f32 v26, v27")
    e(gd[gi]); gi += 1
    for j in range(16):
        e(f"v_pk_mul_f32 {V(64+2*j,2)}, {V(64+2*j,2)}, v[26:27] op_sel_hi:[1,0]")
    for j in range(16):
        e(f"v_cvt_pk_bf16_f32 v{100+j}, v{64+2*j}, v{65+2*j}")
        if j % 4 == 3:
            e(f"ds_write_b128 v8, {V(100+j-3,4)} offset:{256*(j//4)}")
    while gi < 16:
        e(gd[gi]); gi += 1
    if QFAST:
        body = [x.strip() for x in k.l[ln_start:]]
        del k.l[ln_start:]
        body = [(lambda: k.wait_vm(tg[3])) if x.startswith("s_waitcnt vmcnt") else x for x in body]
        skip = opt.get("q_skip", 0)
        run_all(k, body[:skip] + mix(body[skip:], sum((qdma(c) for c in range(QF)), [])))
    k.lgkm0()
    e("s_barrier")
    for j in range(4):
        e(f"ds_read_b64_tr_b16 {V(64+4*j,2)}, v9 offset:{64*j}")
        e(f"ds_read_b64_tr_b16 {V(66+4*j,2)}, v9 offset:{64*j+4*1088}")
    e("v_add_f32 v28, v28, v29")
    th = None
    for j in range(4):
        e(f"s_waitcnt lgkmcnt({6-2*j})") if not opt.get("diag") else k.lgkm0()
        e(f"s_add_u32 s12, s84, {j*2*HS}")
        th = k.vmem(f"buffer_store_dwordx4 {V(64+4*j,4)}, v10, {WS}, s12 offen sc1")
    for rot in (8, 4, 2, 1):
        e(f"v_add_f32_dpp v28, v28, v28 row_ror:{rot} row_mask:0xf bank_mask:0xf")
        k.nop(2)
    e(f"v_mul_f32 v28, {hex(f32bits(-1.4426950408889634))}, v28")
    e("v_exp_f32 v28, v28")
    k.nop(1)
    e("v_add_f32 v28, 1.0, v28")
    e("v_rcp_f32 v28, v28")
    k.nop(1)
    th = k.vmem(f"buffer_store_dword v28, v11, {WS}, 0 offen sc1")
    k.stamp(1)

    th = zload()
    npre = 2

    def h_arrive():
        k.stamp(2)
        e("s_lshr_b32 s12, s8, 2")
        e("s_lshl_b32 s12, s12, 11")
        e(f"s_add_u32 s12, s12, {CNT + 96*256}")
        k.arrive(WS, "s12", 8)
    if not QFAST:
        q0 = opt.get("q_pre", 0)
        for c in range(q0):
            run_all(k, qdma(c))
        k.wait_vm(th)
        zcheck()
        e("s_barrier")
        h_arrive()
        for c in range(q0, 2):
            run_all(k, qdma(c))

    ACC = 160
    FR = [96, 112]

    def qreads(t):
        c, kk = t // 2, t % 2
        slot = c % 3
        hi = slot >= 2
        so = (slot % 2) * 32768
        out = []
        xa = 18 + kk + (2 if hi else 0)
        for i in range(4):
            out.append(f"ds_read_b128 {A(16*t+4*i,4)}, v{xa} offset:{so + i*2048}")
        for sec in range(2):
            for hh in range(2):
                wa = 22 + hh + (2 if hi else 0)
                r = FR[t % 2] + (sec*2 + hh)*4
                o = so + sec*8192 + kk*4096
                out.append(f"ds_read_b64_tr_b16 {V(r,2)}, v{wa} offset:{o}")
                out.append(f"ds_read_b64_tr_b16 {V(r+2,2)}, v{wa} offset:{o+512}")
        return out

    pfl = []
    for r0 in ([192, 64][:opt.get("pf", 2)]):
        pfl.append([lambda r0=r0: (e(f"s_mov_b32 s101, {r0*4096}"), k.vmem(f"buffer_load_dword v157, v154, {W2}, s101 offen"))])
    PFA, PFB_ = opt.get("pf_a", 1), opt.get("pf_b", 1)

    k.wait_vm(ct[0])
    e("s_barrier")
    k.stamp(3)
    run_all(k, qreads(0))
    k.lgkm0()
    pend = qdma(2) if not (QFAST and QF == 3) else []
    QPER = opt.get("q_per", 7)
    consts = [f"s_mov_b32 s92, {hex(LOG2E)}", f"s_mov_b32 s93, {hex(LOG2E)}", f"s_mov_b32 s94, {hex(f32bits(1e-6))}",
              f"s_mov_b32 s95, {hex(f32bits(1e-6))}", "v_mov_b32 v26, s85", "v_mov_b32 v27, s85", "v_mov_b32 v28, s85",
              "v_mov_b32 v29, s85",
              "s_lshl_b32 s12, s3, 11", "s_add_u32 s12, s12, 65536", "v_add_u32 v6, s12, v4", "v_xor_b32 v7, 4096, v6",
              "s_lshl_b32 s15, s9, 2", "s_lshl_b32 s12, s97, 1", "s_add_u32 s15, s15, s12", "s_add_u32 s15, s15, s96",
              "s_lshl_b32 s13, s15, 10", f"s_add_u32 s13, s13, {KVP}", "s_lshl_b32 s12, s15, 6", f"s_add_u32 s12, s12, {ZP}",
              "v_lshlrev_b32 v10, 2, v1", "v_lshlrev_b32 v8, 4, v3", "v_lshl_add_u32 v8, v2, 2, v8",
              "v_cmp_gt_u32 vcc, 4, v2", "v_mov_b32 v9, 0x7ffffff0", "s_nop 0", "v_cndmask_b32 v8, v9, v8, vcc",
              "s_nop 0"]
    for t in range(16):
        qp = dict(zip((0, 1, 2, 3, 4, 5, 6, 8, 10, 12, 14), (1, 2, 3, 4, 5, 6, 7, 8, 0, 9, 10)))
        if t in qp:
            k.stamp(qp[t], True)
        head = []
        if t % 2 == 1 and t + 1 < 16:
            c = (t + 1) // 2
            assert c in ctd, (t, c)
            head = [lambda c=c: k.wait_vm(ct[c]), "s_barrier"]
            if QFAST and c == QF:
                head = [lambda c=c: (k.wait_vm(ct[c]), zcheck()), "s_barrier", h_arrive]
            if c + 2 < 8:
                pend = pend + qdma(c + 2)
            if c == 6:
                for cq in range(8):
                    pend = pend + wqdma(cq)
        nv = len(pend) if t == 15 else (13 if t == 0 else QPER if t < 11 else 8)
        vm = pend[:nv]
        pend = pend[len(vm):]
        if t == 10:
            vm = vm + ["v_mov_b32 v158, 128", lambda: zload("v158", "v159")]
        if t == 15:
            vm = vm + sum(pfl[:PFA], []) + consts
        reads = qreads(t + 1) if t + 1 < 16 else []
        mfmas = []
        for sec in range(2):
            for hh in range(2):
                for i in range(4):
                    d = ACC + 32 + sec*32 + (hh*4 + i)*4
                    cc = "0" if t == 0 else V(d, 4)
                    mfmas.append((None, mf(V(d, 4), A(16*t + 4*i, 4), V(FR[t % 2] + (sec*2 + hh)*4, 4), cc)))
        interleave(k, mfmas, head + mix(reads, vm), tail=3)
        if reads:
            k.lgkm0()
    k.stamp(4)
    k.stamp(11, True)

    def phi(src, dst):
        for j in range(16):
            e(f"v_pk_mul_f32 {V(64+2*j,2)}, {V(src+2*j,2)}, s[92:93]")
        for j in range(32):
            e(f"v_exp_f32 v{64+j}, v{64+j} clamp")
            e(f"v_max_f32 v{src+j}, 0, v{src+j}")
        for j in range(16):
            e(f"v_pk_add_f32 {V(64+2*j,2)}, {V(64+2*j,2)}, s[94:95]")
        for j in range(16):
            e(f"v_pk_add_f32 {V(64+2*j,2)}, {V(64+2*j,2)}, {V(src+2*j,2)}")
        for j in range(16):
            e(f"v_cvt_pk_bf16_f32 v{dst+j}, v{64+2*j}, v{65+2*j}")
    PK, PV, PQ = 96, 112, 128
    phi(ACC + 32, PK)
    for j in range(16):
        e(f"v_cvt_pk_bf16_f32 v{PV+j}, v{ACC+64+2*j}, v{ACC+65+2*j}")
    e("v_cmp_eq_u32 s[88:89], 1, v2")
    e("v_cmp_eq_u32 s[90:91], 2, v2")
    for hh in range(2):
        for p in range(2):
            a_ = V(PK + hh*8 + p*4, 4)
            b_ = V(PV + hh*8 + p*4, 4)
            e(mf(V(32+8*hh, 4), a_, b_, "0" if p == 0 else V(32+8*hh, 4)))
            e(mf(V(36+8*hh, 4), a_, "v[26:29]", "0" if p == 0 else V(36+8*hh, 4)))
    k.nop(4)
    e("ds_write_b128 v6, v[32:35]")
    e("ds_write_b128 v6, v[36:39] offset:1024")
    k.wait_vm(ct["q"])
    zcheck("v158", "v159")
    e("v_cmp_eq_u32 vcc, 3, v2")
    k.lgkm0()
    e("s_barrier")
    e("ds_read_b128 v[32:35], v7")
    e("ds_read_b128 v[36:39], v7 offset:1024")

    def qq_reads(w_):
        out = []
        for kk in range(2):
            for hh in range(2):
                r = 64 + (w_ % 2)*16 + (kk*2 + hh)*4
                o = w_*8192 + kk*4096
                out.append(f"ds_read_b64_tr_b16 {V(r,2)}, v{14+hh} offset:{o}")
                out.append(f"ds_read_b64_tr_b16 {V(r+2,2)}, v{14+hh} offset:{o+512}")
        return out
    run_all(k, qq_reads(0))
    e("s_waitcnt lgkmcnt(8)") if not opt.get("diag") else k.lgkm0()
    for j in range(4):
        e(f"v_pk_add_f32 {V(32+2*j,2)}, {V(32+2*j,2)}, {V(40+2*j,2)}")
    for r in range(4):
        k.vmem(f"buffer_atomic_add_f32 v{32+r}, v10, {WS}, s13 offen offset:{256*r}")
    e("v_cndmask_b32 v36, v36, v37, s[88:89]")
    e("v_cndmask_b32 v36, v36, v38, s[90:91]")
    e("v_cndmask_b32 v36, v36, v39, vcc")
    tat = k.vmem(f"buffer_atomic_add_f32 v36, v8, {WS}, s12 offen")
    e(f"s_lshl_b32 s90, s9, 10")
    e(f"s_add_u32 s90, s90, {CNT}")
    e("s_lshl_b32 s13, s4, 8")
    e("s_add_u32 s13, s13, s90")
    e("v_mov_b32 v8, s13")
    k.lgkm0()
    ps = p3_setup(True)
    KAW = opt.get("kv_aw", 3)
    e1t = {}
    e1_all = p3_e1(e1t)
    QW = 6 * opt.get("q_w", 2)
    qw = e1_all[:QW]
    kvt = {}
    for w_ in range(8):
        mfmas = []
        for kk in range(2):
            for hh in range(2):
                for i in range(4):
                    d = ACC + (hh*4 + i)*4
                    t = 2*w_ + kk
                    mfmas.append((None, mf(V(d, 4), V(64 + (w_ % 2)*16 + (kk*2 + hh)*4, 4), A(16*t + 4*i, 4), "0" if t == 0 else V(d, 4))))
        head = []
        if w_ == KAW:
            head = [lambda: k.wait_vm(tat), "s_barrier", lambda: (k.arrive(WS, "s90", 4), k.stamp(5))] + sum(pfl[PFA:PFA+PFB_], [])
        n_ = -(-len(ps) // (8 - w_))
        fl_ = ps[:n_]
        ps = ps[n_:]
        if w_ >= opt.get("q_ws", KAW):
            n_ = -(-len(qw) // max(1, opt.get("q_we", 8) - w_))
            fl_ = mix(fl_, qw[:n_])
            qw = qw[n_:]
        if w_ == 7:
            fl_ = fl_ + [lambda: kvt.__setitem__(0, k.vmem(f"buffer_load_dword v31, v8, {WS}, 0 offen sc1"))]
        interleave(k, mfmas, head + mix(qq_reads(w_ + 1) if w_ < 7 else [], fl_), tail=3)
        k.lgkm0()
    e("s_barrier")
    k.nop(6)
    qpre = wo_dma() + e1_all[QW:]
    mark = len(k.l)
    phi(ACC, PQ)
    ph = [x.strip() for x in k.l[mark:]]
    del k.l[mark:]
    cut = opt.get("q_cut", 48)
    run_all(k, ph[:cut])
    e("s_and_b32 s15, s15, 30")
    e("s_lshl_b32 s13, s15, 10")
    e(f"s_add_u32 s13, s13, {KVP}")
    e("s_lshl_b32 s12, s15, 6")
    e(f"s_add_u32 s12, s12, {ZP}")
    e("v_lshlrev_b32 v9, 4, v3")
    if not opt.get("nowait"):
        k.wait_vm(kvt[0])
        dn = k.newlab("L_kf")
        e("v_cmp_gt_u32 vcc, 16, v31")
        e(f"s_cbranch_vccz {dn}")
        k.poll("v8", WS, 16)
        k.label(dn)
    k.stamp(6)
    k.stamp(1, 3)
    for hh in range(2):
        k.vmem(f"buffer_load_dwordx4 {V(196+8*hh,4)}, v9, {WS}, s12 offen offset:{64*hh} sc1")
        for r in range(4):
            tkv = k.vmem(f"buffer_load_dword v{192+8*hh+r}, v10, {WS}, s13 offen offset:{1024*hh+256*r} sc1")
    n1 = 8 * opt.get("q_n1", 2)
    run_all(k, mix(ph[cut:], qpre[:n1]))
    e("s_lshl_b32 s15, s8, 3")
    e("s_lshl_b32 s12, s96, 2")
    e("s_add_u32 s15, s15, s12")
    e("s_lshl_b32 s15, s15, 4")
    e("s_lshl_b32 s12, s9, 1")
    e("s_add_u32 s15, s15, s12")
    e("s_add_u32 s15, s15, s97")
    e("s_lshl_b32 s15, s15, 10")
    e(f"s_add_u32 s15, s15, {OF}")
    k.wait_vm(tkv)
    k.stamp(2, 3)
    for q_ in range(8):
        e(f"v_cvt_pk_bf16_f32 v{40+q_}, v{192+2*q_}, v{193+2*q_}")
    k.nop(2)
    for hh in range(2):
        for i in range(4):
            q_ = V(PQ + (hh*4+i)*2, 2)
            e(f"v_mfma_f32_16x16x16_bf16 {V(192+(hh*4+i)*4,4)}, {V(42+4*hh,2)}, {q_}, 0")
    for hh in range(2):
        for i in range(4):
            q_ = V(PQ + (hh*4+i)*2, 2)
            e(f"v_mfma_f32_16x16x16_bf16 {V(160+(hh*4+i)*4,4)}, {V(40+4*hh,2)}, {q_}, 0")
    k.nop(1)
    for n_ in range(8):
        e(f"v_add_f32 v{192+4*n_}, s94, v{192+4*n_}")
    for n_ in range(8):
        e(f"v_rcp_f32 v{192+4*n_}, v{192+4*n_}")
    for n_ in range(8):
        e(f"v_pk_mul_f32 {V(160+4*n_,2)}, {V(160+4*n_,2)}, {V(192+4*n_,2)} op_sel_hi:[1,0]")
        e(f"v_pk_mul_f32 {V(162+4*n_,2)}, {V(162+4*n_,2)}, {V(192+4*n_,2)} op_sel_hi:[1,0]")
    for i in range(4):
        for hh in range(2):
            s_ = 160 + (hh*4+i)*4
            e(f"v_cvt_pk_bf16_f32 v{64+4*i+2*hh}, v{s_}, v{s_+1}")
            e(f"v_cvt_pk_bf16_f32 v{65+4*i+2*hh}, v{s_+2}, v{s_+3}")
        e(f"s_add_u32 s12, s15, {i*16384}")
        tos = k.vmem(f"buffer_store_dwordx4 {V(64+4*i,4)}, v4, {WS}, s12 offen sc1")
    k.stamp(3, 3)
    n2 = n1 + 8 * opt.get("q_n2", 2)
    assert n2 <= 32
    run_all(k, qpre[n1:n2])
    k.wait_vm(tos)
    e("s_barrier")
    e("s_lshl_b32 s12, s8, 9")
    e(f"s_add_u32 s12, s12, {CNT + 32*256}")
    k.arrive(WS, "s12", 2)
    k.stamp(7)
    k.stamp(4, 3)
    run_all(k, sum(pfl[PFA+PFB_:], []))
    run_all(k, qpre[n2:])
    e("v_mov_b32 v29, 0")
    e("s_branch L_p3")

    k.label("L_urole")
    k.c("================= U role =================")
    k.vm = 0
    assert HS == 65536 and HQ == 0
    e("s_and_b32 s97, s9, 1")
    e("s_lshl_b32 s97, s97, 2")
    e("s_add_u32 s97, s97, s3")
    e("v_lshrrev_b32 v12, 2, v1")
    e("v_and_b32 v13, 3, v1")
    e(f"s_mul_i32 s13, s97, {256*2752}")
    e("s_mul_i32 s12, s8, 192")
    e("s_add_u32 s13, s13, s12")
    for j in range(3):
        e(f"v_add_u32 v14, {16*j}, v12")
        e("v_mul_u32_u24 v15, 43, v14")
        e("v_lshrrev_b32 v15, 7, v15")
        e("v_mul_u32_u24 v16, 3, v15")
        e("v_sub_u32 v14, v14, v16")
        e("v_lshrrev_b32 v16, 2, v15")
        e("v_and_b32 v16, 2, v16")
        e("v_xor_b32 v16, v16, v13")
        e("v_lshlrev_b32 v16, 4, v16")
        e("v_lshl_add_u32 v16, v14, 6, v16")
        e("v_mul_u32_u24 v15, 2752, v15")
        e(f"v_add3_u32 v{6+j}, v15, v16, s13")
        if j:
            e(f"v_subrev_u32 v{6+j}, {j*1024}, v{6+j}")
        e(f"v_add_u32 v{9+j}, {16*2752}, v{6+j}")
    e("s_and_b32 s90, s9, 2")
    e("s_add_u32 s90, s90, s5")
    e(f"s_mul_i32 s88, s90, {64*2752}")
    e("s_waitcnt lgkmcnt(0)")
    srd(W1)
    e("s_cmp_eq_u32 s8, 15")
    e("s_cbranch_scc1 L_spare")
    UL, UFB = 6, 7
    RB = 22528

    def u_wdma(t, toks):
        out = []
        for j in range(6):
            if j % 3 == 0:
                out.append(f"s_add_u32 m0, s7, {(t % UL)*6144 + j*1024}")
            out.append(dmai(f"v{6+j}", W1, "s88", (j % 3)*1024, toks, t))
        if t % 2 == 0:
            out.append(f"s_add_u32 s88, s88, {32*2752}")
        elif t < 7:
            out += [f"s_xor_b32 s88, s90, {(t+1)//2}", f"s_mul_i32 s88, s88, {64*2752}"]
        return out

    def u_wread(t):
        out = []
        for fb in range(6):
            r = 64 + t*24 + fb*4
            o = (t % UL)*6144 + (fb >> 1)*64
            out.append(f"ds_read_b64_tr_b16 {A(r,2)}, v{16+(fb&1)} offset:{o}")
            out.append(f"ds_read_b64_tr_b16 {A(r+2,2)}, v{16+(fb&1)} offset:{o+768}")
        return out

    def u_fload(t, b, toks):
        def f():
            toks[(t, b)] = k.vmem(f"buffer_load_dwordx4 {V(32+(t%UFB)*16+4*b,4)}, v{12+b}, {WS}, s{92+(t%8)//2} offen offset:{(t%2)*1024} sc1")
        out = [f]
        if t == 7 and b == 3:
            out += [f"s_xor_b32 s{92+q}, s{92+q}, {4*HS}" for q in range(4)]
        return out

    def uacc(ps_, b, j):
        n_ = b*6 + j
        if b == 3:
            return V(152 + 24*ps_ + j*4, 4)
        return A(n_*4, 4) if n_ < 16 else V(144 + (n_-16)*4, 4)

    def u_mm(t, b, j):
        d = uacc(t // 8, b, j)
        first = t % 8 == 0 and not (t == 8 and b == 3)
        return mf(d, A(64 + (t % 8)*24 + j*4, 4), V(32+(t % UFB)*16+4*b, 4), "0" if first else d)

    su = SK(k, 8, UL, 8, UFB, 6, u_wdma, u_wread, u_fload, u_mm)
    TWA = opt.get("tw_after", 1)
    su.issue_w(TWA)
    if opt.get("cpf", 0):
        e("s_getpc_b64 s[92:93]")
        k.label("L_pc")
        e("s_and_b32 s12, s6, 15")
        e("s_lshl_b32 s12, s12, 2")
        e("s_add_u32 s12, s12, s3")
        e(f"s_mul_i32 s12, s12, {9*128}")
        e("v_lshl_add_u32 v30, v1, 7, s12")
        e("v_cmp_gt_u32 vcc, L_end-L_code0, v30")
        e("s_sub_u32 s92, s92, L_pc-L_code0")
        e("s_subb_u32 s93, s93, 0")
        e("s_and_b64 s[94:95], vcc, 0x1ff")
        e("v_mov_b32 v31, s93")
        e("v_add_co_u32 v30, vcc, s92, v30")
        e("s_nop 1")
        e("v_addc_co_u32 v31, vcc, 0, v31, vcc")
        e("s_mov_b64 exec, s[94:95]")
        cs = k.newlab("L_cs")
        e(f"s_cbranch_execz {cs}")
        e("global_load_dword v157, v[30:31], off")
        k.label(cs)
        e("s_mov_b64 exec, -1")
    touch_w1()
    su.issue_w(2)
    srd(B1)
    e("s_mul_i32 s12, s8, 192")
    e("v_lshlrev_b32 v30, 3, v3")
    for j in range(6):
        k.vmem(f"buffer_load_dwordx2 {V(200+2*j,2)}, v30, {B1}, s12 offen offset:{32*j}")
    for n_ in (WS, DBG, WO, W2, B2, OUT):
        srd(n_)
    diag_clear()
    e("v_lshrrev_b32 v16, 2, v2")
    e("v_lshl_add_u32 v16, v3, 3, v16")
    e("v_mul_u32_u24 v16, 192, v16")
    e("v_and_b32 v12, 3, v2")
    e("v_lshl_add_u32 v16, v12, 3, v16")
    e("v_add_u32 v16, s7, v16")
    e("v_and_b32 v12, 1, v3")
    e("v_lshlrev_b32 v12, 5, v12")
    e("v_xor_b32 v13, 32, v12")
    e("v_add_u32 v17, v16, v13")
    e("v_add_u32 v16, v16, v12")
    e("s_and_b32 s13, s9, 6")
    e(f"s_mul_i32 s13, s13, {4*HS}")
    e("s_lshl_b32 s12, s97, 13")
    e("s_add_u32 s13, s13, s12")
    if HF:
        e(f"s_add_u32 s13, s13, {HF}")
    for b in range(4):
        e(f"s_add_u32 s12, s3, {1+b}")
        e("s_and_b32 s12, s12, 3")
        e(f"s_mul_i32 s12, s12, {HS}")
        e("s_add_u32 s12, s12, s13")
        e(f"v_add_u32 v{12+b}, s12, v4")
    e("s_and_b32 s12, s9, 1")
    e("s_xor_b32 s12, s12, 1")
    e("s_lshl_b32 s12, s12, 18")
    for q in range(4):
        e(f"s_xor_b32 s{92+q}, s90, {q}")
        e(f"s_lshl_b32 s{92+q}, s{92+q}, 11")
        e(f"s_add_u32 s{92+q}, s{92+q}, s12")
    run_all(k, p3_setup(False))
    e(f"s_add_u32 s12, s7, {RB}")
    e("v_add_u32 v26, s12, v4")
    for o in range(1, 4):
        e(f"s_add_u32 s12, s3, {o}")
        e("s_and_b32 s12, s12, 3")
        e("s_mul_i32 s12, s12, 40960")
        e(f"s_add_u32 s12, s12, {RB + (3-o)*6144}")
        e(f"v_add_u32 v{26+o}, s12, v4")
    e("s_and_b32 s12, s2, 7")
    e("s_lshr_b32 s13, s97, 1")
    e("s_lshl_b32 s13, s13, 3")
    e("s_add_u32 s12, s12, s13")
    e("s_lshl_b32 s12, s12, 8")
    e(f"s_add_u32 s12, s12, {CNT + 96*256}")
    e("v_mov_b32 v18, s12")
    for snd in range(2):
        e("s_lshl_b32 s12, s8, 3")
        e("s_add_u32 s12, s12, s9")
        if snd:
            e("s_xor_b32 s12, s12, 1")
        e("s_lshl_b32 s13, s12, 8")
        e("s_lshl_b32 s14, s3, 6")
        e("s_add_u32 s13, s13, s14")
        e(f"s_add_u32 s13, s13, {CNT + 256*256}")
        e(f"v_mov_b32 {'v21' if snd else 'v235'}, s13")
        e("s_lshl_b32 s12, s12, 2")
        e("s_add_u32 s12, s12, s3")
        e("s_mul_i32 s12, s12, 6144")
        e(f"s_add_u32 s12, s12, {UX}")
        e(f"v_add_u32 {'v20' if snd else 'v234'}, s12, v4")
    c0 = -2.0 * 0.7978845608028654 * 1.4426950408889634
    c1 = c0 * 0.044715
    e("s_lshl_b32 s15, s9, 2")
    e("s_add_u32 s15, s15, s3")
    e("s_mul_i32 s15, s15, 43")
    e("s_mul_i32 s13, s8, 3")
    e("s_add_u32 s15, s15, s13")
    e("s_lshl_b32 s15, s15, 10")
    e(f"s_add_u32 s15, s15, {GUF}")
    e("s_cmp_eq_u32 s8, 14")
    e("s_cselect_b32 s13, 0x7ff00000, 0")
    e("v_or_b32 v19, s13, v4")
    su.issue_w(4)
    tz_ = zload()
    su.issue_w(UL)
    k.stamp(5)
    su.to_regs(2, opt.get("u_hold", 1))
    k.wait_vm(tz_)
    for j in range(6):
        e(f"v_lshlrev_b32 v{176+4*j}, 16, v{200+2*j}")
        e(f"v_and_b32 v{177+4*j}, 0xffff0000, v{200+2*j}")
        e(f"v_lshlrev_b32 v{178+4*j}, 16, v{201+2*j}")
        e(f"v_and_b32 v{179+4*j}, 0xffff0000, v{201+2*j}")
    zcheck()
    k.stamp(1)
    drained = k.poll2("v18", WS, 32, lambda: (su.issue_w(8 - opt.get("u_keep", 0)), su.to_regs(opt.get("u_r", 4), 9)))
    k.stamp(2)
    k.stamp(1, True)
    seq = []
    for ps_ in range(2):
        seq += [(8*ps_ + t, b) for t in range(4) for b in range(4)] + [(8*ps_ + t, b) for b in range(4) for t in range(4, 8)]

    def u_post(win):
        if win % 8 < 5:
            return []
        b = win % 8 - 5
        return [f"ds_write_b128 v26, {uacc(0, b, j)} offset:{(b*6+j)*1024}" for j in range(6)]
    pe_all = wo_dma() + p3_e1()
    cuts = [0, 8, 16, 24, 32, 38]
    UE1 = opt.get("u_e1", 0)
    pe = pe_all[:cuts[UE1]]
    UPW, UPN = opt.get("u_pw", 10), opt.get("u_pn", 5)
    xt = {}

    def rd_(c):
        o, hf = 1 + c // 2, c % 2
        return [f"ds_read_b128 {V(200+12*hf+4*j,4)}, v{26+o} offset:{(3*hf+j)*1024}" for j in range(3)]

    def ad_(c):
        hf = c % 2
        if opt.get("u_pk", 0):
            return [f"v_pk_add_f32 {V(152+12*hf+2*r,2)}, {V(152+12*hf+2*r,2)}, {V(200+12*hf+2*r,2)}" for r in range(6)]
        return [f"v_add_f32 v{152+12*hf+r}, v{152+12*hf+r}, v{200+12*hf+r}" for r in range(12)]

    def st_(j):
        return lambda: xt.__setitem__(0, k.vmem(f"buffer_store_dwordx4 {V(152+4*j,4)}, v20, {WS}, {'0' if j < 4 else 's84'} offen offset:{(j%4)*1024} sc1"))
    red = ["s_barrier"] + rd_(0) + rd_(1) + ["s_nop 0"] * 6
    for c in range(6):
        red += ["s_waitcnt lgkmcnt(3)" if c < 5 else "s_waitcnt lgkmcnt(0)"]
        if c == 5:
            red += mix(ad_(c), [st_(j) for j in range(3)]) + [st_(j) for j in range(3, 6)]
        else:
            red += ad_(c)
        if c + 2 < 6:
            red += rd_(c + 2)
    XE = opt.get("u_xe", 1)
    XE2 = opt.get("u_xe2", 0)
    tx_ = {}

    def xcheck():
        k.wait_vm(xt[1])
        if not opt.get("nowait"):
            dn = k.newlab("L_xf")
            e("v_cmp_gt_u32 vcc, 1, v31")
            e(f"s_cbranch_vccz {dn}")
            k.poll("v235", WS, 1)
            k.label(dn)

    def xl(j):
        return lambda: tx_.__setitem__(j, k.vmem(f"buffer_load_dwordx4 {V(200+4*j,4)}, v234, {WS}, {'0' if j < 4 else 's84'} offen offset:{(j%4)*1024} sc1"))
    RN = opt.get("u_rn", 2)
    XF = opt.get("u_xf", 11)

    def u_extra(win):
        out = []
        if 8 <= win < 8 + RN:
            n_ = -(-len(red) // RN)
            out = red[(win-8)*n_:(win-7)*n_]
        if win == 12:
            out = out + ["s_barrier"]
        if win == 3:
            out = out + ["v_mov_b32 v5, 128", lambda: zload()]
        UPF = [int(x) for x in str(opt.get("u_pf", "")).split(",") if x != ""]
        if UPF and win == 1:
            out = out + ["v_lshrrev_b32 v6, 3, v1", "v_and_b32 v7, 7, v1", "v_lshlrev_b32 v6, 12, v6", "v_lshl_add_u32 v6, v7, 7, v6",
                         f"s_mul_i32 s13, s3, {352*4096}", "s_and_b32 s14, s6, 15", "s_lshl_b32 s14, s14, 15", "s_add_u32 s13, s13, s14",
                         "s_lshl_b32 s14, s4, 10", "s_add_u32 s13, s13, s14", "v_add_u32 v6, s13, v6"]
        if win in UPF:
            r0 = [192, 64, 0][UPF.index(win)]
            out = out + [lambda r0=r0: (e(f"s_mov_b32 s13, {r0*4096}"), k.vmem(f"buffer_load_dword v7, v6, {W2}, s13 offen"))]
        if win == XF:
            out = out + [lambda: (k.wait_vm(xt[0]), zcheck()), lambda: k.vmem(f"buffer_store_dword v5, v21, {WS}, 0 offen sc1")]
        if UPW <= win < UPW + UPN:
            n3 = -(-len(pe) // UPN)
            out = out + pe[(win-UPW)*n3:(win-UPW+1)*n3]
        if win == 15:
            out = out + [f"s_mov_b32 s92, {hex(f32bits(c1))}", f"s_mov_b32 s93, {hex(f32bits(c1))}",
                         f"v_mov_b32 v20, {hex(f32bits(c0))}", f"v_mov_b32 v21, {hex(f32bits(c0))}"]
            if XE:
                out = out + ["s_nop 0"]*XE2 + [xcheck] + [xl(j) for j in range(6)]
        if win == (14 if XE else 15):
            out = out + ["s_nop 0"]*XE + [lambda: xt.__setitem__(1, k.vmem(f"buffer_load_dword v31, v235, {WS}, 0 offen sc1"))]
        return out
    su.run(seq, opt.get("u_la", 12), drained, u_post, 0, u_extra, prewin=lambda win: k.lgkm0() if win == 8 else None,
           prof=dict(zip((0, 1, 2, 3, 4, 6, 8, 10, 12, 14), (2, 3, 4, 5, 6, 7, 8, 0, 9, 10))))
    k.stamp(11, True)
    k.stamp(3)
    if not XE:
        xcheck()
        for j in range(6):
            xl(j)()
    k.lgkm0()
    e("s_barrier")
    for p in range(3):
        for o in range(1, 4):
            for j in (2*p, 2*p+1):
                e(f"ds_read_b128 {V(8+24*o+4*j,4)}, v{26+o} offset:{j*1024}")
        if p == 1:
            e("s_waitcnt lgkmcnt(6)") if not opt.get("diag") else k.lgkm0()
    for p in range(3):
        R_ = range(4*p, 4*p+4)
        if p == 1:
            e("s_waitcnt lgkmcnt(6)") if not opt.get("diag") else k.lgkm0()
        if p == 2:
            k.lgkm0()
        run_all(k, [f"v_pk_add_f32 {V(32+2*r,2)}, {V(32+2*r,2)}, {V(56+2*r,2)}" for r in R_])
        run_all(k, [f"v_pk_add_f32 {V(176+2*r,2)}, {V(176+2*r,2)}, {V(80+2*r,2)}" for r in R_])
        run_all(k, [f"v_pk_add_f32 {V(32+2*r,2)}, {V(32+2*r,2)}, {V(176+2*r,2)}" for r in R_])
    tst = {}
    for p in range(3):
        R_ = range(4*p, 4*p+4)
        k.wait_vm(tx_[2*p+1])
        va = []
        va += [f"v_pk_add_f32 {V(32+2*r,2)}, {V(32+2*r,2)}, {V(200+2*r,2)}" for r in R_]
        va += [f"v_pk_mul_f32 {V(56+2*r,2)}, {V(32+2*r,2)}, {V(32+2*r,2)}" for r in R_]
        va += [f"v_pk_fma_f32 {V(56+2*r,2)}, {V(56+2*r,2)}, s[92:93], v[20:21]" for r in R_]
        va += [f"v_pk_mul_f32 {V(56+2*r,2)}, {V(56+2*r,2)}, {V(32+2*r,2)}" for r in R_]
        va += [f"v_exp_f32 v{56+r}, v{56+r}" for r in range(8*p, 8*p+8)]
        va += [f"v_add_f32 v{56+r}, 1.0, v{56+r}" for r in range(8*p, 8*p+8)]
        va += [f"v_rcp_f32 v{56+r}, v{56+r}" for r in range(8*p, 8*p+8)]
        va += [f"v_pk_mul_f32 {V(32+2*r,2)}, {V(32+2*r,2)}, {V(56+2*r,2)}" for r in R_]
        va += [f"v_cvt_pk_bf16_f32 v{136+4*p+q}, v{32+8*p+2*q}, v{33+8*p+2*q}" for q in range(4)]
        run_all(k, va)
        tst[p] = k.vmem(f"buffer_store_dwordx4 {V(136+4*p,4)}, {'v4' if p == 0 else 'v19'}, {WS}, s15 offen offset:{p*1024} sc1")
    k.stamp(4)
    ncut = cuts[min(5, UE1 + opt.get("u_e2", 2))]
    tof = k.vmem(f"buffer_load_dword v29, v240, {WS}, 0 offen sc1")
    run_all(k, pe_all[len(pe):ncut])
    e("s_lshl_b32 s12, s9, 10")
    e(f"s_add_u32 s12, s12, {CNT + 64*256}")
    k.wait_vm(tst[2])
    e("s_barrier")
    k.arrive(WS, "s12", 4)
    k.stamp(7)
    run_all(k, pe_all[ncut:])
    k.wait_vm(tof)
    e("s_branch L_p3")

    k.label("L_spare")
    for n_ in (WS, DBG):
        srd(n_)
    touch_w1()
    for n_ in (WO, W2, B2, OUT):
        srd(n_)
    diag_clear()
    run_all(k, p3_setup(False))
    if opt.get("spf", 1):
        e("v_lshlrev_b32 v30, 7, v1")
        e("s_lshl_b32 s12, s9, 2")
        e("s_add_u32 s12, s12, s3")
        e("s_lshl_b32 s12, s12, 14")
        e(f"buffer_load_dword v31, v30, {WO}, s12 offen")
        e("s_add_u32 s12, s12, 8192")
        e(f"buffer_load_dword v31, v30, {WO}, s12 offen")
        e(f"s_mul_i32 s12, s3, {352*4096}")
        e("s_lshl_b32 s13, s9, 13")
        e("s_add_u32 s12, s12, s13")
        e(f"s_add_u32 s13, s12, {320*4096}")
        for z_ in range(2):
            e(f"buffer_load_dword v31, v30, {W2}, s13 offen")
            e("s_add_u32 s13, s13, 65536")
        e("s_mov_b32 s14, 0")
        lp = k.newlab("L_spf")
        k.label(lp)
        e(f"buffer_load_dword v31, v30, {W2}, s12 offen")
        e("s_add_u32 s12, s12, 65536")
        e("s_add_u32 s14, s14, 1")
        e("s_waitcnt vmcnt(2)")
        e(f"s_cmp_lt_u32 s14, {opt.get('spf_n', 5)}")
        e(f"s_cbranch_scc1 {lp}")
        k.wait_vm0()
        k.stamp(6)
    e("v_mov_b32 v5, 128")
    k.poll("v5", DBG, 1)
    e(f"v_mov_b32 v30, {CNT}")
    k.poll("v30", WS, 16, sleep=32)
    run_all(k, wo_dma() + p3_e1())
    e("v_mov_b32 v29, 0")

    k.label("L_p3")
    k.c("================= P3 =================")

    def p_mm(t, b, j):
        d = V(YA + (b*4 + j)*4, 4)
        return mf(d, freg(t, b), A((t % PNWB)*16 + j*4, 4), d)

    k.vm = 16
    sp = SK(k, 11, PL, PNWB, PFB, 4, p_wdma, p_wread, p_fload, p_mm)
    QY = 6 - opt.get("q_w", 2)
    twos = k.vm + 4*(6 - QY)
    sp.assume_issued(PE, 4)
    k.wait_vm(twos)
    for t in range(4):
        for j in range(4):
            e(f"ds_read_b64_tr_b16 {A(64+t*16+j*4,2)}, v{224+j} offset:{t*4096}")
            e(f"ds_read_b64_tr_b16 {A(66+t*16+j*4,2)}, v{224+j} offset:{t*4096+2048}")
    if not opt.get("nowait"):
        dn = k.newlab("L_of")
        e("v_cmp_gt_u32 vcc, 8, v29")
        e(f"s_cbranch_vccz {dn}")
        k.poll("v240", WS, 8)
        k.label(dn)
    k.stamp(8)
    aft = {}

    def afl(t, b):
        def f():
            aft[(t, b)] = k.vmem(f"buffer_load_dwordx4 {A(128+t*16+4*b,4)}, v{232+(b&1)}, {WS}, {'0' if b < 2 else 's91'} offen offset:{t*1024} sc1")
        return f
    ALA = opt.get("a_la", 12)
    al = [afl(t, b) for t in range(4) for b in range(4)]
    al += [lambda j=j: aft.__setitem__("g", k.vmem(f"buffer_load_dword v{32+2*j}, v242, {WS}, 0 offen offset:{64*j} sc1")) for j in range(4)]
    run_all(k, al[:ALA])
    al = al[ALA:]
    PR0 = opt.get("p_r0", 2)
    sp.to_regs(PR0, 9)
    k.lgkm0()
    for win in range(4):
        mfmas = []
        for b in range(4):
            for j in range(4):
                d = V(YA + (j*4 + b)*4, 4)
                pre = (lambda x=(win, b): k.wait_vm(aft[x])) if j == 0 else None
                mfmas.append((pre, mf(d, A(64+win*16+j*4, 4), A(128+win*16+4*b, 4), "0" if win == 0 else d)))
        fl_ = al[:4]
        al = al[4:]
        if win == opt.get("p_gw", 3):
            fl_ = fl_ + [lambda: aft.__setitem__("gu", k.vmem(f"buffer_load_dword v31, v241, {WS}, 0 offen sc1"))]
        if sp.issued < min(10, sp.nread + PL):
            fl_ = fl_ + p_wdma(sp.issued, sp.wt)
            sp.issued += 1
        rd = []
        if sp.nread < 4:
            rd = [lambda u=sp.nread: k.wait_vm(sp.wt[u])] + p_wread(sp.nread)
            sp.nread += 1
        interleave(k, mfmas, mix(rd, fl_), tail=2)
        if rd:
            k.lgkm0()
    sc = [f"v_sub_f32 v{48+2*j}, 1.0, v{32+2*j}" for j in range(4)]
    sc += [f"v_max_f32 v{48+2*j}, {hex(f32bits(1e-30))}, v{48+2*j}" for j in range(4)]
    sc += [f"v_rcp_f32 v{56+j}, v{48+2*j}" for j in range(4)]
    sc += [f"v_lshlrev_b32 v{40+2*j}, 16, v{252+j}" for j in range(4)]
    sc += [f"v_mul_f32 v{32+2*j}, v{32+2*j}, v{56+j}" for j in range(4)]
    for b in range(4):
        for j in range(4):
            for h_ in range(2):
                r = YA + (b*4 + j)*4 + 2*h_
                if b < 3:
                    sc.append(f"v_pk_mul_f32 {V(r,2)}, {V(r,2)}, {V(32+2*j,2)} op_sel_hi:[1,0]")
                else:
                    sc.append(f"v_pk_fma_f32 {V(r,2)}, {V(r,2)}, {V(32+2*j,2)}, {V(40+2*j,2)} op_sel_hi:[1,0,0]")
    PLA = 12
    seq_y = [(t, b) for t in range(7) for b in range(4)] + [(t, b) for b in range(4) for t in range(7, 11)]
    k.wait_vm(max(aft["gu"], aft["g"]))
    k.stamp(0)
    if not opt.get("nowait"):
        fast = k.newlab("L_yf")
        jn = k.newlab("L_yj")
        e("v_cmp_gt_u32 vcc, 15, v31")
        e(f"s_cbranch_vccz {fast}")
        vs = k.vm
        run_all(k, sc)
        k.poll("v241", WS, 15)
        k.stamp(9)
        for i in range(PLA):
            run_all(k, p_fload(*seq_y[i], sp.ft))
        e(f"s_branch {jn}")
        k.label(fast)
        k.vm = vs
    run_all(k, mix(sum((p_fload(*seq_y[i], sp.ft) for i in range(PLA)), []), sc))
    if not opt.get("nowait"):
        k.label(jn)
    k.nop(2)

    def comb(b):
        return [f"ds_write_b128 v244, {V(YA+(b*4+j)*4,4)} offset:{(b*4+j)*1024}" for j in range(4)]
    sp.run(seq_y, PLA, 0, lambda win: comb(win - 8) if win >= 8 else [], rmax=1, pre_issued=PLA,
           prof=(dict(zip(range(11), (1, 2, 3, 4, 5, 6, 7, 8, 0, 9, 10))) if opt.get("prof") == 2 else None))
    if opt.get("prof") == 2:
        k.stamp(11, True)
    k.stamp(10)
    k.lgkm0()
    e("s_barrier")
    for o in range(3):
        for j in range(4):
            e(f"ds_read_b128 {V(AA+16*o+4*j,4)}, v{245+o} offset:{j*1024}")
    for o in range(3):
        e(f"s_waitcnt lgkmcnt({8-4*o})") if not opt.get("diag") else k.lgkm0()
        for r in range(8):
            e(f"v_pk_add_f32 {V(YA+48+2*r,2)}, {V(YA+48+2*r,2)}, {V(AA+16*o+2*r,2)}")
    for r in range(8):
        e(f"v_pk_mul_f32 {V(YA+48+2*r,2)}, {V(YA+48+2*r,2)}, {V(48+2*(r//2),2)} op_sel_hi:[1,0]")
    for t in range(4):
        e(f"v_cvt_pk_bf16_f32 v{32+2*t}, v{YA+48+4*t}, v{YA+49+4*t}")
        e(f"v_cvt_pk_bf16_f32 v{33+2*t}, v{YA+50+4*t}, v{YA+51+4*t}")
    k.nop(2)
    for p in range(2):
        e(f"v_permlane16_swap_b32 v{32+4*p}, v{34+4*p}")
        e(f"v_permlane16_swap_b32 v{33+4*p}, v{35+4*p}")
    k.nop(1)
    for p in range(2):
        e(f"buffer_store_dwordx4 {V(32+4*p,4)}, v{248+p}, {OUT}, s87 offen {opt.get('oflags', '')}")
    if opt.get("diag"):
        e("s_waitcnt vmcnt(0)")
        k.stamp(11)
        k.lgkm0()
        for i in range(12):
            e(f"v_mov_b32 v{32+i}, s{16+2*i}")
        e("v_mov_b32 v44, s98")
        e("s_getreg_b32 s12, hwreg(HW_REG_XCC_ID)")
        e("v_mov_b32 v45, s12")
        e("s_lshl_b32 s12, s2, 2")
        e("s_add_u32 s12, s12, s3")
        e("s_lshl_b32 s12, s12, 6")
        e(f"s_add_u32 s12, s12, {DIAG}")
        e("v_mov_b32 v30, 0")
        e("s_mov_b64 exec, 1")
        for i in range(4):
            e(f"buffer_store_dwordx4 {V(32+4*i,4)}, v30, {WS}, s12 offen offset:{16*i}")
    k.label("L_end")
    e("s_endpgm")
    return "\n".join(k.l)


HEADER = open("cdna_kernels/" + NAME + ".s.ref").read().split("; Override launch geometry")[0]


def gen_meas(opt):
    mj, mk = opt["meas"], opt.get("mk", 1)
    l = []
    a = l.append
    a("s_cmp_ge_u32 s2, 1")
    a("s_cbranch_scc1 M_end")
    a("s_memrealtime s[30:31]")
    a("s_load_dwordx2 s[4:5], s[0:1], 88")
    a("v_lshlrev_b32 v1, 6, v0")
    a("v_mov_b32 v2, -1")
    a("v_mov_b32 v3, 0")
    a("s_waitcnt lgkmcnt(0)")
    a("s_mov_b32 s8, s4")
    a("s_mov_b32 s9, s5")
    a(f"s_mov_b32 s10, {WS_BYTES}")
    a("s_mov_b32 s11, 0x20000")
    lo, hi = {"Q": (0, 8), "U": (8, 16), "A": (0, 16)}[opt.get("mrole", "A")]
    for it in range(16):
        a(f"s_mov_b32 s12, {DIAG + it*4096}")
        a(f"buffer_load_dword v4, v1, s[8:11], s12 offen offset:48")
        a(f"buffer_load_dword v5, v1, s[8:11], s12 offen offset:{4*mj}")
        a("s_waitcnt vmcnt(0)")
        a("v_min_u32 v2, v2, v4")
        if lo <= it < hi:
            a("v_max_u32 v3, v3, v5")
    a("s_mov_b32 s14, -1")
    a("s_mov_b32 s15, 0")
    a("s_nop 4")
    for i in range(64):
        a(f"v_readlane_b32 s16, v2, {i}")
        a(f"v_readlane_b32 s17, v3, {i}")
        a("s_nop 3")
        a("s_min_u32 s14, s14, s16")
        a("s_max_u32 s15, s15, s17")
    if opt.get("mpost"):
        a("s_sub_u32 s15, s30, s15")
    else:
        a("s_sub_u32 s15, s15, s14")
    a("s_min_u32 s15, s15, 20000")
    a(f"s_mul_i32 s15, s15, {mk}")
    a("s_memrealtime s[20:21]")
    a("s_waitcnt lgkmcnt(0)")
    a("M_spin:")
    a("s_memrealtime s[22:23]")
    a("s_waitcnt lgkmcnt(0)")
    a("s_sub_u32 s24, s22, s20")
    a("s_cmp_lt_u32 s24, s15")
    a("s_cbranch_scc1 M_spin")
    a("M_end:")
    a("s_endpgm")
    return "\n".join(l)


def gen_file(opt):
    kn = NAME + "_kernel"
    nl = opt.get("launches", 1)
    s = HEADER
    for _ in range(opt.get("pre_empty", 0)):
        s += "; @launch kernel=empty_kernel grid=(1,1,1) block=(64,1,1) lds=0\n"
    if opt.get("pre_empty") and "meas" not in opt:
        s += f"; @launch kernel={kn} grid=(256,1,1) block=(256,1,1) lds=163840\n"
    elif "meas" in opt:
        s += f"; @launch kernel={kn} grid=(256,1,1) block=(256,1,1) lds=163840\n"
        s += f"; @launch kernel=meas_kernel grid=(1,1,1) block=(64,1,1) lds=0\n"
    elif nl == 1:
        s += "; @launch grid=(256,1,1) block=(256,1,1) lds=163840\n"
    else:
        for _ in range(nl):
            s += f"; @launch kernel={kn} grid=(256,1,1) block=(256,1,1) lds=163840\n"
    extra_code = ""
    if "meas" in opt:
        extra_code = ".globl meas_kernel\n.p2align 8\n.type meas_kernel,@function\nmeas_kernel:\n" + gen_meas(opt) + "\n"
    if opt.get("pre_empty"):
        extra_code += ".globl empty_kernel\n.p2align 8\n.type empty_kernel,@function\nempty_kernel:\n s_endpgm\n"
    s += f""".amdgcn_target "amdgcn-amd-amdhsa--gfx950"
.text
.globl {kn}
.p2align 8
.type {kn},@function
{kn}:
{gen_body(opt)}
{extra_code}.section .rodata,"a"
.p2align 6
.amdhsa_kernel {kn}
  .amdhsa_next_free_vgpr 512
  .amdhsa_next_free_sgpr 102
  .amdhsa_accum_offset 256
  .amdhsa_group_segment_fixed_size 0
  .amdhsa_kernarg_size 96
  .amdhsa_user_sgpr_count 2
  .amdhsa_user_sgpr_kernarg_segment_ptr 1
  .amdhsa_system_sgpr_workgroup_id_x 1
.end_amdhsa_kernel
"""
    if "meas" in opt:
        s += """.p2align 6
.amdhsa_kernel meas_kernel
  .amdhsa_next_free_vgpr 32
  .amdhsa_next_free_sgpr 102
  .amdhsa_accum_offset 32
  .amdhsa_group_segment_fixed_size 0
  .amdhsa_kernarg_size 96
  .amdhsa_user_sgpr_count 2
  .amdhsa_user_sgpr_kernarg_segment_ptr 1
  .amdhsa_system_sgpr_workgroup_id_x 1
.end_amdhsa_kernel
"""
    if opt.get("pre_empty"):
        s += """.p2align 6
.amdhsa_kernel empty_kernel
  .amdhsa_next_free_vgpr 32
  .amdhsa_next_free_sgpr 102
  .amdhsa_accum_offset 32
  .amdhsa_group_segment_fixed_size 0
  .amdhsa_kernarg_size 96
  .amdhsa_user_sgpr_count 2
  .amdhsa_user_sgpr_kernarg_segment_ptr 1
  .amdhsa_system_sgpr_workgroup_id_x 1
.end_amdhsa_kernel
"""
    return s


if __name__ == "__main__":
    opt = {}
    out = None
    for a in sys.argv[1:]:
        if "=" in a:
            kk, vv = a.split("=", 1)
            try:
                vv = int(vv)
            except ValueError:
                pass
            opt[kk] = vv
        else:
            out = a
    txt = gen_file(opt)
    open(out or ("cdna_kernels/" + NAME + ".s"), "w").write(txt)
```

```python
import sys

NAME = "gated_mix__linear_attn_block__mixer_token_mlp__prompt"

HF = 0x000000
GUF = 0x240000
OF = 0x400000
KVP = 0x600000
ZP = 0x608000
GG = 0x690000
CNT = 0x6A0000
AF = 0x6C0000
DIAG = 0x7E0000
UX = 0x800000
WS_BYTES = 0xC00000

X, WQKV, WO, W1, B1, W2, B2, GW, OUT, DBG, WS = [f"s[{40+4*i}:{43+4*i}]" for i in range(11)]
SRD_INFO = [(40, 16, 2048*512*2), (44, 18, 512*1536*2), (48, 20, 512*512*2), (52, 24, 2048*1376*2),
            (56, 26, 1376*2), (60, 28, 1376*2048*2), (64, 30, 2048*2), (68, 32, 512*2),
            (72, 34, 2048*512*2), (76, 36, 256), (80, 38, WS_BYTES)]

LOG2E = 0x3fb8aa3b
HS = 65536
HQ = 0


def f32bits(x):
    import struct
    return struct.unpack("<I", struct.pack("<f", x))[0]


def rr(kind, base, n):
    return f"{kind}{base}" if n == 1 else f"{kind}[{base}:{base+n-1}]"


def V(b, n=1):
    return rr("v", b, n)


def A(b, n=1):
    return rr("a", b, n)


class Em:
    def __init__(self, opt):
        self.l = []
        self.vm = 0
        self.lab = 0
        self.opt = opt
        self.nstamp = 0

    def e(self, s):
        self.l.append("    " + s)

    def c(self, s):
        self.l.append("    ; " + s)

    def label(self, s):
        self.l.append(s + ":")

    def newlab(self, p="L"):
        self.lab += 1
        return f"{p}_{self.lab}"

    def vmem(self, s):
        self.e(s)
        self.vm += 1
        return self.vm

    def wait_vm(self, tok):
        n = self.vm - tok
        assert n >= 0
        self.e(f"s_waitcnt vmcnt({min(n, 63)})")

    def wait_vm0(self):
        self.e("s_waitcnt vmcnt(0)")

    def lgkm0(self):
        self.e("s_waitcnt lgkmcnt(0)")

    def nop(self, n):
        while n > 0:
            k = min(n, 16)
            self.e(f"s_nop {k-1}")
            n -= k

    def stamp(self, i, prof=False):
        if prof is True:
            prof = self.opt.get("prof") if self.opt.get("prof") in (1, 2) else -1
        if (self.opt.get("prof") or False) != prof:
            return
        if self.opt.get("diag"):
            assert i < 12
            self.e(f"{'s_memtime' if self.opt.get('clk') else 's_memrealtime'} s[{16+2*i}:{17+2*i}]")

    def dma(self, voff, srd, soff, m0expr, flags=""):
        sreg, imm = m0expr
        if sreg is None:
            self.e(f"s_mov_b32 m0, {imm}")
        else:
            self.e(f"s_add_u32 m0, {sreg}, {imm}")
        sr, si = soff
        self.e(f"s_add_u32 s13, {sr}, {si}")
        return self.vmem(f"buffer_load_dwordx4 {voff}, {srd}, s13 offen {flags} lds".replace("  ", " "))

    def poll(self, voff, srd, expect, tmp="v31", sleep=None):
        if self.opt.get("nowait"):
            self.wait_vm0()
            return
        lp = self.newlab("L_poll")
        dn = self.newlab("L_polled")
        self.e("s_mov_b32 s14, 0")
        self.label(lp)
        self.e(f"buffer_load_dword {tmp}, {voff}, {srd}, 0 offen sc1")
        self.e("s_add_u32 s14, s14, 1")
        self.e("s_waitcnt vmcnt(0)")
        self.e(f"v_cmp_gt_u32 vcc, {expect}, {tmp}")
        self.e(f"s_cbranch_vccz {dn}")
        self.e(f"s_sleep {sleep or self.opt.get('sleep', 1)}")
        self.e("s_cmp_lt_u32 s14, 0x40000")
        self.e(f"s_cbranch_scc1 {lp}")
        self.label(dn)

    def poll2(self, voff, srd, expect, more, tmp="v31"):
        if self.opt.get("nowait"):
            more()
            return 0
        t = self.vmem(f"buffer_load_dword {tmp}, {voff}, {srd}, 0 offen sc1")
        more()
        self.wait_vm(t)
        dn = self.newlab("L_fast")
        self.e(f"v_cmp_gt_u32 vcc, {expect}, {tmp}")
        self.e(f"s_cbranch_vccz {dn}")
        self.poll(voff, srd, expect, tmp)
        self.label(dn)
        return t

    def arrive(self, srd, off_sreg, nrep):
        sk = self.newlab("L_arr")
        self.e("s_cmp_lg_u32 s3, 0")
        self.e(f"s_cbranch_scc1 {sk}")
        self.e("v_lshlrev_b32 v30, 8, v1")
        self.e("v_mov_b32 v31, 1")
        self.e(f"s_mov_b64 exec, {(1 << nrep) - 1}")
        self.e(f"buffer_atomic_add v31, v30, {srd}, {off_sreg} offen sc1")
        self.e("s_mov_b64 exec, -1")
        self.label(sk)


def mf(d, a, b, c):
    return f"v_mfma_f32_16x16x32_bf16 {d}, {a}, {b}, {c}"


def interleave(k, mfmas, fillers, tail=2, cap=2, late=(), at=None):
    nm = len(mfmas)
    if late:
        interleave(k, mfmas[:8], fillers[:len(fillers) * 8 // nm + 1], tail=0, cap=cap)
        interleave(k, mfmas[8:], mix(list(late), fillers[len(fillers) * 8 // nm + 1:]), tail=min(tail, 1), cap=cap)
        return
    nf = len(fillers)
    span = max(1, nm - tail)
    fi = 0
    for i, (pre, txt) in enumerate(mfmas):
        if pre:
            pre()
        k.e(txt)
        want = min(nf, -(-(i + 1) * nf // span))
        budget = cap - (1 if (i + 1 < nm and mfmas[i + 1][0]) else 0)
        if at and i in at:
            run_all(k, at[i])
            budget -= len(at[i])
        while fi < want and budget > 0:
            f = fillers[fi]
            fi += 1
            budget -= 1
            if callable(f):
                f()
            else:
                k.e(f)
    while fi < nf:
        f = fillers[fi]
        fi += 1
        if callable(f):
            f()
        else:
            k.e(f)


def run_all(k, items):
    for f in items:
        if callable(f):
            f()
        else:
            k.e(f)


def mix(a, b):
    out = []
    ia = ib = 0
    while ia < len(a) or ib < len(b):
        if ib >= len(b) or (ia < len(a) and ia * len(b) <= ib * len(a)):
            out.append(a[ia])
            ia += 1
        else:
            out.append(b[ib])
            ib += 1
    return out


class SK:
    def __init__(self, k, n, L, NWB, FB, NF, wdma, wread, fload, mm):
        self.__dict__.update(locals())
        self.wt = {}
        self.ft = {}
        self.issued = 0
        self.nread = 0
        self.done = set()
        self.wdone = 0
        self.wq = []
        self.wtmp = {}
        self.wage = {}

    def issue_w(self, upto):
        while self.issued < min(upto, self.n):
            assert self.issued < self.nread + self.L
            run_all(self.k, self.wdma(self.issued, self.wt))
            self.issued += 1

    def assume_issued(self, e, per):
        for t in range(e):
            self.k.vm += per
            self.wt[t] = self.k.vm
        self.issued = e

    def to_regs(self, R, hold=0):
        k = self.k
        while self.nread < R:
            t = self.nread
            assert t < self.wdone + self.NWB
            k.wait_vm(self.wt[t])
            run_all(k, self.wread(t))
            k.lgkm0()
            self.nread += 1
            if self.nread <= R - hold:
                self.issue_w(t + self.L + 1)

    def run(self, seq, LA, drained=0, post=None, wdelay=0, extra=None, pre_issued=0, prof=None,
            wsplit=1, rmax=2, age=2, burst=0, prewin=None):
        k, n, L = self.k, self.n, self.L
        fi = pre_issued

        def fl(i):
            t, b = seq[i]
            if t - self.FB >= 0:
                assert (t - self.FB, b) in self.done, (t, b)
            return self.fload(t, b, self.ft)
        while fi < min(LA, len(seq)):
            run_all(k, fl(fi))
            fi += 1
        for win in range(len(seq) // 4):
            if prof and win in prof:
                k.stamp(prof[win], True)
            if prewin:
                prewin(win)
            grp = seq[4*win:4*win+4]
            assert max(t % n for t, b in grp) < self.nread, (grp, self.nread)
            vm = []
            bursty = burst and (self.issued < n or self.wq)
            nfl = 4
            if bursty:
                ph = win % burst
                nfl = 0 if ph < burst // 2 else 8
            elif burst:
                nfl = max(0, min(8, 4*win + LA + 4 - fi))
            for _ in range(nfl):
                if fi < len(seq):
                    vm += fl(fi)
                    fi += 1
            assert fi >= min(len(seq), 4*win + 8), (win, fi)
            extra_fin = []
            if bursty:
                if nfl == 0:
                    for _ in range(2):
                        if self.issued < n and self.issued < self.nread + L:
                            vm += self.wdma(self.issued, self.wtmp)
                            extra_fin.append(self.issued)
                            self.issued += 1
            if not burst and not self.wq and win >= wdelay and self.issued < n and self.issued < self.nread + L:
                self.wq = self.wdma(self.issued, self.wtmp)
                self.wq_t = self.issued
                self.wq_n = -(-len(self.wq) // wsplit)
                self.issued += 1
            fin = None
            if self.wq:
                vm += self.wq[:self.wq_n]
                self.wq = self.wq[self.wq_n:]
                if not self.wq:
                    fin = self.wq_t
            rd = []
            nr = 0
            while nr < rmax:
                u = self.nread
                if not (u < n and u < self.wdone + self.NWB and u in self.wt):
                    break
                must = u <= max(t % n for t, b in seq[4*win:4*win+8])
                if not must and self.wage.get(u, -99) + age > win:
                    break
                if nr >= 1 and not must and self.issued < n:
                    break
                if self.wt[u] > drained:
                    rd.append(lambda u=u: k.wait_vm(self.wt[u]))
                rd += self.wread(u)
                self.nread += 1
                nr += 1
            mfmas = []
            for (t, b) in grp:
                for j in range(self.NF):
                    pre = (lambda t=t, b=b: k.wait_vm(self.ft[(t, b)])) if j == 0 else None
                    mfmas.append((pre, self.mm(t, b, j)))
            fill = mix(rd, vm)
            ps = post(win) if post else []
            if extra:
                fill = mix(fill, extra(win))
            interleave(k, mfmas, fill, tail=3, late=ps)
            for fin_ in ([fin] if fin is not None else []) + extra_fin:
                self.wt[fin_] = self.wtmp[fin_]
                self.wage[fin_] = win
            for gb in grp:
                self.done.add(gb)
            while self.wdone < n and all((self.wdone, b) in self.done for b in range(4)):
                self.wdone += 1
            if rd:
                k.lgkm0()
        assert not self.wq
        self.wage = {}


def gen_body(opt):
    k = Em(opt)
    e = k.e
    WFL = opt.get("wflags", "")
    ROTQ = opt.get("rot_q", 0)
    ROTU = opt.get("rot_u", 2)
    ROTP = opt.get("rot_p", 1)
    UPART = opt.get("upart", 4)
    UFL = opt.get("u_wflags", "")
    global HS
    global HQ
    HQ = opt.get("hq", 0)
    HS = opt.get("hs", 65536)
    assert HS >= 65536 + 4*HQ
    PW = "s[84:87]"

    def srd(name):
        for (d, s, sz) in SRD_INFO:
            if f"s[{d}:{d+3}]" == name:
                e(f"s_mov_b32 s{d}, s{s}")
                e(f"s_mov_b32 s{d+1}, s{s+1}")
                e(f"s_mov_b32 s{d+2}, {sz}")
                e(f"s_mov_b32 s{d+3}, 0x20000")

    def dmai(voff, srd_, soff, off, toks=None, key=None, fl=""):
        def f():
            if " m0," in k.l[-1]:
                e("s_nop 0")
            t = k.vmem(f"buffer_load_dwordx4 {voff}, {srd_}, {soff} offen offset:{off} {fl} lds".replace("  ", " "))
            if toks is not None:
                toks[key] = t
        return f

    def diag_clear():
        if opt.get("diag"):
            for i in range(16, 40):
                e(f"s_mov_b32 s{i}, 0")

    k.label("L_code0")
    e("s_cmp_ge_u32 s2, 256")
    e("s_cbranch_scc1 L_end")
    e("s_load_dwordx16 s[16:31], s[0:1], 0")
    e("s_load_dwordx8 s[32:39], s[0:1], 64")
    if opt.get("diag"):
        e(f"{'s_memtime' if opt.get('clk') else 's_memrealtime'} s[98:99]")
    e("v_lshrrev_b32 v2, 6, v0")
    e("v_and_b32 v1, 63, v0")
    e("v_readfirstlane_b32 s3, v2")
    e("s_and_b32 s4, s2, 7")
    e("s_lshr_b32 s6, s2, 3")
    e("s_and_b32 s5, s4, 1")
    e("s_lshr_b32 s4, s4, 1")
    k.c("role tile: s8 = a*4 + ((idx&15)>>2) (sb / ft), s9 = b*4 + (idx&3) (hg / dt)")
    e("s_bfe_u32 s8, s6, 0x20002")
    e("s_lshl_b32 s12, s4, 2")
    e("s_add_u32 s8, s8, s12")
    e("s_and_b32 s9, s6, 3")
    e("s_lshl_b32 s12, s5, 2")
    e("s_add_u32 s9, s9, s12")
    k.c("P3 tile: s10 = st = a*8 + (idx&7), s11 = dt3 = b*4 + 2*((idx>>3)&1) + ((idx ^ (idx>>4))&1)")
    e("s_and_b32 s10, s6, 7")
    if opt.get("stx"):
        e(f"s_xor_b32 s10, s10, {opt['stx']}")
    e("s_lshr_b32 s11, s6, 4")
    e("s_xor_b32 s11, s11, s6")
    e("s_and_b32 s11, s11, 1")
    e("s_add_u32 s11, s11, s12")
    e("s_lshr_b32 s12, s6, 2")
    e("s_and_b32 s12, s12, 2")
    e("s_add_u32 s11, s11, s12")
    e("s_lshl_b32 s12, s4, 3")
    e("s_add_u32 s10, s10, s12")
    e("s_mul_i32 s7, s3, 40960")
    e("v_and_b32 v2, 15, v1")
    e("v_lshrrev_b32 v3, 4, v1")
    e("v_lshlrev_b32 v4, 4, v1")
    e("v_mov_b32 v5, 0")
    e("s_cmp_lt_u32 s6, 16")
    e("s_cbranch_scc1 L_qrole")
    nz = k.newlab("L_nz")
    n1_ = k.newlab("L_n1")
    e("s_and_b32 s12, s2, 0xf7")
    e("s_cmp_lg_u32 s12, 230")
    e("s_cbranch_scc1 L_urole")
    e("v_mov_b32 v31, 1")
    e("v_lshlrev_b32 v30, 8, v0")
    e("s_waitcnt lgkmcnt(0)")
    srd(WS)
    srd(DBG)
    e("s_cmp_lg_u32 s2, 230")
    e(f"s_cbranch_scc1 {n1_}")
    e("s_cmp_lg_u32 s3, 0")
    e(f"s_cbranch_scc1 {nz}")
    e(f"s_mov_b32 s12, {CNT + 96*256}")
    e("s_mov_b64 exec, 0xffffffff")
    e(f"buffer_store_dword v5, v30, {WS}, s12 offen sc1")
    e("s_mov_b64 exec, -1")
    k.wait_vm0()
    e(f"buffer_store_dword v31, v5, {DBG}, 0 offen sc1")
    e(f"s_branch {nz}")
    k.label(n1_)
    e("v_lshrrev_b32 v29, 5, v0")
    e("v_cmp_ne_u32 vcc, 3, v29")
    e(f"s_mov_b32 s12, {CNT}")
    e("s_and_b64 exec, exec, vcc")
    e(f"buffer_store_dword v5, v30, {WS}, s12 offen sc1")
    e("s_mov_b64 exec, -1")
    e("v_lshlrev_b32 v30, 6, v0")
    for z_ in range(2):
        e(f"s_mov_b32 s12, {CNT + 256*256 + z_*16384}")
        e(f"buffer_store_dword v5, v30, {WS}, s12 offen sc1")
    for r in range(4):
        e(f"v_mov_b32 v{32+r}, 0")
    e("v_lshlrev_b32 v30, 4, v0")
    for z_ in range(9):
        e(f"s_mov_b32 s12, {KVP + z_*4096}")
        e(f"buffer_store_dwordx4 v[32:35], v30, {WS}, s12 offen sc1")
    k.wait_vm0()
    e("s_barrier")
    e("s_cmp_lg_u32 s3, 0")
    e(f"s_cbranch_scc1 {nz}")
    e(f"buffer_store_dword v31, v5, {DBG}, 0 offen offset:128 sc1")
    k.label(nz)
    e("s_branch L_urole")
    k.label("L_qrole")


    def touch_xw():
        if not opt.get("pfx", 2):
            return
        if opt.get("pfx", 2) == 2:
            return touch_xw_all()
        e("s_lshl_b32 s12, s6, 2")
        e("s_add_u32 s12, s12, s3")
        e("v_lshrrev_b32 v116, 2, v1")
        e("v_lshlrev_b32 v116, 10, v116")
        e("v_and_b32 v117, 3, v1")
        e("v_lshl_add_u32 v116, v117, 7, v116")
        e(f"s_mul_i32 s13, s12, {8*3072}")
        e("s_lshl_b32 s14, s5, 9")
        e("s_add_u32 s13, s13, s14")
        k.vmem(f"buffer_load_dword v157, v116, {WQKV}, s13 offen")
        e("v_lshlrev_b32 v117, 7, v1")
        e("s_lshl_b32 s12, s12, 13")
        e("s_lshl_b32 s14, s4, 19")
        e("s_add_u32 s12, s12, s14")
        k.vmem(f"buffer_load_dword v157, v117, {X}, s12 offen")
        e("s_add_u32 s13, s13, 16384")
        e("s_mov_b64 exec, 0xffffffff")
        k.vmem(f"buffer_load_dword v157, v116, {WQKV}, s13 offen")
        e("s_mov_b64 exec, -1")

    def touch_xw_all():
        e("s_lshl_b32 s12, s6, 2")
        e("s_add_u32 s12, s12, s3")
        e("v_lshrrev_b32 v116, 2, v1")
        e("v_lshlrev_b32 v116, 10, v116")
        e("v_and_b32 v117, 3, v1")
        e("v_lshl_add_u32 v116, v117, 7, v116")
        e(f"s_mul_i32 s13, s12, {4*3072}")
        e("s_lshl_b32 s14, s5, 9")
        e("s_add_u32 s13, s13, s14")
        e("s_mov_b32 s14, 0xffff")
        e("s_mov_b32 exec_hi, s14")
        k.vmem(f"buffer_load_dword v157, v116, {WQKV}, s13 offen")
        e("s_mov_b64 exec, -1")

    def touch_x_other():
        e("s_and_b32 s12, s6, 15")
        e("s_lshl_b32 s12, s12, 2")
        e("s_add_u32 s12, s12, s3")
        e("s_lshr_b32 s13, s12, 4")
        e("s_lshl_b32 s13, s13, 17")
        e("s_and_b32 s12, s12, 15")
        e("s_lshl_b32 s12, s12, 12")
        e("s_add_u32 s12, s12, s13")
        e("s_lshl_b32 s13, s4, 19")
        e("s_add_u32 s12, s12, s13")
        e("s_xor_b32 s13, s5, 1")
        e("s_lshl_b32 s13, s13, 16")
        e("s_add_u32 s12, s12, s13")
        e("v_lshlrev_b32 v117, 7, v1")
        e("s_mov_b64 exec, 0xffffffff")
        k.vmem(f"buffer_load_dword v157, v117, {X}, s12 offen")
        e("s_mov_b64 exec, -1")

    def touch_w1():
        if opt.get("pfx", 2) == 2:
            srd(X)
            srd(WQKV)
            touch_x_other()
            touch_xw_all()
        if not opt.get("pfw", 0):
            return
        bw = 768 if UPART == 4 else 384
        e("s_and_b32 s12, s6, 15")
        e("s_lshl_b32 s12, s12, 2")
        e("s_add_u32 s12, s12, s3")
        e(f"s_mul_i32 s12, s12, {32*2752}")
        if UPART == 4:
            e("s_mul_i32 s13, s4, 768")
            e("v_lshrrev_b32 v158, 3, v1")
            e("v_and_b32 v159, 7, v1")
        else:
            e("s_and_b32 s13, s2, 7")
            e("s_mul_i32 s13, s13, 384")
            e("v_lshrrev_b32 v158, 2, v1")
            e("v_and_b32 v159, 3, v1")
        e("s_add_u32 s12, s12, s13")
        e("v_lshlrev_b32 v159, 7, v159")
        e(f"v_min_u32 v159, {bw-4}, v159")
        e("v_mul_u32_u24 v158, 2752, v158")
        e("v_add_u32 v158, v158, v159")
        nrow = 8 if UPART == 4 else 16
        for j in range(32 // nrow):
            k.vmem(f"buffer_load_dword v157, v158, {W1}, s12 offen {UFL}")
            if j + 1 < 32 // nrow:
                e(f"s_add_u32 s12, s12, {nrow*2752}")

    PL, PNWB, PFB = 6, 8, 8
    PE = 6
    YA, AA = 64, 128

    def p3_setup(isq):
        out = (["s_mul_i32 s100, s3, 24576", "s_lshl_b32 s99, s3, 14", "s_add_u32 s99, s99, 98304"] if isq
               else ["s_add_u32 s100, s7, 16384", "s_mov_b32 s99, s7"])
        out += ["v_lshrrev_b32 v30, 3, v1", "v_and_b32 v31, 7, v1", "v_and_b32 v22, 6, v30", "v_xor_b32 v31, v31, v22",
                "v_lshlrev_b32 v31, 4, v31", "v_lshl_add_u32 v22, v30, 12, v31", "v_lshl_add_u32 v250, v30, 10, v31",
                "s_lshl_b32 s13, s11, 7", "s_lshl_b32 s87, s3, 5", "s_add_u32 s87, s87, s13",
                "s_lshl_b32 s12, s3, 17", "s_add_u32 s12, s12, s13", "v_add_u32 v250, s12, v250",
                f"s_mul_i32 s12, s3, {352*4096}", "s_lshl_b32 s13, s10, 7", "s_add_u32 s12, s12, s13", "v_add_u32 v22, s12, v22"]
        for j in range(1, 4):
            out.append(f"v_add_u32 v{22+j}, {j*(8*4096-1024)}, v22")
        out += [f"v_add_u32 v251, {8*1024-1024}, v250"]
        out += ["s_and_b32 s12, s10, 30", "s_add_u32 s12, s12, s5", "s_lshl_b32 s12, s12, 8",
                f"s_add_u32 s12, s12, {CNT + 32*256}", "v_mov_b32 v240, s12",
                "s_lshl_b32 s12, s11, 2", "s_add_u32 s12, s12, s4", "s_lshl_b32 s12, s12, 8",
                f"s_add_u32 s12, s12, {CNT + 64*256}", "v_mov_b32 v241, s12"]
        out += ["v_lshrrev_b32 v228, 2, v2", "v_lshl_add_u32 v228, v3, 2, v228", "v_lshrrev_b32 v229, 1, v228",
                "v_and_b32 v229, 3, v229", "v_lshlrev_b32 v228, 7, v228", "v_lshl_add_u32 v228, v229, 5, v228",
                "v_and_b32 v229, 3, v2", "v_lshl_add_u32 v228, v229, 3, v228", "v_add_u32 v227, s99, v228",
                "v_add_u32 v228, s100, v228"]
        for j in range(1, 4):
            out.append(f"v_xor_b32 v{228+j}, {32*j}, v228")
        out += ["s_lshl_b32 s12, s10, 16", "s_lshl_b32 s13, s3, 12", "s_add_u32 s12, s12, s13",
                f"s_add_u32 s12, s12, {OF}", "v_add_u32 v232, s12, v4", "v_add_u32 v233, 16384, v232",
                f"s_mul_i32 s13, s11, {4*43*1024}", f"s_mul_i32 s12, s3, {11*1024}", "s_add_u32 s13, s13, s12",
                f"s_add_u32 s13, s13, {GUF}"]
        for b in range(4):
            out += [f"s_add_u32 s12, s3, {1+b}", "s_and_b32 s12, s12, 3",
                    "s_lshl_b32 s14, s12, 5", f"v_xor_b32 v{224+b}, s14, v227",
                    f"s_mul_i32 s14, s12, {24576 if isq else 40960}"]
            base = 0 if isq else 16384
            if b < 3:
                out += [f"s_add_u32 s14, s14, {base + (2-b)*4096}", f"v_add_u32 v{245+b}, s14, v4"]
            else:
                out += ["v_add_u32 v244, s100, v4"]
            out += [f"s_mul_i32 s12, s12, {43*1024}", "s_add_u32 s12, s12, s13", f"v_add_u32 v{236+b}, s12, v4"]
        out += ["s_mov_b32 s84, 4096", "s_mov_b32 s85, 8192", "s_mov_b32 s86, 10240", "s_mov_b32 s91, 32768",
                lambda: (e("s_cmp_eq_u32 s3, 3"), e(f"s_cselect_b32 s86, {hex(WS_BYTES)}, s86")),
                "s_lshl_b32 s12, s10, 6", "v_add_u32 v248, s12, v2", "v_lshlrev_b32 v242, 2, v248",
                f"v_add_u32 v242, {GG}, v242", "v_lshlrev_b32 v243, 1, v248",
                "v_and_b32 v249, 1, v3", "v_lshl_add_u32 v248, v249, 4, v248", "v_lshlrev_b32 v248, 10, v248",
                "v_lshrrev_b32 v249, 1, v3", "v_lshl_add_u32 v248, v249, 4, v248", "v_add_u32 v249, 32768, v248"]
        for j in range(4):
            out.append(lambda j=j: k.vmem(f"buffer_load_ushort v{252+j}, v243, {B2}, 0 offen offset:{32*j}"))
        return out

    def wo_dma(d=None):
        out = []
        for t in range(4):
            for h_ in range(2):
                out += [f"s_add_u32 m0, s99, {t*4096 + h_*2048}", f"s_mov_b32 s101, {t*32*1024 + h_*16384}"]
                out += [dmai(f"v{250+j}", WO, "s101", j*1024, {} if d is None else d, t, WFL) for j in range(2)]
        return out

    def yblk(t):
        return t

    def p_wdma(t, toks):
        sl = t % PL
        out = [f"s_add_u32 m0, s100, {sl*4096}",
               f"s_mov_b32 s101, {yblk(t)*32*4096}"]
        for j in range(4):
            out.append(dmai(f"v{22+j}", W2, "s101", j*1024, toks, t, WFL))
        return out

    def p_wread(t):
        out = []
        for j in range(4):
            r = (t % PNWB)*16 + j*4
            sl = t % PL
            o = (sl if sl < 6 else sl - 6)*4096
            ar = (228 if sl < 6 else 224) + j
            out.append(f"ds_read_b64_tr_b16 {A(r,2)}, v{ar} offset:{o}")
            out.append(f"ds_read_b64_tr_b16 {A(r+2,2)}, v{ar} offset:{o+2048}")
        return out

    def p3_e1(d=None):
        out = []
        for t in range(PE):
            out += p_wdma(t, {} if d is None else d)
        return out

    def freg(t, b):
        return A(128 + ((t + 4) % PFB)*16 + 4*b, 4)

    def p_fload(t, b, toks, early=False):
        y = yblk(t)
        so, off = ("s86" if y == 10 else ["0", "s84", "s85"][y // 4]), (0 if y == 10 else (y % 4)*1024)

        if early:
            so = {"0": "s90"}[so]

        def f():
            toks[(t, b)] = k.vmem(f"buffer_load_dwordx4 {freg(t,b)}, v{236+b}, {WS}, {so} offen offset:{off} sc1")
        return [f]

    def acc_init():
        out = [f"v_mov_b32 v{YA+r}, 0" for r in range(48)]
        for j in range(4):
            out += [f"v_lshlrev_b32 v{YA+48+4*j+r}, 16, v{252+j}" for r in range(4)]
        return out

    def zload(va="v5", vd="v31"):
        return k.vmem(f"buffer_load_dword {vd}, {va}, {DBG}, 0 offen sc1")

    def zcheck(va="v5", vd="v31"):
        if opt.get("nowait"):
            return
        dn = k.newlab("L_z")
        e(f"v_cmp_gt_u32 vcc, 1, {vd}")
        e(f"s_cbranch_vccz {dn}")
        k.poll(va, DBG, 1)
        k.label(dn)

    k.c("================= Q role: LN =================")
    k.vm = 0
    e("s_lshl_b32 s15, s8, 7")
    e("s_lshl_b32 s12, s9, 4")
    e("s_add_u32 s15, s15, s12")
    e("s_lshl_b32 s12, s3, 2")
    e("s_add_u32 s12, s12, s15")
    e("s_lshl_b32 s12, s12, 10")
    e("v_lshlrev_b32 v7, 4, v2")
    e("v_lshl_add_u32 v6, v3, 10, v7")
    e("s_waitcnt lgkmcnt(0)")
    srd(X)
    tx = [k.vmem(f"buffer_load_dwordx4 {V(32+4*j,4)}, v6, {X}, s12 offen offset:{256*j}") for j in range(4)]
    srd(GW)
    tg = [k.vmem(f"buffer_load_dwordx4 {V(48+4*j,4)}, v7, {GW}, 0 offen offset:{256*j}") for j in range(4)]
    srd(WQKV)
    if not opt.get("q_late", 0):
        touch_xw()
    for n_ in (WS, DBG, WO, W2, B2, OUT):
        srd(n_)
    diag_clear()
    e("v_lshrrev_b32 v12, 3, v1")
    e("v_and_b32 v13, 7, v1")
    e("v_lshrrev_b32 v14, 1, v12")
    e("v_xor_b32 v14, v14, v13")
    e("v_lshlrev_b32 v14, 4, v14")
    e("v_lshl_add_u32 v14, v12, 10, v14")
    e("v_xor_b32 v15, 64, v14")
    e("s_lshl_b32 s13, s8, 17")
    e("s_lshl_b32 s12, s3, 15")
    e("s_add_u32 s13, s13, s12")
    e("v_add_u32 v144, s13, v14")
    e(f"s_add_u32 s13, s13, {7168}")
    e("v_add_u32 v145, s13, v15")
    e(f"v_add_u32 v146, {2*7168}, v144")
    e(f"v_add_u32 v147, {2*7168}, v145")
    e("v_and_b32 v16, 2, v12")
    e("v_xor_b32 v16, v16, v13")
    e("v_lshlrev_b32 v16, 4, v16")
    e("v_xor_b32 v17, 64, v16")
    e("v_mul_u32_u24 v12, 3072, v12")
    e("s_mul_i32 s13, s3, 49152")
    e("s_lshl_b32 s12, s9, 7")
    e("s_add_u32 s13, s13, s12")
    e("v_add3_u32 v148, v16, v12, s13")
    e(f"s_add_u32 s13, s13, {8*3072-1024}")
    e("v_add3_u32 v149, v17, v12, s13")
    for sec in (1, 2):
        e(f"v_add_u32 v{148+2*sec}, {1024*sec}, v148")
        e(f"v_add_u32 v{149+2*sec}, {1024*sec}, v149")
    e("s_lshl_b32 s90, s3, 12")
    e("s_lshl_b32 s91, s3, 11")
    ct = {}
    WQB = 98304

    def qdma(c):
        slot = c % 3
        out = [f"s_add_u32 m0, s90, {slot*32768}", f"s_mov_b32 s88, {c*128}"]
        for j in range(4):
            out.append(dmai(f"v{144+j}", X, "s88", j*1024))
        for sec in (1, 2):
            out.append(f"s_add_u32 m0, s91, {slot*32768 + 16384 + (sec-1)*8192}")
            if sec == 1:
                out.append(f"s_mov_b32 s89, {c*64*3072}")
            for j in range(2):
                out.append(dmai(f"v{148+2*sec+j}", WQKV, "s89", j*1024, ct, c, WFL))
        out.append(lambda: ctd.add(c))
        return out

    def wqdma(c):
        out = [f"s_add_u32 m0, s91, {WQB + c*8192}", f"s_mov_b32 s89, {c*64*3072}"]
        for j in range(2):
            out.append(dmai(f"v{148+j}", WQKV, "s89", j*1024, ct, "q", WFL))
        return out
    ctd = set()
    nearly = 0
    LNB = 163840 - 17408
    e("s_mul_i32 s12, s3, 4352")
    e(f"s_add_u32 s12, s12, {LNB}")
    e("v_mul_u32_u24 v8, 1088, v3")
    e("v_add3_u32 v8, v8, v7, s12")
    e("v_and_b32 v9, 1, v3")
    e("v_lshlrev_b32 v9, 3, v9")
    e("v_lshrrev_b32 v10, 2, v2")
    e("v_add_u32 v9, v9, v10")
    e("v_mul_u32_u24 v9, 1088, v9")
    e("v_lshrrev_b32 v10, 1, v3")
    e("v_lshl_add_u32 v9, v10, 5, v9")
    e("v_and_b32 v11, 3, v2")
    e("v_lshl_add_u32 v9, v11, 3, v9")
    e("s_lshl_b32 s12, s3, 8")
    e(f"s_add_u32 s12, s12, {LNB}")
    e("v_add_u32 v9, s12, v9")
    e(f"v_mul_u32_u24 v10, {HS}, v10")
    e("v_and_b32 v11, 1, v3")
    e("v_lshl_add_u32 v10, v11, 8, v10")
    e("v_add_u32 v10, v10, v7")
    e(f"s_mul_i32 s84, s3, {8*HS}")
    e("s_lshl_b32 s12, s15, 5")
    e("s_add_u32 s84, s84, s12")
    if HQ:
        e("s_lshr_b32 s12, s15, 9")
        e(f"s_mul_i32 s12, s12, {HQ}")
        e("s_add_u32 s84, s84, s12")
    if HF:
        e(f"s_add_u32 s84, s84, {HF}")
    e("s_lshl_b32 s12, s3, 2")
    e("s_add_u32 s12, s12, s15")
    e("s_lshl_b32 s12, s12, 2")
    e(f"s_add_u32 s12, s12, {GG}")
    e("v_lshl_add_u32 v11, v3, 2, s12")
    e("v_cmp_eq_u32 vcc, 0, v2")
    e("v_mov_b32 v12, 0x7ffffff0")
    e("s_mov_b32 s85, 0x3f803f80")
    e("v_cndmask_b32 v11, v12, v11, vcc")
    e("s_lshr_b32 s96, s3, 1")
    e("s_and_b32 s97, s3, 1")
    e("v_lshrrev_b32 v18, 1, v2")
    e("v_xor_b32 v18, v18, v3")
    e("v_lshlrev_b32 v18, 4, v18")
    e("v_lshl_add_u32 v18, v2, 7, v18")
    e("s_lshl_b32 s12, s96, 13")
    e("v_add_u32 v18, s12, v18")
    e("v_xor_b32 v19, 64, v18")
    e("v_add_u32 v20, 65536, v18")
    e("v_add_u32 v21, 65536, v19")
    e("v_lshrrev_b32 v22, 2, v2")
    e("v_lshrrev_b32 v23, 3, v2")
    e("v_and_b32 v24, 1, v3")
    e("v_lshl_add_u32 v23, v24, 1, v23")
    e("s_lshl_b32 s12, s97, 1")
    e("v_xor_b32 v23, s12, v23")
    e("v_lshl_add_u32 v22, v3, 3, v22")
    e("v_lshlrev_b32 v22, 7, v22")
    e("v_lshl_add_u32 v22, v23, 5, v22")
    e("v_and_b32 v24, 3, v2")
    e("v_lshl_add_u32 v22, v24, 3, v22")
    e("v_add_u32 v22, 16384, v22")
    e(f"v_add_u32 v14, {WQB - 16384}, v22")
    e("v_xor_b32 v15, 32, v14")
    e("s_lshl_b32 s12, s96, 5")
    e("v_xor_b32 v23, s12, v22")
    e("v_xor_b32 v22, 32, v23")
    e("v_add_u32 v24, 65536, v22")
    e("v_add_u32 v25, 65536, v23")
    e("v_lshrrev_b32 v154, 3, v1")
    e("v_and_b32 v155, 7, v1")
    e("v_lshlrev_b32 v154, 12, v154")
    e("v_lshl_add_u32 v154, v155, 7, v154")
    e(f"s_mul_i32 s13, s3, {352*4096}")
    e("s_lshl_b32 s14, s6, 15")
    e("s_add_u32 s13, s13, s14")
    e("s_lshl_b32 s14, s4, 10")
    e("s_add_u32 s13, s13, s14")
    e("v_add_u32 v154, s13, v154")

    k.wait_vm(tx[3])
    if opt.get("q_late", 0):
        touch_xw()
    QFAST = opt.get("q_fast", 1)
    QF = opt.get("q_f", 2)
    ln_start = len(k.l)
    e("v_dot2_f32_bf16 v26, v32, s85, 0")
    e("v_dot2_f32_bf16 v27, v33, s85, 0")
    for j in range(2, 16):
        e(f"v_dot2_f32_bf16 v{26+(j&1)}, v{32+j}, s85, v{26+(j&1)}")
    unp = []
    for j in range(16):
        unp.append(f"v_lshlrev_b32 v{64+2*j}, 16, v{32+j}")
        unp.append(f"v_and_b32 v{65+2*j}, 0xffff0000, v{32+j}")
    for s in unp[:4]:
        e(s)
    e("v_add_f32 v26, v26, v27")
    ui = 4
    for rot in (8, 4, 2, 1):
        for s in unp[ui:ui+3]:
            e(s)
        ui += 3
        e(f"v_add_f32_dpp v26, v26, v26 row_ror:{rot} row_mask:0xf bank_mask:0xf")
    for s in unp[ui:]:
        e(s)
    e(f"v_mul_f32 v26, {hex(f32bits(-1.0/512))}, v26")
    for j in range(16):
        e(f"v_pk_add_f32 {V(64+2*j,2)}, {V(64+2*j,2)}, v[26:27] op_sel_hi:[1,0]")
    e("v_pk_mul_f32 v[96:97], v[64:65], v[64:65]")
    e("v_pk_mul_f32 v[98:99], v[66:67], v[66:67]")
    for j in range(2, 16):
        a_ = 96 + 2 * (j & 1)
        e(f"v_pk_fma_f32 {V(a_,2)}, {V(64+2*j,2)}, {V(64+2*j,2)}, {V(a_,2)}")
    e("v_pk_add_f32 v[96:97], v[96:97], v[98:99]")
    e("v_add_f32 v26, v96, v97")
    k.wait_vm(tg[3])
    gd = ["v_dot2_f32_bf16 v28, v32, v48, 0", "v_dot2_f32_bf16 v29, v33, v49, 0"]
    for j in range(2, 16):
        gd.append(f"v_dot2_f32_bf16 v{28+(j&1)}, v{32+j}, v{48+j}, v{28+(j&1)}")
    gi = 0
    for rot in (8, 4, 2, 1):
        e(gd[gi]); e(gd[gi+1]); gi += 2
        e(f"v_add_f32_dpp v26, v26, v26 row_ror:{rot} row_mask:0xf bank_mask:0xf")
    e(f"v_mov_b32 v27, {hex(f32bits(1e-5))}")
    e(f"v_fmac_f32 v27, {hex(f32bits(1.0/512))}, v26")
    e("v_rsq_f32 v26, v27")
    e(gd[gi]); gi += 1
    for j in range(16):
        e(f"v_pk_mul_f32 {V(64+2*j,2)}, {V(64+2*j,2)}, v[26:27] op_sel_hi:[1,0]")
    for j in range(16):
        e(f"v_cvt_pk_bf16_f32 v{100+j}, v{64+2*j}, v{65+2*j}")
        if j % 4 == 3:
            e(f"ds_write_b128 v8, {V(100+j-3,4)} offset:{256*(j//4)}")
    while gi < 16:
        e(gd[gi]); gi += 1
    if QFAST:
        body = [x.strip() for x in k.l[ln_start:]]
        del k.l[ln_start:]
        body = [(lambda: k.wait_vm(tg[3])) if x.startswith("s_waitcnt vmcnt") else x for x in body]
        skip = opt.get("q_skip", 0)
        run_all(k, body[:skip] + mix(body[skip:], sum((qdma(c) for c in range(QF)), [])))
    k.lgkm0()
    e("s_barrier")
    for j in range(4):
        e(f"ds_read_b64_tr_b16 {V(64+4*j,2)}, v9 offset:{64*j}")
        e(f"ds_read_b64_tr_b16 {V(66+4*j,2)}, v9 offset:{64*j+4*1088}")
    e("v_add_f32 v28, v28, v29")
    th = None
    for j in range(4):
        e(f"s_waitcnt lgkmcnt({6-2*j})") if not opt.get("diag") else k.lgkm0()
        e(f"s_add_u32 s12, s84, {j*2*HS}")
        th = k.vmem(f"buffer_store_dwordx4 {V(64+4*j,4)}, v10, {WS}, s12 offen sc1")
    for rot in (8, 4, 2, 1):
        e(f"v_add_f32_dpp v28, v28, v28 row_ror:{rot} row_mask:0xf bank_mask:0xf")
        k.nop(2)
    e(f"v_mul_f32 v28, {hex(f32bits(-1.4426950408889634))}, v28")
    e("v_exp_f32 v28, v28")
    k.nop(1)
    e("v_add_f32 v28, 1.0, v28")
    e("v_rcp_f32 v28, v28")
    k.nop(1)
    th = k.vmem(f"buffer_store_dword v28, v11, {WS}, 0 offen sc1")
    k.stamp(1)

    th = zload()
    npre = 2

    def h_arrive():
        k.stamp(2)
        e("s_lshr_b32 s12, s8, 2")
        e("s_lshl_b32 s12, s12, 11")
        e(f"s_add_u32 s12, s12, {CNT + 96*256}")
        k.arrive(WS, "s12", 8)
    if not QFAST:
        q0 = opt.get("q_pre", 0)
        for c in range(q0):
            run_all(k, qdma(c))
        k.wait_vm(th)
        zcheck()
        e("s_barrier")
        h_arrive()
        for c in range(q0, 2):
            run_all(k, qdma(c))

    ACC = 160
    FR = [96, 112]

    def qreads(t):
        c, kk = t // 2, t % 2
        slot = c % 3
        hi = slot >= 2
        so = (slot % 2) * 32768
        out = []
        xa = 18 + kk + (2 if hi else 0)
        for i in range(4):
            out.append(f"ds_read_b128 {A(16*t+4*i,4)}, v{xa} offset:{so + i*2048}")
        for sec in range(2):
            for hh in range(2):
                wa = 22 + hh + (2 if hi else 0)
                r = FR[t % 2] + (sec*2 + hh)*4
                o = so + sec*8192 + kk*4096
                out.append(f"ds_read_b64_tr_b16 {V(r,2)}, v{wa} offset:{o}")
                out.append(f"ds_read_b64_tr_b16 {V(r+2,2)}, v{wa} offset:{o+512}")
        return out

    pfl = []
    for r0 in ([0, 128][:opt.get("pf", 2)]):
        pfl.append([lambda r0=r0: (e(f"s_mov_b32 s101, {r0*4096}"), k.vmem(f"buffer_load_dword v157, v154, {W2}, s101 offen"))])
    PFA, PFB_ = opt.get("pf_a", 2), opt.get("pf_b", 1)

    k.wait_vm(ct[0])
    e("s_barrier")
    k.stamp(3)
    run_all(k, qreads(0))
    k.lgkm0()
    pend = qdma(2) if not (QFAST and QF == 3) else []
    QPER = opt.get("q_per", 7)
    consts = [f"s_mov_b32 s92, {hex(LOG2E)}", f"s_mov_b32 s93, {hex(LOG2E)}", f"s_mov_b32 s94, {hex(f32bits(1e-6))}",
              f"s_mov_b32 s95, {hex(f32bits(1e-6))}", "v_mov_b32 v26, s85", "v_mov_b32 v27, s85", "v_mov_b32 v28, s85",
              "v_mov_b32 v29, s85",
              "s_lshl_b32 s12, s3, 11", "s_add_u32 s12, s12, 65536", "v_add_u32 v6, s12, v4", "v_xor_b32 v7, 4096, v6",
              "s_lshl_b32 s15, s9, 2", "s_lshl_b32 s12, s97, 1", "s_add_u32 s15, s15, s12", "s_add_u32 s15, s15, s96",
              "s_lshl_b32 s13, s15, 10", f"s_add_u32 s13, s13, {KVP}", "s_lshl_b32 s12, s15, 6", f"s_add_u32 s12, s12, {ZP}",
              "v_lshlrev_b32 v10, 2, v1", "v_lshlrev_b32 v8, 4, v3", "v_lshl_add_u32 v8, v2, 2, v8",
              "v_cmp_gt_u32 vcc, 4, v2", "v_mov_b32 v9, 0x7ffffff0", "s_nop 0", "v_cndmask_b32 v8, v9, v8, vcc",
              "s_nop 0"]
    for t in range(16):
        qp = dict(zip((0, 1, 2, 3, 4, 5, 6, 8, 10, 12, 14), (1, 2, 3, 4, 5, 6, 7, 8, 0, 9, 10)))
        if t in qp:
            k.stamp(qp[t], True)
        head = []
        if t % 2 == 1 and t + 1 < 16:
            c = (t + 1) // 2
            assert c in ctd, (t, c)
            head = [lambda c=c: k.wait_vm(ct[c]), "s_barrier"]
            if QFAST and c == QF:
                head = [lambda c=c: (k.wait_vm(ct[c]), zcheck()), "s_barrier", h_arrive]
            if c + 2 < 8:
                pend = pend + qdma(c + 2)
            if c == 6:
                for cq in range(8):
                    pend = pend + wqdma(cq)
        nv = len(pend) if t == 15 else (13 if t == 0 else QPER if t < 11 else 8)
        vm = pend[:nv]
        pend = pend[len(vm):]
        if t == 10:
            vm = vm + ["v_mov_b32 v158, 128", lambda: zload("v158", "v159")]
        if t == 15:
            vm = vm + sum(pfl[:PFA], []) + consts
        reads = qreads(t + 1) if t + 1 < 16 else []
        mfmas = []
        for sec in range(2):
            for hh in range(2):
                for i in range(4):
                    d = ACC + 32 + sec*32 + (hh*4 + i)*4
                    cc = "0" if t == 0 else V(d, 4)
                    mfmas.append((None, mf(V(d, 4), A(16*t + 4*i, 4), V(FR[t % 2] + (sec*2 + hh)*4, 4), cc)))
        interleave(k, mfmas, head + mix(reads, vm), tail=3)
        if reads:
            k.lgkm0()
    k.stamp(4)
    k.stamp(11, True)

    def phi(src, dst):
        for j in range(16):
            e(f"v_pk_mul_f32 {V(64+2*j,2)}, {V(src+2*j,2)}, s[92:93]")
        for j in range(32):
            e(f"v_exp_f32 v{64+j}, v{64+j} clamp")
            e(f"v_max_f32 v{src+j}, 0, v{src+j}")
        for j in range(16):
            e(f"v_pk_add_f32 {V(64+2*j,2)}, {V(64+2*j,2)}, s[94:95]")
        for j in range(16):
            e(f"v_pk_add_f32 {V(64+2*j,2)}, {V(64+2*j,2)}, {V(src+2*j,2)}")
        for j in range(16):
            e(f"v_cvt_pk_bf16_f32 v{dst+j}, v{64+2*j}, v{65+2*j}")
    PK, PV, PQ = 96, 112, 128
    phi(ACC + 32, PK)
    for j in range(16):
        e(f"v_cvt_pk_bf16_f32 v{PV+j}, v{ACC+64+2*j}, v{ACC+65+2*j}")
    e("v_cmp_eq_u32 s[88:89], 1, v2")
    e("v_cmp_eq_u32 s[90:91], 2, v2")
    for hh in range(2):
        for p in range(2):
            a_ = V(PK + hh*8 + p*4, 4)
            b_ = V(PV + hh*8 + p*4, 4)
            e(mf(V(32+8*hh, 4), a_, b_, "0" if p == 0 else V(32+8*hh, 4)))
            e(mf(V(36+8*hh, 4), a_, "v[26:29]", "0" if p == 0 else V(36+8*hh, 4)))
    k.nop(4)
    e("ds_write_b128 v6, v[32:35]")
    e("ds_write_b128 v6, v[36:39] offset:1024")
    k.wait_vm(ct["q"])
    zcheck("v158", "v159")
    e("v_cmp_eq_u32 vcc, 3, v2")
    k.lgkm0()
    e("s_barrier")
    e("ds_read_b128 v[32:35], v7")
    e("ds_read_b128 v[36:39], v7 offset:1024")

    def qq_reads(w_):
        out = []
        for kk in range(2):
            for hh in range(2):
                r = 64 + (w_ % 2)*16 + (kk*2 + hh)*4
                o = w_*8192 + kk*4096
                out.append(f"ds_read_b64_tr_b16 {V(r,2)}, v{14+hh} offset:{o}")
                out.append(f"ds_read_b64_tr_b16 {V(r+2,2)}, v{14+hh} offset:{o+512}")
        return out
    run_all(k, qq_reads(0))
    e("s_waitcnt lgkmcnt(8)") if not opt.get("diag") else k.lgkm0()
    for j in range(4):
        e(f"v_pk_add_f32 {V(32+2*j,2)}, {V(32+2*j,2)}, {V(40+2*j,2)}")
    for r in range(4):
        k.vmem(f"buffer_atomic_add_f32 v{32+r}, v10, {WS}, s13 offen offset:{256*r}")
    e("v_cndmask_b32 v36, v36, v37, s[88:89]")
    e("v_cndmask_b32 v36, v36, v38, s[90:91]")
    e("v_cndmask_b32 v36, v36, v39, vcc")
    tat = k.vmem(f"buffer_atomic_add_f32 v36, v8, {WS}, s12 offen")
    e(f"s_lshl_b32 s90, s9, 10")
    e(f"s_add_u32 s90, s90, {CNT}")
    e("s_lshl_b32 s13, s4, 8")
    e("s_add_u32 s13, s13, s90")
    e("v_mov_b32 v8, s13")
    k.lgkm0()
    ps = p3_setup(True)
    KAW = opt.get("kv_aw", 3)
    e1t = {}
    e1_all = p3_e1(e1t)
    QW = 6 * opt.get("q_w", 4)
    qw = e1_all[:QW]
    kvt = {}
    for w_ in range(8):
        mfmas = []
        for kk in range(2):
            for hh in range(2):
                for i in range(4):
                    d = ACC + (hh*4 + i)*4
                    t = 2*w_ + kk
                    mfmas.append((None, mf(V(d, 4), V(64 + (w_ % 2)*16 + (kk*2 + hh)*4, 4), A(16*t + 4*i, 4), "0" if t == 0 else V(d, 4))))
        head = []
        if w_ == KAW:
            head = [lambda: k.wait_vm(tat), "s_barrier", lambda: (k.arrive(WS, "s90", 4), k.stamp(5))] + (sum(pfl[PFA:PFA+PFB_], []) if not opt.get("pf_late", 0) else [])
        n_ = -(-len(ps) // (8 - w_))
        fl_ = ps[:n_]
        ps = ps[n_:]
        if w_ >= opt.get("q_ws", KAW):
            n_ = -(-len(qw) // max(1, opt.get("q_we", 8) - w_))
            fl_ = mix(fl_, qw[:n_])
            qw = qw[n_:]
        if w_ == 7:
            fl_ = fl_ + [lambda: kvt.__setitem__(0, k.vmem(f"buffer_load_dword v31, v8, {WS}, 0 offen sc1"))]
        interleave(k, mfmas, head + mix(qq_reads(w_ + 1) if w_ < 7 else [], fl_), tail=3)
        k.lgkm0()
    e("s_barrier")
    k.nop(6)
    qpre = wo_dma() + e1_all[QW:]
    mark = len(k.l)
    phi(ACC, PQ)
    ph = [x.strip() for x in k.l[mark:]]
    del k.l[mark:]
    cut = opt.get("q_cut", 48)
    run_all(k, ph[:cut])
    e("s_and_b32 s15, s15, 30")
    e("s_lshl_b32 s13, s15, 10")
    e(f"s_add_u32 s13, s13, {KVP}")
    e("s_lshl_b32 s12, s15, 6")
    e(f"s_add_u32 s12, s12, {ZP}")
    e("v_lshlrev_b32 v9, 4, v3")
    if not opt.get("nowait"):
        k.wait_vm(kvt[0])
        dn = k.newlab("L_kf")
        e("v_cmp_gt_u32 vcc, 16, v31")
        e(f"s_cbranch_vccz {dn}")
        k.poll("v8", WS, 16)
        k.label(dn)
    k.stamp(6)
    k.stamp(1, 3)
    for hh in range(2):
        k.vmem(f"buffer_load_dwordx4 {V(196+8*hh,4)}, v9, {WS}, s12 offen offset:{64*hh} sc1")
        for r in range(4):
            tkv = k.vmem(f"buffer_load_dword v{192+8*hh+r}, v10, {WS}, s13 offen offset:{1024*hh+256*r} sc1")
    if opt.get("pf_late", 0):
        run_all(k, sum(pfl[PFA:PFA+PFB_], []))
    n1 = 8 * opt.get("q_n1", 2)
    run_all(k, mix(ph[cut:], qpre[:n1]))
    e("s_lshl_b32 s15, s8, 3")
    e("s_lshl_b32 s12, s96, 2")
    e("s_add_u32 s15, s15, s12")
    e("s_lshl_b32 s15, s15, 4")
    e("s_lshl_b32 s12, s9, 1")
    e("s_add_u32 s15, s15, s12")
    e("s_add_u32 s15, s15, s97")
    e("s_lshl_b32 s15, s15, 10")
    e(f"s_add_u32 s15, s15, {OF}")
    k.wait_vm(tkv)
    k.stamp(2, 3)
    for q_ in range(8):
        e(f"v_cvt_pk_bf16_f32 v{40+q_}, v{192+2*q_}, v{193+2*q_}")
    k.nop(2)
    for hh in range(2):
        for i in range(4):
            q_ = V(PQ + (hh*4+i)*2, 2)
            e(f"v_mfma_f32_16x16x16_bf16 {V(192+(hh*4+i)*4,4)}, {V(42+4*hh,2)}, {q_}, 0")
    for hh in range(2):
        for i in range(4):
            q_ = V(PQ + (hh*4+i)*2, 2)
            e(f"v_mfma_f32_16x16x16_bf16 {V(160+(hh*4+i)*4,4)}, {V(40+4*hh,2)}, {q_}, 0")
    k.nop(1)
    for n_ in range(8):
        e(f"v_add_f32 v{192+4*n_}, s94, v{192+4*n_}")
    for n_ in range(8):
        e(f"v_rcp_f32 v{192+4*n_}, v{192+4*n_}")
    for n_ in range(8):
        e(f"v_pk_mul_f32 {V(160+4*n_,2)}, {V(160+4*n_,2)}, {V(192+4*n_,2)} op_sel_hi:[1,0]")
        e(f"v_pk_mul_f32 {V(162+4*n_,2)}, {V(162+4*n_,2)}, {V(192+4*n_,2)} op_sel_hi:[1,0]")
    for i in range(4):
        for hh in range(2):
            s_ = 160 + (hh*4+i)*4
            e(f"v_cvt_pk_bf16_f32 v{64+4*i+2*hh}, v{s_}, v{s_+1}")
            e(f"v_cvt_pk_bf16_f32 v{65+4*i+2*hh}, v{s_+2}, v{s_+3}")
        e(f"s_add_u32 s12, s15, {i*16384}")
        tos = k.vmem(f"buffer_store_dwordx4 {V(64+4*i,4)}, v4, {WS}, s12 offen sc1")
    k.stamp(3, 3)
    n2 = n1 + 8 * opt.get("q_n2", 2)
    assert n2 <= 32
    run_all(k, qpre[n1:n2])
    k.wait_vm(tos)
    e("s_barrier")
    e("s_lshl_b32 s12, s8, 9")
    e(f"s_add_u32 s12, s12, {CNT + 32*256}")
    k.arrive(WS, "s12", 2)
    k.stamp(7)
    k.stamp(4, 3)
    run_all(k, sum(pfl[PFA+PFB_:], []))
    run_all(k, qpre[n2:])
    e("v_mov_b32 v29, 0")
    e("s_branch L_p3")

    k.label("L_urole")
    k.c("================= U role =================")
    k.vm = 0
    assert HS == 65536 and HQ == 0
    KX = opt.get("kx", 1)
    if KX:
        e("s_and_b32 s9, s6, 3")
        e("s_lshl_b32 s9, s9, 1")
        e("s_add_u32 s9, s9, s5")
    e("s_and_b32 s97, s9, 1")
    e("s_lshl_b32 s97, s97, 2")
    e("s_add_u32 s97, s97, s3")
    e("v_lshrrev_b32 v12, 2, v1")
    e("v_and_b32 v13, 3, v1")
    e(f"s_mul_i32 s13, s97, {256*2752}")
    e("s_mul_i32 s12, s8, 192")
    e("s_add_u32 s13, s13, s12")
    for j in range(3):
        e(f"v_add_u32 v14, {16*j}, v12")
        e("v_mul_u32_u24 v15, 43, v14")
        e("v_lshrrev_b32 v15, 7, v15")
        e("v_mul_u32_u24 v16, 3, v15")
        e("v_sub_u32 v14, v14, v16")
        e("v_lshrrev_b32 v16, 2, v15")
        e("v_and_b32 v16, 2, v16")
        e("v_xor_b32 v16, v16, v13")
        e("v_lshlrev_b32 v16, 4, v16")
        e("v_lshl_add_u32 v16, v14, 6, v16")
        e("v_mul_u32_u24 v15, 2752, v15")
        e(f"v_add3_u32 v{6+j}, v15, v16, s13")
        if j:
            e(f"v_subrev_u32 v{6+j}, {j*1024}, v{6+j}")
        e(f"v_add_u32 v{9+j}, {16*2752}, v{6+j}")
    if KX:
        e("s_and_b32 s90, s6, 3")
    else:
        e("s_and_b32 s90, s9, 2")
        e("s_add_u32 s90, s90, s5")
    e(f"s_mul_i32 s88, s90, {64*2752}")
    e("s_waitcnt lgkmcnt(0)")
    srd(W1)
    e("s_cmp_eq_u32 s8, 15")
    e("s_cbranch_scc1 L_spare")
    UL, UFB = 6, 7
    RB = 22528

    def u_wdma(t, toks):
        out = []
        for j in range(6):
            if j % 3 == 0:
                out.append(f"s_add_u32 m0, s7, {(t % UL)*6144 + j*1024}")
            out.append(dmai(f"v{6+j}", W1, "s88", (j % 3)*1024, toks, t))
        if t % 2 == 0:
            out.append(f"s_add_u32 s88, s88, {32*2752}")
        elif t < 7:
            out += [f"s_xor_b32 s88, s90, {(t+1)//2}", f"s_mul_i32 s88, s88, {64*2752}"]
        return out

    def u_wread(t):
        out = []
        for fb in range(6):
            r = 64 + t*24 + fb*4
            o = (t % UL)*6144 + (fb >> 1)*64
            out.append(f"ds_read_b64_tr_b16 {A(r,2)}, v{16+(fb&1)} offset:{o}")
            out.append(f"ds_read_b64_tr_b16 {A(r+2,2)}, v{16+(fb&1)} offset:{o+768}")
        return out

    def u_fload(t, b, toks):
        def f():
            toks[(t, b)] = k.vmem(f"buffer_load_dwordx4 {V(32+(t%UFB)*16+4*b,4)}, v{12+b}, {WS}, s{92+(t%8)//2} offen offset:{(t%2)*1024} sc1")
        out = [f]
        if t == 7 and b == 3:
            out += [f"s_xor_b32 s{92+q}, s{92+q}, {4*HS}" for q in range(4)]
        return out

    def uacc(ps_, b, j):
        n_ = b*6 + j
        if b == 3:
            return V(152 + 24*ps_ + j*4, 4)
        return A(n_*4, 4) if n_ < 16 else V(144 + (n_-16)*4, 4)

    def u_mm(t, b, j):
        d = uacc(t // 8, b, j)
        first = t % 8 == 0 and not (t == 8 and b == 3)
        return mf(d, A(64 + (t % 8)*24 + j*4, 4), V(32+(t % UFB)*16+4*b, 4), "0" if first else d)

    su = SK(k, 8, UL, 8, UFB, 6, u_wdma, u_wread, u_fload, u_mm)
    TWA = opt.get("tw_after", 1)
    su.issue_w(TWA)
    if opt.get("cpf", 0):
        e("s_getpc_b64 s[92:93]")
        k.label("L_pc")
        e("s_and_b32 s12, s6, 15")
        e("s_lshl_b32 s12, s12, 2")
        e("s_add_u32 s12, s12, s3")
        e(f"s_mul_i32 s12, s12, {9*128}")
        e("v_lshl_add_u32 v30, v1, 7, s12")
        e("v_cmp_gt_u32 vcc, L_end-L_code0, v30")
        e("s_sub_u32 s92, s92, L_pc-L_code0")
        e("s_subb_u32 s93, s93, 0")
        e("s_and_b64 s[94:95], vcc, 0x1ff")
        e("v_mov_b32 v31, s93")
        e("v_add_co_u32 v30, vcc, s92, v30")
        e("s_nop 1")
        e("v_addc_co_u32 v31, vcc, 0, v31, vcc")
        e("s_mov_b64 exec, s[94:95]")
        cs = k.newlab("L_cs")
        e(f"s_cbranch_execz {cs}")
        e("global_load_dword v157, v[30:31], off")
        k.label(cs)
        e("s_mov_b64 exec, -1")
    touch_w1()
    su.issue_w(2)
    srd(B1)
    e("s_mul_i32 s12, s8, 192")
    e("v_lshlrev_b32 v30, 3, v3")
    for j in range(6):
        k.vmem(f"buffer_load_dwordx2 {V(208+2*j,2)}, v30, {B1}, s12 offen offset:{32*j}")
    for n_ in (WS, DBG, WO, W2, B2, OUT):
        srd(n_)
    diag_clear()
    e("v_lshrrev_b32 v16, 2, v2")
    e("v_lshl_add_u32 v16, v3, 3, v16")
    e("v_mul_u32_u24 v16, 192, v16")
    e("v_and_b32 v12, 3, v2")
    e("v_lshl_add_u32 v16, v12, 3, v16")
    e("v_add_u32 v16, s7, v16")
    e("v_and_b32 v12, 1, v3")
    e("v_lshlrev_b32 v12, 5, v12")
    e("v_xor_b32 v13, 32, v12")
    e("v_add_u32 v17, v16, v13")
    e("v_add_u32 v16, v16, v12")
    e("s_and_b32 s13, s9, 6")
    e(f"s_mul_i32 s13, s13, {4*HS}")
    e("s_lshl_b32 s12, s97, 13")
    e("s_add_u32 s13, s13, s12")
    if HF:
        e(f"s_add_u32 s13, s13, {HF}")
    for b in range(4):
        e(f"s_add_u32 s12, s3, {3-b}")
        e("s_and_b32 s12, s12, 3")
        e(f"s_mul_i32 s12, s12, {HS}")
        e("s_add_u32 s12, s12, s13")
        e(f"v_add_u32 v{12+b}, s12, v4")
    e("s_and_b32 s12, s9, 1")
    e("s_xor_b32 s12, s12, 1")
    e("s_lshl_b32 s12, s12, 18")
    for q in range(4):
        e(f"s_xor_b32 s{92+q}, s90, {q}")
        e(f"s_lshl_b32 s{92+q}, s{92+q}, 11")
        e(f"s_add_u32 s{92+q}, s{92+q}, s12")
    run_all(k, p3_setup(False))
    RB = 40960 - 6144
    e(f"s_add_u32 s12, s7, {RB}")
    e("v_add_u32 v26, s12, v4")
    e("s_add_u32 s12, s3, 3")
    e("s_and_b32 s12, s12, 3")
    e("s_mul_i32 s12, s12, 40960")
    e(f"s_add_u32 s12, s12, {RB}")
    e("v_add_u32 v27, s12, v4")
    e("s_and_b32 s12, s2, 7")
    e("s_lshr_b32 s13, s97, 1")
    e("s_lshl_b32 s13, s13, 3")
    e("s_add_u32 s12, s12, s13")
    e("s_lshl_b32 s12, s12, 8")
    e(f"s_add_u32 s12, s12, {CNT + 96*256}")
    e("v_mov_b32 v18, s12")
    for snd in range(2):
        e("s_lshl_b32 s12, s8, 3")
        e("s_add_u32 s12, s12, s9")
        if snd:
            e("s_xor_b32 s12, s12, 1")
        e("s_lshl_b32 s13, s12, 8")
        e("s_lshl_b32 s14, s3, 6")
        e("s_add_u32 s13, s13, s14")
        e(f"s_add_u32 s13, s13, {CNT + 256*256}")
        e(f"v_mov_b32 {'v21' if snd else 'v235'}, s13")
        e("s_lshl_b32 s12, s12, 2")
        e("s_add_u32 s12, s12, s3")
        e("s_mul_i32 s12, s12, 6144")
        e(f"s_add_u32 s12, s12, {UX}")
        e(f"v_add_u32 {'v20' if snd else 'v234'}, s12, v4")
    c0 = -2.0 * 0.7978845608028654 * 1.4426950408889634
    c1 = c0 * 0.044715
    e("s_lshl_b32 s15, s9, 2")
    e("s_add_u32 s15, s15, s3")
    e("s_mul_i32 s15, s15, 43")
    e("s_mul_i32 s13, s8, 3")
    e("s_add_u32 s15, s15, s13")
    e("s_lshl_b32 s15, s15, 10")
    e(f"s_add_u32 s15, s15, {GUF}")
    e("s_cmp_eq_u32 s8, 14")
    e("s_cselect_b32 s13, 0x7ff00000, 0")
    e("v_or_b32 v19, s13, v4")
    UB = opt.get("u_bar", 3)

    def front_pf():
        n_ = opt.get("u_fpf", 0)
        if not n_:
            return
        run_all(k, ["v_lshrrev_b32 v116, 3, v1", "v_and_b32 v117, 7, v1", "v_lshlrev_b32 v116, 12, v116",
                    "v_lshl_add_u32 v116, v117, 7, v116",
                    f"s_mul_i32 s13, s3, {352*4096}", "s_and_b32 s14, s6, 15", "s_lshl_b32 s14, s14, 15", "s_add_u32 s13, s13, s14",
                    "s_lshl_b32 s14, s4, 10", "s_add_u32 s13, s13, s14", "v_add_u32 v116, s13, v116"])
        for r0 in [192, 64][:n_] if n_ < 3 else [224, 96, 0]:
            e(f"s_mov_b32 s13, {r0*4096}")
            k.vmem(f"buffer_load_dword v157, v116, {W2}, s13 offen")
    if opt.get("u_fpos", 0) == 0:
        front_pf()
    if UB & 1:
        e("s_barrier")
    if UB & 8:
        k.wait_vm(su.wt[0])
    if UB & 16:
        k.wait_vm(su.wt[1])
    su.issue_w(4)
    tz_ = zload()
    if UB & 2:
        e("s_barrier")
    su.issue_w(UL)
    if UB & 4:
        e("s_barrier")
    k.stamp(5)
    su.to_regs(2, opt.get("u_hold", 1))
    k.wait_vm(tz_)
    zcheck()
    k.stamp(1)
    k.poll2("v18", WS, 32, lambda: (su.issue_w(8), su.to_regs(opt.get("u_r", 5), 9)))
    k.stamp(2)
    k.stamp(1, True)
    ULA = opt.get("u_la", 16)
    ft = {}

    def fl3(i):
        blk, t = i // 8, i % 8

        def f():
            ft[i] = k.vmem(f"buffer_load_dwordx4 {V(32+(blk%4)*32+4*t,4)}, v{12+blk%4}, {WS}, s{92+t//2} offen offset:{(t%2)*1024} sc1")
        out = [f]
        if i == 31:
            out += [f"s_xor_b32 s{92+q}, s{92+q}, {4*HS}" for q in range(4)]
        return out
    for i in range(ULA):
        run_all(k, fl3(i))
    su.to_regs(8, 9)
    fi = ULA
    pe_all = wo_dma() + p3_e1()
    cuts = [0, 8, 16, 24, 32, 38, 44, 50, 56]
    UE1 = opt.get("u_e1", 8)
    pe = pe_all[:cuts[UE1]]
    UPW, UPN = opt.get("u_pw", 8), opt.get("u_pn", 8)
    XF, XC = opt.get("u_xf", 11), opt.get("u_xc", 14)
    xt = {}
    tx_ = {}

    def xcheck():
        k.wait_vm(xt[1])
        if not opt.get("nowait"):
            dn = k.newlab("L_xf")
            e("v_cmp_gt_u32 vcc, 1, v31")
            e(f"s_cbranch_vccz {dn}")
            k.poll("v235", WS, 1)
            k.label(dn)

    def xl(j):
        return lambda: tx_.__setitem__(j, k.vmem(f"buffer_load_dwordx4 {V(160+4*j,4)}, v234, {WS}, {'0' if j < 4 else 's84'} offen offset:{(j%4)*1024} sc1"))

    def xs(j):
        return lambda: xt.__setitem__(0, k.vmem(f"buffer_store_dwordx4 {V(184+4*j,4)}, v20, {WS}, {'0' if j < 4 else 's84'} offen offset:{(j%4)*1024} sc1"))
    uprof = dict(zip((0, 1, 2, 3, 4, 6, 8, 10, 12, 14), (2, 3, 4, 5, 6, 7, 8, 0, 9, 10)))
    for n in range(16):
        if n in uprof:
            k.stamp(uprof[n], True)
        blk, hf = n // 2, n % 2
        stg = blk % 4
        buf = 160 + (n % 4)*12
        mfmas = []
        for j in range(3):
            for t in range(8):
                d = V(buf + 4*j, 4)
                pre = None
                if j == 0 and hf == 0:
                    pre = (lambda i=blk*8+t: k.wait_vm(ft[i]))
                mfmas.append((pre, mf(d, A(64 + t*24 + (3*hf + j)*4, 4), V(32+(blk % 4)*32+4*t, 4), "0" if (t == 0 and n < 2) else d)))
        fl_ = []
        for _ in range(4):
            if fi < 64:
                assert fi // 8 - 4 < blk, (n, fi)
                fl_ += fl3(fi)
                fi += 1
        at = {}
        pn = n - 1
        W0, B0 = opt.get("u_w0", 5), opt.get("u_b0", 13)
        ring = pn >= 0 and (pn // 2) % 4 < 3
        if ring:
            pb = 160 + (pn % 4)*12
            nb = 160 + ((n + 1) % 4)*12
            for j in range(3):
                at[(0, 1, 7)[j]] = [f"ds_write_b128 v26, {V(pb+4*j,4)} offset:{(pn%2)*3072 + j*1024}"]
                at[B0 + 1 + j] = [f"ds_read_b128 {V(nb+4*j,4)}, v27 offset:{(pn%2)*3072 + j*1024}"]
            at[B0] = [k.lgkm0, "s_barrier"]
        if pn in (6, 7):
            for j in range(3):
                at[8 + 5*j] = [xs(3*(pn-6) + j)]
        if n in (6, 7):
            h2 = n - 6
            for j in range(3):
                r, q = 160 + h2*12 + 4*j, 208 + 2*(3*h2 + j)
                fl_ += [f"v_lshlrev_b32 v{r}, 16, v{q}", f"v_and_b32 v{r+1}, 0xffff0000, v{q}",
                        f"v_lshlrev_b32 v{r+2}, 16, v{q+1}", f"v_and_b32 v{r+3}, 0xffff0000, v{q+1}"]
        if n == 3:
            fl_ += ["v_mov_b32 v5, 128", lambda: zload()]
        if n == XF:
            fl_ = [lambda: (k.wait_vm(xt[0]), zcheck()), lambda: k.vmem(f"buffer_store_dword v5, v21, {WS}, 0 offen sc1")] + fl_
        if UPW <= n < UPW + UPN:
            n3 = -(-len(pe) // UPN)
            fl_ += pe[(n-UPW)*n3:(n-UPW+1)*n3]
        if n == XC:
            fl_ = [lambda: xt.__setitem__(1, k.vmem(f"buffer_load_dword v31, v235, {WS}, 0 offen sc1"))] + fl_
        if n == 15:
            fl_ = [xcheck] + [xl(j) for j in range(6)] + fl_
            fl_ += [f"s_mov_b32 s92, {hex(f32bits(c1))}", f"s_mov_b32 s93, {hex(f32bits(c1))}",
                    f"v_mov_b32 v20, {hex(f32bits(c0))}", f"v_mov_b32 v21, {hex(f32bits(c0))}"]
        interleave(k, mfmas, fl_, tail=1, at=at)
        if ring:
            k.lgkm0()
    k.stamp(11, True)
    k.stamp(3)
    tst = {}
    for p in range(3):
        R_ = range(4*p, 4*p+4)
        k.wait_vm(tx_[2*p+1])
        va = []
        va += [f"v_pk_add_f32 {V(32+2*r,2)}, {V(184+2*r,2)}, {V(160+2*r,2)}" for r in R_]
        va += [f"v_pk_mul_f32 {V(56+2*r,2)}, {V(32+2*r,2)}, {V(32+2*r,2)}" for r in R_]
        va += [f"v_pk_fma_f32 {V(56+2*r,2)}, {V(56+2*r,2)}, s[92:93], v[20:21]" for r in R_]
        va += [f"v_pk_mul_f32 {V(56+2*r,2)}, {V(56+2*r,2)}, {V(32+2*r,2)}" for r in R_]
        va += [f"v_exp_f32 v{56+r}, v{56+r}" for r in range(8*p, 8*p+8)]
        va += [f"v_add_f32 v{56+r}, 1.0, v{56+r}" for r in range(8*p, 8*p+8)]
        va += [f"v_rcp_f32 v{56+r}, v{56+r}" for r in range(8*p, 8*p+8)]
        va += [f"v_pk_mul_f32 {V(32+2*r,2)}, {V(32+2*r,2)}, {V(56+2*r,2)}" for r in R_]
        va += [f"v_cvt_pk_bf16_f32 v{96+4*p+q}, v{32+8*p+2*q}, v{33+8*p+2*q}" for q in range(4)]
        run_all(k, va)
        tst[p] = k.vmem(f"buffer_store_dwordx4 {V(96+4*p,4)}, {'v4' if p == 0 else 'v19'}, {WS}, s15 offen offset:{p*1024} sc1")
    k.stamp(4)
    ncut = cuts[min(8, UE1 + opt.get("u_e2", 2))]
    tof = k.vmem(f"buffer_load_dword v29, v240, {WS}, 0 offen sc1")
    run_all(k, pe_all[len(pe):ncut])
    e("s_lshl_b32 s12, s9, 10")
    e(f"s_add_u32 s12, s12, {CNT + 64*256}")
    k.wait_vm(tst[2])
    e("s_barrier")
    k.arrive(WS, "s12", 4)
    k.stamp(7)
    run_all(k, pe_all[ncut:])
    k.wait_vm(tof)
    e("s_branch L_p3")

    k.label("L_spare")
    for n_ in (WS, DBG):
        srd(n_)
    touch_w1()
    for n_ in (WO, W2, B2, OUT):
        srd(n_)
    diag_clear()
    run_all(k, p3_setup(False))
    if opt.get("spf", 1):
        e("v_lshlrev_b32 v30, 7, v1")
        e("s_lshl_b32 s12, s9, 2")
        e("s_add_u32 s12, s12, s3")
        e("s_lshl_b32 s12, s12, 14")
        e(f"buffer_load_dword v31, v30, {WO}, s12 offen")
        e("s_add_u32 s12, s12, 8192")
        e(f"buffer_load_dword v31, v30, {WO}, s12 offen")
        e(f"s_mul_i32 s12, s3, {352*4096}")
        e("s_lshl_b32 s13, s9, 13")
        e("s_add_u32 s12, s12, s13")
        e(f"s_add_u32 s12, s12, {(352 - 16*opt.get('spf_n', 6))*4096}")
        e("s_mov_b32 s14, 0")
        lp = k.newlab("L_spf")
        k.label(lp)
        e(f"buffer_load_dword v31, v30, {W2}, s12 offen")
        e("s_add_u32 s12, s12, 65536")
        e("s_add_u32 s14, s14, 1")
        e("s_waitcnt vmcnt(2)")
        e(f"s_cmp_lt_u32 s14, {opt.get('spf_n', 6)}")
        e(f"s_cbranch_scc1 {lp}")
        k.wait_vm0()
        k.stamp(6)
    e("v_mov_b32 v5, 128")
    k.poll("v5", DBG, 1)
    e(f"v_mov_b32 v30, {CNT}")
    k.poll("v30", WS, 16, sleep=32)
    run_all(k, wo_dma() + p3_e1())
    e("v_mov_b32 v29, 0")

    k.label("L_p3")
    k.c("================= P3 =================")

    def p_mm(t, b, j):
        d = V(YA + (b*4 + j)*4, 4)
        return mf(d, freg(t, b), A((t % PNWB)*16 + j*4, 4), d)

    k.vm = 16
    sp = SK(k, 11, PL, PNWB, PFB, 4, p_wdma, p_wread, p_fload, p_mm)
    QY = 6 - opt.get("q_w", 4)
    twos = k.vm + 4*(6 - QY)
    sp.assume_issued(PE, 4)
    k.wait_vm(twos)
    for t in range(4):
        for j in range(4):
            e(f"ds_read_b64_tr_b16 {A(64+t*16+j*4,2)}, v{224+j} offset:{t*4096}")
            e(f"ds_read_b64_tr_b16 {A(66+t*16+j*4,2)}, v{224+j} offset:{t*4096+2048}")
    PRE = opt.get("p_pre", 4)
    sp.to_regs(PRE)
    if not opt.get("nowait"):
        dn = k.newlab("L_of")
        e("v_cmp_gt_u32 vcc, 8, v29")
        e(f"s_cbranch_vccz {dn}")
        k.poll("v240", WS, 8)
        k.label(dn)
    k.stamp(8)
    aft = {}

    def afl(t, b):
        def f():
            aft[(t, b)] = k.vmem(f"buffer_load_dwordx4 {A(128+t*16+4*b,4)}, v{232+(b&1)}, {WS}, {'0' if b < 2 else 's91'} offen offset:{t*1024} sc1")
        return f
    ALA = opt.get("a_la", 12)
    al = [afl(t, b) for t in range(4) for b in range(4)]
    al += [lambda j=j: aft.__setitem__("g", k.vmem(f"buffer_load_dword v{32+2*j}, v242, {WS}, 0 offen offset:{64*j} sc1")) for j in range(4)]
    run_all(k, al[:ALA])
    al = al[ALA:]
    PR0 = max(PRE, opt.get("p_r0", 2))
    sp.to_regs(PR0, 9)
    k.lgkm0()
    for win in range(4):
        mfmas = []
        for b in range(4):
            for j in range(4):
                d = V(YA + (j*4 + b)*4, 4)
                pre = (lambda x=(win, b): k.wait_vm(aft[x])) if j == 0 else None
                mfmas.append((pre, mf(d, A(64+win*16+j*4, 4), A(128+win*16+4*b, 4), "0" if win == 0 else d)))
        fl_ = al[:4]
        al = al[4:]
        if sp.issued < min(10, sp.nread + PL):
            fl_ = fl_ + p_wdma(sp.issued, sp.wt)
            sp.issued += 1
        GWN = opt.get("p_gw", 0)
        if win == GWN:
            fl_ = fl_ + [lambda: aft.__setitem__("gu", k.vmem(f"buffer_load_dword v31, v241, {WS}, 0 offen sc1"))]
        if win == 2:
            assert sp.issued == 10 and not al
            if opt.get("nowait"):
                fl_ = fl_ + ["s_mov_b32 s90, 0"]
            else:
                fl_ = fl_ + [lambda: k.wait_vm(aft["gu"]), "v_cmp_gt_u32 vcc, 15, v31", "s_nop 0",
                             lambda: (e("s_cmp_eq_u64 vcc, 0"), e(f"s_cselect_b32 s90, 0, {hex(WS_BYTES)}"))]
        if win >= 2:
            fl_ = fl_ + sum((p_fload(win - 2, b, sp.ft, True) for b in range(4)), [])
        rd = []
        if sp.nread < 4:
            rd = [lambda u=sp.nread: k.wait_vm(sp.wt[u])] + p_wread(sp.nread)
            sp.nread += 1
        interleave(k, mfmas, mix(rd, fl_), tail=2)
        if rd:
            k.lgkm0()
    sc = [f"v_sub_f32 v{48+2*j}, 1.0, v{32+2*j}" for j in range(4)]
    sc += [f"v_max_f32 v{48+2*j}, {hex(f32bits(1e-30))}, v{48+2*j}" for j in range(4)]
    sc += [f"v_rcp_f32 v{56+j}, v{48+2*j}" for j in range(4)]
    sc += [f"v_lshlrev_b32 v{40+2*j}, 16, v{252+j}" for j in range(4)]
    sc += [f"v_mul_f32 v{32+2*j}, v{32+2*j}, v{56+j}" for j in range(4)]
    for b in range(4):
        for j in range(4):
            for h_ in range(2):
                r = YA + (b*4 + j)*4 + 2*h_
                if b < 3:
                    sc.append(f"v_pk_mul_f32 {V(r,2)}, {V(r,2)}, {V(32+2*j,2)} op_sel_hi:[1,0]")
                else:
                    sc.append(f"v_pk_fma_f32 {V(r,2)}, {V(r,2)}, {V(32+2*j,2)}, {V(40+2*j,2)} op_sel_hi:[1,0,0]")
    PLA = 12
    seq_y = [(t, b) for t in range(7) for b in range(4)] + [(t, b) for b in range(4) for t in range(7, 11)]
    k.wait_vm(aft["g"])
    k.stamp(0)
    run_all(k, mix(sum((p_fload(2, b, sp.ft, True) for b in range(4)), []), sc))
    if not opt.get("nowait"):
        jn = k.newlab("L_yj")
        e("s_cmp_eq_u32 s90, 0")
        e(f"s_cbranch_scc1 {jn}")
        vs = k.vm
        k.poll("v241", WS, 15)
        k.stamp(9)
        for i in range(PLA):
            run_all(k, p_fload(*seq_y[i], {}))
        k.vm = vs
        k.label(jn)
    k.nop(2)

    def comb(b):
        return [f"ds_write_b128 v244, {V(YA+(b*4+j)*4,4)} offset:{(b*4+j)*1024}" for j in range(4)]
    sp.run(seq_y, PLA, 0, lambda win: comb(win - 8) if win >= 8 else [], rmax=1, pre_issued=PLA,
           prof=(dict(zip(range(11), (1, 2, 3, 4, 5, 6, 7, 8, 0, 9, 10))) if opt.get("prof") == 2 else None))
    if opt.get("prof") == 2:
        k.stamp(11, True)
    k.stamp(10)
    k.lgkm0()
    e("s_barrier")
    for o in range(3):
        for j in range(4):
            e(f"ds_read_b128 {V(AA+16*o+4*j,4)}, v{245+o} offset:{j*1024}")
    for o in range(3):
        e(f"s_waitcnt lgkmcnt({8-4*o})") if not opt.get("diag") else k.lgkm0()
        for r in range(8):
            e(f"v_pk_add_f32 {V(YA+48+2*r,2)}, {V(YA+48+2*r,2)}, {V(AA+16*o+2*r,2)}")
    for r in range(8):
        e(f"v_pk_mul_f32 {V(YA+48+2*r,2)}, {V(YA+48+2*r,2)}, {V(48+2*(r//2),2)} op_sel_hi:[1,0]")
    for t in range(4):
        e(f"v_cvt_pk_bf16_f32 v{32+2*t}, v{YA+48+4*t}, v{YA+49+4*t}")
        e(f"v_cvt_pk_bf16_f32 v{33+2*t}, v{YA+50+4*t}, v{YA+51+4*t}")
    k.nop(2)
    for p in range(2):
        e(f"v_permlane16_swap_b32 v{32+4*p}, v{34+4*p}")
        e(f"v_permlane16_swap_b32 v{33+4*p}, v{35+4*p}")
    k.nop(1)
    for p in range(2):
        e(f"buffer_store_dwordx4 {V(32+4*p,4)}, v{248+p}, {OUT}, s87 offen {opt.get('oflags', '')}")
    if opt.get("diag"):
        e("s_waitcnt vmcnt(0)")
        k.stamp(11)
        k.lgkm0()
        for i in range(12):
            e(f"v_mov_b32 v{32+i}, s{16+2*i}")
        e("v_mov_b32 v44, s98")
        e("s_getreg_b32 s12, hwreg(HW_REG_XCC_ID)")
        e("v_mov_b32 v45, s12")
        e("s_lshl_b32 s12, s2, 2")
        e("s_add_u32 s12, s12, s3")
        e("s_lshl_b32 s12, s12, 6")
        e(f"s_add_u32 s12, s12, {DIAG}")
        e("v_mov_b32 v30, 0")
        e("s_mov_b64 exec, 1")
        for i in range(4):
            e(f"buffer_store_dwordx4 {V(32+4*i,4)}, v30, {WS}, s12 offen offset:{16*i}")
    k.label("L_end")
    e("s_endpgm")
    return "\n".join(k.l)


HEADER = open("cdna_kernels/" + NAME + ".s.ref").read().split("; Override launch geometry")[0]


def gen_meas(opt):
    mj, mk = opt["meas"], opt.get("mk", 1)
    l = []
    a = l.append
    a("s_cmp_ge_u32 s2, 1")
    a("s_cbranch_scc1 M_end")
    a("s_memrealtime s[30:31]")
    a("s_load_dwordx2 s[4:5], s[0:1], 88")
    a("v_lshlrev_b32 v1, 6, v0")
    a("v_mov_b32 v2, -1")
    a("v_mov_b32 v3, 0")
    a("s_waitcnt lgkmcnt(0)")
    a("s_mov_b32 s8, s4")
    a("s_mov_b32 s9, s5")
    a(f"s_mov_b32 s10, {WS_BYTES}")
    a("s_mov_b32 s11, 0x20000")
    lo, hi = {"Q": (0, 8), "U": (8, 16), "A": (0, 16)}[opt.get("mrole", "A")]
    for it in range(16):
        a(f"s_mov_b32 s12, {DIAG + it*4096}")
        a(f"buffer_load_dword v4, v1, s[8:11], s12 offen offset:48")
        a(f"buffer_load_dword v5, v1, s[8:11], s12 offen offset:{4*mj}")
        a("s_waitcnt vmcnt(0)")
        a("v_min_u32 v2, v2, v4")
        if lo <= it < hi:
            a("v_max_u32 v3, v3, v5")
    a("s_mov_b32 s14, -1")
    a("s_mov_b32 s15, 0")
    a("s_nop 4")
    for i in range(64):
        a(f"v_readlane_b32 s16, v2, {i}")
        a(f"v_readlane_b32 s17, v3, {i}")
        a("s_nop 3")
        a("s_min_u32 s14, s14, s16")
        a("s_max_u32 s15, s15, s17")
    if opt.get("mpost"):
        a("s_sub_u32 s15, s30, s15")
    else:
        a("s_sub_u32 s15, s15, s14")
    a("s_min_u32 s15, s15, 20000")
    a(f"s_mul_i32 s15, s15, {mk}")
    a("s_memrealtime s[20:21]")
    a("s_waitcnt lgkmcnt(0)")
    a("M_spin:")
    a("s_memrealtime s[22:23]")
    a("s_waitcnt lgkmcnt(0)")
    a("s_sub_u32 s24, s22, s20")
    a("s_cmp_lt_u32 s24, s15")
    a("s_cbranch_scc1 M_spin")
    a("M_end:")
    a("s_endpgm")
    return "\n".join(l)


def gen_file(opt):
    kn = NAME + "_kernel"
    nl = opt.get("launches", 1)
    s = HEADER
    for _ in range(opt.get("pre_empty", 0)):
        s += "; @launch kernel=empty_kernel grid=(1,1,1) block=(64,1,1) lds=0\n"
    if opt.get("pre_empty") and "meas" not in opt:
        s += f"; @launch kernel={kn} grid=(256,1,1) block=(256,1,1) lds=163840\n"
    elif "meas" in opt:
        s += f"; @launch kernel={kn} grid=(256,1,1) block=(256,1,1) lds=163840\n"
        s += f"; @launch kernel=meas_kernel grid=(1,1,1) block=(64,1,1) lds=0\n"
    elif nl == 1:
        s += "; @launch grid=(256,1,1) block=(256,1,1) lds=163840\n"
    else:
        for _ in range(nl):
            s += f"; @launch kernel={kn} grid=(256,1,1) block=(256,1,1) lds=163840\n"
    extra_code = ""
    if "meas" in opt:
        extra_code = ".globl meas_kernel\n.p2align 8\n.type meas_kernel,@function\nmeas_kernel:\n" + gen_meas(opt) + "\n"
    if opt.get("pre_empty"):
        extra_code += ".globl empty_kernel\n.p2align 8\n.type empty_kernel,@function\nempty_kernel:\n s_endpgm\n"
    s += f""".amdgcn_target "amdgcn-amd-amdhsa--gfx950"
.text
.globl {kn}
.p2align 8
.type {kn},@function
{kn}:
{gen_body(opt)}
{extra_code}.section .rodata,"a"
.p2align 6
.amdhsa_kernel {kn}
  .amdhsa_next_free_vgpr 512
  .amdhsa_next_free_sgpr 102
  .amdhsa_accum_offset 256
  .amdhsa_group_segment_fixed_size 0
  .amdhsa_kernarg_size 96
  .amdhsa_user_sgpr_count 2
  .amdhsa_user_sgpr_kernarg_segment_ptr 1
  .amdhsa_system_sgpr_workgroup_id_x 1
.end_amdhsa_kernel
"""
    if "meas" in opt:
        s += """.p2align 6
.amdhsa_kernel meas_kernel
  .amdhsa_next_free_vgpr 32
  .amdhsa_next_free_sgpr 102
  .amdhsa_accum_offset 32
  .amdhsa_group_segment_fixed_size 0
  .amdhsa_kernarg_size 96
  .amdhsa_user_sgpr_count 2
  .amdhsa_user_sgpr_kernarg_segment_ptr 1
  .amdhsa_system_sgpr_workgroup_id_x 1
.end_amdhsa_kernel
"""
    if opt.get("pre_empty"):
        s += """.p2align 6
.amdhsa_kernel empty_kernel
  .amdhsa_next_free_vgpr 32
  .amdhsa_next_free_sgpr 102
  .amdhsa_accum_offset 32
  .amdhsa_group_segment_fixed_size 0
  .amdhsa_kernarg_size 96
  .amdhsa_user_sgpr_count 2
  .amdhsa_user_sgpr_kernarg_segment_ptr 1
  .amdhsa_system_sgpr_workgroup_id_x 1
.end_amdhsa_kernel
"""
    return s


if __name__ == "__main__":
    opt = {}
    out = None
    for a in sys.argv[1:]:
        if "=" in a:
            kk, vv = a.split("=", 1)
            try:
                vv = int(vv)
            except ValueError:
                pass
            opt[kk] = vv
        else:
            out = a
    txt = gen_file(opt)
    open(out or ("cdna_kernels/" + NAME + ".s"), "w").write(txt)
```

```python
import sys

NAME = "gated_mix__linear_attn_block__mixer_token_mlp__prompt"

HF = 0x000000
GUF = 0x240000
OF = 0x400000
KVP = 0x600000
ZP = 0x608000
GG = 0x690000
CNT = 0x6A0000
AF = 0x6C0000
DIAG = 0x7E0000
UX = 0x800000
WS_BYTES = 0xC00000

X, WQKV, WO, W1, B1, W2, B2, GW, OUT, DBG, WS = [f"s[{40+4*i}:{43+4*i}]" for i in range(11)]
SRD_INFO = [(40, 16, 2048*512*2), (44, 18, 512*1536*2), (48, 20, 512*512*2), (52, 24, 2048*1376*2),
            (56, 26, 1376*2), (60, 28, 1376*2048*2), (64, 30, 2048*2), (68, 32, 512*2),
            (72, 34, 2048*512*2), (76, 36, 256), (80, 38, WS_BYTES)]

LOG2E = 0x3fb8aa3b
HS = 65536
HQ = 0


def f32bits(x):
    import struct
    return struct.unpack("<I", struct.pack("<f", x))[0]


def rr(kind, base, n):
    return f"{kind}{base}" if n == 1 else f"{kind}[{base}:{base+n-1}]"


def V(b, n=1):
    return rr("v", b, n)


def A(b, n=1):
    return rr("a", b, n)


class Em:
    def __init__(self, opt):
        self.l = []
        self.vm = 0
        self.lab = 0
        self.opt = opt
        self.nstamp = 0

    def e(self, s):
        self.l.append("    " + s)

    def c(self, s):
        self.l.append("    ; " + s)

    def label(self, s):
        self.l.append(s + ":")

    def newlab(self, p="L"):
        self.lab += 1
        return f"{p}_{self.lab}"

    def vmem(self, s):
        self.e(s)
        self.vm += 1
        return self.vm

    def wait_vm(self, tok):
        n = self.vm - tok
        assert n >= 0
        self.e(f"s_waitcnt vmcnt({min(n, 63)})")

    def wait_vm0(self):
        self.e("s_waitcnt vmcnt(0)")

    def lgkm0(self):
        self.e("s_waitcnt lgkmcnt(0)")

    def nop(self, n):
        while n > 0:
            k = min(n, 16)
            self.e(f"s_nop {k-1}")
            n -= k

    def stamp(self, i, prof=False):
        if prof is True:
            prof = self.opt.get("prof") if self.opt.get("prof") in (1, 2) else -1
        if (self.opt.get("prof") or False) != prof:
            return
        if self.opt.get("diag"):
            assert i < 12
            self.e(f"{'s_memtime' if self.opt.get('clk') else 's_memrealtime'} s[{16+2*i}:{17+2*i}]")

    def dma(self, voff, srd, soff, m0expr, flags=""):
        sreg, imm = m0expr
        if sreg is None:
            self.e(f"s_mov_b32 m0, {imm}")
        else:
            self.e(f"s_add_u32 m0, {sreg}, {imm}")
        sr, si = soff
        self.e(f"s_add_u32 s13, {sr}, {si}")
        return self.vmem(f"buffer_load_dwordx4 {voff}, {srd}, s13 offen {flags} lds".replace("  ", " "))

    def poll(self, voff, srd, expect, tmp="v31", sleep=None):
        if self.opt.get("nowait"):
            self.wait_vm0()
            return
        lp = self.newlab("L_poll")
        dn = self.newlab("L_polled")
        self.e("s_mov_b32 s14, 0")
        self.label(lp)
        self.e(f"buffer_load_dword {tmp}, {voff}, {srd}, 0 offen sc1")
        self.e("s_add_u32 s14, s14, 1")
        self.e("s_waitcnt vmcnt(0)")
        self.e(f"v_cmp_gt_u32 vcc, {expect}, {tmp}")
        self.e(f"s_cbranch_vccz {dn}")
        self.e(f"s_sleep {sleep or self.opt.get('sleep', 1)}")
        self.e("s_cmp_lt_u32 s14, 0x40000")
        self.e(f"s_cbranch_scc1 {lp}")
        self.label(dn)

    def poll2(self, voff, srd, expect, more, tmp="v31"):
        if self.opt.get("nowait"):
            more()
            return 0
        t = self.vmem(f"buffer_load_dword {tmp}, {voff}, {srd}, 0 offen sc1")
        more()
        self.wait_vm(t)
        dn = self.newlab("L_fast")
        self.e(f"v_cmp_gt_u32 vcc, {expect}, {tmp}")
        self.e(f"s_cbranch_vccz {dn}")
        self.poll(voff, srd, expect, tmp)
        self.label(dn)
        return t

    def arrive(self, srd, off_sreg, nrep):
        sk = self.newlab("L_arr")
        self.e("s_cmp_lg_u32 s3, 0")
        self.e(f"s_cbranch_scc1 {sk}")
        self.e("v_lshlrev_b32 v30, 8, v1")
        self.e("v_mov_b32 v31, 1")
        self.e(f"s_mov_b64 exec, {(1 << nrep) - 1}")
        self.e(f"buffer_atomic_add v31, v30, {srd}, {off_sreg} offen sc1")
        self.e("s_mov_b64 exec, -1")
        self.label(sk)


def mf(d, a, b, c):
    return f"v_mfma_f32_16x16x32_bf16 {d}, {a}, {b}, {c}"


def interleave(k, mfmas, fillers, tail=2, cap=2, late=(), at=None):
    nm = len(mfmas)
    if late:
        interleave(k, mfmas[:8], fillers[:len(fillers) * 8 // nm + 1], tail=0, cap=cap)
        interleave(k, mfmas[8:], mix(list(late), fillers[len(fillers) * 8 // nm + 1:]), tail=min(tail, 1), cap=cap)
        return
    nf = len(fillers)
    span = max(1, nm - tail)
    fi = 0
    for i, (pre, txt) in enumerate(mfmas):
        if pre:
            pre()
        k.e(txt)
        want = min(nf, -(-(i + 1) * nf // span))
        budget = cap - (1 if (i + 1 < nm and mfmas[i + 1][0]) else 0)
        if at and i in at:
            run_all(k, at[i])
            budget -= len(at[i])
        while fi < want and budget > 0:
            f = fillers[fi]
            fi += 1
            budget -= 1
            if callable(f):
                f()
            else:
                k.e(f)
    while fi < nf:
        f = fillers[fi]
        fi += 1
        if callable(f):
            f()
        else:
            k.e(f)


def run_all(k, items):
    for f in items:
        if callable(f):
            f()
        else:
            k.e(f)


def mix(a, b):
    out = []
    ia = ib = 0
    while ia < len(a) or ib < len(b):
        if ib >= len(b) or (ia < len(a) and ia * len(b) <= ib * len(a)):
            out.append(a[ia])
            ia += 1
        else:
            out.append(b[ib])
            ib += 1
    return out


class SK:
    def __init__(self, k, n, L, NWB, FB, NF, wdma, wread, fload, mm):
        self.__dict__.update(locals())
        self.wt = {}
        self.ft = {}
        self.issued = 0
        self.nread = 0
        self.done = set()
        self.wdone = 0
        self.wq = []
        self.wtmp = {}
        self.wage = {}

    def issue_w(self, upto):
        while self.issued < min(upto, self.n):
            assert self.issued < self.nread + self.L
            run_all(self.k, self.wdma(self.issued, self.wt))
            self.issued += 1

    def assume_issued(self, e, per):
        for t in range(e):
            self.k.vm += per
            self.wt[t] = self.k.vm
        self.issued = e

    def to_regs(self, R, hold=0):
        k = self.k
        while self.nread < R:
            t = self.nread
            assert t < self.wdone + self.NWB
            k.wait_vm(self.wt[t])
            run_all(k, self.wread(t))
            k.lgkm0()
            self.nread += 1
            if self.nread <= R - hold:
                self.issue_w(t + self.L + 1)

    def run(self, seq, LA, drained=0, post=None, wdelay=0, extra=None, pre_issued=0, prof=None,
            wsplit=1, rmax=2, age=2, burst=0, prewin=None):
        k, n, L = self.k, self.n, self.L
        fi = pre_issued

        def fl(i):
            t, b = seq[i]
            if t - self.FB >= 0:
                assert (t - self.FB, b) in self.done, (t, b)
            return self.fload(t, b, self.ft)
        while fi < min(LA, len(seq)):
            run_all(k, fl(fi))
            fi += 1
        for win in range(len(seq) // 4):
            if prof and win in prof:
                k.stamp(prof[win], True)
            if prewin:
                prewin(win)
            grp = seq[4*win:4*win+4]
            assert max(t % n for t, b in grp) < self.nread, (grp, self.nread)
            vm = []
            bursty = burst and (self.issued < n or self.wq)
            nfl = 4
            if bursty:
                ph = win % burst
                nfl = 0 if ph < burst // 2 else 8
            elif burst:
                nfl = max(0, min(8, 4*win + LA + 4 - fi))
            for _ in range(nfl):
                if fi < len(seq):
                    vm += fl(fi)
                    fi += 1
            assert fi >= min(len(seq), 4*win + 8), (win, fi)
            extra_fin = []
            if bursty:
                if nfl == 0:
                    for _ in range(2):
                        if self.issued < n and self.issued < self.nread + L:
                            vm += self.wdma(self.issued, self.wtmp)
                            extra_fin.append(self.issued)
                            self.issued += 1
            if not burst and not self.wq and win >= wdelay and self.issued < n and self.issued < self.nread + L:
                self.wq = self.wdma(self.issued, self.wtmp)
                self.wq_t = self.issued
                self.wq_n = -(-len(self.wq) // wsplit)
                self.issued += 1
            fin = None
            if self.wq:
                vm += self.wq[:self.wq_n]
                self.wq = self.wq[self.wq_n:]
                if not self.wq:
                    fin = self.wq_t
            rd = []
            nr = 0
            while nr < rmax:
                u = self.nread
                if not (u < n and u < self.wdone + self.NWB and u in self.wt):
                    break
                must = u <= max(t % n for t, b in seq[4*win:4*win+8])
                if not must and self.wage.get(u, -99) + age > win:
                    break
                if nr >= 1 and not must and self.issued < n:
                    break
                if self.wt[u] > drained:
                    rd.append(lambda u=u: k.wait_vm(self.wt[u]))
                rd += self.wread(u)
                self.nread += 1
                nr += 1
            mfmas = []
            for (t, b) in grp:
                for j in range(self.NF):
                    pre = (lambda t=t, b=b: k.wait_vm(self.ft[(t, b)])) if j == 0 else None
                    mfmas.append((pre, self.mm(t, b, j)))
            fill = mix(rd, vm)
            ps = post(win) if post else []
            if extra:
                fill = mix(fill, extra(win))
            interleave(k, mfmas, fill, tail=3, late=ps)
            for fin_ in ([fin] if fin is not None else []) + extra_fin:
                self.wt[fin_] = self.wtmp[fin_]
                self.wage[fin_] = win
            for gb in grp:
                self.done.add(gb)
            while self.wdone < n and all((self.wdone, b) in self.done for b in range(4)):
                self.wdone += 1
            if rd:
                k.lgkm0()
        assert not self.wq
        self.wage = {}


def gen_body(opt):
    k = Em(opt)
    e = k.e
    WFL = opt.get("wflags", "")
    ROTQ = opt.get("rot_q", 0)
    ROTU = opt.get("rot_u", 2)
    ROTP = opt.get("rot_p", 1)
    UPART = opt.get("upart", 4)
    UFL = opt.get("u_wflags", "")
    global HS
    global HQ
    HQ = opt.get("hq", 0)
    HS = opt.get("hs", 65536)
    assert HS >= 65536 + 4*HQ
    PW = "s[84:87]"

    def srd(name):
        for (d, s, sz) in SRD_INFO:
            if f"s[{d}:{d+3}]" == name:
                e(f"s_mov_b32 s{d}, s{s}")
                e(f"s_mov_b32 s{d+1}, s{s+1}")
                e(f"s_mov_b32 s{d+2}, {sz}")
                e(f"s_mov_b32 s{d+3}, 0x20000")

    def dmai(voff, srd_, soff, off, toks=None, key=None, fl=""):
        def f():
            if " m0," in k.l[-1]:
                e("s_nop 0")
            t = k.vmem(f"buffer_load_dwordx4 {voff}, {srd_}, {soff} offen offset:{off} {fl} lds".replace("  ", " "))
            if toks is not None:
                toks[key] = t
        return f

    def diag_clear():
        if opt.get("diag"):
            for i in range(16, 40):
                e(f"s_mov_b32 s{i}, 0")

    k.label("L_code0")
    e("s_cmp_ge_u32 s2, 256")
    e("s_cbranch_scc1 L_end")
    e("s_load_dwordx16 s[16:31], s[0:1], 0")
    e("s_load_dwordx8 s[32:39], s[0:1], 64")
    if opt.get("diag"):
        e(f"{'s_memtime' if opt.get('clk') else 's_memrealtime'} s[98:99]")
    if opt.get("cpf", 1):
        e("s_getpc_b64 s[92:93]")
        k.label("L_pc")
        e("s_lshr_b32 s12, s2, 3")
        e(f"s_mul_i32 s12, s12, {12*128}")
        e("s_sub_u32 s92, s92, L_pc-L_code0")
        e("s_subb_u32 s93, s93, 0")
        e("v_lshl_add_u32 v30, v0, 7, s12")
        e("v_min_u32 v30, L_end-L_code0, v30")
        e("v_mov_b32 v31, s93")
        e("v_cmp_gt_u32 s[94:95], 12, v0")
        e("v_add_co_u32 v30, vcc, s92, v30")
        e("s_nop 1")
        e("v_addc_co_u32 v31, vcc, 0, v31, vcc")
        e("s_mov_b64 exec, s[94:95]")
        cs = k.newlab("L_cs")
        e(f"s_cbranch_execz {cs}")
        e("global_load_dword v157, v[30:31], off")
        k.label(cs)
        e("s_mov_b64 exec, -1")
    e("v_lshrrev_b32 v2, 6, v0")
    e("v_and_b32 v1, 63, v0")
    e("v_readfirstlane_b32 s3, v2")
    e("s_and_b32 s4, s2, 7")
    e("s_lshr_b32 s6, s2, 3")
    e("s_and_b32 s5, s4, 1")
    e("s_lshr_b32 s4, s4, 1")
    k.c("role tile: s8 = a*4 + ((idx&15)>>2) (sb / ft), s9 = b*4 + (idx&3) (hg / dt)")
    e("s_bfe_u32 s8, s6, 0x20002")
    e("s_lshl_b32 s12, s4, 2")
    e("s_add_u32 s8, s8, s12")
    e("s_and_b32 s9, s6, 3")
    e("s_lshl_b32 s12, s5, 2")
    e("s_add_u32 s9, s9, s12")
    k.c("P3 tile: s10 = st = a*8 + (idx&7), s11 = dt3 = b*4 + 2*((idx>>3)&1) + ((idx ^ (idx>>4))&1)")
    e("s_and_b32 s10, s6, 7")
    if opt.get("stx"):
        e(f"s_xor_b32 s10, s10, {opt['stx']}")
    e("s_lshr_b32 s11, s6, 4")
    e("s_xor_b32 s11, s11, s6")
    e("s_and_b32 s11, s11, 1")
    e("s_add_u32 s11, s11, s12")
    e("s_lshr_b32 s12, s6, 2")
    e("s_and_b32 s12, s12, 2")
    e("s_add_u32 s11, s11, s12")
    e("s_lshl_b32 s12, s4, 3")
    e("s_add_u32 s10, s10, s12")
    e("s_mul_i32 s7, s3, 40960")
    e("v_and_b32 v2, 15, v1")
    e("v_lshrrev_b32 v3, 4, v1")
    e("v_lshlrev_b32 v4, 4, v1")
    e("v_mov_b32 v5, 0")
    e("s_cmp_lt_u32 s6, 16")
    e("s_cbranch_scc1 L_qrole")
    nz = k.newlab("L_nz")
    n1_ = k.newlab("L_n1")
    e("s_and_b32 s12, s2, 0xf7")
    e("s_cmp_lg_u32 s12, 230")
    e("s_cbranch_scc1 L_urole")
    e("v_mov_b32 v31, 1")
    e("v_lshlrev_b32 v30, 8, v0")
    e("s_waitcnt lgkmcnt(0)")
    srd(WS)
    srd(DBG)
    e("s_cmp_lg_u32 s2, 230")
    e(f"s_cbranch_scc1 {n1_}")
    e("s_cmp_lg_u32 s3, 0")
    e(f"s_cbranch_scc1 {nz}")
    e(f"s_mov_b32 s12, {CNT + 96*256}")
    e("s_mov_b64 exec, 0xffffffff")
    e(f"buffer_store_dword v5, v30, {WS}, s12 offen sc1")
    e("s_mov_b64 exec, -1")
    k.wait_vm0()
    e(f"buffer_store_dword v31, v5, {DBG}, 0 offen sc1")
    e(f"s_branch {nz}")
    k.label(n1_)
    e("v_lshrrev_b32 v29, 5, v0")
    e("v_cmp_ne_u32 vcc, 3, v29")
    e(f"s_mov_b32 s12, {CNT}")
    e("s_and_b64 exec, exec, vcc")
    e(f"buffer_store_dword v5, v30, {WS}, s12 offen sc1")
    e("s_mov_b64 exec, -1")
    e("v_lshlrev_b32 v30, 6, v0")
    for z_ in range(2):
        e(f"s_mov_b32 s12, {CNT + 256*256 + z_*16384}")
        e(f"buffer_store_dword v5, v30, {WS}, s12 offen sc1")
    for r in range(4):
        e(f"v_mov_b32 v{32+r}, 0")
    e("v_lshlrev_b32 v30, 4, v0")
    for z_ in range(9):
        e(f"s_mov_b32 s12, {KVP + z_*4096}")
        e(f"buffer_store_dwordx4 v[32:35], v30, {WS}, s12 offen sc1")
    k.wait_vm0()
    e("s_barrier")
    e("s_cmp_lg_u32 s3, 0")
    e(f"s_cbranch_scc1 {nz}")
    e(f"buffer_store_dword v31, v5, {DBG}, 0 offen offset:128 sc1")
    k.label(nz)
    e("s_branch L_urole")
    k.label("L_qrole")


    def touch_xw():
        if not opt.get("pfx", 4):
            return
        if opt.get("pfx", 4) == 2:
            return touch_xw_all()
        if opt.get("pfx", 4) >= 3:
            return touch_kv(64 if opt.get("pfx", 4) == 3 else 128)
        e("s_lshl_b32 s12, s6, 2")
        e("s_add_u32 s12, s12, s3")
        e("v_lshrrev_b32 v116, 2, v1")
        e("v_lshlrev_b32 v116, 10, v116")
        e("v_and_b32 v117, 3, v1")
        e("v_lshl_add_u32 v116, v117, 7, v116")
        e(f"s_mul_i32 s13, s12, {8*3072}")
        e("s_lshl_b32 s14, s5, 9")
        e("s_add_u32 s13, s13, s14")
        k.vmem(f"buffer_load_dword v157, v116, {WQKV}, s13 offen")
        e("v_lshlrev_b32 v117, 7, v1")
        e("s_lshl_b32 s12, s12, 13")
        e("s_lshl_b32 s14, s4, 19")
        e("s_add_u32 s12, s12, s14")
        k.vmem(f"buffer_load_dword v157, v117, {X}, s12 offen")
        e("s_add_u32 s13, s13, 16384")
        e("s_mov_b64 exec, 0xffffffff")
        k.vmem(f"buffer_load_dword v157, v116, {WQKV}, s13 offen")
        e("s_mov_b64 exec, -1")

    def touch_xw_all():
        e("s_lshl_b32 s12, s6, 2")
        e("s_add_u32 s12, s12, s3")
        e("v_lshrrev_b32 v116, 2, v1")
        e("v_lshlrev_b32 v116, 10, v116")
        e("v_and_b32 v117, 3, v1")
        e("v_lshl_add_u32 v116, v117, 7, v116")
        e(f"s_mul_i32 s13, s12, {4*3072}")
        e("s_lshl_b32 s14, s5, 9")
        e("s_add_u32 s13, s13, s14")
        e("s_mov_b32 s14, 0xffff")
        e("s_mov_b32 exec_hi, s14")
        k.vmem(f"buffer_load_dword v157, v116, {WQKV}, s13 offen")
        e("s_mov_b64 exec, -1")

    def touch_kv(nw):
        e("s_lshl_b32 s12, s6, 2")
        e("s_add_u32 s12, s12, s3")
        e("v_lshrrev_b32 v116, 3, v1")
        e("v_mul_u32_u24 v116, 3072, v116")
        e("v_bfe_u32 v117, v1, 2, 1")
        e("v_lshl_add_u32 v116, v117, 10, v116")
        e("v_and_b32 v117, 3, v1")
        e("v_lshl_add_u32 v116, v117, 7, v116")
        e(f"s_mul_i32 s13, s12, {(512//nw)*3072}")
        e("s_lshl_b32 s14, s5, 9")
        e("s_add_u32 s13, s13, s14")
        if nw == 128:
            e("s_mov_b64 exec, 0xffffffff")
        k.vmem(f"buffer_load_dword v157, v116, {WQKV}, s13 offen offset:1024")
        if nw == 128:
            e("s_mov_b64 exec, -1")

    def touch_x_other():
        e("s_and_b32 s12, s6, 15")
        e("s_lshl_b32 s12, s12, 2")
        e("s_add_u32 s12, s12, s3")
        e("s_lshr_b32 s13, s12, 4")
        e("s_lshl_b32 s13, s13, 17")
        e("s_and_b32 s12, s12, 15")
        e("s_lshl_b32 s12, s12, 12")
        e("s_add_u32 s12, s12, s13")
        e("s_lshl_b32 s13, s4, 19")
        e("s_add_u32 s12, s12, s13")
        e("s_xor_b32 s13, s5, 1")
        e("s_lshl_b32 s13, s13, 16")
        e("s_add_u32 s12, s12, s13")
        e("v_lshlrev_b32 v117, 7, v1")
        e("s_mov_b64 exec, 0xffffffff")
        k.vmem(f"buffer_load_dword v157, v117, {X}, s12 offen")
        e("s_mov_b64 exec, -1")

    def touch_w1():
        if opt.get("pfx", 4) == 2:
            srd(X)
            srd(WQKV)
            touch_x_other()
            touch_xw_all()
        if opt.get("pfx", 4) >= 3:
            srd(X)
            srd(WQKV)
            touch_x_other()
            if opt.get("pfx", 4) == 4:
                touch_kv(128)
        if not opt.get("pfw", 0):
            return
        bw = 768 if UPART == 4 else 384
        e("s_and_b32 s12, s6, 15")
        e("s_lshl_b32 s12, s12, 2")
        e("s_add_u32 s12, s12, s3")
        e(f"s_mul_i32 s12, s12, {32*2752}")
        if UPART == 4:
            e("s_mul_i32 s13, s4, 768")
            e("v_lshrrev_b32 v158, 3, v1")
            e("v_and_b32 v159, 7, v1")
        else:
            e("s_and_b32 s13, s2, 7")
            e("s_mul_i32 s13, s13, 384")
            e("v_lshrrev_b32 v158, 2, v1")
            e("v_and_b32 v159, 3, v1")
        e("s_add_u32 s12, s12, s13")
        e("v_lshlrev_b32 v159, 7, v159")
        e(f"v_min_u32 v159, {bw-4}, v159")
        e("v_mul_u32_u24 v158, 2752, v158")
        e("v_add_u32 v158, v158, v159")
        nrow = 8 if UPART == 4 else 16
        for j in range(32 // nrow):
            k.vmem(f"buffer_load_dword v157, v158, {W1}, s12 offen {UFL}")
            if j + 1 < 32 // nrow:
                e(f"s_add_u32 s12, s12, {nrow*2752}")

    PL, PNWB, PFB = 6, 8, 8
    PE = 6
    YA, AA = 64, 128

    def p3_setup(isq):
        out = (["s_mul_i32 s100, s3, 24576", "s_lshl_b32 s99, s3, 14", "s_add_u32 s99, s99, 98304"] if isq
               else ["s_add_u32 s100, s7, 16384", "s_mov_b32 s99, s7"])
        out += ["v_lshrrev_b32 v30, 3, v1", "v_and_b32 v31, 7, v1", "v_and_b32 v22, 6, v30", "v_xor_b32 v31, v31, v22",
                "v_lshlrev_b32 v31, 4, v31", "v_lshl_add_u32 v22, v30, 12, v31", "v_lshl_add_u32 v250, v30, 10, v31",
                "s_lshl_b32 s13, s11, 7", "s_lshl_b32 s87, s3, 5", "s_add_u32 s87, s87, s13",
                "s_lshl_b32 s12, s3, 17", "s_add_u32 s12, s12, s13", "v_add_u32 v250, s12, v250",
                f"s_mul_i32 s12, s3, {352*4096}", "s_lshl_b32 s13, s10, 7", "s_add_u32 s12, s12, s13", "v_add_u32 v22, s12, v22"]
        for j in range(1, 4):
            out.append(f"v_add_u32 v{22+j}, {j*(8*4096-1024)}, v22")
        out += [f"v_add_u32 v251, {8*1024-1024}, v250"]
        out += ["s_and_b32 s12, s10, 30", "s_add_u32 s12, s12, s5", "s_lshl_b32 s12, s12, 8",
                f"s_add_u32 s12, s12, {CNT + 32*256}", "v_mov_b32 v240, s12",
                "s_lshl_b32 s12, s11, 2", "s_add_u32 s12, s12, s4", "s_lshl_b32 s12, s12, 8",
                f"s_add_u32 s12, s12, {CNT + 64*256}", "v_mov_b32 v241, s12"]
        out += ["v_lshrrev_b32 v228, 2, v2", "v_lshl_add_u32 v228, v3, 2, v228", "v_lshrrev_b32 v229, 1, v228",
                "v_and_b32 v229, 3, v229", "v_lshlrev_b32 v228, 7, v228", "v_lshl_add_u32 v228, v229, 5, v228",
                "v_and_b32 v229, 3, v2", "v_lshl_add_u32 v228, v229, 3, v228", "v_add_u32 v227, s99, v228",
                "v_add_u32 v228, s100, v228"]
        for j in range(1, 4):
            out.append(f"v_xor_b32 v{228+j}, {32*j}, v228")
        out += ["s_lshl_b32 s12, s10, 16", "s_lshl_b32 s13, s3, 12", "s_add_u32 s12, s12, s13",
                f"s_add_u32 s12, s12, {OF}", "v_add_u32 v232, s12, v4", "v_add_u32 v233, 16384, v232",
                f"s_mul_i32 s13, s11, {4*43*1024}", f"s_mul_i32 s12, s3, {11*1024}", "s_add_u32 s13, s13, s12",
                f"s_add_u32 s13, s13, {GUF}"]
        for b in range(4):
            out += [f"s_add_u32 s12, s3, {1+b}", "s_and_b32 s12, s12, 3",
                    "s_lshl_b32 s14, s12, 5", f"v_xor_b32 v{224+b}, s14, v227",
                    f"s_mul_i32 s14, s12, {24576 if isq else 40960}"]
            base = 0 if isq else 16384
            if b < 3:
                out += [f"s_add_u32 s14, s14, {base + (2-b)*4096}", f"v_add_u32 v{245+b}, s14, v4"]
            else:
                out += ["v_add_u32 v244, s100, v4"]
            out += [f"s_mul_i32 s12, s12, {43*1024}", "s_add_u32 s12, s12, s13", f"v_add_u32 v{236+b}, s12, v4"]
        out += ["s_mov_b32 s84, 4096", "s_mov_b32 s85, 8192", "s_mov_b32 s86, 10240", "s_mov_b32 s91, 32768",
                lambda: (e("s_cmp_eq_u32 s3, 3"), e(f"s_cselect_b32 s86, {hex(WS_BYTES)}, s86")),
                "s_lshl_b32 s12, s10, 6", "v_add_u32 v248, s12, v2", "v_lshlrev_b32 v242, 2, v248",
                f"v_add_u32 v242, {GG}, v242", "v_lshlrev_b32 v243, 1, v248",
                "v_and_b32 v249, 1, v3", "v_lshl_add_u32 v248, v249, 4, v248", "v_lshlrev_b32 v248, 10, v248",
                "v_lshrrev_b32 v249, 1, v3", "v_lshl_add_u32 v248, v249, 4, v248", "v_add_u32 v249, 32768, v248"]
        for j in range(4):
            out.append(lambda j=j: k.vmem(f"buffer_load_ushort v{252+j}, v243, {B2}, 0 offen offset:{32*j}"))
        return out

    def wo_dma(d=None):
        out = []
        for t in range(4):
            for h_ in range(2):
                out += [f"s_add_u32 m0, s99, {t*4096 + h_*2048}", f"s_mov_b32 s101, {t*32*1024 + h_*16384}"]
                out += [dmai(f"v{250+j}", WO, "s101", j*1024, {} if d is None else d, t, WFL) for j in range(2)]
        return out

    def wo_reads():
        out = []
        for t in range(4):
            for j in range(4):
                out.append(f"ds_read_b64_tr_b16 {A(64+t*16+j*4,2)}, v{224+j} offset:{t*4096}")
                out.append(f"ds_read_b64_tr_b16 {A(66+t*16+j*4,2)}, v{224+j} offset:{t*4096+2048}")
        return out

    def yblk(t):
        return t

    def p_wdma(t, toks):
        sl = t % PL
        out = [f"s_add_u32 m0, s100, {sl*4096}",
               f"s_mov_b32 s101, {yblk(t)*32*4096}"]
        for j in range(4):
            out.append(dmai(f"v{22+j}", W2, "s101", j*1024, toks, t, WFL))
        return out

    def p_wread(t):
        out = []
        for j in range(4):
            r = (t % PNWB)*16 + j*4
            sl = t % PL
            o = (sl if sl < 6 else sl - 6)*4096
            ar = (228 if sl < 6 else 224) + j
            out.append(f"ds_read_b64_tr_b16 {A(r,2)}, v{ar} offset:{o}")
            out.append(f"ds_read_b64_tr_b16 {A(r+2,2)}, v{ar} offset:{o+2048}")
        return out

    def p3_e1(d=None):
        out = []
        for t in range(PE):
            out += p_wdma(t, {} if d is None else d)
        return out

    def freg(t, b):
        return A(128 + ((t + 4) % PFB)*16 + 4*b, 4)

    def p_fload(t, b, toks, early=False):
        y = yblk(t)
        so, off = ("s86" if y == 10 else ["0", "s84", "s85"][y // 4]), (0 if y == 10 else (y % 4)*1024)

        if early:
            so = {"0": "s90"}[so]

        def f():
            toks[(t, b)] = k.vmem(f"buffer_load_dwordx4 {freg(t,b)}, v{236+b}, {WS}, {so} offen offset:{off} sc1")
        return [f]

    def acc_init():
        out = [f"v_mov_b32 v{YA+r}, 0" for r in range(48)]
        for j in range(4):
            out += [f"v_lshlrev_b32 v{YA+48+4*j+r}, 16, v{252+j}" for r in range(4)]
        return out

    def zload(va="v5", vd="v31"):
        return k.vmem(f"buffer_load_dword {vd}, {va}, {DBG}, 0 offen sc1")

    def zcheck(va="v5", vd="v31"):
        if opt.get("nowait"):
            return
        dn = k.newlab("L_z")
        e(f"v_cmp_gt_u32 vcc, 1, {vd}")
        e(f"s_cbranch_vccz {dn}")
        k.poll(va, DBG, 1)
        k.label(dn)

    k.c("================= Q role: LN =================")
    k.vm = 0
    e("s_lshl_b32 s15, s8, 7")
    e("s_lshl_b32 s12, s9, 4")
    e("s_add_u32 s15, s15, s12")
    e("s_lshl_b32 s12, s3, 2")
    e("s_add_u32 s12, s12, s15")
    e("s_lshl_b32 s12, s12, 10")
    e("v_lshlrev_b32 v7, 4, v2")
    e("v_lshl_add_u32 v6, v3, 10, v7")
    e("s_waitcnt lgkmcnt(0)")
    srd(X)
    tx = [k.vmem(f"buffer_load_dwordx4 {V(32+4*j,4)}, v6, {X}, s12 offen offset:{256*j}") for j in range(4)]
    srd(GW)
    tg = [k.vmem(f"buffer_load_dwordx4 {V(48+4*j,4)}, v7, {GW}, 0 offen offset:{256*j}") for j in range(4)]
    srd(WQKV)
    if not opt.get("q_late", 0):
        touch_xw()
    for n_ in (WS, DBG, WO, W2, B2, OUT):
        srd(n_)
    diag_clear()
    k.stamp(1, 4)
    e("v_lshrrev_b32 v12, 3, v1")
    e("v_and_b32 v13, 7, v1")
    e("v_lshrrev_b32 v14, 1, v12")
    e("v_xor_b32 v14, v14, v13")
    e("v_lshlrev_b32 v14, 4, v14")
    e("v_lshl_add_u32 v14, v12, 10, v14")
    e("v_xor_b32 v15, 64, v14")
    e("s_lshl_b32 s13, s8, 17")
    e("s_lshl_b32 s12, s3, 15")
    e("s_add_u32 s13, s13, s12")
    e("v_add_u32 v144, s13, v14")
    e(f"s_add_u32 s13, s13, {7168}")
    e("v_add_u32 v145, s13, v15")
    e(f"v_add_u32 v146, {2*7168}, v144")
    e(f"v_add_u32 v147, {2*7168}, v145")
    e("v_and_b32 v16, 2, v12")
    e("v_xor_b32 v16, v16, v13")
    e("v_lshlrev_b32 v16, 4, v16")
    e("v_xor_b32 v17, 64, v16")
    e("v_mul_u32_u24 v12, 3072, v12")
    e("s_mul_i32 s13, s3, 49152")
    e("s_lshl_b32 s12, s9, 7")
    e("s_add_u32 s13, s13, s12")
    e("v_add3_u32 v148, v16, v12, s13")
    e(f"s_add_u32 s13, s13, {8*3072-1024}")
    e("v_add3_u32 v149, v17, v12, s13")
    for sec in (1, 2):
        e(f"v_add_u32 v{148+2*sec}, {1024*sec}, v148")
        e(f"v_add_u32 v{149+2*sec}, {1024*sec}, v149")
    e("s_lshl_b32 s90, s3, 12")
    e("s_lshl_b32 s91, s3, 11")
    ct = {}
    WQB = 98304

    def qdma(c):
        slot = c % 3
        out = [f"s_add_u32 m0, s90, {slot*32768}", f"s_mov_b32 s88, {c*128}"]
        for j in range(4):
            out.append(dmai(f"v{144+j}", X, "s88", j*1024))
        for sec in (1, 2):
            out.append(f"s_add_u32 m0, s91, {slot*32768 + 16384 + (sec-1)*8192}")
            if sec == 1:
                out.append(f"s_mov_b32 s89, {c*64*3072}")
            for j in range(2):
                out.append(dmai(f"v{148+2*sec+j}", WQKV, "s89", j*1024, ct, c, WFL))
        out.append(lambda: ctd.add(c))
        return out

    def wqdma(c):
        out = [f"s_add_u32 m0, s91, {WQB + c*8192}", f"s_mov_b32 s89, {c*64*3072}"]
        for j in range(2):
            out.append(dmai(f"v{148+j}", WQKV, "s89", j*1024, ct, "q", WFL))
        return out
    ctd = set()
    nearly = 0
    LNB = 163840 - 17408
    e("s_mul_i32 s12, s3, 4352")
    e(f"s_add_u32 s12, s12, {LNB}")
    e("v_mul_u32_u24 v8, 1088, v3")
    e("v_add3_u32 v8, v8, v7, s12")
    e("v_and_b32 v9, 1, v3")
    e("v_lshlrev_b32 v9, 3, v9")
    e("v_lshrrev_b32 v10, 2, v2")
    e("v_add_u32 v9, v9, v10")
    e("v_mul_u32_u24 v9, 1088, v9")
    e("v_lshrrev_b32 v10, 1, v3")
    e("v_lshl_add_u32 v9, v10, 5, v9")
    e("v_and_b32 v11, 3, v2")
    e("v_lshl_add_u32 v9, v11, 3, v9")
    e("s_lshl_b32 s12, s3, 8")
    e(f"s_add_u32 s12, s12, {LNB}")
    e("v_add_u32 v9, s12, v9")
    e(f"v_mul_u32_u24 v10, {HS}, v10")
    e("v_and_b32 v11, 1, v3")
    e("v_lshl_add_u32 v10, v11, 8, v10")
    e("v_add_u32 v10, v10, v7")
    e(f"s_mul_i32 s84, s3, {8*HS}")
    e("s_lshl_b32 s12, s15, 5")
    e("s_add_u32 s84, s84, s12")
    if HQ:
        e("s_lshr_b32 s12, s15, 9")
        e(f"s_mul_i32 s12, s12, {HQ}")
        e("s_add_u32 s84, s84, s12")
    if HF:
        e(f"s_add_u32 s84, s84, {HF}")
    e("s_lshl_b32 s12, s3, 2")
    e("s_add_u32 s12, s12, s15")
    e("s_lshl_b32 s12, s12, 2")
    e(f"s_add_u32 s12, s12, {GG}")
    e("v_lshl_add_u32 v11, v3, 2, s12")
    e("v_cmp_eq_u32 vcc, 0, v2")
    e("v_mov_b32 v12, 0x7ffffff0")
    e("s_mov_b32 s85, 0x3f803f80")
    e("v_cndmask_b32 v11, v12, v11, vcc")
    e("s_lshr_b32 s96, s3, 1")
    e("s_and_b32 s97, s3, 1")
    e("v_lshrrev_b32 v18, 1, v2")
    e("v_xor_b32 v18, v18, v3")
    e("v_lshlrev_b32 v18, 4, v18")
    e("v_lshl_add_u32 v18, v2, 7, v18")
    e("s_lshl_b32 s12, s96, 13")
    e("v_add_u32 v18, s12, v18")
    e("v_xor_b32 v19, 64, v18")
    e("v_add_u32 v20, 65536, v18")
    e("v_add_u32 v21, 65536, v19")
    e("v_lshrrev_b32 v22, 2, v2")
    e("v_lshrrev_b32 v23, 3, v2")
    e("v_and_b32 v24, 1, v3")
    e("v_lshl_add_u32 v23, v24, 1, v23")
    e("s_lshl_b32 s12, s97, 1")
    e("v_xor_b32 v23, s12, v23")
    e("v_lshl_add_u32 v22, v3, 3, v22")
    e("v_lshlrev_b32 v22, 7, v22")
    e("v_lshl_add_u32 v22, v23, 5, v22")
    e("v_and_b32 v24, 3, v2")
    e("v_lshl_add_u32 v22, v24, 3, v22")
    e("v_add_u32 v22, 16384, v22")
    e(f"v_add_u32 v14, {WQB - 16384}, v22")
    e("v_xor_b32 v15, 32, v14")
    e("s_lshl_b32 s12, s96, 5")
    e("v_xor_b32 v23, s12, v22")
    e("v_xor_b32 v22, 32, v23")
    e("v_add_u32 v24, 65536, v22")
    e("v_add_u32 v25, 65536, v23")
    e("v_lshrrev_b32 v154, 3, v1")
    e("v_and_b32 v155, 7, v1")
    e("v_lshlrev_b32 v154, 12, v154")
    e("v_lshl_add_u32 v154, v155, 7, v154")
    e(f"s_mul_i32 s13, s3, {352*4096}")
    e("s_lshl_b32 s14, s6, 15")
    e("s_add_u32 s13, s13, s14")
    e("s_lshl_b32 s14, s4, 10")
    e("s_add_u32 s13, s13, s14")
    e("v_add_u32 v154, s13, v154")

    k.stamp(2, 4)
    k.wait_vm(tx[3])
    k.stamp(3, 4)
    if opt.get("q_late", 0):
        touch_xw()
    QFAST = opt.get("q_fast", 1)
    QF = opt.get("q_f", 1)
    ln_start = len(k.l)
    e("v_dot2_f32_bf16 v26, v32, s85, 0")
    e("v_dot2_f32_bf16 v27, v33, s85, 0")
    for j in range(2, 16):
        e(f"v_dot2_f32_bf16 v{26+(j&1)}, v{32+j}, s85, v{26+(j&1)}")
    unp = []
    for j in range(16):
        unp.append(f"v_lshlrev_b32 v{64+2*j}, 16, v{32+j}")
        unp.append(f"v_and_b32 v{65+2*j}, 0xffff0000, v{32+j}")
    for s in unp[:4]:
        e(s)
    e("v_add_f32 v26, v26, v27")
    ui = 4
    for rot in (8, 4, 2, 1):
        for s in unp[ui:ui+3]:
            e(s)
        ui += 3
        e(f"v_add_f32_dpp v26, v26, v26 row_ror:{rot} row_mask:0xf bank_mask:0xf")
    for s in unp[ui:]:
        e(s)
    e(f"v_mul_f32 v26, {hex(f32bits(-1.0/512))}, v26")
    for j in range(16):
        e(f"v_pk_add_f32 {V(64+2*j,2)}, {V(64+2*j,2)}, v[26:27] op_sel_hi:[1,0]")
    e("v_pk_mul_f32 v[96:97], v[64:65], v[64:65]")
    e("v_pk_mul_f32 v[98:99], v[66:67], v[66:67]")
    for j in range(2, 16):
        a_ = 96 + 2 * (j & 1)
        e(f"v_pk_fma_f32 {V(a_,2)}, {V(64+2*j,2)}, {V(64+2*j,2)}, {V(a_,2)}")
    e("v_pk_add_f32 v[96:97], v[96:97], v[98:99]")
    e("v_add_f32 v26, v96, v97")
    k.wait_vm(tg[3])
    gd = ["v_dot2_f32_bf16 v28, v32, v48, 0", "v_dot2_f32_bf16 v29, v33, v49, 0"]
    for j in range(2, 16):
        gd.append(f"v_dot2_f32_bf16 v{28+(j&1)}, v{32+j}, v{48+j}, v{28+(j&1)}")
    gi = 0
    for rot in (8, 4, 2, 1):
        e(gd[gi]); e(gd[gi+1]); gi += 2
        e(f"v_add_f32_dpp v26, v26, v26 row_ror:{rot} row_mask:0xf bank_mask:0xf")
    e(f"v_mov_b32 v27, {hex(f32bits(1e-5))}")
    e(f"v_fmac_f32 v27, {hex(f32bits(1.0/512))}, v26")
    e("v_rsq_f32 v26, v27")
    e(gd[gi]); gi += 1
    for j in range(16):
        e(f"v_pk_mul_f32 {V(64+2*j,2)}, {V(64+2*j,2)}, v[26:27] op_sel_hi:[1,0]")
    for j in range(16):
        e(f"v_cvt_pk_bf16_f32 v{100+j}, v{64+2*j}, v{65+2*j}")
        if j % 4 == 3:
            e(f"ds_write_b128 v8, {V(100+j-3,4)} offset:{256*(j//4)}")
    while gi < 16:
        e(gd[gi]); gi += 1
    if QFAST:
        body = [x.strip() for x in k.l[ln_start:]]
        del k.l[ln_start:]
        body = [(lambda: k.wait_vm(tg[3])) if x.startswith("s_waitcnt vmcnt") else x for x in body]
        skip = opt.get("q_skip", 0)
        run_all(k, body[:skip] + mix(body[skip:], sum((qdma(c) for c in range(QF)), [])))
    k.stamp(4, 4)
    k.lgkm0()
    e("s_barrier")
    k.stamp(5, 4)
    for j in range(4):
        e(f"ds_read_b64_tr_b16 {V(64+4*j,2)}, v9 offset:{64*j}")
        e(f"ds_read_b64_tr_b16 {V(66+4*j,2)}, v9 offset:{64*j+4*1088}")
    e("v_add_f32 v28, v28, v29")
    th = None
    for j in range(4):
        e(f"s_waitcnt lgkmcnt({6-2*j})") if not opt.get("diag") else k.lgkm0()
        e(f"s_add_u32 s12, s84, {j*2*HS}")
        th = k.vmem(f"buffer_store_dwordx4 {V(64+4*j,4)}, v10, {WS}, s12 offen sc1")
    k.stamp(6, 4)
    for rot in (8, 4, 2, 1):
        e(f"v_add_f32_dpp v28, v28, v28 row_ror:{rot} row_mask:0xf bank_mask:0xf")
        k.nop(2)
    e(f"v_mul_f32 v28, {hex(f32bits(-1.4426950408889634))}, v28")
    e("v_exp_f32 v28, v28")
    k.nop(1)
    e("v_add_f32 v28, 1.0, v28")
    e("v_rcp_f32 v28, v28")
    k.nop(1)
    th = k.vmem(f"buffer_store_dword v28, v11, {WS}, 0 offen sc1")
    k.stamp(1)

    th = zload()
    npre = 2

    def h_arrive():
        k.stamp(2)
        e("s_lshr_b32 s12, s8, 2")
        e("s_lshl_b32 s12, s12, 11")
        e(f"s_add_u32 s12, s12, {CNT + 96*256}")
        k.arrive(WS, "s12", 8)
    if QFAST and QF == 1:
        run_all(k, qdma(1))
    if not QFAST:
        q0 = opt.get("q_pre", 0)
        for c in range(q0):
            run_all(k, qdma(c))
        k.wait_vm(th)
        zcheck()
        e("s_barrier")
        h_arrive()
        for c in range(q0, 2):
            run_all(k, qdma(c))

    ACC = 160
    FR = [96, 112]

    def qreads(t):
        c, kk = t // 2, t % 2
        slot = c % 3
        hi = slot >= 2
        so = (slot % 2) * 32768
        out = []
        xa = 18 + kk + (2 if hi else 0)
        for i in range(4):
            out.append(f"ds_read_b128 {A(16*t+4*i,4)}, v{xa} offset:{so + i*2048}")
        for sec in range(2):
            for hh in range(2):
                wa = 22 + hh + (2 if hi else 0)
                r = FR[t % 2] + (sec*2 + hh)*4
                o = so + sec*8192 + kk*4096
                out.append(f"ds_read_b64_tr_b16 {V(r,2)}, v{wa} offset:{o}")
                out.append(f"ds_read_b64_tr_b16 {V(r+2,2)}, v{wa} offset:{o+512}")
        return out

    pfl = []
    for r0 in ([0, 128][:opt.get("pf", 2)]):
        pfl.append([lambda r0=r0: (e(f"s_mov_b32 s101, {r0*4096}"), k.vmem(f"buffer_load_dword v157, v154, {W2}, s101 offen"))])
    PFA, PFB_ = opt.get("pf_a", 2), opt.get("pf_b", 1)

    k.wait_vm(ct[0])
    e("s_barrier")
    k.stamp(3)
    run_all(k, qreads(0))
    k.lgkm0()
    pend = qdma(2) if not (QFAST and QF == 3) else []
    QPER = opt.get("q_per", 7)
    consts = [f"s_mov_b32 s92, {hex(LOG2E)}", f"s_mov_b32 s93, {hex(LOG2E)}", f"s_mov_b32 s94, {hex(f32bits(1e-6))}",
              f"s_mov_b32 s95, {hex(f32bits(1e-6))}", "v_mov_b32 v26, s85", "v_mov_b32 v27, s85", "v_mov_b32 v28, s85",
              "v_mov_b32 v29, s85",
              "s_lshl_b32 s12, s3, 11", "s_add_u32 s12, s12, 65536", "v_add_u32 v6, s12, v4", "v_xor_b32 v7, 4096, v6",
              "s_lshl_b32 s15, s9, 2", "s_lshl_b32 s12, s97, 1", "s_add_u32 s15, s15, s12", "s_add_u32 s15, s15, s96",
              "s_lshl_b32 s13, s15, 10", f"s_add_u32 s13, s13, {KVP}", "s_lshl_b32 s12, s15, 6", f"s_add_u32 s12, s12, {ZP}",
              "v_lshlrev_b32 v10, 2, v1", "v_lshlrev_b32 v8, 4, v3", "v_lshl_add_u32 v8, v2, 2, v8",
              "v_cmp_gt_u32 vcc, 4, v2", "v_mov_b32 v9, 0x7ffffff0", "s_nop 0", "v_cndmask_b32 v8, v9, v8, vcc",
              "s_nop 0"]
    for t in range(16):
        qp = dict(zip((0, 1, 2, 3, 4, 5, 6, 8, 10, 12, 14), (1, 2, 3, 4, 5, 6, 7, 8, 0, 9, 10)))
        if t in qp:
            k.stamp(qp[t], True)
        head = []
        if t % 2 == 1 and t + 1 < 16:
            c = (t + 1) // 2
            assert c in ctd, (t, c)
            head = [lambda c=c: k.wait_vm(ct[c]), "s_barrier"]
            if QFAST and c == QF:
                head = [lambda c=c: (k.wait_vm(ct[c]), zcheck()), "s_barrier", h_arrive]
            if c + 2 < 8:
                pend = pend + qdma(c + 2)
            if c == 6:
                for cq in range(8):
                    pend = pend + wqdma(cq)
        nv = len(pend) if t == 15 else (13 if t == 0 else QPER if t < 11 else 8)
        vm = pend[:nv]
        pend = pend[len(vm):]
        if t == 10:
            vm = vm + ["v_mov_b32 v158, 128", lambda: zload("v158", "v159")]
        if t == 15:
            vm = vm + sum(pfl[:PFA], []) + consts
        reads = qreads(t + 1) if t + 1 < 16 else []
        mfmas = []
        for sec in range(2):
            for hh in range(2):
                for i in range(4):
                    d = ACC + 32 + sec*32 + (hh*4 + i)*4
                    cc = "0" if t == 0 else V(d, 4)
                    mfmas.append((None, mf(V(d, 4), A(16*t + 4*i, 4), V(FR[t % 2] + (sec*2 + hh)*4, 4), cc)))
        interleave(k, mfmas, head + mix(reads, vm), tail=3)
        if reads:
            k.lgkm0()
    k.stamp(4)
    k.stamp(11, True)

    def phi(src, dst):
        for j in range(16):
            e(f"v_pk_mul_f32 {V(64+2*j,2)}, {V(src+2*j,2)}, s[92:93]")
        for j in range(32):
            e(f"v_exp_f32 v{64+j}, v{64+j} clamp")
            e(f"v_max_f32 v{src+j}, 0, v{src+j}")
        for j in range(16):
            e(f"v_pk_add_f32 {V(64+2*j,2)}, {V(64+2*j,2)}, s[94:95]")
        for j in range(16):
            e(f"v_pk_add_f32 {V(64+2*j,2)}, {V(64+2*j,2)}, {V(src+2*j,2)}")
        for j in range(16):
            e(f"v_cvt_pk_bf16_f32 v{dst+j}, v{64+2*j}, v{65+2*j}")
    PK, PV, PQ = 96, 112, 128
    phi(ACC + 32, PK)
    for j in range(16):
        e(f"v_cvt_pk_bf16_f32 v{PV+j}, v{ACC+64+2*j}, v{ACC+65+2*j}")
    e("v_cmp_eq_u32 s[88:89], 1, v2")
    e("v_cmp_eq_u32 s[90:91], 2, v2")
    for hh in range(2):
        for p in range(2):
            a_ = V(PK + hh*8 + p*4, 4)
            b_ = V(PV + hh*8 + p*4, 4)
            e(mf(V(32+8*hh, 4), a_, b_, "0" if p == 0 else V(32+8*hh, 4)))
            e(mf(V(36+8*hh, 4), a_, "v[26:29]", "0" if p == 0 else V(36+8*hh, 4)))
    k.nop(4)
    e("ds_write_b128 v6, v[32:35]")
    e("ds_write_b128 v6, v[36:39] offset:1024")
    k.wait_vm(ct["q"])
    zcheck("v158", "v159")
    e("v_cmp_eq_u32 vcc, 3, v2")
    k.lgkm0()
    e("s_barrier")
    e("ds_read_b128 v[32:35], v7")
    e("ds_read_b128 v[36:39], v7 offset:1024")

    def qq_reads(w_):
        out = []
        for kk in range(2):
            for hh in range(2):
                r = 64 + (w_ % 2)*16 + (kk*2 + hh)*4
                o = w_*8192 + kk*4096
                out.append(f"ds_read_b64_tr_b16 {V(r,2)}, v{14+hh} offset:{o}")
                out.append(f"ds_read_b64_tr_b16 {V(r+2,2)}, v{14+hh} offset:{o+512}")
        return out
    run_all(k, qq_reads(0))
    e("s_waitcnt lgkmcnt(8)") if not opt.get("diag") else k.lgkm0()
    for j in range(4):
        e(f"v_pk_add_f32 {V(32+2*j,2)}, {V(32+2*j,2)}, {V(40+2*j,2)}")
    for r in range(4):
        k.vmem(f"buffer_atomic_add_f32 v{32+r}, v10, {WS}, s13 offen offset:{256*r}")
    e("v_cndmask_b32 v36, v36, v37, s[88:89]")
    e("v_cndmask_b32 v36, v36, v38, s[90:91]")
    e("v_cndmask_b32 v36, v36, v39, vcc")
    tat = k.vmem(f"buffer_atomic_add_f32 v36, v8, {WS}, s12 offen")
    e(f"s_lshl_b32 s90, s9, 10")
    e(f"s_add_u32 s90, s90, {CNT}")
    e("s_lshl_b32 s13, s4, 8")
    e("s_add_u32 s13, s13, s90")
    e("v_mov_b32 v8, s13")
    k.lgkm0()
    ps = p3_setup(True)
    KAW = opt.get("kv_aw", 3)
    e1t = {}
    e1_all = p3_e1(e1t)
    QW = 6 * opt.get("q_w", 2)
    qw = e1_all[:QW]
    kvt = {}
    for w_ in range(8):
        mfmas = []
        for kk in range(2):
            for hh in range(2):
                for i in range(4):
                    d = ACC + (hh*4 + i)*4
                    t = 2*w_ + kk
                    mfmas.append((None, mf(V(d, 4), V(64 + (w_ % 2)*16 + (kk*2 + hh)*4, 4), A(16*t + 4*i, 4), "0" if t == 0 else V(d, 4))))
        head = []
        if w_ == KAW:
            head = [lambda: k.wait_vm(tat), "s_barrier", lambda: (k.arrive(WS, "s90", 4), k.stamp(5))] + (sum(pfl[PFA:PFA+PFB_], []) if not opt.get("pf_late", 0) else [])
        n_ = -(-len(ps) // (8 - w_))
        fl_ = ps[:n_]
        ps = ps[n_:]
        if w_ >= opt.get("q_ws", KAW):
            n_ = -(-len(qw) // max(1, opt.get("q_we", 8) - w_))
            fl_ = mix(fl_, qw[:n_])
            qw = qw[n_:]
        if w_ == 7:
            fl_ = fl_ + [lambda: kvt.__setitem__(0, k.vmem(f"buffer_load_dword v31, v8, {WS}, 0 offen sc1"))]
        interleave(k, mfmas, head + mix(qq_reads(w_ + 1) if w_ < 7 else [], fl_), tail=3)
        k.lgkm0()
    e("s_barrier")
    k.nop(6)
    qpre = wo_dma() + e1_all[QW:]
    mark = len(k.l)
    phi(ACC, PQ)
    ph = [x.strip() for x in k.l[mark:]]
    del k.l[mark:]
    cut = opt.get("q_cut", 48)
    run_all(k, ph[:cut])
    e("s_and_b32 s15, s15, 30")
    e("s_lshl_b32 s13, s15, 10")
    e(f"s_add_u32 s13, s13, {KVP}")
    e("s_lshl_b32 s12, s15, 6")
    e(f"s_add_u32 s12, s12, {ZP}")
    e("v_lshlrev_b32 v9, 4, v3")
    if not opt.get("nowait"):
        k.wait_vm(kvt[0])
        dn = k.newlab("L_kf")
        e("v_cmp_gt_u32 vcc, 16, v31")
        e(f"s_cbranch_vccz {dn}")
        k.poll("v8", WS, 16)
        k.label(dn)
    k.stamp(6)
    k.stamp(1, 3)
    for hh in range(2):
        k.vmem(f"buffer_load_dwordx4 {V(196+8*hh,4)}, v9, {WS}, s12 offen offset:{64*hh} sc1")
        for r in range(4):
            tkv = k.vmem(f"buffer_load_dword v{192+8*hh+r}, v10, {WS}, s13 offen offset:{1024*hh+256*r} sc1")
    if opt.get("pf_late", 0):
        run_all(k, sum(pfl[PFA:PFA+PFB_], []))
    n1 = 8 * opt.get("q_n1", 2)
    run_all(k, mix(ph[cut:], qpre[:n1]))
    e("s_lshl_b32 s15, s8, 3")
    e("s_lshl_b32 s12, s96, 2")
    e("s_add_u32 s15, s15, s12")
    e("s_lshl_b32 s15, s15, 4")
    e("s_lshl_b32 s12, s9, 1")
    e("s_add_u32 s15, s15, s12")
    e("s_add_u32 s15, s15, s97")
    e("s_lshl_b32 s15, s15, 10")
    e(f"s_add_u32 s15, s15, {OF}")
    k.wait_vm(tkv)
    k.stamp(2, 3)
    for q_ in range(8):
        e(f"v_cvt_pk_bf16_f32 v{40+q_}, v{192+2*q_}, v{193+2*q_}")
    k.nop(2)
    for hh in range(2):
        for i in range(4):
            q_ = V(PQ + (hh*4+i)*2, 2)
            e(f"v_mfma_f32_16x16x16_bf16 {V(192+(hh*4+i)*4,4)}, {V(42+4*hh,2)}, {q_}, 0")
    for hh in range(2):
        for i in range(4):
            q_ = V(PQ + (hh*4+i)*2, 2)
            e(f"v_mfma_f32_16x16x16_bf16 {V(160+(hh*4+i)*4,4)}, {V(40+4*hh,2)}, {q_}, 0")
    k.nop(1)
    for n_ in range(8):
        e(f"v_add_f32 v{192+4*n_}, s94, v{192+4*n_}")
    for n_ in range(8):
        e(f"v_rcp_f32 v{192+4*n_}, v{192+4*n_}")
    for n_ in range(8):
        e(f"v_pk_mul_f32 {V(160+4*n_,2)}, {V(160+4*n_,2)}, {V(192+4*n_,2)} op_sel_hi:[1,0]")
        e(f"v_pk_mul_f32 {V(162+4*n_,2)}, {V(162+4*n_,2)}, {V(192+4*n_,2)} op_sel_hi:[1,0]")
    for i in range(4):
        for hh in range(2):
            s_ = 160 + (hh*4+i)*4
            e(f"v_cvt_pk_bf16_f32 v{64+4*i+2*hh}, v{s_}, v{s_+1}")
            e(f"v_cvt_pk_bf16_f32 v{65+4*i+2*hh}, v{s_+2}, v{s_+3}")
        e(f"s_add_u32 s12, s15, {i*16384}")
        tos = k.vmem(f"buffer_store_dwordx4 {V(64+4*i,4)}, v4, {WS}, s12 offen sc1")
    k.stamp(3, 3)
    n2 = n1 + 8 * opt.get("q_n2", 2)
    assert n2 <= 32
    run_all(k, qpre[n1:n2])
    k.wait_vm(tos)
    e("s_barrier")
    e("s_lshl_b32 s12, s8, 9")
    e(f"s_add_u32 s12, s12, {CNT + 32*256}")
    k.arrive(WS, "s12", 2)
    k.stamp(7)
    k.stamp(4, 3)
    run_all(k, sum(pfl[PFA+PFB_:], []))
    run_all(k, qpre[n2:])
    e("v_mov_b32 v29, 0")
    e("s_branch L_p3")

    k.label("L_urole")
    k.c("================= U role =================")
    k.vm = 0
    assert HS == 65536 and HQ == 0
    KX = opt.get("kx", 1)
    if KX:
        e("s_and_b32 s9, s6, 3")
        e("s_lshl_b32 s9, s9, 1")
        e("s_add_u32 s9, s9, s5")
    e("s_and_b32 s97, s9, 1")
    e("s_lshl_b32 s97, s97, 2")
    e("s_add_u32 s97, s97, s3")
    e("v_lshrrev_b32 v12, 2, v1")
    e("v_and_b32 v13, 3, v1")
    e(f"s_mul_i32 s13, s97, {256*2752}")
    e("s_mul_i32 s12, s8, 192")
    e("s_add_u32 s13, s13, s12")
    for j in range(3):
        e(f"v_add_u32 v14, {16*j}, v12")
        e("v_mul_u32_u24 v15, 43, v14")
        e("v_lshrrev_b32 v15, 7, v15")
        e("v_mul_u32_u24 v16, 3, v15")
        e("v_sub_u32 v14, v14, v16")
        e("v_lshrrev_b32 v16, 2, v15")
        e("v_and_b32 v16, 2, v16")
        e("v_xor_b32 v16, v16, v13")
        e("v_lshlrev_b32 v16, 4, v16")
        e("v_lshl_add_u32 v16, v14, 6, v16")
        e("v_mul_u32_u24 v15, 2752, v15")
        e(f"v_add3_u32 v{6+j}, v15, v16, s13")
        if j:
            e(f"v_subrev_u32 v{6+j}, {j*1024}, v{6+j}")
        e(f"v_add_u32 v{9+j}, {16*2752}, v{6+j}")
    if KX:
        e("s_and_b32 s90, s6, 3")
    else:
        e("s_and_b32 s90, s9, 2")
        e("s_add_u32 s90, s90, s5")
    e(f"s_mul_i32 s88, s90, {64*2752}")
    e("s_waitcnt lgkmcnt(0)")
    srd(W1)
    e("s_cmp_eq_u32 s8, 15")
    e("s_cbranch_scc1 L_spare")
    UL, UFB = 6, 7
    RB = 22528

    def u_wdma(t, toks):
        out = []
        for j in range(6):
            if j % 3 == 0:
                out.append(f"s_add_u32 m0, s7, {(t % UL)*6144 + j*1024}")
            out.append(dmai(f"v{6+j}", W1, "s88", (j % 3)*1024, toks, t))
        if t % 2 == 0:
            out.append(f"s_add_u32 s88, s88, {32*2752}")
        elif t < 7:
            out += [f"s_xor_b32 s88, s90, {(t+1)//2}", f"s_mul_i32 s88, s88, {64*2752}"]
        return out

    def u_wread(t):
        out = []
        for fb in range(6):
            r = 64 + t*24 + fb*4
            o = (t % UL)*6144 + (fb >> 1)*64
            out.append(f"ds_read_b64_tr_b16 {A(r,2)}, v{16+(fb&1)} offset:{o}")
            out.append(f"ds_read_b64_tr_b16 {A(r+2,2)}, v{16+(fb&1)} offset:{o+768}")
        return out

    def u_fload(t, b, toks):
        def f():
            toks[(t, b)] = k.vmem(f"buffer_load_dwordx4 {V(32+(t%UFB)*16+4*b,4)}, v{12+b}, {WS}, s{92+(t%8)//2} offen offset:{(t%2)*1024} sc1")
        out = [f]
        if t == 7 and b == 3:
            out += [f"s_xor_b32 s{92+q}, s{92+q}, {4*HS}" for q in range(4)]
        return out

    def uacc(ps_, b, j):
        n_ = b*6 + j
        if b == 3:
            return V(152 + 24*ps_ + j*4, 4)
        return A(n_*4, 4) if n_ < 16 else V(144 + (n_-16)*4, 4)

    def u_mm(t, b, j):
        d = uacc(t // 8, b, j)
        first = t % 8 == 0 and not (t == 8 and b == 3)
        return mf(d, A(64 + (t % 8)*24 + j*4, 4), V(32+(t % UFB)*16+4*b, 4), "0" if first else d)

    su = SK(k, 8, UL, 8, UFB, 6, u_wdma, u_wread, u_fload, u_mm)
    TWA = opt.get("tw_after", 1)
    su.issue_w(TWA)
    touch_w1()
    su.issue_w(2)
    srd(B1)
    e("s_mul_i32 s12, s8, 192")
    e("v_lshlrev_b32 v30, 3, v3")
    for j in range(6):
        k.vmem(f"buffer_load_dwordx2 {V(208+2*j,2)}, v30, {B1}, s12 offen offset:{32*j}")
    for n_ in (WS, DBG, WO, W2, B2, OUT):
        srd(n_)
    diag_clear()
    e("v_lshrrev_b32 v16, 2, v2")
    e("v_lshl_add_u32 v16, v3, 3, v16")
    e("v_mul_u32_u24 v16, 192, v16")
    e("v_and_b32 v12, 3, v2")
    e("v_lshl_add_u32 v16, v12, 3, v16")
    e("v_add_u32 v16, s7, v16")
    e("v_and_b32 v12, 1, v3")
    e("v_lshlrev_b32 v12, 5, v12")
    e("v_xor_b32 v13, 32, v12")
    e("v_add_u32 v17, v16, v13")
    e("v_add_u32 v16, v16, v12")
    e("s_and_b32 s13, s9, 6")
    e(f"s_mul_i32 s13, s13, {4*HS}")
    e("s_lshl_b32 s12, s97, 13")
    e("s_add_u32 s13, s13, s12")
    if HF:
        e(f"s_add_u32 s13, s13, {HF}")
    for b in range(4):
        e(f"s_add_u32 s12, s3, {3-b}")
        e("s_and_b32 s12, s12, 3")
        e(f"s_mul_i32 s12, s12, {HS}")
        e("s_add_u32 s12, s12, s13")
        e(f"v_add_u32 v{12+b}, s12, v4")
    e("s_and_b32 s12, s9, 1")
    e("s_xor_b32 s12, s12, 1")
    e("s_lshl_b32 s12, s12, 18")
    for q in range(4):
        e(f"s_xor_b32 s{92+q}, s90, {q}")
        e(f"s_lshl_b32 s{92+q}, s{92+q}, 11")
        e(f"s_add_u32 s{92+q}, s{92+q}, s12")
    run_all(k, p3_setup(False))
    RB = 40960 - 6144
    e(f"s_add_u32 s12, s7, {RB}")
    e("v_add_u32 v26, s12, v4")
    e("s_add_u32 s12, s3, 3")
    e("s_and_b32 s12, s12, 3")
    e("s_mul_i32 s12, s12, 40960")
    e(f"s_add_u32 s12, s12, {RB}")
    e("v_add_u32 v27, s12, v4")
    e("s_and_b32 s12, s2, 7")
    e("s_lshr_b32 s13, s97, 1")
    e("s_lshl_b32 s13, s13, 3")
    e("s_add_u32 s12, s12, s13")
    e("s_lshl_b32 s12, s12, 8")
    e(f"s_add_u32 s12, s12, {CNT + 96*256}")
    e("v_mov_b32 v18, s12")
    for snd in range(2):
        e("s_lshl_b32 s12, s8, 3")
        e("s_add_u32 s12, s12, s9")
        if snd:
            e("s_xor_b32 s12, s12, 1")
        e("s_lshl_b32 s13, s12, 8")
        e("s_lshl_b32 s14, s3, 6")
        e("s_add_u32 s13, s13, s14")
        e(f"s_add_u32 s13, s13, {CNT + 256*256}")
        e(f"v_mov_b32 {'v21' if snd else 'v235'}, s13")
        e("s_lshl_b32 s12, s12, 2")
        e("s_add_u32 s12, s12, s3")
        e("s_mul_i32 s12, s12, 6144")
        e(f"s_add_u32 s12, s12, {UX}")
        e(f"v_add_u32 {'v20' if snd else 'v234'}, s12, v4")
    c0 = -2.0 * 0.7978845608028654 * 1.4426950408889634
    c1 = c0 * 0.044715
    e("s_lshl_b32 s15, s9, 2")
    e("s_add_u32 s15, s15, s3")
    e("s_mul_i32 s15, s15, 43")
    e("s_mul_i32 s13, s8, 3")
    e("s_add_u32 s15, s15, s13")
    e("s_lshl_b32 s15, s15, 10")
    e(f"s_add_u32 s15, s15, {GUF}")
    e("s_cmp_eq_u32 s8, 14")
    e("s_cselect_b32 s13, 0x7ff00000, 0")
    e("v_or_b32 v19, s13, v4")
    UB = opt.get("u_bar", 3)

    def front_pf():
        n_ = opt.get("u_fpf", 0)
        if not n_:
            return
        run_all(k, ["v_lshrrev_b32 v116, 3, v1", "v_and_b32 v117, 7, v1", "v_lshlrev_b32 v116, 12, v116",
                    "v_lshl_add_u32 v116, v117, 7, v116",
                    f"s_mul_i32 s13, s3, {352*4096}", "s_and_b32 s14, s6, 15", "s_lshl_b32 s14, s14, 15", "s_add_u32 s13, s13, s14",
                    "s_lshl_b32 s14, s4, 10", "s_add_u32 s13, s13, s14", "v_add_u32 v116, s13, v116"])
        for r0 in [192, 64][:n_] if n_ < 3 else [224, 96, 0]:
            e(f"s_mov_b32 s13, {r0*4096}")
            k.vmem(f"buffer_load_dword v157, v116, {W2}, s13 offen")
    if opt.get("u_fpos", 0) == 0:
        front_pf()
    if UB & 1:
        e("s_barrier")
    if UB & 8:
        k.wait_vm(su.wt[0])
    if UB & 16:
        k.wait_vm(su.wt[1])
    su.issue_w(4)
    tz_ = zload()
    if UB & 2:
        e("s_barrier")
    su.issue_w(UL)
    if UB & 4:
        e("s_barrier")
    k.stamp(5)
    su.to_regs(2, opt.get("u_hold", 1))
    k.wait_vm(tz_)
    zcheck()
    k.stamp(1)
    k.poll2("v18", WS, 32, lambda: (su.issue_w(8), su.to_regs(opt.get("u_r", 5), 9)))
    k.stamp(2)
    k.stamp(1, True)
    ULA = opt.get("u_la", 16)
    ft = {}

    def fl3(i):
        blk, t = i // 8, i % 8

        def f():
            ft[i] = k.vmem(f"buffer_load_dwordx4 {V(32+(blk%4)*32+4*t,4)}, v{12+blk%4}, {WS}, s{92+t//2} offen offset:{(t%2)*1024} sc1")
        out = [f]
        if i == 31:
            out += [f"s_xor_b32 s{92+q}, s{92+q}, {4*HS}" for q in range(4)]
        return out
    for i in range(ULA):
        run_all(k, fl3(i))
    su.to_regs(8, 9)
    fi = ULA
    UX2 = opt.get("u_x2", 0)
    uet = {}
    uwo = {}
    pe_all = wo_dma(uwo) + p3_e1(uet)
    if UX2 == 1:
        pe_all = p3_e1(uet)[:24] + wo_dma(uwo) + p3_e1(uet)[24:]
    y69 = sum((p_wdma(t, {}) for t in range(6, 10)), [])
    YR, YD, YDN = opt.get("u_yr", 11), opt.get("u_yd", 13), opt.get("u_ydn", 3)
    cuts = [0, 8, 16, 24, 32, 38, 44, 50, 56]
    UE1 = opt.get("u_e1", 8)
    pe = pe_all[:cuts[UE1]]
    UPW, UPN = opt.get("u_pw", 6 if UX2 else 8), opt.get("u_pn", 7 if UX2 else 8)
    XF, XC = opt.get("u_xf", 12), opt.get("u_xc", 14)
    xt = {}
    tx_ = {}

    def xcheck():
        k.wait_vm(xt[1])
        if not opt.get("nowait"):
            dn = k.newlab("L_xf")
            e("v_cmp_gt_u32 vcc, 1, v31")
            e(f"s_cbranch_vccz {dn}")
            k.poll("v235", WS, 1)
            k.label(dn)

    def xl(j):
        return lambda: tx_.__setitem__(j, k.vmem(f"buffer_load_dwordx4 {V(160+4*j,4)}, v234, {WS}, {'0' if j < 4 else 's84'} offen offset:{(j%4)*1024} sc1"))

    def xs(j):
        return lambda: xt.__setitem__(0, k.vmem(f"buffer_store_dwordx4 {V(184+4*j,4)}, v20, {WS}, {'0' if j < 4 else 's84'} offen offset:{(j%4)*1024} sc1"))
    uprof = dict(zip((0, 1, 2, 3, 4, 6, 8, 10, 12, 14), (2, 3, 4, 5, 6, 7, 8, 0, 9, 10)))
    for n in range(16):
        if n in uprof:
            k.stamp(uprof[n], True)
        blk, hf = n // 2, n % 2
        stg = blk % 4
        buf = 160 + (n % 4)*12
        WP0 = [int(x) for x in str(opt.get("u_wp", "2,5,9")).split(",")]
        ringn = n >= 1 and ((n - 1) // 2) % 4 < 3
        mfmas = []
        for j in range(3):
            for t in range(8):
                d = V(buf + 4*j, 4)
                pre = None
                if j == 0 and hf == 0:
                    pre = (lambda i=blk*8+t: k.wait_vm(ft[i]))
                if j == 1 and t == 0 and opt.get("u_lw", 1) and stg > 0:
                    pre = (lambda: e(f"s_waitcnt lgkmcnt({sum(1 for x in WP0 if x < 8) if ringn else 0})"))
                mfmas.append((pre, mf(d, A(64 + t*24 + (3*hf + j)*4, 4), V(32+(blk % 4)*32+4*t, 4), "0" if (t == 0 and n < 2) else d)))
        fl_ = []
        for _ in range(4):
            if fi < 64:
                assert fi // 8 - 4 < blk, (n, fi)
                fl_ += fl3(fi)
                fi += 1
        at = {}
        pn = n - 1
        W0, B0 = opt.get("u_w0", 5), opt.get("u_b0", 16)
        WP = [int(x) for x in str(opt.get("u_wp", "2,5,9")).split(",")]
        RS = opt.get("u_rs", 2)
        ring = pn >= 0 and (pn // 2) % 4 < 3
        if ring:
            pb = 160 + (pn % 4)*12
            nb = 160 + ((n + 1) % 4)*12
            for j in range(3):
                at[WP[j]] = [f"ds_write_b128 v26, {V(pb+4*j,4)} offset:{(pn%2)*3072 + j*1024}"]
                at[B0 + 1 + RS*j] = [f"ds_read_b128 {V(nb+4*j,4)}, v27 offset:{(pn%2)*3072 + j*1024}"]
            at[B0] = [k.lgkm0, "s_barrier"]
        if pn in (6, 7):
            for j in range(3):
                at[8 + 5*j] = [xs(3*(pn-6) + j)]
        if n in (6, 7):
            h2 = n - 6
            for j in range(3):
                r, q = 160 + h2*12 + 4*j, 208 + 2*(3*h2 + j)
                fl_ += [f"v_lshlrev_b32 v{r}, 16, v{q}", f"v_and_b32 v{r+1}, 0xffff0000, v{q}",
                        f"v_lshlrev_b32 v{r+2}, 16, v{q+1}", f"v_and_b32 v{r+3}, 0xffff0000, v{q+1}"]
        if n == 3:
            fl_ += ["v_mov_b32 v5, 128", lambda: zload()]
        if n == XF:
            fl_ = [lambda: (k.wait_vm(xt[0]), zcheck()), lambda: k.vmem(f"buffer_store_dword v5, v21, {WS}, 0 offen sc1")] + fl_
        if UPW <= n < UPW + UPN:
            n3 = -(-len(pe) // UPN)
            fl_ += pe[(n-UPW)*n3:(n-UPW+1)*n3]
        yrd = UX2 and YR <= n < YR + 2
        if yrd:
            for t in (2*(n-YR), 2*(n-YR)+1):
                fl_ = mix(fl_, [lambda t=t: k.wait_vm(uet[t])] + p_wread(t))
        if UX2 and YD <= n:
            assert n >= UPW + UPN and n >= YR + 2
            n3 = 6*opt.get("u_ydk", 4) // (16 - YD)
            fl_ += y69[:n3]
            y69 = y69[n3:]
        if n == XC:
            fl_ = [lambda: xt.__setitem__(1, k.vmem(f"buffer_load_dword v31, v235, {WS}, 0 offen sc1"))] + fl_
        if n == 15:
            fl_ = [xcheck] + [xl(j) for j in range(6)] + fl_
            fl_ += [f"s_mov_b32 s92, {hex(f32bits(c1))}", f"s_mov_b32 s93, {hex(f32bits(c1))}",
                    f"v_mov_b32 v20, {hex(f32bits(c0))}", f"v_mov_b32 v21, {hex(f32bits(c0))}"]
        interleave(k, mfmas, fl_, tail=1, at=at)
        if yrd or (ring and not opt.get("u_lw", 1)):
            k.lgkm0()
        elif ring:
            e("s_waitcnt lgkmcnt(2)")
    k.stamp(11, True)
    k.stamp(3)
    tst = {}
    for p in range(3):
        R_ = range(4*p, 4*p+4)
        k.wait_vm(tx_[2*p+1])
        va = []
        va += [f"v_pk_add_f32 {V(32+2*r,2)}, {V(184+2*r,2)}, {V(160+2*r,2)}" for r in R_]
        va += [f"v_pk_mul_f32 {V(56+2*r,2)}, {V(32+2*r,2)}, {V(32+2*r,2)}" for r in R_]
        va += [f"v_pk_fma_f32 {V(56+2*r,2)}, {V(56+2*r,2)}, s[92:93], v[20:21]" for r in R_]
        va += [f"v_pk_mul_f32 {V(56+2*r,2)}, {V(56+2*r,2)}, {V(32+2*r,2)}" for r in R_]
        va += [f"v_exp_f32 v{56+r}, v{56+r}" for r in range(8*p, 8*p+8)]
        va += [f"v_add_f32 v{56+r}, 1.0, v{56+r}" for r in range(8*p, 8*p+8)]
        va += [f"v_rcp_f32 v{56+r}, v{56+r}" for r in range(8*p, 8*p+8)]
        va += [f"v_pk_mul_f32 {V(32+2*r,2)}, {V(32+2*r,2)}, {V(56+2*r,2)}" for r in R_]
        va += [f"v_cvt_pk_bf16_f32 v{96+4*p+q}, v{32+8*p+2*q}, v{33+8*p+2*q}" for q in range(4)]
        run_all(k, va)
        tst[p] = k.vmem(f"buffer_store_dwordx4 {V(96+4*p,4)}, {'v4' if p == 0 else 'v19'}, {WS}, s15 offen offset:{p*1024} sc1")
    k.stamp(4)
    ncut = cuts[min(8, UE1 + opt.get("u_e2", 2))]
    tof = k.vmem(f"buffer_load_dword v29, v240, {WS}, 0 offen sc1")
    run_all(k, pe_all[len(pe):ncut])
    if UX2:
        assert UE1 == 8
        run_all(k, wo_reads())
        run_all(k, y69)
    e("s_lshl_b32 s12, s9, 10")
    e(f"s_add_u32 s12, s12, {CNT + 64*256}")
    k.wait_vm(tst[2])
    e("s_barrier")
    k.arrive(WS, "s12", 4)
    k.stamp(7)
    run_all(k, pe_all[ncut:])
    k.wait_vm(tof)
    e("s_branch L_p3b" if UX2 else "s_branch L_p3")

    k.label("L_spare")
    for n_ in (WS, DBG):
        srd(n_)
    touch_w1()
    for n_ in (WO, W2, B2, OUT):
        srd(n_)
    diag_clear()
    run_all(k, p3_setup(False))
    if opt.get("spf", 1):
        e("v_lshlrev_b32 v30, 7, v1")
        e("s_lshl_b32 s12, s9, 2")
        e("s_add_u32 s12, s12, s3")
        if opt.get("pfx", 4) >= 3:
            e("v_lshrrev_b32 v28, 3, v1")
            e("v_mul_u32_u24 v28, 3072, v28")
            e("v_and_b32 v29, 7, v1")
            e("v_lshl_add_u32 v28, v29, 7, v28")
            e(f"s_mul_i32 s13, s12, {16*3072}")
            e(f"buffer_load_dword v31, v28, {WQKV}, s13 offen")
            e(f"s_add_u32 s13, s13, {8*3072}")
            e(f"buffer_load_dword v31, v28, {WQKV}, s13 offen")
        e("s_lshl_b32 s12, s12, 14")
        e(f"buffer_load_dword v31, v30, {WO}, s12 offen")
        e("s_add_u32 s12, s12, 8192")
        e(f"buffer_load_dword v31, v30, {WO}, s12 offen")
        e(f"s_mul_i32 s12, s3, {352*4096}")
        e("s_lshl_b32 s13, s9, 13")
        e("s_add_u32 s12, s12, s13")
        e(f"s_add_u32 s12, s12, {(352 - 16*opt.get('spf_n', 5))*4096}")
        e("s_mov_b32 s14, 0")
        lp = k.newlab("L_spf")
        k.label(lp)
        e(f"buffer_load_dword v31, v30, {W2}, s12 offen")
        e("s_add_u32 s12, s12, 65536")
        e("s_add_u32 s14, s14, 1")
        e("s_waitcnt vmcnt(2)")
        e(f"s_cmp_lt_u32 s14, {opt.get('spf_n', 5)}")
        e(f"s_cbranch_scc1 {lp}")
        k.wait_vm0()
        k.stamp(6)
    e("v_mov_b32 v5, 128")
    k.poll("v5", DBG, 1)
    e(f"v_mov_b32 v30, {CNT}")
    k.poll("v30", WS, 16, sleep=32)
    run_all(k, wo_dma() + p3_e1())
    e("v_mov_b32 v29, 0")

    k.label("L_p3")
    k.c("================= P3 =================")

    def p_mm(t, b, j):
        d = V(YA + (b*4 + j)*4, 4)
        return mf(d, freg(t, b), A((t % PNWB)*16 + j*4, 4), d)

    k.vm = 16
    sp = SK(k, 11, PL, PNWB, PFB, 4, p_wdma, p_wread, p_fload, p_mm)
    QY = 6 - opt.get("q_w", 2)
    twos = k.vm + 4*(6 - QY)
    sp.assume_issued(PE, 4)
    k.wait_vm(twos)
    run_all(k, wo_reads())
    PRE = 4
    sp.to_regs(PRE)
    k.label("L_p3b")
    for t in range(4, 10):
        sp.wt[t] = k.vm
    if not opt.get("nowait"):
        dn = k.newlab("L_of")
        e("v_cmp_gt_u32 vcc, 8, v29")
        e(f"s_cbranch_vccz {dn}")
        k.poll("v240", WS, 8)
        k.label(dn)
    k.stamp(8)
    aft = {}

    def afl(t, b):
        def f():
            aft[(t, b)] = k.vmem(f"buffer_load_dwordx4 {A(128+t*16+4*b,4)}, v{232+(b&1)}, {WS}, {'0' if b < 2 else 's91'} offen offset:{t*1024} sc1")
        return f
    ALA = opt.get("a_la", 12)
    al = [afl(t, b) for t in range(4) for b in range(4)]
    al += [lambda j=j: aft.__setitem__("g", k.vmem(f"buffer_load_dword v{32+2*j}, v242, {WS}, 0 offen offset:{64*j} sc1")) for j in range(4)]
    run_all(k, al[:ALA])
    al = al[ALA:]
    PR0 = max(PRE, opt.get("p_r0", 2))
    sp.to_regs(PR0, 9)
    k.lgkm0()
    for win in range(4):
        mfmas = []
        for b in range(4):
            for j in range(4):
                d = V(YA + (j*4 + b)*4, 4)
                pre = (lambda x=(win, b): k.wait_vm(aft[x])) if j == 0 else None
                mfmas.append((pre, mf(d, A(64+win*16+j*4, 4), A(128+win*16+4*b, 4), "0" if win == 0 else d)))
        fl_ = al[:4]
        al = al[4:]
        if sp.issued < min(10, sp.nread + PL):
            fl_ = fl_ + p_wdma(sp.issued, sp.wt)
            sp.issued += 1
        GWN = opt.get("p_gw", 0)
        if win == GWN:
            fl_ = fl_ + [lambda: aft.__setitem__("gu", k.vmem(f"buffer_load_dword v31, v241, {WS}, 0 offen sc1"))]
        if win == 2:
            assert sp.issued == 10 and not al
            if opt.get("nowait"):
                fl_ = fl_ + ["s_mov_b32 s90, 0"]
            else:
                fl_ = fl_ + [lambda: k.wait_vm(aft["gu"]), "v_cmp_gt_u32 vcc, 15, v31", "s_nop 0",
                             lambda: (e("s_cmp_eq_u64 vcc, 0"), e(f"s_cselect_b32 s90, 0, {hex(WS_BYTES)}"))]
        if win >= 2:
            fl_ = fl_ + sum((p_fload(win - 2, b, sp.ft, True) for b in range(4)), [])
        rd = []
        if sp.nread < 4:
            rd = [lambda u=sp.nread: k.wait_vm(sp.wt[u])] + p_wread(sp.nread)
            sp.nread += 1
        interleave(k, mfmas, mix(rd, fl_), tail=2)
        if rd:
            k.lgkm0()
    sc = [f"v_sub_f32 v{48+2*j}, 1.0, v{32+2*j}" for j in range(4)]
    sc += [f"v_max_f32 v{48+2*j}, {hex(f32bits(1e-30))}, v{48+2*j}" for j in range(4)]
    sc += [f"v_rcp_f32 v{56+j}, v{48+2*j}" for j in range(4)]
    sc += [f"v_lshlrev_b32 v{40+2*j}, 16, v{252+j}" for j in range(4)]
    sc += [f"v_mul_f32 v{32+2*j}, v{32+2*j}, v{56+j}" for j in range(4)]
    for b in range(4):
        for j in range(4):
            for h_ in range(2):
                r = YA + (b*4 + j)*4 + 2*h_
                if b < 3:
                    sc.append(f"v_pk_mul_f32 {V(r,2)}, {V(r,2)}, {V(32+2*j,2)} op_sel_hi:[1,0]")
                else:
                    sc.append(f"v_pk_fma_f32 {V(r,2)}, {V(r,2)}, {V(32+2*j,2)}, {V(40+2*j,2)} op_sel_hi:[1,0,0]")
    PLA = 12
    seq_y = [(t, b) for t in range(7) for b in range(4)] + [(t, b) for b in range(4) for t in range(7, 11)]
    k.wait_vm(aft["g"])
    k.stamp(0)
    run_all(k, mix(sum((p_fload(2, b, sp.ft, True) for b in range(4)), []), sc))
    if not opt.get("nowait"):
        jn = k.newlab("L_yj")
        e("s_cmp_eq_u32 s90, 0")
        e(f"s_cbranch_scc1 {jn}")
        vs = k.vm
        k.poll("v241", WS, 15)
        k.stamp(9)
        for i in range(PLA):
            run_all(k, p_fload(*seq_y[i], {}))
        k.vm = vs
        k.label(jn)
    k.nop(2)

    def comb(b):
        return [f"ds_write_b128 v244, {V(YA+(b*4+j)*4,4)} offset:{(b*4+j)*1024}" for j in range(4)]
    sp.run(seq_y, PLA, 0, lambda win: comb(win - 8) if win >= 8 else [], rmax=1, pre_issued=PLA,
           prof=(dict(zip(range(11), (1, 2, 3, 4, 5, 6, 7, 8, 0, 9, 10))) if opt.get("prof") == 2 else None))
    if opt.get("prof") == 2:
        k.stamp(11, True)
    k.stamp(10)
    k.lgkm0()
    e("s_barrier")
    for o in range(3):
        for j in range(4):
            e(f"ds_read_b128 {V(AA+16*o+4*j,4)}, v{245+o} offset:{j*1024}")
    for o in range(3):
        e(f"s_waitcnt lgkmcnt({8-4*o})") if not opt.get("diag") else k.lgkm0()
        for r in range(8):
            e(f"v_pk_add_f32 {V(YA+48+2*r,2)}, {V(YA+48+2*r,2)}, {V(AA+16*o+2*r,2)}")
    for r in range(8):
        e(f"v_pk_mul_f32 {V(YA+48+2*r,2)}, {V(YA+48+2*r,2)}, {V(48+2*(r//2),2)} op_sel_hi:[1,0]")
    for t in range(4):
        e(f"v_cvt_pk_bf16_f32 v{32+2*t}, v{YA+48+4*t}, v{YA+49+4*t}")
        e(f"v_cvt_pk_bf16_f32 v{33+2*t}, v{YA+50+4*t}, v{YA+51+4*t}")
    k.nop(2)
    for p in range(2):
        e(f"v_permlane16_swap_b32 v{32+4*p}, v{34+4*p}")
        e(f"v_permlane16_swap_b32 v{33+4*p}, v{35+4*p}")
    k.nop(1)
    for p in range(2):
        e(f"buffer_store_dwordx4 {V(32+4*p,4)}, v{248+p}, {OUT}, s87 offen {opt.get('oflags', '')}")
    if opt.get("diag"):
        e("s_waitcnt vmcnt(0)")
        k.stamp(11)
        k.lgkm0()
        for i in range(12):
            e(f"v_mov_b32 v{32+i}, s{16+2*i}")
        e("v_mov_b32 v44, s98")
        e("s_getreg_b32 s12, hwreg(HW_REG_XCC_ID)")
        e("v_mov_b32 v45, s12")
        e("s_lshl_b32 s12, s2, 2")
        e("s_add_u32 s12, s12, s3")
        e("s_lshl_b32 s12, s12, 6")
        e(f"s_add_u32 s12, s12, {DIAG}")
        e("v_mov_b32 v30, 0")
        e("s_mov_b64 exec, 1")
        for i in range(4):
            e(f"buffer_store_dwordx4 {V(32+4*i,4)}, v30, {WS}, s12 offen offset:{16*i}")
    k.label("L_end")
    e("s_endpgm")
    return "\n".join(k.l)


HEADER = open("cdna_kernels/" + NAME + ".s.ref").read().split("; Override launch geometry")[0]


def gen_meas(opt):
    mj, mk = opt["meas"], opt.get("mk", 1)
    l = []
    a = l.append
    a("s_cmp_ge_u32 s2, 1")
    a("s_cbranch_scc1 M_end")
    a("s_memrealtime s[30:31]")
    a("s_load_dwordx2 s[4:5], s[0:1], 88")
    a("v_lshlrev_b32 v1, 6, v0")
    a("v_mov_b32 v2, -1")
    a("v_mov_b32 v3, 0")
    a("s_waitcnt lgkmcnt(0)")
    a("s_mov_b32 s8, s4")
    a("s_mov_b32 s9, s5")
    a(f"s_mov_b32 s10, {WS_BYTES}")
    a("s_mov_b32 s11, 0x20000")
    lo, hi = {"Q": (0, 8), "U": (8, 16), "A": (0, 16)}[opt.get("mrole", "A")]
    for it in range(16):
        a(f"s_mov_b32 s12, {DIAG + it*4096}")
        a(f"buffer_load_dword v4, v1, s[8:11], s12 offen offset:48")
        a(f"buffer_load_dword v5, v1, s[8:11], s12 offen offset:{4*mj}")
        a("s_waitcnt vmcnt(0)")
        a("v_min_u32 v2, v2, v4")
        if lo <= it < hi:
            a("v_max_u32 v3, v3, v5")
    a("s_mov_b32 s14, -1")
    a("s_mov_b32 s15, 0")
    a("s_nop 4")
    for i in range(64):
        a(f"v_readlane_b32 s16, v2, {i}")
        a(f"v_readlane_b32 s17, v3, {i}")
        a("s_nop 3")
        a("s_min_u32 s14, s14, s16")
        a("s_max_u32 s15, s15, s17")
    if opt.get("mpost"):
        a("s_sub_u32 s15, s30, s15")
    else:
        a("s_sub_u32 s15, s15, s14")
    a("s_min_u32 s15, s15, 20000")
    a(f"s_mul_i32 s15, s15, {mk}")
    a("s_memrealtime s[20:21]")
    a("s_waitcnt lgkmcnt(0)")
    a("M_spin:")
    a("s_memrealtime s[22:23]")
    a("s_waitcnt lgkmcnt(0)")
    a("s_sub_u32 s24, s22, s20")
    a("s_cmp_lt_u32 s24, s15")
    a("s_cbranch_scc1 M_spin")
    a("M_end:")
    a("s_endpgm")
    return "\n".join(l)


def gen_file(opt):
    kn = NAME + "_kernel"
    nl = opt.get("launches", 1)
    s = HEADER
    for _ in range(opt.get("pre_empty", 0)):
        s += "; @launch kernel=empty_kernel grid=(1,1,1) block=(64,1,1) lds=0\n"
    if opt.get("pre_empty") and "meas" not in opt:
        s += f"; @launch kernel={kn} grid=(256,1,1) block=(256,1,1) lds=163840\n"
    elif "meas" in opt:
        s += f"; @launch kernel={kn} grid=(256,1,1) block=(256,1,1) lds=163840\n"
        s += f"; @launch kernel=meas_kernel grid=(1,1,1) block=(64,1,1) lds=0\n"
    elif nl == 1:
        s += "; @launch grid=(256,1,1) block=(256,1,1) lds=163840\n"
    else:
        for _ in range(nl):
            s += f"; @launch kernel={kn} grid=(256,1,1) block=(256,1,1) lds=163840\n"
    extra_code = ""
    if "meas" in opt:
        extra_code = ".globl meas_kernel\n.p2align 8\n.type meas_kernel,@function\nmeas_kernel:\n" + gen_meas(opt) + "\n"
    if opt.get("pre_empty"):
        extra_code += ".globl empty_kernel\n.p2align 8\n.type empty_kernel,@function\nempty_kernel:\n s_endpgm\n"
    s += f""".amdgcn_target "amdgcn-amd-amdhsa--gfx950"
.text
.globl {kn}
.p2align 8
.type {kn},@function
{kn}:
{gen_body(opt)}
{extra_code}.section .rodata,"a"
.p2align 6
.amdhsa_kernel {kn}
  .amdhsa_next_free_vgpr 512
  .amdhsa_next_free_sgpr 102
  .amdhsa_accum_offset 256
  .amdhsa_group_segment_fixed_size 0
  .amdhsa_kernarg_size 96
  .amdhsa_user_sgpr_count 2
  .amdhsa_user_sgpr_kernarg_segment_ptr 1
  .amdhsa_system_sgpr_workgroup_id_x 1
.end_amdhsa_kernel
"""
    if "meas" in opt:
        s += """.p2align 6
.amdhsa_kernel meas_kernel
  .amdhsa_next_free_vgpr 32
  .amdhsa_next_free_sgpr 102
  .amdhsa_accum_offset 32
  .amdhsa_group_segment_fixed_size 0
  .amdhsa_kernarg_size 96
  .amdhsa_user_sgpr_count 2
  .amdhsa_user_sgpr_kernarg_segment_ptr 1
  .amdhsa_system_sgpr_workgroup_id_x 1
.end_amdhsa_kernel
"""
    if opt.get("pre_empty"):
        s += """.p2align 6
.amdhsa_kernel empty_kernel
  .amdhsa_next_free_vgpr 32
  .amdhsa_next_free_sgpr 102
  .amdhsa_accum_offset 32
  .amdhsa_group_segment_fixed_size 0
  .amdhsa_kernarg_size 96
  .amdhsa_user_sgpr_count 2
  .amdhsa_user_sgpr_kernarg_segment_ptr 1
  .amdhsa_system_sgpr_workgroup_id_x 1
.end_amdhsa_kernel
"""
    return s


if __name__ == "__main__":
    opt = {}
    out = None
    for a in sys.argv[1:]:
        if "=" in a:
            kk, vv = a.split("=", 1)
            try:
                vv = int(vv)
            except ValueError:
                pass
            opt[kk] = vv
        else:
            out = a
    txt = gen_file(opt)
    open(out or ("cdna_kernels/" + NAME + ".s"), "w").write(txt)
```

```python
import sys

NAME = "gated_mix__linear_attn_block__mixer_token_mlp__prompt"

HF = 0x000000
GUF = 0x240000
OF = 0x400000
KVP = 0x600000
ZP = 0x608000
GG = 0x690000
CNT = 0x6A0000
AF = 0x6C0000
DIAG = 0x7E0000
UX = 0x800000
WS_BYTES = 0xC00000

X, WQKV, WO, W1, B1, W2, B2, GW, OUT, DBG, WS = [f"s[{40+4*i}:{43+4*i}]" for i in range(11)]
SRD_INFO = [(40, 16, 2048*512*2), (44, 18, 512*1536*2), (48, 20, 512*512*2), (52, 24, 2048*1376*2),
            (56, 26, 1376*2), (60, 28, 1376*2048*2), (64, 30, 2048*2), (68, 32, 512*2),
            (72, 34, 2048*512*2), (76, 36, 256), (80, 38, WS_BYTES)]

LOG2E = 0x3fb8aa3b
HS = 65536
HQ = 0


def f32bits(x):
    import struct
    return struct.unpack("<I", struct.pack("<f", x))[0]


def rr(kind, base, n):
    return f"{kind}{base}" if n == 1 else f"{kind}[{base}:{base+n-1}]"


def V(b, n=1):
    return rr("v", b, n)


def A(b, n=1):
    return rr("a", b, n)


class Em:
    def __init__(self, opt):
        self.l = []
        self.vm = 0
        self.lab = 0
        self.opt = opt
        self.nstamp = 0

    def e(self, s):
        self.l.append("    " + s)

    def c(self, s):
        self.l.append("    ; " + s)

    def label(self, s):
        self.l.append(s + ":")

    def newlab(self, p="L"):
        self.lab += 1
        return f"{p}_{self.lab}"

    def vmem(self, s):
        self.e(s)
        self.vm += 1
        return self.vm

    def wait_vm(self, tok):
        n = self.vm - tok
        assert n >= 0
        self.e(f"s_waitcnt vmcnt({min(n, 63)})")

    def wait_vm0(self):
        self.e("s_waitcnt vmcnt(0)")

    def lgkm0(self):
        self.e("s_waitcnt lgkmcnt(0)")

    def nop(self, n):
        while n > 0:
            k = min(n, 16)
            self.e(f"s_nop {k-1}")
            n -= k

    def stamp(self, i, prof=False):
        if prof is True:
            prof = self.opt.get("prof") if self.opt.get("prof") in (1, 2) else -1
        if (self.opt.get("prof") or False) != prof:
            return
        if self.opt.get("diag"):
            assert i < 12
            self.e(f"{'s_memtime' if self.opt.get('clk') else 's_memrealtime'} s[{16+2*i}:{17+2*i}]")

    def dma(self, voff, srd, soff, m0expr, flags=""):
        sreg, imm = m0expr
        if sreg is None:
            self.e(f"s_mov_b32 m0, {imm}")
        else:
            self.e(f"s_add_u32 m0, {sreg}, {imm}")
        sr, si = soff
        self.e(f"s_add_u32 s13, {sr}, {si}")
        return self.vmem(f"buffer_load_dwordx4 {voff}, {srd}, s13 offen {flags} lds".replace("  ", " "))

    def poll(self, voff, srd, expect, tmp="v31", sleep=None):
        if self.opt.get("nowait"):
            self.wait_vm0()
            return
        lp = self.newlab("L_poll")
        dn = self.newlab("L_polled")
        self.e("s_mov_b32 s14, 0")
        self.label(lp)
        self.e(f"buffer_load_dword {tmp}, {voff}, {srd}, 0 offen sc1")
        self.e("s_add_u32 s14, s14, 1")
        self.e("s_waitcnt vmcnt(0)")
        self.e(f"v_cmp_gt_u32 vcc, {expect}, {tmp}")
        self.e(f"s_cbranch_vccz {dn}")
        self.e(f"s_sleep {sleep or self.opt.get('sleep', 1)}")
        self.e("s_cmp_lt_u32 s14, 0x40000")
        self.e(f"s_cbranch_scc1 {lp}")
        self.label(dn)

    def poll2(self, voff, srd, expect, more, tmp="v31"):
        if self.opt.get("nowait"):
            more()
            return 0
        t = self.vmem(f"buffer_load_dword {tmp}, {voff}, {srd}, 0 offen sc1")
        more()
        self.wait_vm(t)
        dn = self.newlab("L_fast")
        self.e(f"v_cmp_gt_u32 vcc, {expect}, {tmp}")
        self.e(f"s_cbranch_vccz {dn}")
        self.poll(voff, srd, expect, tmp)
        self.label(dn)
        return t

    def arrive(self, srd, off_sreg, nrep):
        sk = self.newlab("L_arr")
        self.e("s_cmp_lg_u32 s3, 0")
        self.e(f"s_cbranch_scc1 {sk}")
        self.e("v_lshlrev_b32 v30, 8, v1")
        self.e("v_mov_b32 v31, 1")
        self.e(f"s_mov_b64 exec, {(1 << nrep) - 1}")
        self.e(f"buffer_atomic_add v31, v30, {srd}, {off_sreg} offen sc1")
        self.e("s_mov_b64 exec, -1")
        self.label(sk)


def mf(d, a, b, c):
    return f"v_mfma_f32_16x16x32_bf16 {d}, {a}, {b}, {c}"


def interleave(k, mfmas, fillers, tail=2, cap=2, late=(), at=None):
    nm = len(mfmas)
    if late:
        interleave(k, mfmas[:8], fillers[:len(fillers) * 8 // nm + 1], tail=0, cap=cap)
        interleave(k, mfmas[8:], mix(list(late), fillers[len(fillers) * 8 // nm + 1:]), tail=min(tail, 1), cap=cap)
        return
    nf = len(fillers)
    span = max(1, nm - tail)
    fi = 0
    for i, (pre, txt) in enumerate(mfmas):
        if pre:
            pre()
        k.e(txt)
        want = min(nf, -(-(i + 1) * nf // span))
        budget = cap - (1 if (i + 1 < nm and mfmas[i + 1][0]) else 0)
        if at and i in at:
            run_all(k, at[i])
            budget -= len(at[i])
        while fi < want and budget > 0:
            f = fillers[fi]
            fi += 1
            budget -= 1
            if callable(f):
                f()
            else:
                k.e(f)
    while fi < nf:
        f = fillers[fi]
        fi += 1
        if callable(f):
            f()
        else:
            k.e(f)


def run_all(k, items):
    for f in items:
        if callable(f):
            f()
        else:
            k.e(f)


def mix(a, b):
    out = []
    ia = ib = 0
    while ia < len(a) or ib < len(b):
        if ib >= len(b) or (ia < len(a) and ia * len(b) <= ib * len(a)):
            out.append(a[ia])
            ia += 1
        else:
            out.append(b[ib])
            ib += 1
    return out


class SK:
    def __init__(self, k, n, L, NWB, FB, NF, wdma, wread, fload, mm):
        self.__dict__.update(locals())
        self.wt = {}
        self.ft = {}
        self.issued = 0
        self.nread = 0
        self.done = set()
        self.wdone = 0
        self.wq = []
        self.wtmp = {}
        self.wage = {}

    def issue_w(self, upto):
        while self.issued < min(upto, self.n):
            assert self.issued < self.nread + self.L
            run_all(self.k, self.wdma(self.issued, self.wt))
            self.issued += 1

    def assume_issued(self, e, per):
        for t in range(e):
            self.k.vm += per
            self.wt[t] = self.k.vm
        self.issued = e

    def to_regs(self, R, hold=0):
        k = self.k
        while self.nread < R:
            t = self.nread
            assert t < self.wdone + self.NWB
            k.wait_vm(self.wt[t])
            run_all(k, self.wread(t))
            k.lgkm0()
            self.nread += 1
            if self.nread <= R - hold:
                self.issue_w(t + self.L + 1)

    def run(self, seq, LA, drained=0, post=None, wdelay=0, extra=None, pre_issued=0, prof=None,
            wsplit=1, rmax=2, age=2, burst=0, prewin=None):
        k, n, L = self.k, self.n, self.L
        fi = pre_issued

        def fl(i):
            t, b = seq[i]
            if t - self.FB >= 0:
                assert (t - self.FB, b) in self.done, (t, b)
            return self.fload(t, b, self.ft)
        while fi < min(LA, len(seq)):
            run_all(k, fl(fi))
            fi += 1
        for win in range(len(seq) // 4):
            if prof and win in prof:
                k.stamp(prof[win], True)
            if prewin:
                prewin(win)
            grp = seq[4*win:4*win+4]
            assert max(t % n for t, b in grp) < self.nread, (grp, self.nread)
            vm = []
            bursty = burst and (self.issued < n or self.wq)
            nfl = 4
            if bursty:
                ph = win % burst
                nfl = 0 if ph < burst // 2 else 8
            elif burst:
                nfl = max(0, min(8, 4*win + LA + 4 - fi))
            for _ in range(nfl):
                if fi < len(seq):
                    vm += fl(fi)
                    fi += 1
            assert fi >= min(len(seq), 4*win + 8), (win, fi)
            extra_fin = []
            if bursty:
                if nfl == 0:
                    for _ in range(2):
                        if self.issued < n and self.issued < self.nread + L:
                            vm += self.wdma(self.issued, self.wtmp)
                            extra_fin.append(self.issued)
                            self.issued += 1
            if not burst and not self.wq and win >= wdelay and self.issued < n and self.issued < self.nread + L:
                self.wq = self.wdma(self.issued, self.wtmp)
                self.wq_t = self.issued
                self.wq_n = -(-len(self.wq) // wsplit)
                self.issued += 1
            fin = None
            if self.wq:
                vm += self.wq[:self.wq_n]
                self.wq = self.wq[self.wq_n:]
                if not self.wq:
                    fin = self.wq_t
            rd = []
            nr = 0
            while nr < rmax:
                u = self.nread
                if not (u < n and u < self.wdone + self.NWB and u in self.wt):
                    break
                must = u <= max(t % n for t, b in seq[4*win:4*win+8])
                if not must and self.wage.get(u, -99) + age > win:
                    break
                if nr >= 1 and not must and self.issued < n:
                    break
                if self.wt[u] > drained:
                    rd.append(lambda u=u: k.wait_vm(self.wt[u]))
                rd += self.wread(u)
                self.nread += 1
                nr += 1
            mfmas = []
            for (t, b) in grp:
                for j in range(self.NF):
                    pre = (lambda t=t, b=b: k.wait_vm(self.ft[(t, b)])) if j == 0 else None
                    mfmas.append((pre, self.mm(t, b, j)))
            fill = mix(rd, vm)
            ps = post(win) if post else []
            if extra:
                fill = mix(fill, extra(win))
            interleave(k, mfmas, fill, tail=3, late=ps)
            for fin_ in ([fin] if fin is not None else []) + extra_fin:
                self.wt[fin_] = self.wtmp[fin_]
                self.wage[fin_] = win
            for gb in grp:
                self.done.add(gb)
            while self.wdone < n and all((self.wdone, b) in self.done for b in range(4)):
                self.wdone += 1
            if rd:
                k.lgkm0()
        assert not self.wq
        self.wage = {}


def gen_body(opt):
    k = Em(opt)
    e = k.e
    WFL = opt.get("wflags", "")
    ROTQ = opt.get("rot_q", 0)
    ROTU = opt.get("rot_u", 2)
    ROTP = opt.get("rot_p", 1)
    UPART = opt.get("upart", 4)
    UFL = opt.get("u_wflags", "")
    global HS
    global HQ
    HQ = opt.get("hq", 0)
    HS = opt.get("hs", 65536)
    assert HS >= 65536 + 4*HQ
    PW = "s[84:87]"

    def srd(name):
        for (d, s, sz) in SRD_INFO:
            if f"s[{d}:{d+3}]" == name:
                e(f"s_mov_b32 s{d}, s{s}")
                e(f"s_mov_b32 s{d+1}, s{s+1}")
                e(f"s_mov_b32 s{d+2}, {sz}")
                e(f"s_mov_b32 s{d+3}, 0x20000")

    def dmai(voff, srd_, soff, off, toks=None, key=None, fl=""):
        def f():
            if " m0," in k.l[-1]:
                e("s_nop 0")
            t = k.vmem(f"buffer_load_dwordx4 {voff}, {srd_}, {soff} offen offset:{off} {fl} lds".replace("  ", " "))
            if toks is not None:
                toks[key] = t
        return f

    def diag_clear():
        if opt.get("diag"):
            for i in range(16, 40):
                e(f"s_mov_b32 s{i}, 0")

    k.label("L_code0")
    e("s_cmp_ge_u32 s2, 256")
    e("s_cbranch_scc1 L_end")
    e("s_load_dwordx16 s[16:31], s[0:1], 0")
    e("s_load_dwordx8 s[32:39], s[0:1], 64")
    if opt.get("diag"):
        e(f"{'s_memtime' if opt.get('clk') else 's_memrealtime'} s[98:99]")
    if opt.get("cpf", 1):
        e("s_getpc_b64 s[92:93]")
        k.label("L_pc")
        e("s_lshr_b32 s12, s2, 3")
        e(f"s_mul_i32 s12, s12, {12*128}")
        e("s_sub_u32 s92, s92, L_pc-L_code0")
        e("s_subb_u32 s93, s93, 0")
        e("v_lshl_add_u32 v30, v0, 7, s12")
        e("v_min_u32 v30, L_end-L_code0, v30")
        e("v_mov_b32 v31, s93")
        e("v_cmp_gt_u32 s[94:95], 12, v0")
        e("v_add_co_u32 v30, vcc, s92, v30")
        e("s_nop 1")
        e("v_addc_co_u32 v31, vcc, 0, v31, vcc")
        e("s_mov_b64 exec, s[94:95]")
        cs = k.newlab("L_cs")
        e(f"s_cbranch_execz {cs}")
        e("global_load_dword v157, v[30:31], off")
        k.label(cs)
        e("s_mov_b64 exec, -1")
    e("v_lshrrev_b32 v2, 6, v0")
    e("v_and_b32 v1, 63, v0")
    e("v_readfirstlane_b32 s3, v2")
    e("s_and_b32 s4, s2, 7")
    e("s_lshr_b32 s6, s2, 3")
    e("s_and_b32 s5, s4, 1")
    e("s_lshr_b32 s4, s4, 1")
    k.c("role tile: s8 = a*4 + ((idx&15)>>2) (sb / ft), s9 = b*4 + (idx&3) (hg / dt)")
    e("s_bfe_u32 s8, s6, 0x20002")
    e("s_lshl_b32 s12, s4, 2")
    e("s_add_u32 s8, s8, s12")
    e("s_and_b32 s9, s6, 3")
    e("s_lshl_b32 s12, s5, 2")
    e("s_add_u32 s9, s9, s12")
    PP8 = opt.get("pp8", 1)
    if PP8:
        k.c("P3 tile: st = xcd*4 + (idx&3), dt3 = 2*((idx>>2)&3) + ((idx ^ (idx>>4))&1)")
        e("s_and_b32 s10, s6, 3")
        e("s_and_b32 s12, s2, 7")
        e("s_lshl_b32 s12, s12, 2")
        e("s_add_u32 s10, s10, s12")
        e("s_lshr_b32 s11, s6, 4")
        e("s_xor_b32 s11, s11, s6")
        e("s_and_b32 s11, s11, 1")
        e("s_lshr_b32 s12, s6, 1")
        e("s_and_b32 s12, s12, 6")
        e("s_add_u32 s11, s11, s12")
    else:
        k.c("P3 tile: s10 = st = a*8 + (idx&7), s11 = dt3 = b*4 + 2*((idx>>3)&1) + ((idx ^ (idx>>4))&1)")
        e("s_and_b32 s10, s6, 7")
        if opt.get("stx"):
            e(f"s_xor_b32 s10, s10, {opt['stx']}")
        e("s_lshr_b32 s11, s6, 4")
        e("s_xor_b32 s11, s11, s6")
        e("s_and_b32 s11, s11, 1")
        e("s_add_u32 s11, s11, s12")
        e("s_lshr_b32 s12, s6, 2")
        e("s_and_b32 s12, s12, 2")
        e("s_add_u32 s11, s11, s12")
        e("s_lshl_b32 s12, s4, 3")
        e("s_add_u32 s10, s10, s12")
    e("s_mul_i32 s7, s3, 40960")
    e("v_and_b32 v2, 15, v1")
    e("v_lshrrev_b32 v3, 4, v1")
    e("v_lshlrev_b32 v4, 4, v1")
    e("v_mov_b32 v5, 0")
    e("s_cmp_lt_u32 s6, 16")
    e("s_cbranch_scc1 L_qrole")
    nz = k.newlab("L_nz")
    n1_ = k.newlab("L_n1")
    e("s_and_b32 s12, s2, 0xf7")
    e("s_cmp_lg_u32 s12, 230")
    e("s_cbranch_scc1 L_urole")
    e("v_mov_b32 v31, 1")
    e("v_lshlrev_b32 v30, 8, v0")
    e("s_waitcnt lgkmcnt(0)")
    srd(WS)
    srd(DBG)
    e("s_cmp_lg_u32 s2, 230")
    e(f"s_cbranch_scc1 {n1_}")
    e("s_cmp_lg_u32 s3, 0")
    e(f"s_cbranch_scc1 {nz}")
    e(f"s_mov_b32 s12, {CNT + 96*256}")
    e("s_mov_b64 exec, 0xffffffff")
    e(f"buffer_store_dword v5, v30, {WS}, s12 offen sc1")
    e("s_mov_b64 exec, -1")
    k.wait_vm0()
    e(f"buffer_store_dword v31, v5, {DBG}, 0 offen sc1")
    e(f"s_branch {nz}")
    k.label(n1_)
    e("v_lshrrev_b32 v29, 5, v0")
    e("v_cmp_ne_u32 vcc, 3, v29")
    e(f"s_mov_b32 s12, {CNT}")
    e("s_and_b64 exec, exec, vcc")
    e(f"buffer_store_dword v5, v30, {WS}, s12 offen sc1")
    e("s_mov_b64 exec, -1")
    e("v_lshlrev_b32 v30, 6, v0")
    for z_ in range(2):
        e(f"s_mov_b32 s12, {CNT + 256*256 + z_*16384}")
        e(f"buffer_store_dword v5, v30, {WS}, s12 offen sc1")
    for r in range(4):
        e(f"v_mov_b32 v{32+r}, 0")
    e("v_lshlrev_b32 v30, 4, v0")
    for z_ in range(9):
        e(f"s_mov_b32 s12, {KVP + z_*4096}")
        e(f"buffer_store_dwordx4 v[32:35], v30, {WS}, s12 offen sc1")
    k.wait_vm0()
    e("s_barrier")
    e("s_cmp_lg_u32 s3, 0")
    e(f"s_cbranch_scc1 {nz}")
    e(f"buffer_store_dword v31, v5, {DBG}, 0 offen offset:128 sc1")
    k.label(nz)
    e("s_branch L_urole")
    k.label("L_qrole")


    def touch_xw():
        if not opt.get("pfx", 4):
            return
        if opt.get("pfx", 4) == 2:
            return touch_xw_all()
        if opt.get("pfx", 4) >= 3:
            return touch_kv(64 if opt.get("pfx", 4) == 3 else 128)
        e("s_lshl_b32 s12, s6, 2")
        e("s_add_u32 s12, s12, s3")
        e("v_lshrrev_b32 v116, 2, v1")
        e("v_lshlrev_b32 v116, 10, v116")
        e("v_and_b32 v117, 3, v1")
        e("v_lshl_add_u32 v116, v117, 7, v116")
        e(f"s_mul_i32 s13, s12, {8*3072}")
        e("s_lshl_b32 s14, s5, 9")
        e("s_add_u32 s13, s13, s14")
        k.vmem(f"buffer_load_dword v157, v116, {WQKV}, s13 offen")
        e("v_lshlrev_b32 v117, 7, v1")
        e("s_lshl_b32 s12, s12, 13")
        e("s_lshl_b32 s14, s4, 19")
        e("s_add_u32 s12, s12, s14")
        k.vmem(f"buffer_load_dword v157, v117, {X}, s12 offen")
        e("s_add_u32 s13, s13, 16384")
        e("s_mov_b64 exec, 0xffffffff")
        k.vmem(f"buffer_load_dword v157, v116, {WQKV}, s13 offen")
        e("s_mov_b64 exec, -1")

    def touch_xw_all():
        e("s_lshl_b32 s12, s6, 2")
        e("s_add_u32 s12, s12, s3")
        e("v_lshrrev_b32 v116, 2, v1")
        e("v_lshlrev_b32 v116, 10, v116")
        e("v_and_b32 v117, 3, v1")
        e("v_lshl_add_u32 v116, v117, 7, v116")
        e(f"s_mul_i32 s13, s12, {4*3072}")
        e("s_lshl_b32 s14, s5, 9")
        e("s_add_u32 s13, s13, s14")
        e("s_mov_b32 s14, 0xffff")
        e("s_mov_b32 exec_hi, s14")
        k.vmem(f"buffer_load_dword v157, v116, {WQKV}, s13 offen")
        e("s_mov_b64 exec, -1")

    def touch_kv(nw):
        e("s_lshl_b32 s12, s6, 2")
        e("s_add_u32 s12, s12, s3")
        e("v_lshrrev_b32 v116, 3, v1")
        e("v_mul_u32_u24 v116, 3072, v116")
        e("v_bfe_u32 v117, v1, 2, 1")
        e("v_lshl_add_u32 v116, v117, 10, v116")
        e("v_and_b32 v117, 3, v1")
        e("v_lshl_add_u32 v116, v117, 7, v116")
        e(f"s_mul_i32 s13, s12, {(512//nw)*3072}")
        e("s_lshl_b32 s14, s5, 9")
        e("s_add_u32 s13, s13, s14")
        if nw == 128:
            e("s_mov_b64 exec, 0xffffffff")
        k.vmem(f"buffer_load_dword v157, v116, {WQKV}, s13 offen offset:1024")
        if nw == 128:
            e("s_mov_b64 exec, -1")

    def touch_x_other():
        e("s_and_b32 s12, s6, 15")
        e("s_lshl_b32 s12, s12, 2")
        e("s_add_u32 s12, s12, s3")
        e("s_lshr_b32 s13, s12, 4")
        e("s_lshl_b32 s13, s13, 17")
        e("s_and_b32 s12, s12, 15")
        e("s_lshl_b32 s12, s12, 12")
        e("s_add_u32 s12, s12, s13")
        e("s_lshl_b32 s13, s4, 19")
        e("s_add_u32 s12, s12, s13")
        e("s_xor_b32 s13, s5, 1")
        e("s_lshl_b32 s13, s13, 16")
        e("s_add_u32 s12, s12, s13")
        e("v_lshlrev_b32 v117, 7, v1")
        e("s_mov_b64 exec, 0xffffffff")
        k.vmem(f"buffer_load_dword v157, v117, {X}, s12 offen")
        e("s_mov_b64 exec, -1")

    def touch_w1():
        if opt.get("pfx", 4) == 2:
            srd(X)
            srd(WQKV)
            touch_x_other()
            touch_xw_all()
        if opt.get("pfx", 4) >= 3:
            srd(X)
            srd(WQKV)
            touch_x_other()
            if opt.get("pfx", 4) == 4:
                touch_kv(128)
        if not opt.get("pfw", 0):
            return
        bw = 768 if UPART == 4 else 384
        e("s_and_b32 s12, s6, 15")
        e("s_lshl_b32 s12, s12, 2")
        e("s_add_u32 s12, s12, s3")
        e(f"s_mul_i32 s12, s12, {32*2752}")
        if UPART == 4:
            e("s_mul_i32 s13, s4, 768")
            e("v_lshrrev_b32 v158, 3, v1")
            e("v_and_b32 v159, 7, v1")
        else:
            e("s_and_b32 s13, s2, 7")
            e("s_mul_i32 s13, s13, 384")
            e("v_lshrrev_b32 v158, 2, v1")
            e("v_and_b32 v159, 3, v1")
        e("s_add_u32 s12, s12, s13")
        e("v_lshlrev_b32 v159, 7, v159")
        e(f"v_min_u32 v159, {bw-4}, v159")
        e("v_mul_u32_u24 v158, 2752, v158")
        e("v_add_u32 v158, v158, v159")
        nrow = 8 if UPART == 4 else 16
        for j in range(32 // nrow):
            k.vmem(f"buffer_load_dword v157, v158, {W1}, s12 offen {UFL}")
            if j + 1 < 32 // nrow:
                e(f"s_add_u32 s12, s12, {nrow*2752}")

    PL, PNWB, PFB = 6, 8, 8
    PE = 6
    YA, AA = 64, 128

    def p3_setup(isq):
        out = (["s_mul_i32 s100, s3, 24576", "s_lshl_b32 s99, s3, 14", "s_add_u32 s99, s99, 98304"] if isq
               else ["s_add_u32 s100, s7, 16384", "s_mov_b32 s99, s7"])
        out += ["v_lshrrev_b32 v30, 3, v1", "v_and_b32 v31, 7, v1", "v_and_b32 v22, 6, v30", "v_xor_b32 v31, v31, v22",
                "v_lshlrev_b32 v31, 4, v31", "v_lshl_add_u32 v22, v30, 12, v31", "v_lshl_add_u32 v250, v30, 10, v31",
                "s_lshl_b32 s13, s11, 7", "s_lshl_b32 s87, s3, 5", "s_add_u32 s87, s87, s13",
                "s_lshl_b32 s12, s3, 17", "s_add_u32 s12, s12, s13", "v_add_u32 v250, s12, v250",
                f"s_mul_i32 s12, s3, {352*4096}", "s_lshl_b32 s13, s10, 7", "s_add_u32 s12, s12, s13", "v_add_u32 v22, s12, v22"]
        for j in range(1, 4):
            out.append(f"v_add_u32 v{22+j}, {j*(8*4096-1024)}, v22")
        out += [f"v_add_u32 v251, {8*1024-1024}, v250"]
        out += ["s_and_b32 s12, s10, 30", "s_add_u32 s12, s12, s5", "s_lshl_b32 s12, s12, 8",
                f"s_add_u32 s12, s12, {CNT + 32*256}", "v_mov_b32 v240, s12",
                ] + (["s_lshl_b32 s12, s11, 3", "s_and_b32 s13, s2, 7", "s_add_u32 s12, s12, s13", "s_lshl_b32 s12, s12, 8",
                      f"s_add_u32 s12, s12, {CNT + 128*256}"] if PP8 else
                     ["s_lshl_b32 s12, s11, 2", "s_add_u32 s12, s12, s4", "s_lshl_b32 s12, s12, 8",
                      f"s_add_u32 s12, s12, {CNT + 64*256}"]) + ["v_mov_b32 v241, s12"]
        out += ["v_lshrrev_b32 v228, 2, v2", "v_lshl_add_u32 v228, v3, 2, v228", "v_lshrrev_b32 v229, 1, v228",
                "v_and_b32 v229, 3, v229", "v_lshlrev_b32 v228, 7, v228", "v_lshl_add_u32 v228, v229, 5, v228",
                "v_and_b32 v229, 3, v2", "v_lshl_add_u32 v228, v229, 3, v228", "v_add_u32 v227, s99, v228",
                "v_add_u32 v228, s100, v228"]
        for j in range(1, 4):
            out.append(f"v_xor_b32 v{228+j}, {32*j}, v228")
        out += ["s_lshl_b32 s12, s10, 16", "s_lshl_b32 s13, s3, 12", "s_add_u32 s12, s12, s13",
                f"s_add_u32 s12, s12, {OF}", "v_add_u32 v232, s12, v4", "v_add_u32 v233, 16384, v232",
                f"s_mul_i32 s13, s11, {4*43*1024}", f"s_mul_i32 s12, s3, {11*1024}", "s_add_u32 s13, s13, s12",
                f"s_add_u32 s13, s13, {GUF}"]
        for b in range(4):
            out += [f"s_add_u32 s12, s3, {1+b}", "s_and_b32 s12, s12, 3",
                    "s_lshl_b32 s14, s12, 5", f"v_xor_b32 v{224+b}, s14, v227",
                    f"s_mul_i32 s14, s12, {24576 if isq else 40960}"]
            base = 0 if isq else 16384
            if b < 3:
                out += [f"s_add_u32 s14, s14, {base + (2-b)*4096}", f"v_add_u32 v{245+b}, s14, v4"]
            else:
                out += ["v_add_u32 v244, s100, v4"]
            out += [f"s_mul_i32 s12, s12, {43*1024}", "s_add_u32 s12, s12, s13", f"v_add_u32 v{236+b}, s12, v4"]
        out += ["s_mov_b32 s84, 4096", "s_mov_b32 s85, 8192", "s_mov_b32 s86, 10240", "s_mov_b32 s91, 32768",
                lambda: (e("s_cmp_eq_u32 s3, 3"), e(f"s_cselect_b32 s86, {hex(WS_BYTES)}, s86")),
                "s_lshl_b32 s12, s10, 6", "v_add_u32 v248, s12, v2", "v_lshlrev_b32 v242, 2, v248",
                f"v_add_u32 v242, {GG}, v242", "v_lshlrev_b32 v243, 1, v248",
                "v_and_b32 v249, 1, v3", "v_lshl_add_u32 v248, v249, 4, v248", "v_lshlrev_b32 v248, 10, v248",
                "v_lshrrev_b32 v249, 1, v3", "v_lshl_add_u32 v248, v249, 4, v248", "v_add_u32 v249, 32768, v248"]
        for j in range(4):
            out.append(lambda j=j: k.vmem(f"buffer_load_ushort v{252+j}, v243, {B2}, 0 offen offset:{32*j}"))
        return out

    def wo_dma(d=None):
        out = []
        for t in range(4):
            for h_ in range(2):
                out += [f"s_add_u32 m0, s99, {t*4096 + h_*2048}", f"s_mov_b32 s101, {t*32*1024 + h_*16384}"]
                out += [dmai(f"v{250+j}", WO, "s101", j*1024, {} if d is None else d, t, WFL) for j in range(2)]
        return out

    def wo_reads():
        out = []
        for t in range(4):
            for j in range(4):
                out.append(f"ds_read_b64_tr_b16 {A(64+t*16+j*4,2)}, v{224+j} offset:{t*4096}")
                out.append(f"ds_read_b64_tr_b16 {A(66+t*16+j*4,2)}, v{224+j} offset:{t*4096+2048}")
        return out

    def yblk(t):
        return t

    def p_wdma(t, toks):
        sl = t % PL
        out = [f"s_add_u32 m0, s100, {sl*4096}",
               f"s_mov_b32 s101, {yblk(t)*32*4096}"]
        for j in range(4):
            out.append(dmai(f"v{22+j}", W2, "s101", j*1024, toks, t, WFL))
        return out

    def p_wread(t):
        out = []
        for j in range(4):
            r = (t % PNWB)*16 + j*4
            sl = t % PL
            o = (sl if sl < 6 else sl - 6)*4096
            ar = (228 if sl < 6 else 224) + j
            out.append(f"ds_read_b64_tr_b16 {A(r,2)}, v{ar} offset:{o}")
            out.append(f"ds_read_b64_tr_b16 {A(r+2,2)}, v{ar} offset:{o+2048}")
        return out

    def p3_e1(d=None):
        out = []
        for t in range(PE):
            out += p_wdma(t, {} if d is None else d)
        return out

    def freg(t, b):
        return A(128 + ((t + 4) % PFB)*16 + 4*b, 4)

    def p_fload(t, b, toks, early=False):
        y = yblk(t)
        so, off = ("s86" if y == 10 else ["0", "s84", "s85"][y // 4]), (0 if y == 10 else (y % 4)*1024)

        if early:
            so = {"0": "s90"}[so]

        def f():
            toks[(t, b)] = k.vmem(f"buffer_load_dwordx4 {freg(t,b)}, v{236+b}, {WS}, {so} offen offset:{off} sc1")
        return [f]

    def acc_init():
        out = [f"v_mov_b32 v{YA+r}, 0" for r in range(48)]
        for j in range(4):
            out += [f"v_lshlrev_b32 v{YA+48+4*j+r}, 16, v{252+j}" for r in range(4)]
        return out

    def zload(va="v5", vd="v31"):
        return k.vmem(f"buffer_load_dword {vd}, {va}, {DBG}, 0 offen sc1")

    def zcheck(va="v5", vd="v31"):
        if opt.get("nowait"):
            return
        dn = k.newlab("L_z")
        e(f"v_cmp_gt_u32 vcc, 1, {vd}")
        e(f"s_cbranch_vccz {dn}")
        k.poll(va, DBG, 1)
        k.label(dn)

    k.c("================= Q role: LN =================")
    k.vm = 0
    e("s_lshl_b32 s15, s8, 7")
    e("s_lshl_b32 s12, s9, 4")
    e("s_add_u32 s15, s15, s12")
    e("s_lshl_b32 s12, s3, 2")
    e("s_add_u32 s12, s12, s15")
    e("s_lshl_b32 s12, s12, 10")
    e("v_lshlrev_b32 v7, 4, v2")
    e("v_lshl_add_u32 v6, v3, 10, v7")
    e("s_waitcnt lgkmcnt(0)")
    srd(X)
    tx = [k.vmem(f"buffer_load_dwordx4 {V(32+4*j,4)}, v6, {X}, s12 offen offset:{256*j}") for j in range(4)]
    srd(GW)
    tg = [k.vmem(f"buffer_load_dwordx4 {V(48+4*j,4)}, v7, {GW}, 0 offen offset:{256*j}") for j in range(4)]
    srd(WQKV)
    if not opt.get("q_late", 0):
        touch_xw()
    for n_ in (WS, DBG, WO, W2, B2, OUT):
        srd(n_)
    diag_clear()
    k.stamp(1, 4)
    e("v_lshrrev_b32 v12, 3, v1")
    e("v_and_b32 v13, 7, v1")
    e("v_lshrrev_b32 v14, 1, v12")
    e("v_xor_b32 v14, v14, v13")
    e("v_lshlrev_b32 v14, 4, v14")
    e("v_lshl_add_u32 v14, v12, 10, v14")
    e("v_xor_b32 v15, 64, v14")
    e("s_lshl_b32 s13, s8, 17")
    e("s_lshl_b32 s12, s3, 15")
    e("s_add_u32 s13, s13, s12")
    e("v_add_u32 v144, s13, v14")
    e(f"s_add_u32 s13, s13, {7168}")
    e("v_add_u32 v145, s13, v15")
    e(f"v_add_u32 v146, {2*7168}, v144")
    e(f"v_add_u32 v147, {2*7168}, v145")
    e("v_and_b32 v16, 2, v12")
    e("v_xor_b32 v16, v16, v13")
    e("v_lshlrev_b32 v16, 4, v16")
    e("v_xor_b32 v17, 64, v16")
    e("v_mul_u32_u24 v12, 3072, v12")
    e("s_mul_i32 s13, s3, 49152")
    e("s_lshl_b32 s12, s9, 7")
    e("s_add_u32 s13, s13, s12")
    e("v_add3_u32 v148, v16, v12, s13")
    e(f"s_add_u32 s13, s13, {8*3072-1024}")
    e("v_add3_u32 v149, v17, v12, s13")
    for sec in (1, 2):
        e(f"v_add_u32 v{148+2*sec}, {1024*sec}, v148")
        e(f"v_add_u32 v{149+2*sec}, {1024*sec}, v149")
    e("s_lshl_b32 s90, s3, 12")
    e("s_lshl_b32 s91, s3, 11")
    ct = {}
    WQB = 98304

    def qdma(c):
        slot = c % 3
        out = [f"s_add_u32 m0, s90, {slot*32768}", f"s_mov_b32 s88, {c*128}"]
        for j in range(4):
            out.append(dmai(f"v{144+j}", X, "s88", j*1024))
        for sec in (1, 2):
            out.append(f"s_add_u32 m0, s91, {slot*32768 + 16384 + (sec-1)*8192}")
            if sec == 1:
                out.append(f"s_mov_b32 s89, {c*64*3072}")
            for j in range(2):
                out.append(dmai(f"v{148+2*sec+j}", WQKV, "s89", j*1024, ct, c, WFL))
        out.append(lambda: ctd.add(c))
        return out

    def wqdma(c):
        out = [f"s_add_u32 m0, s91, {WQB + c*8192}", f"s_mov_b32 s89, {c*64*3072}"]
        for j in range(2):
            out.append(dmai(f"v{148+j}", WQKV, "s89", j*1024, ct, "q", WFL))
        return out
    ctd = set()
    nearly = 0
    LNB = 163840 - 17408
    e("s_mul_i32 s12, s3, 4352")
    e(f"s_add_u32 s12, s12, {LNB}")
    e("v_mul_u32_u24 v8, 1088, v3")
    e("v_add3_u32 v8, v8, v7, s12")
    e("v_and_b32 v9, 1, v3")
    e("v_lshlrev_b32 v9, 3, v9")
    e("v_lshrrev_b32 v10, 2, v2")
    e("v_add_u32 v9, v9, v10")
    e("v_mul_u32_u24 v9, 1088, v9")
    e("v_lshrrev_b32 v10, 1, v3")
    e("v_lshl_add_u32 v9, v10, 5, v9")
    e("v_and_b32 v11, 3, v2")
    e("v_lshl_add_u32 v9, v11, 3, v9")
    e("s_lshl_b32 s12, s3, 8")
    e(f"s_add_u32 s12, s12, {LNB}")
    e("v_add_u32 v9, s12, v9")
    e(f"v_mul_u32_u24 v10, {HS}, v10")
    e("v_and_b32 v11, 1, v3")
    e("v_lshl_add_u32 v10, v11, 8, v10")
    e("v_add_u32 v10, v10, v7")
    e(f"s_mul_i32 s84, s3, {8*HS}")
    e("s_lshl_b32 s12, s15, 5")
    e("s_add_u32 s84, s84, s12")
    if HQ:
        e("s_lshr_b32 s12, s15, 9")
        e(f"s_mul_i32 s12, s12, {HQ}")
        e("s_add_u32 s84, s84, s12")
    if HF:
        e(f"s_add_u32 s84, s84, {HF}")
    e("s_lshl_b32 s12, s3, 2")
    e("s_add_u32 s12, s12, s15")
    e("s_lshl_b32 s12, s12, 2")
    e(f"s_add_u32 s12, s12, {GG}")
    e("v_lshl_add_u32 v11, v3, 2, s12")
    e("v_cmp_eq_u32 vcc, 0, v2")
    e("v_mov_b32 v12, 0x7ffffff0")
    e("s_mov_b32 s85, 0x3f803f80")
    e("v_cndmask_b32 v11, v12, v11, vcc")
    e("s_lshr_b32 s96, s3, 1")
    e("s_and_b32 s97, s3, 1")
    e("v_lshrrev_b32 v18, 1, v2")
    e("v_xor_b32 v18, v18, v3")
    e("v_lshlrev_b32 v18, 4, v18")
    e("v_lshl_add_u32 v18, v2, 7, v18")
    e("s_lshl_b32 s12, s96, 13")
    e("v_add_u32 v18, s12, v18")
    e("v_xor_b32 v19, 64, v18")
    e("v_add_u32 v20, 65536, v18")
    e("v_add_u32 v21, 65536, v19")
    e("v_lshrrev_b32 v22, 2, v2")
    e("v_lshrrev_b32 v23, 3, v2")
    e("v_and_b32 v24, 1, v3")
    e("v_lshl_add_u32 v23, v24, 1, v23")
    e("s_lshl_b32 s12, s97, 1")
    e("v_xor_b32 v23, s12, v23")
    e("v_lshl_add_u32 v22, v3, 3, v22")
    e("v_lshlrev_b32 v22, 7, v22")
    e("v_lshl_add_u32 v22, v23, 5, v22")
    e("v_and_b32 v24, 3, v2")
    e("v_lshl_add_u32 v22, v24, 3, v22")
    e("v_add_u32 v22, 16384, v22")
    e(f"v_add_u32 v14, {WQB - 16384}, v22")
    e("v_xor_b32 v15, 32, v14")
    e("s_lshl_b32 s12, s96, 5")
    e("v_xor_b32 v23, s12, v22")
    e("v_xor_b32 v22, 32, v23")
    e("v_add_u32 v24, 65536, v22")
    e("v_add_u32 v25, 65536, v23")
    e(f"v_lshrrev_b32 v154, {2 if PP8 else 3}, v1")
    e(f"v_and_b32 v155, {3 if PP8 else 7}, v1")
    e("v_lshlrev_b32 v154, 12, v154")
    e("v_lshl_add_u32 v154, v155, 7, v154")
    e(f"s_mul_i32 s13, s3, {352*4096}")
    e(f"s_lshl_b32 s14, s6, {16 if PP8 else 15}")
    e("s_add_u32 s13, s13, s14")
    if PP8:
        e("s_and_b32 s14, s2, 7")
        e("s_lshl_b32 s14, s14, 9")
    else:
        e("s_lshl_b32 s14, s4, 10")
    e("s_add_u32 s13, s13, s14")
    e("v_add_u32 v154, s13, v154")

    k.stamp(2, 4)
    k.wait_vm(tx[3])
    k.stamp(3, 4)
    if opt.get("q_late", 0):
        touch_xw()
    QFAST = opt.get("q_fast", 1)
    QF = opt.get("q_f", 1)
    ln_start = len(k.l)
    e("v_dot2_f32_bf16 v26, v32, s85, 0")
    e("v_dot2_f32_bf16 v27, v33, s85, 0")
    for j in range(2, 16):
        e(f"v_dot2_f32_bf16 v{26+(j&1)}, v{32+j}, s85, v{26+(j&1)}")
    unp = []
    for j in range(16):
        unp.append(f"v_lshlrev_b32 v{64+2*j}, 16, v{32+j}")
        unp.append(f"v_and_b32 v{65+2*j}, 0xffff0000, v{32+j}")
    for s in unp[:4]:
        e(s)
    e("v_add_f32 v26, v26, v27")
    ui = 4
    for rot in (8, 4, 2, 1):
        for s in unp[ui:ui+3]:
            e(s)
        ui += 3
        e(f"v_add_f32_dpp v26, v26, v26 row_ror:{rot} row_mask:0xf bank_mask:0xf")
    for s in unp[ui:]:
        e(s)
    e(f"v_mul_f32 v26, {hex(f32bits(-1.0/512))}, v26")
    for j in range(16):
        e(f"v_pk_add_f32 {V(64+2*j,2)}, {V(64+2*j,2)}, v[26:27] op_sel_hi:[1,0]")
    e("v_pk_mul_f32 v[96:97], v[64:65], v[64:65]")
    e("v_pk_mul_f32 v[98:99], v[66:67], v[66:67]")
    for j in range(2, 16):
        a_ = 96 + 2 * (j & 1)
        e(f"v_pk_fma_f32 {V(a_,2)}, {V(64+2*j,2)}, {V(64+2*j,2)}, {V(a_,2)}")
    e("v_pk_add_f32 v[96:97], v[96:97], v[98:99]")
    e("v_add_f32 v26, v96, v97")
    k.wait_vm(tg[3])
    gd = ["v_dot2_f32_bf16 v28, v32, v48, 0", "v_dot2_f32_bf16 v29, v33, v49, 0"]
    for j in range(2, 16):
        gd.append(f"v_dot2_f32_bf16 v{28+(j&1)}, v{32+j}, v{48+j}, v{28+(j&1)}")
    gi = 0
    for rot in (8, 4, 2, 1):
        e(gd[gi]); e(gd[gi+1]); gi += 2
        e(f"v_add_f32_dpp v26, v26, v26 row_ror:{rot} row_mask:0xf bank_mask:0xf")
    e(f"v_mov_b32 v27, {hex(f32bits(1e-5))}")
    e(f"v_fmac_f32 v27, {hex(f32bits(1.0/512))}, v26")
    e("v_rsq_f32 v26, v27")
    e(gd[gi]); gi += 1
    for j in range(16):
        e(f"v_pk_mul_f32 {V(64+2*j,2)}, {V(64+2*j,2)}, v[26:27] op_sel_hi:[1,0]")
    for j in range(16):
        e(f"v_cvt_pk_bf16_f32 v{100+j}, v{64+2*j}, v{65+2*j}")
        if j % 4 == 3:
            e(f"ds_write_b128 v8, {V(100+j-3,4)} offset:{256*(j//4)}")
    while gi < 16:
        e(gd[gi]); gi += 1
    if QFAST:
        body = [x.strip() for x in k.l[ln_start:]]
        del k.l[ln_start:]
        body = [(lambda: k.wait_vm(tg[3])) if x.startswith("s_waitcnt vmcnt") else x for x in body]
        skip = opt.get("q_skip", 0)
        run_all(k, body[:skip] + mix(body[skip:], sum((qdma(c) for c in range(QF)), [])))
    k.stamp(4, 4)
    k.lgkm0()
    e("s_barrier")
    k.stamp(5, 4)
    for j in range(4):
        e(f"ds_read_b64_tr_b16 {V(64+4*j,2)}, v9 offset:{64*j}")
        e(f"ds_read_b64_tr_b16 {V(66+4*j,2)}, v9 offset:{64*j+4*1088}")
    e("v_add_f32 v28, v28, v29")
    th = None
    for j in range(4):
        e(f"s_waitcnt lgkmcnt({6-2*j})") if not opt.get("diag") else k.lgkm0()
        e(f"s_add_u32 s12, s84, {j*2*HS}")
        th = k.vmem(f"buffer_store_dwordx4 {V(64+4*j,4)}, v10, {WS}, s12 offen sc1")
    k.stamp(6, 4)
    for rot in (8, 4, 2, 1):
        e(f"v_add_f32_dpp v28, v28, v28 row_ror:{rot} row_mask:0xf bank_mask:0xf")
        k.nop(2)
    e(f"v_mul_f32 v28, {hex(f32bits(-1.4426950408889634))}, v28")
    e("v_exp_f32 v28, v28")
    k.nop(1)
    e("v_add_f32 v28, 1.0, v28")
    e("v_rcp_f32 v28, v28")
    k.nop(1)
    th = k.vmem(f"buffer_store_dword v28, v11, {WS}, 0 offen sc1")
    k.stamp(1)

    th = zload()
    npre = 2

    def h_arrive():
        k.stamp(2)
        e("s_lshr_b32 s12, s8, 2")
        e("s_lshl_b32 s12, s12, 11")
        e(f"s_add_u32 s12, s12, {CNT + 96*256}")
        k.arrive(WS, "s12", 8)
    if QFAST and QF == 1:
        run_all(k, qdma(1))
    if not QFAST:
        q0 = opt.get("q_pre", 0)
        for c in range(q0):
            run_all(k, qdma(c))
        k.wait_vm(th)
        zcheck()
        e("s_barrier")
        h_arrive()
        for c in range(q0, 2):
            run_all(k, qdma(c))

    ACC = 160
    FR = [96, 112]

    def qreads(t):
        c, kk = t // 2, t % 2
        slot = c % 3
        hi = slot >= 2
        so = (slot % 2) * 32768
        out = []
        xa = 18 + kk + (2 if hi else 0)
        for i in range(4):
            out.append(f"ds_read_b128 {A(16*t+4*i,4)}, v{xa} offset:{so + i*2048}")
        for sec in range(2):
            for hh in range(2):
                wa = 22 + hh + (2 if hi else 0)
                r = FR[t % 2] + (sec*2 + hh)*4
                o = so + sec*8192 + kk*4096
                out.append(f"ds_read_b64_tr_b16 {V(r,2)}, v{wa} offset:{o}")
                out.append(f"ds_read_b64_tr_b16 {V(r+2,2)}, v{wa} offset:{o+512}")
        return out

    pfl = []
    for r0 in (([0, 96] if PP8 else [0, 128, 224])[:opt.get("pf", 1)]):
        pfl.append([lambda r0=r0: (e(f"s_mov_b32 s101, {r0*4096}"), k.vmem(f"buffer_load_dword v157, v154, {W2}, s101 offen"))])
    PFA, PFB_ = opt.get("pf_a", 2), opt.get("pf_b", 1)

    k.wait_vm(ct[0])
    e("s_barrier")
    k.stamp(3)
    run_all(k, qreads(0))
    k.lgkm0()
    pend = qdma(2) if not (QFAST and QF == 3) else []
    QPER = opt.get("q_per", 7)
    consts = [f"s_mov_b32 s92, {hex(LOG2E)}", f"s_mov_b32 s93, {hex(LOG2E)}", f"s_mov_b32 s94, {hex(f32bits(1e-6))}",
              f"s_mov_b32 s95, {hex(f32bits(1e-6))}", "v_mov_b32 v26, s85", "v_mov_b32 v27, s85", "v_mov_b32 v28, s85",
              "v_mov_b32 v29, s85",
              "s_lshl_b32 s12, s3, 11", "s_add_u32 s12, s12, 65536", "v_add_u32 v6, s12, v4", "v_xor_b32 v7, 4096, v6",
              "s_lshl_b32 s15, s9, 2", "s_lshl_b32 s12, s97, 1", "s_add_u32 s15, s15, s12", "s_add_u32 s15, s15, s96",
              "s_lshl_b32 s13, s15, 10", f"s_add_u32 s13, s13, {KVP}", "s_lshl_b32 s12, s15, 6", f"s_add_u32 s12, s12, {ZP}",
              "v_lshlrev_b32 v10, 2, v1", "v_lshlrev_b32 v8, 4, v3", "v_lshl_add_u32 v8, v2, 2, v8",
              "v_cmp_gt_u32 vcc, 4, v2", "v_mov_b32 v9, 0x7ffffff0", "s_nop 0", "v_cndmask_b32 v8, v9, v8, vcc",
              "s_nop 0"]
    for t in range(16):
        qp = dict(zip((0, 1, 2, 3, 4, 5, 6, 8, 10, 12, 14), (1, 2, 3, 4, 5, 6, 7, 8, 0, 9, 10)))
        if t in qp:
            k.stamp(qp[t], True)
        head = []
        if t % 2 == 1 and t + 1 < 16:
            c = (t + 1) // 2
            assert c in ctd, (t, c)
            head = [lambda c=c: k.wait_vm(ct[c]), "s_barrier"]
            if QFAST and c == QF:
                head = [lambda c=c: (k.wait_vm(ct[c]), zcheck()), "s_barrier", h_arrive]
            if c + 2 < 8:
                pend = pend + qdma(c + 2)
            if c == 6:
                for cq in range(8):
                    pend = pend + wqdma(cq)
        nv = len(pend) if t == 15 else (13 if t == 0 else QPER if t < 11 else 8)
        vm = pend[:nv]
        pend = pend[len(vm):]
        if t == 10:
            vm = vm + ["v_mov_b32 v158, 128", lambda: zload("v158", "v159")]
        if t == 15:
            vm = vm + sum(pfl[:PFA], []) + consts
        reads = qreads(t + 1) if t + 1 < 16 else []
        mfmas = []
        for sec in range(2):
            for hh in range(2):
                for i in range(4):
                    d = ACC + 32 + sec*32 + (hh*4 + i)*4
                    cc = "0" if t == 0 else V(d, 4)
                    mfmas.append((None, mf(V(d, 4), A(16*t + 4*i, 4), V(FR[t % 2] + (sec*2 + hh)*4, 4), cc)))
        interleave(k, mfmas, head + mix(reads, vm), tail=3)
        if reads:
            k.lgkm0()
    k.stamp(4)
    k.stamp(11, True)

    def phi(src, dst):
        for j in range(16):
            e(f"v_pk_mul_f32 {V(64+2*j,2)}, {V(src+2*j,2)}, s[92:93]")
        for j in range(32):
            e(f"v_exp_f32 v{64+j}, v{64+j} clamp")
            e(f"v_max_f32 v{src+j}, 0, v{src+j}")
        for j in range(16):
            e(f"v_pk_add_f32 {V(64+2*j,2)}, {V(64+2*j,2)}, s[94:95]")
        for j in range(16):
            e(f"v_pk_add_f32 {V(64+2*j,2)}, {V(64+2*j,2)}, {V(src+2*j,2)}")
        for j in range(16):
            e(f"v_cvt_pk_bf16_f32 v{dst+j}, v{64+2*j}, v{65+2*j}")
    PK, PV, PQ = 96, 112, 128
    phi(ACC + 32, PK)
    for j in range(16):
        e(f"v_cvt_pk_bf16_f32 v{PV+j}, v{ACC+64+2*j}, v{ACC+65+2*j}")
    e("v_cmp_eq_u32 s[88:89], 1, v2")
    e("v_cmp_eq_u32 s[90:91], 2, v2")
    for hh in range(2):
        for p in range(2):
            a_ = V(PK + hh*8 + p*4, 4)
            b_ = V(PV + hh*8 + p*4, 4)
            e(mf(V(32+8*hh, 4), a_, b_, "0" if p == 0 else V(32+8*hh, 4)))
            e(mf(V(36+8*hh, 4), a_, "v[26:29]", "0" if p == 0 else V(36+8*hh, 4)))
    k.nop(4)
    e("ds_write_b128 v6, v[32:35]")
    e("ds_write_b128 v6, v[36:39] offset:1024")
    k.wait_vm(ct["q"])
    zcheck("v158", "v159")
    e("v_cmp_eq_u32 vcc, 3, v2")
    k.lgkm0()
    e("s_barrier")
    e("ds_read_b128 v[32:35], v7")
    e("ds_read_b128 v[36:39], v7 offset:1024")

    def qq_reads(w_):
        out = []
        for kk in range(2):
            for hh in range(2):
                r = 64 + (w_ % 2)*16 + (kk*2 + hh)*4
                o = w_*8192 + kk*4096
                out.append(f"ds_read_b64_tr_b16 {V(r,2)}, v{14+hh} offset:{o}")
                out.append(f"ds_read_b64_tr_b16 {V(r+2,2)}, v{14+hh} offset:{o+512}")
        return out
    run_all(k, qq_reads(0))
    e("s_waitcnt lgkmcnt(8)") if not opt.get("diag") else k.lgkm0()
    for j in range(4):
        e(f"v_pk_add_f32 {V(32+2*j,2)}, {V(32+2*j,2)}, {V(40+2*j,2)}")
    for r in range(4):
        k.vmem(f"buffer_atomic_add_f32 v{32+r}, v10, {WS}, s13 offen offset:{256*r}")
    e("v_cndmask_b32 v36, v36, v37, s[88:89]")
    e("v_cndmask_b32 v36, v36, v38, s[90:91]")
    e("v_cndmask_b32 v36, v36, v39, vcc")
    tat = k.vmem(f"buffer_atomic_add_f32 v36, v8, {WS}, s12 offen")
    e(f"s_lshl_b32 s90, s9, 10")
    e(f"s_add_u32 s90, s90, {CNT}")
    e("s_lshl_b32 s13, s4, 8")
    e("s_add_u32 s13, s13, s90")
    e("v_mov_b32 v8, s13")
    k.lgkm0()
    ps = p3_setup(True)
    KAW = opt.get("kv_aw", 2)
    e1t = {}
    e1_all = p3_e1(e1t)
    QW = 6 * opt.get("q_w", 2)
    qw = e1_all[:QW]
    kvt = {}
    for w_ in range(8):
        mfmas = []
        for kk in range(2):
            for hh in range(2):
                for i in range(4):
                    d = ACC + (hh*4 + i)*4
                    t = 2*w_ + kk
                    mfmas.append((None, mf(V(d, 4), V(64 + (w_ % 2)*16 + (kk*2 + hh)*4, 4), A(16*t + 4*i, 4), "0" if t == 0 else V(d, 4))))
        head = []
        if w_ == KAW:
            head = [lambda: k.wait_vm(tat), "s_barrier", lambda: (k.arrive(WS, "s90", 4), k.stamp(5))] + (sum(pfl[PFA:PFA+PFB_], []) if not opt.get("pf_late", 0) else [])
        n_ = -(-len(ps) // (8 - w_))
        fl_ = ps[:n_]
        ps = ps[n_:]
        if w_ >= opt.get("q_ws", KAW):
            n_ = -(-len(qw) // max(1, opt.get("q_we", 8) - w_))
            fl_ = mix(fl_, qw[:n_])
            qw = qw[n_:]
        if w_ == 7:
            fl_ = fl_ + [lambda: kvt.__setitem__(0, k.vmem(f"buffer_load_dword v31, v8, {WS}, 0 offen sc1"))]
        interleave(k, mfmas, head + mix(qq_reads(w_ + 1) if w_ < 7 else [], fl_), tail=3)
        k.lgkm0()
    e("s_barrier")
    k.nop(6)
    qpre = wo_dma() + e1_all[QW:]
    mark = len(k.l)
    phi(ACC, PQ)
    ph = [x.strip() for x in k.l[mark:]]
    del k.l[mark:]
    cut = opt.get("q_cut", 48)
    run_all(k, ph[:cut])
    e("s_and_b32 s15, s15, 30")
    e("s_lshl_b32 s13, s15, 10")
    e(f"s_add_u32 s13, s13, {KVP}")
    e("s_lshl_b32 s12, s15, 6")
    e(f"s_add_u32 s12, s12, {ZP}")
    e("v_lshlrev_b32 v9, 4, v3")
    if not opt.get("nowait"):
        k.wait_vm(kvt[0])
        dn = k.newlab("L_kf")
        e("v_cmp_gt_u32 vcc, 16, v31")
        e(f"s_cbranch_vccz {dn}")
        k.poll("v8", WS, 16)
        k.label(dn)
    k.stamp(6)
    k.stamp(1, 3)
    for hh in range(2):
        k.vmem(f"buffer_load_dwordx4 {V(196+8*hh,4)}, v9, {WS}, s12 offen offset:{64*hh} sc1")
        for r in range(4):
            tkv = k.vmem(f"buffer_load_dword v{192+8*hh+r}, v10, {WS}, s13 offen offset:{1024*hh+256*r} sc1")
    if opt.get("pf_late", 0):
        run_all(k, sum(pfl[PFA:PFA+PFB_], []))
    n1 = 8 * opt.get("q_n1", 2)
    run_all(k, mix(ph[cut:], qpre[:n1]))
    e("s_lshl_b32 s15, s8, 3")
    e("s_lshl_b32 s12, s96, 2")
    e("s_add_u32 s15, s15, s12")
    e("s_lshl_b32 s15, s15, 4")
    e("s_lshl_b32 s12, s9, 1")
    e("s_add_u32 s15, s15, s12")
    e("s_add_u32 s15, s15, s97")
    e("s_lshl_b32 s15, s15, 10")
    e(f"s_add_u32 s15, s15, {OF}")
    k.wait_vm(tkv)
    k.stamp(2, 3)
    for q_ in range(8):
        e(f"v_cvt_pk_bf16_f32 v{40+q_}, v{192+2*q_}, v{193+2*q_}")
    k.nop(2)
    for hh in range(2):
        for i in range(4):
            q_ = V(PQ + (hh*4+i)*2, 2)
            e(f"v_mfma_f32_16x16x16_bf16 {V(192+(hh*4+i)*4,4)}, {V(42+4*hh,2)}, {q_}, 0")
    for hh in range(2):
        for i in range(4):
            q_ = V(PQ + (hh*4+i)*2, 2)
            e(f"v_mfma_f32_16x16x16_bf16 {V(160+(hh*4+i)*4,4)}, {V(40+4*hh,2)}, {q_}, 0")
    k.nop(1)
    for n_ in range(8):
        e(f"v_add_f32 v{192+4*n_}, s94, v{192+4*n_}")
    for n_ in range(8):
        e(f"v_rcp_f32 v{192+4*n_}, v{192+4*n_}")
    for n_ in range(8):
        e(f"v_pk_mul_f32 {V(160+4*n_,2)}, {V(160+4*n_,2)}, {V(192+4*n_,2)} op_sel_hi:[1,0]")
        e(f"v_pk_mul_f32 {V(162+4*n_,2)}, {V(162+4*n_,2)}, {V(192+4*n_,2)} op_sel_hi:[1,0]")
    for i in range(4):
        for hh in range(2):
            s_ = 160 + (hh*4+i)*4
            e(f"v_cvt_pk_bf16_f32 v{64+4*i+2*hh}, v{s_}, v{s_+1}")
            e(f"v_cvt_pk_bf16_f32 v{65+4*i+2*hh}, v{s_+2}, v{s_+3}")
        e(f"s_add_u32 s12, s15, {i*16384}")
        tos = k.vmem(f"buffer_store_dwordx4 {V(64+4*i,4)}, v4, {WS}, s12 offen sc1")
    k.stamp(3, 3)
    n2 = n1 + 8 * opt.get("q_n2", 2)
    assert n2 <= 32
    run_all(k, qpre[n1:n2])
    k.wait_vm(tos)
    e("s_barrier")
    e("s_lshl_b32 s12, s8, 9")
    e(f"s_add_u32 s12, s12, {CNT + 32*256}")
    k.arrive(WS, "s12", 2)
    k.stamp(7)
    k.stamp(4, 3)
    run_all(k, sum(pfl[PFA+PFB_:], []))
    run_all(k, qpre[n2:])
    e("v_mov_b32 v29, 0")
    e("s_branch L_p3")

    k.label("L_urole")
    k.c("================= U role =================")
    k.vm = 0
    assert HS == 65536 and HQ == 0
    KX = opt.get("kx", 1)
    if KX:
        e("s_and_b32 s9, s6, 3")
        e("s_lshl_b32 s9, s9, 1")
        e("s_add_u32 s9, s9, s5")
    e("s_and_b32 s97, s9, 1")
    e("s_lshl_b32 s97, s97, 2")
    e("s_add_u32 s97, s97, s3")
    e("v_lshrrev_b32 v12, 2, v1")
    e("v_and_b32 v13, 3, v1")
    e(f"s_mul_i32 s13, s97, {256*2752}")
    e("s_mul_i32 s12, s8, 192")
    e("s_add_u32 s13, s13, s12")
    for j in range(3):
        e(f"v_add_u32 v14, {16*j}, v12")
        e("v_mul_u32_u24 v15, 43, v14")
        e("v_lshrrev_b32 v15, 7, v15")
        e("v_mul_u32_u24 v16, 3, v15")
        e("v_sub_u32 v14, v14, v16")
        e("v_lshrrev_b32 v16, 2, v15")
        e("v_and_b32 v16, 2, v16")
        e("v_xor_b32 v16, v16, v13")
        e("v_lshlrev_b32 v16, 4, v16")
        e("v_lshl_add_u32 v16, v14, 6, v16")
        e("v_mul_u32_u24 v15, 2752, v15")
        e(f"v_add3_u32 v{6+j}, v15, v16, s13")
        if j:
            e(f"v_subrev_u32 v{6+j}, {j*1024}, v{6+j}")
        e(f"v_add_u32 v{9+j}, {16*2752}, v{6+j}")
    if KX:
        e("s_and_b32 s90, s6, 3")
    else:
        e("s_and_b32 s90, s9, 2")
        e("s_add_u32 s90, s90, s5")
    e(f"s_mul_i32 s88, s90, {64*2752}")
    e("s_waitcnt lgkmcnt(0)")
    srd(W1)
    e("s_cmp_eq_u32 s8, 15")
    e("s_cbranch_scc1 L_spare")
    UL, UFB = 6, 7
    RB = 22528

    def u_wdma(t, toks):
        out = []
        for j in range(6):
            if j % 3 == 0:
                out.append(f"s_add_u32 m0, s7, {(t % UL)*6144 + j*1024}")
            out.append(dmai(f"v{6+j}", W1, "s88", (j % 3)*1024, toks, t))
        if t % 2 == 0:
            out.append(f"s_add_u32 s88, s88, {32*2752}")
        elif t < 7:
            out += [f"s_xor_b32 s88, s90, {(t+1)//2}", f"s_mul_i32 s88, s88, {64*2752}"]
        return out

    def u_wread(t):
        out = []
        for fb in range(6):
            r = 64 + t*24 + fb*4
            o = (t % UL)*6144 + (fb >> 1)*64
            out.append(f"ds_read_b64_tr_b16 {A(r,2)}, v{16+(fb&1)} offset:{o}")
            out.append(f"ds_read_b64_tr_b16 {A(r+2,2)}, v{16+(fb&1)} offset:{o+768}")
        return out

    def u_fload(t, b, toks):
        def f():
            toks[(t, b)] = k.vmem(f"buffer_load_dwordx4 {V(32+(t%UFB)*16+4*b,4)}, v{12+b}, {WS}, s{92+(t%8)//2} offen offset:{(t%2)*1024} sc1")
        out = [f]
        if t == 7 and b == 3:
            out += [f"s_xor_b32 s{92+q}, s{92+q}, {4*HS}" for q in range(4)]
        return out

    def uacc(ps_, b, j):
        n_ = b*6 + j
        if b == 3:
            return V(152 + 24*ps_ + j*4, 4)
        return A(n_*4, 4) if n_ < 16 else V(144 + (n_-16)*4, 4)

    def u_mm(t, b, j):
        d = uacc(t // 8, b, j)
        first = t % 8 == 0 and not (t == 8 and b == 3)
        return mf(d, A(64 + (t % 8)*24 + j*4, 4), V(32+(t % UFB)*16+4*b, 4), "0" if first else d)

    su = SK(k, 8, UL, 8, UFB, 6, u_wdma, u_wread, u_fload, u_mm)
    TWA = opt.get("tw_after", 1)
    su.issue_w(TWA)
    touch_w1()
    su.issue_w(2)
    srd(B1)
    e("s_mul_i32 s12, s8, 192")
    e("v_lshlrev_b32 v30, 3, v3")
    for j in range(6):
        k.vmem(f"buffer_load_dwordx2 {V(208+2*j,2)}, v30, {B1}, s12 offen offset:{32*j}")
    for n_ in (WS, DBG, WO, W2, B2, OUT):
        srd(n_)
    diag_clear()
    e("v_lshrrev_b32 v16, 2, v2")
    e("v_lshl_add_u32 v16, v3, 3, v16")
    e("v_mul_u32_u24 v16, 192, v16")
    e("v_and_b32 v12, 3, v2")
    e("v_lshl_add_u32 v16, v12, 3, v16")
    e("v_add_u32 v16, s7, v16")
    e("v_and_b32 v12, 1, v3")
    e("v_lshlrev_b32 v12, 5, v12")
    e("v_xor_b32 v13, 32, v12")
    e("v_add_u32 v17, v16, v13")
    e("v_add_u32 v16, v16, v12")
    e("s_and_b32 s13, s9, 6")
    e(f"s_mul_i32 s13, s13, {4*HS}")
    e("s_lshl_b32 s12, s97, 13")
    e("s_add_u32 s13, s13, s12")
    if HF:
        e(f"s_add_u32 s13, s13, {HF}")
    for b in range(4):
        e(f"s_add_u32 s12, s3, {3-b}")
        e("s_and_b32 s12, s12, 3")
        e(f"s_mul_i32 s12, s12, {HS}")
        e("s_add_u32 s12, s12, s13")
        e(f"v_add_u32 v{12+b}, s12, v4")
    e("s_and_b32 s12, s9, 1")
    e("s_xor_b32 s12, s12, 1")
    e("s_lshl_b32 s12, s12, 18")
    for q in range(4):
        e(f"s_xor_b32 s{92+q}, s90, {q}")
        e(f"s_lshl_b32 s{92+q}, s{92+q}, 11")
        e(f"s_add_u32 s{92+q}, s{92+q}, s12")
    run_all(k, p3_setup(False))
    RB = 40960 - 6144
    e(f"s_add_u32 s12, s7, {RB}")
    e("v_add_u32 v26, s12, v4")
    e("s_add_u32 s12, s3, 3")
    e("s_and_b32 s12, s12, 3")
    e("s_mul_i32 s12, s12, 40960")
    e(f"s_add_u32 s12, s12, {RB}")
    e("v_add_u32 v27, s12, v4")
    e("s_and_b32 s12, s2, 7")
    e("s_lshr_b32 s13, s97, 1")
    e("s_lshl_b32 s13, s13, 3")
    e("s_add_u32 s12, s12, s13")
    e("s_lshl_b32 s12, s12, 8")
    e(f"s_add_u32 s12, s12, {CNT + 96*256}")
    e("v_mov_b32 v18, s12")
    for snd in range(2):
        e("s_lshl_b32 s12, s8, 3")
        e("s_add_u32 s12, s12, s9")
        if snd:
            e("s_xor_b32 s12, s12, 1")
        e("s_lshl_b32 s13, s12, 8")
        e("s_lshl_b32 s14, s3, 6")
        e("s_add_u32 s13, s13, s14")
        e(f"s_add_u32 s13, s13, {CNT + 256*256}")
        e(f"v_mov_b32 {'v21' if snd else 'v235'}, s13")
        e("s_lshl_b32 s12, s12, 2")
        e("s_add_u32 s12, s12, s3")
        e("s_mul_i32 s12, s12, 6144")
        e(f"s_add_u32 s12, s12, {UX}")
        e(f"v_add_u32 {'v20' if snd else 'v234'}, s12, v4")
    c0 = -2.0 * 0.7978845608028654 * 1.4426950408889634
    c1 = c0 * 0.044715
    e("s_lshl_b32 s15, s9, 2")
    e("s_add_u32 s15, s15, s3")
    e("s_mul_i32 s15, s15, 43")
    e("s_mul_i32 s13, s8, 3")
    e("s_add_u32 s15, s15, s13")
    e("s_lshl_b32 s15, s15, 10")
    e(f"s_add_u32 s15, s15, {GUF}")
    e("s_cmp_eq_u32 s8, 14")
    e("s_cselect_b32 s13, 0x7ff00000, 0")
    e("v_or_b32 v19, s13, v4")
    UB = opt.get("u_bar", 3)

    def front_pf():
        n_ = opt.get("u_fpf", 0)
        if not n_:
            return
        run_all(k, ["v_lshrrev_b32 v116, 3, v1", "v_and_b32 v117, 7, v1", "v_lshlrev_b32 v116, 12, v116",
                    "v_lshl_add_u32 v116, v117, 7, v116",
                    f"s_mul_i32 s13, s3, {352*4096}", "s_and_b32 s14, s6, 15", "s_lshl_b32 s14, s14, 15", "s_add_u32 s13, s13, s14",
                    "s_lshl_b32 s14, s4, 10", "s_add_u32 s13, s13, s14", "v_add_u32 v116, s13, v116"])
        for r0 in [192, 64][:n_] if n_ < 3 else [224, 96, 0]:
            e(f"s_mov_b32 s13, {r0*4096}")
            k.vmem(f"buffer_load_dword v157, v116, {W2}, s13 offen")
    if opt.get("u_fpos", 0) == 0:
        front_pf()
    if UB & 1:
        e("s_barrier")
    if UB & 8:
        k.wait_vm(su.wt[0])
    if UB & 16:
        k.wait_vm(su.wt[1])
    su.issue_w(4)
    tz_ = zload()
    if UB & 2:
        e("s_barrier")
    su.issue_w(UL)
    if UB & 4:
        e("s_barrier")
    k.stamp(5)
    su.to_regs(2, opt.get("u_hold", 1))
    k.wait_vm(tz_)
    zcheck()
    k.stamp(1)
    k.poll2("v18", WS, 32, lambda: (su.issue_w(8), su.to_regs(opt.get("u_r", 5), 9)))
    k.stamp(2)
    k.stamp(1, True)
    ULA = opt.get("u_la", 16)
    ft = {}

    def fl3(i):
        blk, t = i // 8, i % 8

        def f():
            ft[i] = k.vmem(f"buffer_load_dwordx4 {V(32+(blk%4)*32+4*t,4)}, v{12+blk%4}, {WS}, s{92+t//2} offen offset:{(t%2)*1024} sc1")
        out = [f]
        if i == 31:
            out += [f"s_xor_b32 s{92+q}, s{92+q}, {4*HS}" for q in range(4)]
        return out
    for i in range(ULA):
        run_all(k, fl3(i))
    su.to_regs(8, 9)
    fi = ULA
    UX2 = opt.get("u_x2", 0)
    uet = {}
    uwo = {}
    pe_all = wo_dma(uwo) + p3_e1(uet)
    if UX2 == 1:
        pe_all = p3_e1(uet)[:24] + wo_dma(uwo) + p3_e1(uet)[24:]
    y69 = sum((p_wdma(t, {}) for t in range(6, 10)), [])
    YR, YD, YDN = opt.get("u_yr", 11), opt.get("u_yd", 13), opt.get("u_ydn", 3)
    cuts = [0, 8, 16, 24, 32, 38, 44, 50, 56]
    UE1 = opt.get("u_e1", 6)
    pe = pe_all[:cuts[UE1]]
    UPW, UPN = opt.get("u_pw", 6 if UX2 else 8), opt.get("u_pn", 7 if UX2 else 8)
    XF, XC = opt.get("u_xf", 12), opt.get("u_xc", 14)
    xt = {}
    tx_ = {}

    def xcheck():
        k.wait_vm(xt[1])
        if not opt.get("nowait"):
            dn = k.newlab("L_xf")
            e("v_cmp_gt_u32 vcc, 1, v31")
            e(f"s_cbranch_vccz {dn}")
            k.poll("v235", WS, 1)
            k.label(dn)

    def xl(j):
        return lambda: tx_.__setitem__(j, k.vmem(f"buffer_load_dwordx4 {V(160+4*j,4)}, v234, {WS}, {'0' if j < 4 else 's84'} offen offset:{(j%4)*1024} sc1"))

    def xs(j):
        return lambda: xt.__setitem__(0, k.vmem(f"buffer_store_dwordx4 {V(184+4*j,4)}, v20, {WS}, {'0' if j < 4 else 's84'} offen offset:{(j%4)*1024} sc1"))
    uprof = dict(zip((0, 1, 2, 3, 4, 6, 8, 10, 12, 14), (2, 3, 4, 5, 6, 7, 8, 0, 9, 10)))
    for n in range(16):
        if n in uprof:
            k.stamp(uprof[n], True)
        blk, hf = n // 2, n % 2
        stg = blk % 4
        buf = 160 + (n % 4)*12
        WP0 = [int(x) for x in str(opt.get("u_wp", "2,5,9")).split(",")]
        ringn = n >= 1 and ((n - 1) // 2) % 4 < 3
        mfmas = []
        for j in range(3):
            for t in range(8):
                d = V(buf + 4*j, 4)
                pre = None
                if j == 0 and hf == 0:
                    pre = (lambda i=blk*8+t: k.wait_vm(ft[i]))
                if j == 1 and t == 0 and opt.get("u_lw", 1) and stg > 0:
                    pre = (lambda: e(f"s_waitcnt lgkmcnt({sum(1 for x in WP0 if x < 8) if ringn else 0})"))
                mfmas.append((pre, mf(d, A(64 + t*24 + (3*hf + j)*4, 4), V(32+(blk % 4)*32+4*t, 4), "0" if (t == 0 and n < 2) else d)))
        fl_ = []
        for _ in range(4):
            if fi < 64:
                assert fi // 8 - 4 < blk, (n, fi)
                fl_ += fl3(fi)
                fi += 1
        at = {}
        pn = n - 1
        W0, B0 = opt.get("u_w0", 5), opt.get("u_b0", 16)
        WP = [int(x) for x in str(opt.get("u_wp", "2,5,9")).split(",")]
        RS = opt.get("u_rs", 2)
        ring = pn >= 0 and (pn // 2) % 4 < 3
        if ring:
            pb = 160 + (pn % 4)*12
            nb = 160 + ((n + 1) % 4)*12
            for j in range(3):
                at[WP[j]] = [f"ds_write_b128 v26, {V(pb+4*j,4)} offset:{(pn%2)*3072 + j*1024}"]
                at[B0 + 1 + RS*j] = [f"ds_read_b128 {V(nb+4*j,4)}, v27 offset:{(pn%2)*3072 + j*1024}"]
            at[B0] = [k.lgkm0, "s_barrier"]
        if pn in (6, 7):
            for j in range(3):
                at[8 + 5*j] = [xs(3*(pn-6) + j)]
        if n in (6, 7):
            h2 = n - 6
            for j in range(3):
                r, q = 160 + h2*12 + 4*j, 208 + 2*(3*h2 + j)
                fl_ += [f"v_lshlrev_b32 v{r}, 16, v{q}", f"v_and_b32 v{r+1}, 0xffff0000, v{q}",
                        f"v_lshlrev_b32 v{r+2}, 16, v{q+1}", f"v_and_b32 v{r+3}, 0xffff0000, v{q+1}"]
        if n == 3:
            fl_ += ["v_mov_b32 v5, 128", lambda: zload()]
        if n == XF:
            fl_ = [lambda: (k.wait_vm(xt[0]), zcheck()), lambda: k.vmem(f"buffer_store_dword v5, v21, {WS}, 0 offen sc1")] + fl_
        if UPW <= n < UPW + UPN:
            n3 = -(-len(pe) // UPN)
            fl_ += pe[(n-UPW)*n3:(n-UPW+1)*n3]
        yrd = UX2 and YR <= n < YR + 2
        if yrd:
            for t in (2*(n-YR), 2*(n-YR)+1):
                fl_ = mix(fl_, [lambda t=t: k.wait_vm(uet[t])] + p_wread(t))
        if UX2 and YD <= n:
            assert n >= UPW + UPN and n >= YR + 2
            n3 = 6*opt.get("u_ydk", 4) // (16 - YD)
            fl_ += y69[:n3]
            y69 = y69[n3:]
        if n == XC:
            fl_ = [lambda: xt.__setitem__(1, k.vmem(f"buffer_load_dword v31, v235, {WS}, 0 offen sc1"))] + fl_
        if n == 15:
            fl_ = [xcheck] + [xl(j) for j in range(6)] + fl_
            fl_ += [f"s_mov_b32 s92, {hex(f32bits(c1))}", f"s_mov_b32 s93, {hex(f32bits(c1))}",
                    f"v_mov_b32 v20, {hex(f32bits(c0))}", f"v_mov_b32 v21, {hex(f32bits(c0))}"]
        interleave(k, mfmas, fl_, tail=1, at=at)
        if yrd or (ring and not opt.get("u_lw", 1)):
            k.lgkm0()
        elif ring:
            e("s_waitcnt lgkmcnt(2)")
    k.stamp(11, True)
    k.stamp(3)
    tst = {}
    for p in range(3):
        R_ = range(4*p, 4*p+4)
        k.wait_vm(tx_[2*p+1])
        va = []
        va += [f"v_pk_add_f32 {V(32+2*r,2)}, {V(184+2*r,2)}, {V(160+2*r,2)}" for r in R_]
        va += [f"v_pk_mul_f32 {V(56+2*r,2)}, {V(32+2*r,2)}, {V(32+2*r,2)}" for r in R_]
        va += [f"v_pk_fma_f32 {V(56+2*r,2)}, {V(56+2*r,2)}, s[92:93], v[20:21]" for r in R_]
        va += [f"v_pk_mul_f32 {V(56+2*r,2)}, {V(56+2*r,2)}, {V(32+2*r,2)}" for r in R_]
        va += [f"v_exp_f32 v{56+r}, v{56+r}" for r in range(8*p, 8*p+8)]
        va += [f"v_add_f32 v{56+r}, 1.0, v{56+r}" for r in range(8*p, 8*p+8)]
        va += [f"v_rcp_f32 v{56+r}, v{56+r}" for r in range(8*p, 8*p+8)]
        va += [f"v_pk_mul_f32 {V(32+2*r,2)}, {V(32+2*r,2)}, {V(56+2*r,2)}" for r in R_]
        va += [f"v_cvt_pk_bf16_f32 v{96+4*p+q}, v{32+8*p+2*q}, v{33+8*p+2*q}" for q in range(4)]
        run_all(k, va)
        tst[p] = k.vmem(f"buffer_store_dwordx4 {V(96+4*p,4)}, {'v4' if p == 0 else 'v19'}, {WS}, s15 offen offset:{p*1024} sc1")
    k.stamp(4)
    ncut = cuts[min(8, UE1 + opt.get("u_e2", 2))]
    tof = k.vmem(f"buffer_load_dword v29, v240, {WS}, 0 offen sc1")
    run_all(k, pe_all[len(pe):ncut])
    if UX2:
        assert UE1 == 8
        run_all(k, wo_reads())
        run_all(k, y69)
    e(f"s_lshl_b32 s12, s9, {11 if PP8 else 10}")
    e(f"s_add_u32 s12, s12, {CNT + (128 if PP8 else 64)*256}")
    k.wait_vm(tst[2])
    e("s_barrier")
    k.arrive(WS, "s12", 8 if PP8 else 4)
    k.stamp(7)
    run_all(k, pe_all[ncut:])
    k.wait_vm(tof)
    e("s_branch L_p3b" if UX2 else "s_branch L_p3")

    k.label("L_spare")
    for n_ in (WS, DBG):
        srd(n_)
    touch_w1()
    for n_ in (WO, W2, B2, OUT):
        srd(n_)
    diag_clear()
    run_all(k, p3_setup(False))
    if opt.get("spf", 1):
        e("v_lshlrev_b32 v30, 7, v1")
        e("s_lshl_b32 s12, s9, 2")
        e("s_add_u32 s12, s12, s3")
        if opt.get("pfx", 4) >= 3:
            e("v_lshrrev_b32 v28, 3, v1")
            e("v_mul_u32_u24 v28, 3072, v28")
            e("v_and_b32 v29, 7, v1")
            e("v_lshl_add_u32 v28, v29, 7, v28")
            e(f"s_mul_i32 s13, s12, {16*3072}")
            e(f"buffer_load_dword v31, v28, {WQKV}, s13 offen")
            e(f"s_add_u32 s13, s13, {8*3072}")
            e(f"buffer_load_dword v31, v28, {WQKV}, s13 offen")
        e("s_lshl_b32 s12, s12, 14")
        e(f"buffer_load_dword v31, v30, {WO}, s12 offen")
        e("s_add_u32 s12, s12, 8192")
        e(f"buffer_load_dword v31, v30, {WO}, s12 offen")
        e(f"s_mul_i32 s12, s3, {352*4096}")
        e("s_lshl_b32 s13, s9, 13")
        e("s_add_u32 s12, s12, s13")
        e(f"s_add_u32 s12, s12, {(352 - 16*opt.get('spf_n', 5))*4096}")
        e("s_mov_b32 s14, 0")
        lp = k.newlab("L_spf")
        k.label(lp)
        e(f"buffer_load_dword v31, v30, {W2}, s12 offen")
        e("s_add_u32 s12, s12, 65536")
        e("s_add_u32 s14, s14, 1")
        e("s_waitcnt vmcnt(2)")
        e(f"s_cmp_lt_u32 s14, {opt.get('spf_n', 5)}")
        e(f"s_cbranch_scc1 {lp}")
        k.wait_vm0()
        k.stamp(6)
    e("v_mov_b32 v5, 128")
    k.poll("v5", DBG, 1)
    e(f"v_mov_b32 v30, {CNT}")
    k.poll("v30", WS, 16, sleep=32)
    run_all(k, wo_dma() + p3_e1())
    e("v_mov_b32 v29, 0")

    k.label("L_p3")
    k.c("================= P3 =================")

    def p_mm(t, b, j):
        d = V(YA + (b*4 + j)*4, 4)
        return mf(d, freg(t, b), A((t % PNWB)*16 + j*4, 4), d)

    k.vm = 16
    sp = SK(k, 11, PL, PNWB, PFB, 4, p_wdma, p_wread, p_fload, p_mm)
    QY = 6 - opt.get("q_w", 2)
    twos = k.vm + 4*(6 - QY)
    sp.assume_issued(PE, 4)
    k.wait_vm(twos)
    run_all(k, wo_reads())
    PRE = 4
    sp.to_regs(PRE)
    k.label("L_p3b")
    for t in range(4, 10):
        sp.wt[t] = k.vm
    if not opt.get("nowait"):
        dn = k.newlab("L_of")
        e("v_cmp_gt_u32 vcc, 8, v29")
        e(f"s_cbranch_vccz {dn}")
        k.poll("v240", WS, 8)
        k.label(dn)
    k.stamp(8)
    aft = {}

    def afl(t, b):
        def f():
            aft[(t, b)] = k.vmem(f"buffer_load_dwordx4 {A(128+t*16+4*b,4)}, v{232+(b&1)}, {WS}, {'0' if b < 2 else 's91'} offen offset:{t*1024} sc1")
        return f
    ALA = opt.get("a_la", 12)
    al = [afl(t, b) for t in range(4) for b in range(4)]
    al += [lambda j=j: aft.__setitem__("g", k.vmem(f"buffer_load_dword v{32+2*j}, v242, {WS}, 0 offen offset:{64*j} sc1")) for j in range(4)]
    run_all(k, al[:ALA])
    al = al[ALA:]
    PR0 = max(PRE, opt.get("p_r0", 2))
    sp.to_regs(PR0, 9)
    k.lgkm0()
    for win in range(4):
        mfmas = []
        for b in range(4):
            for j in range(4):
                d = V(YA + (j*4 + b)*4, 4)
                pre = (lambda x=(win, b): k.wait_vm(aft[x])) if j == 0 else None
                mfmas.append((pre, mf(d, A(64+win*16+j*4, 4), A(128+win*16+4*b, 4), "0" if win == 0 else d)))
        fl_ = al[:4]
        al = al[4:]
        if sp.issued < min(10, sp.nread + PL):
            fl_ = fl_ + p_wdma(sp.issued, sp.wt)
            sp.issued += 1
        GWN = opt.get("p_gw", 0)
        if win == GWN:
            fl_ = fl_ + [lambda: aft.__setitem__("gu", k.vmem(f"buffer_load_dword v31, v241, {WS}, 0 offen sc1"))]
        if win == 2:
            assert sp.issued == 10 and not al
            if opt.get("nowait"):
                fl_ = fl_ + ["s_mov_b32 s90, 0"]
            else:
                fl_ = fl_ + [lambda: k.wait_vm(aft["gu"]), "v_cmp_gt_u32 vcc, 15, v31", "s_nop 0",
                             lambda: (e("s_cmp_eq_u64 vcc, 0"), e(f"s_cselect_b32 s90, 0, {hex(WS_BYTES)}"))]
        if win >= 2:
            fl_ = fl_ + sum((p_fload(win - 2, b, sp.ft, True) for b in range(4)), [])
        rd = []
        if sp.nread < 4:
            rd = [lambda u=sp.nread: k.wait_vm(sp.wt[u])] + p_wread(sp.nread)
            sp.nread += 1
        interleave(k, mfmas, mix(rd, fl_), tail=2)
        if rd:
            k.lgkm0()
    sc = [f"v_sub_f32 v{48+2*j}, 1.0, v{32+2*j}" for j in range(4)]
    sc += [f"v_max_f32 v{48+2*j}, {hex(f32bits(1e-30))}, v{48+2*j}" for j in range(4)]
    sc += [f"v_rcp_f32 v{56+j}, v{48+2*j}" for j in range(4)]
    sc += [f"v_lshlrev_b32 v{40+2*j}, 16, v{252+j}" for j in range(4)]
    sc += [f"v_mul_f32 v{32+2*j}, v{32+2*j}, v{56+j}" for j in range(4)]
    for b in range(4):
        for j in range(4):
            for h_ in range(2):
                r = YA + (b*4 + j)*4 + 2*h_
                if b < 3:
                    sc.append(f"v_pk_mul_f32 {V(r,2)}, {V(r,2)}, {V(32+2*j,2)} op_sel_hi:[1,0]")
                else:
                    sc.append(f"v_pk_fma_f32 {V(r,2)}, {V(r,2)}, {V(32+2*j,2)}, {V(40+2*j,2)} op_sel_hi:[1,0,0]")
    PLA = 12
    seq_y = [(t, b) for t in range(7) for b in range(4)] + [(t, b) for b in range(4) for t in range(7, 11)]
    k.wait_vm(aft["g"])
    k.stamp(0)
    run_all(k, mix(sum((p_fload(2, b, sp.ft, True) for b in range(4)), []), sc))
    if not opt.get("nowait"):
        jn = k.newlab("L_yj")
        e("s_cmp_eq_u32 s90, 0")
        e(f"s_cbranch_scc1 {jn}")
        vs = k.vm
        k.poll("v241", WS, 15)
        k.stamp(9)
        for i in range(PLA):
            run_all(k, p_fload(*seq_y[i], {}))
        k.vm = vs
        k.label(jn)
    k.nop(2)

    def comb(b):
        return [f"ds_write_b128 v244, {V(YA+(b*4+j)*4,4)} offset:{(b*4+j)*1024}" for j in range(4)]
    sp.run(seq_y, PLA, 0, lambda win: comb(win - 8) if win >= 8 else [], rmax=1, pre_issued=PLA,
           prof=(dict(zip(range(11), (1, 2, 3, 4, 5, 6, 7, 8, 0, 9, 10))) if opt.get("prof") == 2 else None))
    if opt.get("prof") == 2:
        k.stamp(11, True)
    k.stamp(10)
    k.lgkm0()
    e("s_barrier")
    for o in range(3):
        for j in range(4):
            e(f"ds_read_b128 {V(AA+16*o+4*j,4)}, v{245+o} offset:{j*1024}")
    for o in range(3):
        e(f"s_waitcnt lgkmcnt({8-4*o})") if not opt.get("diag") else k.lgkm0()
        for r in range(8):
            e(f"v_pk_add_f32 {V(YA+48+2*r,2)}, {V(YA+48+2*r,2)}, {V(AA+16*o+2*r,2)}")
    for r in range(8):
        e(f"v_pk_mul_f32 {V(YA+48+2*r,2)}, {V(YA+48+2*r,2)}, {V(48+2*(r//2),2)} op_sel_hi:[1,0]")
    for t in range(4):
        e(f"v_cvt_pk_bf16_f32 v{32+2*t}, v{YA+48+4*t}, v{YA+49+4*t}")
        e(f"v_cvt_pk_bf16_f32 v{33+2*t}, v{YA+50+4*t}, v{YA+51+4*t}")
    k.nop(2)
    for p in range(2):
        e(f"v_permlane16_swap_b32 v{32+4*p}, v{34+4*p}")
        e(f"v_permlane16_swap_b32 v{33+4*p}, v{35+4*p}")
    k.nop(1)
    for p in range(2):
        e(f"buffer_store_dwordx4 {V(32+4*p,4)}, v{248+p}, {OUT}, s87 offen {opt.get('oflags', '')}")
    if opt.get("diag"):
        e("s_waitcnt vmcnt(0)")
        k.stamp(11)
        k.lgkm0()
        for i in range(12):
            e(f"v_mov_b32 v{32+i}, s{16+2*i}")
        e("v_mov_b32 v44, s98")
        e("s_getreg_b32 s12, hwreg(HW_REG_XCC_ID)")
        e("v_mov_b32 v45, s12")
        e("s_lshl_b32 s12, s2, 2")
        e("s_add_u32 s12, s12, s3")
        e("s_lshl_b32 s12, s12, 6")
        e(f"s_add_u32 s12, s12, {DIAG}")
        e("v_mov_b32 v30, 0")
        e("s_mov_b64 exec, 1")
        for i in range(4):
            e(f"buffer_store_dwordx4 {V(32+4*i,4)}, v30, {WS}, s12 offen offset:{16*i}")
    k.label("L_end")
    e("s_endpgm")
    return "\n".join(k.l)


HEADER = open("cdna_kernels/" + NAME + ".s.ref").read().split("; Override launch geometry")[0]


def gen_meas(opt):
    mj, mk = opt["meas"], opt.get("mk", 1)
    l = []
    a = l.append
    a("s_cmp_ge_u32 s2, 1")
    a("s_cbranch_scc1 M_end")
    a("s_memrealtime s[30:31]")
    a("s_load_dwordx2 s[4:5], s[0:1], 88")
    a("v_lshlrev_b32 v1, 6, v0")
    a("v_mov_b32 v2, -1")
    a("v_mov_b32 v3, 0")
    a("s_waitcnt lgkmcnt(0)")
    a("s_mov_b32 s8, s4")
    a("s_mov_b32 s9, s5")
    a(f"s_mov_b32 s10, {WS_BYTES}")
    a("s_mov_b32 s11, 0x20000")
    lo, hi = {"Q": (0, 8), "U": (8, 16), "A": (0, 16)}[opt.get("mrole", "A")]
    for it in range(16):
        a(f"s_mov_b32 s12, {DIAG + it*4096}")
        a(f"buffer_load_dword v4, v1, s[8:11], s12 offen offset:48")
        a(f"buffer_load_dword v5, v1, s[8:11], s12 offen offset:{4*mj}")
        a("s_waitcnt vmcnt(0)")
        a("v_min_u32 v2, v2, v4")
        if lo <= it < hi:
            a("v_max_u32 v3, v3, v5")
    a("s_mov_b32 s14, -1")
    a("s_mov_b32 s15, 0")
    a("s_nop 4")
    for i in range(64):
        a(f"v_readlane_b32 s16, v2, {i}")
        a(f"v_readlane_b32 s17, v3, {i}")
        a("s_nop 3")
        a("s_min_u32 s14, s14, s16")
        a("s_max_u32 s15, s15, s17")
    if opt.get("mpost"):
        a("s_sub_u32 s15, s30, s15")
    else:
        a("s_sub_u32 s15, s15, s14")
    a("s_min_u32 s15, s15, 20000")
    a(f"s_mul_i32 s15, s15, {mk}")
    a("s_memrealtime s[20:21]")
    a("s_waitcnt lgkmcnt(0)")
    a("M_spin:")
    a("s_memrealtime s[22:23]")
    a("s_waitcnt lgkmcnt(0)")
    a("s_sub_u32 s24, s22, s20")
    a("s_cmp_lt_u32 s24, s15")
    a("s_cbranch_scc1 M_spin")
    a("M_end:")
    a("s_endpgm")
    return "\n".join(l)


def gen_file(opt):
    kn = NAME + "_kernel"
    nl = opt.get("launches", 1)
    s = HEADER
    for _ in range(opt.get("pre_empty", 0)):
        s += "; @launch kernel=empty_kernel grid=(1,1,1) block=(64,1,1) lds=0\n"
    if opt.get("pre_empty") and "meas" not in opt:
        s += f"; @launch kernel={kn} grid=(256,1,1) block=(256,1,1) lds=163840\n"
    elif "meas" in opt:
        s += f"; @launch kernel={kn} grid=(256,1,1) block=(256,1,1) lds=163840\n"
        s += f"; @launch kernel=meas_kernel grid=(1,1,1) block=(64,1,1) lds=0\n"
    elif nl == 1:
        s += "; @launch grid=(256,1,1) block=(256,1,1) lds=163840\n"
    else:
        for _ in range(nl):
            s += f"; @launch kernel={kn} grid=(256,1,1) block=(256,1,1) lds=163840\n"
    extra_code = ""
    if "meas" in opt:
        extra_code = ".globl meas_kernel\n.p2align 8\n.type meas_kernel,@function\nmeas_kernel:\n" + gen_meas(opt) + "\n"
    if opt.get("pre_empty"):
        extra_code += ".globl empty_kernel\n.p2align 8\n.type empty_kernel,@function\nempty_kernel:\n s_endpgm\n"
    s += f""".amdgcn_target "amdgcn-amd-amdhsa--gfx950"
.text
.globl {kn}
.p2align 8
.type {kn},@function
{kn}:
{gen_body(opt)}
{extra_code}.section .rodata,"a"
.p2align 6
.amdhsa_kernel {kn}
  .amdhsa_next_free_vgpr 512
  .amdhsa_next_free_sgpr 102
  .amdhsa_accum_offset 256
  .amdhsa_group_segment_fixed_size 0
  .amdhsa_kernarg_size 96
  .amdhsa_user_sgpr_count 2
  .amdhsa_user_sgpr_kernarg_segment_ptr 1
  .amdhsa_system_sgpr_workgroup_id_x 1
.end_amdhsa_kernel
"""
    if "meas" in opt:
        s += """.p2align 6
.amdhsa_kernel meas_kernel
  .amdhsa_next_free_vgpr 32
  .amdhsa_next_free_sgpr 102
  .amdhsa_accum_offset 32
  .amdhsa_group_segment_fixed_size 0
  .amdhsa_kernarg_size 96
  .amdhsa_user_sgpr_count 2
  .amdhsa_user_sgpr_kernarg_segment_ptr 1
  .amdhsa_system_sgpr_workgroup_id_x 1
.end_amdhsa_kernel
"""
    if opt.get("pre_empty"):
        s += """.p2align 6
.amdhsa_kernel empty_kernel
  .amdhsa_next_free_vgpr 32
  .amdhsa_next_free_sgpr 102
  .amdhsa_accum_offset 32
  .amdhsa_group_segment_fixed_size 0
  .amdhsa_kernarg_size 96
  .amdhsa_user_sgpr_count 2
  .amdhsa_user_sgpr_kernarg_segment_ptr 1
  .amdhsa_system_sgpr_workgroup_id_x 1
.end_amdhsa_kernel
"""
    return s


if __name__ == "__main__":
    opt = {}
    out = None
    for a in sys.argv[1:]:
        if "=" in a:
            kk, vv = a.split("=", 1)
            try:
                vv = int(vv)
            except ValueError:
                pass
            opt[kk] = vv
        else:
            out = a
    txt = gen_file(opt)
    open(out or ("cdna_kernels/" + NAME + ".s"), "w").write(txt)
```

```python
import sys

NAME = "gated_mix__linear_attn_block__mixer_token_mlp__prompt"

HF = 0x000000
GUF = 0x240000
OF = 0x400000
KVP = 0x600000
ZP = 0x608000
GG = 0x690000
CNT = 0x6A0000
AF = 0x6C0000
DIAG = 0x7E0000
UX = 0x800000
WS_BYTES = 0xC00000

X, WQKV, WO, W1, B1, W2, B2, GW, OUT, DBG, WS = [f"s[{40+4*i}:{43+4*i}]" for i in range(11)]
SRD_INFO = [(40, 16, 2048*512*2), (44, 18, 512*1536*2), (48, 20, 512*512*2), (52, 24, 2048*1376*2),
            (56, 26, 1376*2), (60, 28, 1376*2048*2), (64, 30, 2048*2), (68, 32, 512*2),
            (72, 34, 2048*512*2), (76, 36, 256), (80, 38, WS_BYTES)]

LOG2E = 0x3fb8aa3b
HS = 65536
HQ = 0


def f32bits(x):
    import struct
    return struct.unpack("<I", struct.pack("<f", x))[0]


def rr(kind, base, n):
    return f"{kind}{base}" if n == 1 else f"{kind}[{base}:{base+n-1}]"


def V(b, n=1):
    return rr("v", b, n)


def A(b, n=1):
    return rr("a", b, n)


class Em:
    def __init__(self, opt):
        self.l = []
        self.vm = 0
        self.lab = 0
        self.opt = opt
        self.nstamp = 0

    def e(self, s):
        self.l.append("    " + s)

    def c(self, s):
        self.l.append("    ; " + s)

    def label(self, s):
        self.l.append(s + ":")

    def newlab(self, p="L"):
        self.lab += 1
        return f"{p}_{self.lab}"

    def vmem(self, s):
        self.e(s)
        self.vm += 1
        return self.vm

    def wait_vm(self, tok):
        n = self.vm - tok
        assert n >= 0
        self.e(f"s_waitcnt vmcnt({min(n, 63)})")

    def wait_vm0(self):
        self.e("s_waitcnt vmcnt(0)")

    def lgkm0(self):
        self.e("s_waitcnt lgkmcnt(0)")

    def nop(self, n):
        while n > 0:
            k = min(n, 16)
            self.e(f"s_nop {k-1}")
            n -= k

    def stamp(self, i, prof=False):
        if prof is True:
            prof = self.opt.get("prof") if self.opt.get("prof") in (1, 2) else -1
        if (self.opt.get("prof") or False) != prof:
            return
        if self.opt.get("diag"):
            assert i < 12
            self.e(f"{'s_memtime' if self.opt.get('clk') else 's_memrealtime'} s[{16+2*i}:{17+2*i}]")

    def dma(self, voff, srd, soff, m0expr, flags=""):
        sreg, imm = m0expr
        if sreg is None:
            self.e(f"s_mov_b32 m0, {imm}")
        else:
            self.e(f"s_add_u32 m0, {sreg}, {imm}")
        sr, si = soff
        self.e(f"s_add_u32 s13, {sr}, {si}")
        return self.vmem(f"buffer_load_dwordx4 {voff}, {srd}, s13 offen {flags} lds".replace("  ", " "))

    def poll(self, voff, srd, expect, tmp="v31", sleep=None):
        if self.opt.get("nowait"):
            self.wait_vm0()
            return
        lp = self.newlab("L_poll")
        dn = self.newlab("L_polled")
        self.e("s_mov_b32 s14, 0")
        self.label(lp)
        self.e(f"buffer_load_dword {tmp}, {voff}, {srd}, 0 offen sc1")
        self.e("s_add_u32 s14, s14, 1")
        self.e("s_waitcnt vmcnt(0)")
        self.e(f"v_cmp_gt_u32 vcc, {expect}, {tmp}")
        self.e(f"s_cbranch_vccz {dn}")
        self.e(f"s_sleep {sleep or self.opt.get('sleep', 1)}")
        self.e("s_cmp_lt_u32 s14, 0x40000")
        self.e(f"s_cbranch_scc1 {lp}")
        self.label(dn)

    def poll2(self, voff, srd, expect, more, tmp="v31"):
        if self.opt.get("nowait"):
            more()
            return 0
        t = self.vmem(f"buffer_load_dword {tmp}, {voff}, {srd}, 0 offen sc1")
        more()
        self.wait_vm(t)
        dn = self.newlab("L_fast")
        self.e(f"v_cmp_gt_u32 vcc, {expect}, {tmp}")
        self.e(f"s_cbranch_vccz {dn}")
        self.poll(voff, srd, expect, tmp)
        self.label(dn)
        return t

    def arrive(self, srd, off_sreg, nrep):
        sk = self.newlab("L_arr")
        self.e("s_cmp_lg_u32 s3, 0")
        self.e(f"s_cbranch_scc1 {sk}")
        self.e("v_lshlrev_b32 v30, 8, v1")
        self.e("v_mov_b32 v31, 1")
        self.e(f"s_mov_b64 exec, {(1 << nrep) - 1}")
        self.e(f"buffer_atomic_add v31, v30, {srd}, {off_sreg} offen sc1")
        self.e("s_mov_b64 exec, -1")
        self.label(sk)


def mf(d, a, b, c):
    return f"v_mfma_f32_16x16x32_bf16 {d}, {a}, {b}, {c}"


def interleave(k, mfmas, fillers, tail=2, cap=2, late=(), at=None):
    nm = len(mfmas)
    if late:
        interleave(k, mfmas[:8], fillers[:len(fillers) * 8 // nm + 1], tail=0, cap=cap)
        interleave(k, mfmas[8:], mix(list(late), fillers[len(fillers) * 8 // nm + 1:]), tail=min(tail, 1), cap=cap)
        return
    nf = len(fillers)
    span = max(1, nm - tail)
    fi = 0
    for i, (pre, txt) in enumerate(mfmas):
        if pre:
            pre()
        k.e(txt)
        want = min(nf, -(-(i + 1) * nf // span))
        budget = cap - (1 if (i + 1 < nm and mfmas[i + 1][0]) else 0)
        if at and i in at:
            run_all(k, at[i])
            budget -= len(at[i])
        while fi < want and budget > 0:
            f = fillers[fi]
            fi += 1
            budget -= 1
            if callable(f):
                f()
            else:
                k.e(f)
    while fi < nf:
        f = fillers[fi]
        fi += 1
        if callable(f):
            f()
        else:
            k.e(f)


def run_all(k, items):
    for f in items:
        if callable(f):
            f()
        else:
            k.e(f)


def mix(a, b):
    out = []
    ia = ib = 0
    while ia < len(a) or ib < len(b):
        if ib >= len(b) or (ia < len(a) and ia * len(b) <= ib * len(a)):
            out.append(a[ia])
            ia += 1
        else:
            out.append(b[ib])
            ib += 1
    return out


class SK:
    def __init__(self, k, n, L, NWB, FB, NF, wdma, wread, fload, mm):
        self.__dict__.update(locals())
        self.wt = {}
        self.ft = {}
        self.issued = 0
        self.nread = 0
        self.done = set()
        self.wdone = 0
        self.wq = []
        self.wtmp = {}
        self.wage = {}

    def issue_w(self, upto):
        while self.issued < min(upto, self.n):
            assert self.issued < self.nread + self.L
            run_all(self.k, self.wdma(self.issued, self.wt))
            self.issued += 1

    def assume_issued(self, e, per):
        for t in range(e):
            self.k.vm += per
            self.wt[t] = self.k.vm
        self.issued = e

    def to_regs(self, R, hold=0):
        k = self.k
        while self.nread < R:
            t = self.nread
            assert t < self.wdone + self.NWB
            k.wait_vm(self.wt[t])
            run_all(k, self.wread(t))
            k.lgkm0()
            self.nread += 1
            if self.nread <= R - hold:
                self.issue_w(t + self.L + 1)

    def run(self, seq, LA, drained=0, post=None, wdelay=0, extra=None, pre_issued=0, prof=None,
            wsplit=1, rmax=2, age=2, burst=0, prewin=None):
        k, n, L = self.k, self.n, self.L
        fi = pre_issued

        def fl(i):
            t, b = seq[i]
            if t - self.FB >= 0:
                assert (t - self.FB, b) in self.done, (t, b)
            return self.fload(t, b, self.ft)
        while fi < min(LA, len(seq)):
            run_all(k, fl(fi))
            fi += 1
        for win in range(len(seq) // 4):
            if prof and win in prof:
                k.stamp(prof[win], True)
            if prewin:
                prewin(win)
            grp = seq[4*win:4*win+4]
            assert max(t % n for t, b in grp) < self.nread, (grp, self.nread)
            vm = []
            bursty = burst and (self.issued < n or self.wq)
            nfl = 4
            if bursty:
                ph = win % burst
                nfl = 0 if ph < burst // 2 else 8
            elif burst:
                nfl = max(0, min(8, 4*win + LA + 4 - fi))
            for _ in range(nfl):
                if fi < len(seq):
                    vm += fl(fi)
                    fi += 1
            assert fi >= min(len(seq), 4*win + 8), (win, fi)
            extra_fin = []
            if bursty:
                if nfl == 0:
                    for _ in range(2):
                        if self.issued < n and self.issued < self.nread + L:
                            vm += self.wdma(self.issued, self.wtmp)
                            extra_fin.append(self.issued)
                            self.issued += 1
            if not burst and not self.wq and win >= wdelay and self.issued < n and self.issued < self.nread + L:
                self.wq = self.wdma(self.issued, self.wtmp)
                self.wq_t = self.issued
                self.wq_n = -(-len(self.wq) // wsplit)
                self.issued += 1
            fin = None
            if self.wq:
                vm += self.wq[:self.wq_n]
                self.wq = self.wq[self.wq_n:]
                if not self.wq:
                    fin = self.wq_t
            rd = []
            nr = 0
            while nr < rmax:
                u = self.nread
                if not (u < n and u < self.wdone + self.NWB and u in self.wt):
                    break
                must = u <= max(t % n for t, b in seq[4*win:4*win+8])
                if not must and self.wage.get(u, -99) + age > win:
                    break
                if nr >= 1 and not must and self.issued < n:
                    break
                if self.wt[u] > drained:
                    rd.append(lambda u=u: k.wait_vm(self.wt[u]))
                rd += self.wread(u)
                self.nread += 1
                nr += 1
            mfmas = []
            for (t, b) in grp:
                for j in range(self.NF):
                    pre = (lambda t=t, b=b: k.wait_vm(self.ft[(t, b)])) if j == 0 else None
                    mfmas.append((pre, self.mm(t, b, j)))
            fill = mix(rd, vm)
            ps = post(win) if post else []
            if extra:
                fill = mix(fill, extra(win))
            interleave(k, mfmas, fill, tail=3, late=ps)
            for fin_ in ([fin] if fin is not None else []) + extra_fin:
                self.wt[fin_] = self.wtmp[fin_]
                self.wage[fin_] = win
            for gb in grp:
                self.done.add(gb)
            while self.wdone < n and all((self.wdone, b) in self.done for b in range(4)):
                self.wdone += 1
            if rd:
                k.lgkm0()
        assert not self.wq
        self.wage = {}


def gen_body(opt):
    k = Em(opt)
    e = k.e
    WFL = opt.get("wflags", "")
    ROTQ = opt.get("rot_q", 0)
    ROTU = opt.get("rot_u", 2)
    ROTP = opt.get("rot_p", 1)
    UPART = opt.get("upart", 4)
    UFL = opt.get("u_wflags", "")
    global HS
    global HQ
    HQ = opt.get("hq", 0)
    HS = opt.get("hs", 65536)
    assert HS >= 65536 + 4*HQ
    PW = "s[84:87]"

    def srd(name):
        for (d, s, sz) in SRD_INFO:
            if f"s[{d}:{d+3}]" == name:
                e(f"s_mov_b32 s{d}, s{s}")
                e(f"s_mov_b32 s{d+1}, s{s+1}")
                e(f"s_mov_b32 s{d+2}, {sz}")
                e(f"s_mov_b32 s{d+3}, 0x20000")

    def dmai(voff, srd_, soff, off, toks=None, key=None, fl=""):
        def f():
            if " m0," in k.l[-1]:
                e("s_nop 0")
            t = k.vmem(f"buffer_load_dwordx4 {voff}, {srd_}, {soff} offen offset:{off} {fl} lds".replace("  ", " "))
            if toks is not None:
                toks[key] = t
        return f

    def diag_clear():
        if opt.get("diag"):
            for i in range(16, 40):
                e(f"s_mov_b32 s{i}, 0")

    k.label("L_code0")
    e("s_cmp_ge_u32 s2, 256")
    e("s_cbranch_scc1 L_end")
    e("s_load_dwordx16 s[16:31], s[0:1], 0")
    e("s_load_dwordx8 s[32:39], s[0:1], 64")
    if opt.get("diag"):
        e(f"{'s_memtime' if opt.get('clk') else 's_memrealtime'} s[98:99]")
    if opt.get("cpf", 1):
        e("s_getpc_b64 s[92:93]")
        k.label("L_pc")
        e("s_lshr_b32 s12, s2, 3")
        e(f"s_mul_i32 s12, s12, {12*128}")
        e("s_sub_u32 s92, s92, L_pc-L_code0")
        e("s_subb_u32 s93, s93, 0")
        e("v_lshl_add_u32 v30, v0, 7, s12")
        e("v_min_u32 v30, L_end-L_code0, v30")
        e("v_mov_b32 v31, s93")
        e("v_cmp_gt_u32 s[94:95], 12, v0")
        e("v_add_co_u32 v30, vcc, s92, v30")
        e("s_nop 1")
        e("v_addc_co_u32 v31, vcc, 0, v31, vcc")
        e("s_mov_b64 exec, s[94:95]")
        cs = k.newlab("L_cs")
        e(f"s_cbranch_execz {cs}")
        e("global_load_dword v157, v[30:31], off")
        k.label(cs)
        e("s_mov_b64 exec, -1")
    e("v_lshrrev_b32 v2, 6, v0")
    e("v_and_b32 v1, 63, v0")
    e("v_readfirstlane_b32 s3, v2")
    e("s_and_b32 s4, s2, 7")
    e("s_lshr_b32 s6, s2, 3")
    e("s_and_b32 s5, s4, 1")
    e("s_lshr_b32 s4, s4, 1")
    k.c("role tile: s8 = a*4 + ((idx&15)>>2) (sb / ft), s9 = b*4 + (idx&3) (hg / dt)")
    e("s_bfe_u32 s8, s6, 0x20002")
    e("s_lshl_b32 s12, s4, 2")
    e("s_add_u32 s8, s8, s12")
    e("s_and_b32 s9, s6, 3")
    e("s_lshl_b32 s12, s5, 2")
    e("s_add_u32 s9, s9, s12")
    PP8 = opt.get("pp8", 1)
    if PP8:
        k.c("P3 tile: st = xcd*4 + (idx&3), dt3 = 2*((idx>>2)&3) + ((idx ^ (idx>>4))&1)")
        e("s_and_b32 s10, s6, 3")
        e("s_and_b32 s12, s2, 7")
        e("s_lshl_b32 s12, s12, 2")
        e("s_add_u32 s10, s10, s12")
        e("s_lshr_b32 s11, s6, 4")
        e("s_xor_b32 s11, s11, s6")
        e("s_and_b32 s11, s11, 1")
        e("s_lshr_b32 s12, s6, 1")
        e("s_and_b32 s12, s12, 6")
        e("s_add_u32 s11, s11, s12")
    else:
        k.c("P3 tile: s10 = st = a*8 + (idx&7), s11 = dt3 = b*4 + 2*((idx>>3)&1) + ((idx ^ (idx>>4))&1)")
        e("s_and_b32 s10, s6, 7")
        if opt.get("stx"):
            e(f"s_xor_b32 s10, s10, {opt['stx']}")
        e("s_lshr_b32 s11, s6, 4")
        e("s_xor_b32 s11, s11, s6")
        e("s_and_b32 s11, s11, 1")
        e("s_add_u32 s11, s11, s12")
        e("s_lshr_b32 s12, s6, 2")
        e("s_and_b32 s12, s12, 2")
        e("s_add_u32 s11, s11, s12")
        e("s_lshl_b32 s12, s4, 3")
        e("s_add_u32 s10, s10, s12")
    e("s_mul_i32 s7, s3, 40960")
    e("v_and_b32 v2, 15, v1")
    e("v_lshrrev_b32 v3, 4, v1")
    e("v_lshlrev_b32 v4, 4, v1")
    e("v_mov_b32 v5, 0")
    e("s_cmp_lt_u32 s6, 16")
    e("s_cbranch_scc1 L_qrole")
    nz = k.newlab("L_nz")
    n1_ = k.newlab("L_n1")
    e("s_and_b32 s12, s2, 0xf7")
    e("s_cmp_lg_u32 s12, 230")
    e("s_cbranch_scc1 L_urole")
    e("v_mov_b32 v31, 1")
    e("v_lshlrev_b32 v30, 8, v0")
    e("s_waitcnt lgkmcnt(0)")
    srd(WS)
    srd(DBG)
    e("s_cmp_lg_u32 s2, 230")
    e(f"s_cbranch_scc1 {n1_}")
    e("s_cmp_lg_u32 s3, 0")
    e(f"s_cbranch_scc1 {nz}")
    e(f"s_mov_b32 s12, {CNT + 96*256}")
    e("s_mov_b64 exec, 0xffffffff")
    e(f"buffer_store_dword v5, v30, {WS}, s12 offen sc1")
    e("s_mov_b64 exec, -1")
    k.wait_vm0()
    e(f"buffer_store_dword v31, v5, {DBG}, 0 offen sc1")
    e(f"s_branch {nz}")
    k.label(n1_)
    e("v_lshrrev_b32 v29, 5, v0")
    e("v_cmp_ne_u32 vcc, 3, v29")
    e(f"s_mov_b32 s12, {CNT}")
    e("s_and_b64 exec, exec, vcc")
    e(f"buffer_store_dword v5, v30, {WS}, s12 offen sc1")
    e("s_mov_b64 exec, -1")
    e("v_lshlrev_b32 v30, 6, v0")
    for z_ in range(2):
        e(f"s_mov_b32 s12, {CNT + 256*256 + z_*16384}")
        e(f"buffer_store_dword v5, v30, {WS}, s12 offen sc1")
    for r in range(4):
        e(f"v_mov_b32 v{32+r}, 0")
    e("v_lshlrev_b32 v30, 4, v0")
    for z_ in range(9):
        e(f"s_mov_b32 s12, {KVP + z_*4096}")
        e(f"buffer_store_dwordx4 v[32:35], v30, {WS}, s12 offen sc1")
    k.wait_vm0()
    e("s_barrier")
    e("s_cmp_lg_u32 s3, 0")
    e(f"s_cbranch_scc1 {nz}")
    e(f"buffer_store_dword v31, v5, {DBG}, 0 offen offset:128 sc1")
    k.label(nz)
    e("s_branch L_urole")
    k.label("L_qrole")


    def touch_xw():
        if not opt.get("pfx", 4):
            return
        if opt.get("pfx", 4) == 2:
            return touch_xw_all()
        if opt.get("pfx", 4) >= 3:
            return touch_kv(64 if opt.get("pfx", 4) == 3 else 128)
        e("s_lshl_b32 s12, s6, 2")
        e("s_add_u32 s12, s12, s3")
        e("v_lshrrev_b32 v116, 2, v1")
        e("v_lshlrev_b32 v116, 10, v116")
        e("v_and_b32 v117, 3, v1")
        e("v_lshl_add_u32 v116, v117, 7, v116")
        e(f"s_mul_i32 s13, s12, {8*3072}")
        e("s_lshl_b32 s14, s5, 9")
        e("s_add_u32 s13, s13, s14")
        k.vmem(f"buffer_load_dword v157, v116, {WQKV}, s13 offen")
        e("v_lshlrev_b32 v117, 7, v1")
        e("s_lshl_b32 s12, s12, 13")
        e("s_lshl_b32 s14, s4, 19")
        e("s_add_u32 s12, s12, s14")
        k.vmem(f"buffer_load_dword v157, v117, {X}, s12 offen")
        e("s_add_u32 s13, s13, 16384")
        e("s_mov_b64 exec, 0xffffffff")
        k.vmem(f"buffer_load_dword v157, v116, {WQKV}, s13 offen")
        e("s_mov_b64 exec, -1")

    def touch_xw_all():
        e("s_lshl_b32 s12, s6, 2")
        e("s_add_u32 s12, s12, s3")
        e("v_lshrrev_b32 v116, 2, v1")
        e("v_lshlrev_b32 v116, 10, v116")
        e("v_and_b32 v117, 3, v1")
        e("v_lshl_add_u32 v116, v117, 7, v116")
        e(f"s_mul_i32 s13, s12, {4*3072}")
        e("s_lshl_b32 s14, s5, 9")
        e("s_add_u32 s13, s13, s14")
        e("s_mov_b32 s14, 0xffff")
        e("s_mov_b32 exec_hi, s14")
        k.vmem(f"buffer_load_dword v157, v116, {WQKV}, s13 offen")
        e("s_mov_b64 exec, -1")

    def touch_kv(nw):
        e("s_lshl_b32 s12, s6, 2")
        e("s_add_u32 s12, s12, s3")
        e("v_lshrrev_b32 v116, 3, v1")
        e("v_mul_u32_u24 v116, 3072, v116")
        e("v_bfe_u32 v117, v1, 2, 1")
        e("v_lshl_add_u32 v116, v117, 10, v116")
        e("v_and_b32 v117, 3, v1")
        e("v_lshl_add_u32 v116, v117, 7, v116")
        e(f"s_mul_i32 s13, s12, {(512//nw)*3072}")
        e("s_lshl_b32 s14, s5, 9")
        e("s_add_u32 s13, s13, s14")
        if nw == 128:
            e("s_mov_b64 exec, 0xffffffff")
        k.vmem(f"buffer_load_dword v157, v116, {WQKV}, s13 offen offset:1024")
        if nw == 128:
            e("s_mov_b64 exec, -1")

    def touch_x_other():
        e("s_and_b32 s12, s6, 15")
        e("s_lshl_b32 s12, s12, 2")
        e("s_add_u32 s12, s12, s3")
        e("s_lshr_b32 s13, s12, 4")
        e("s_lshl_b32 s13, s13, 17")
        e("s_and_b32 s12, s12, 15")
        e("s_lshl_b32 s12, s12, 12")
        e("s_add_u32 s12, s12, s13")
        e("s_lshl_b32 s13, s4, 19")
        e("s_add_u32 s12, s12, s13")
        e("s_xor_b32 s13, s5, 1")
        e("s_lshl_b32 s13, s13, 16")
        e("s_add_u32 s12, s12, s13")
        e("v_lshlrev_b32 v117, 7, v1")
        e("s_mov_b64 exec, 0xffffffff")
        k.vmem(f"buffer_load_dword v157, v117, {X}, s12 offen")
        e("s_mov_b64 exec, -1")

    def touch_w1():
        if opt.get("pfx", 4) == 2:
            srd(X)
            srd(WQKV)
            touch_x_other()
            touch_xw_all()
        if opt.get("pfx", 4) >= 3:
            srd(X)
            srd(WQKV)
            touch_x_other()
            if opt.get("pfx", 4) == 4:
                touch_kv(128)
        if not opt.get("pfw", 0):
            return
        bw = 768 if UPART == 4 else 384
        e("s_and_b32 s12, s6, 15")
        e("s_lshl_b32 s12, s12, 2")
        e("s_add_u32 s12, s12, s3")
        e(f"s_mul_i32 s12, s12, {32*2752}")
        if UPART == 4:
            e("s_mul_i32 s13, s4, 768")
            e("v_lshrrev_b32 v158, 3, v1")
            e("v_and_b32 v159, 7, v1")
        else:
            e("s_and_b32 s13, s2, 7")
            e("s_mul_i32 s13, s13, 384")
            e("v_lshrrev_b32 v158, 2, v1")
            e("v_and_b32 v159, 3, v1")
        e("s_add_u32 s12, s12, s13")
        e("v_lshlrev_b32 v159, 7, v159")
        e(f"v_min_u32 v159, {bw-4}, v159")
        e("v_mul_u32_u24 v158, 2752, v158")
        e("v_add_u32 v158, v158, v159")
        nrow = 8 if UPART == 4 else 16
        for j in range(32 // nrow):
            k.vmem(f"buffer_load_dword v157, v158, {W1}, s12 offen {UFL}")
            if j + 1 < 32 // nrow:
                e(f"s_add_u32 s12, s12, {nrow*2752}")

    PL, PNWB, PFB = 6, 8, 8
    PE = 6
    YA, AA = 64, 128

    def p3_setup(isq):
        out = (["s_mul_i32 s100, s3, 24576", "s_lshl_b32 s99, s3, 14", "s_add_u32 s99, s99, 98304"] if isq
               else ["s_add_u32 s100, s7, 16384", "s_mov_b32 s99, s7"])
        out += ["v_lshrrev_b32 v30, 3, v1", "v_and_b32 v31, 7, v1", "v_and_b32 v22, 6, v30", "v_xor_b32 v31, v31, v22",
                "v_lshlrev_b32 v31, 4, v31", "v_lshl_add_u32 v22, v30, 12, v31", "v_lshl_add_u32 v250, v30, 10, v31",
                "s_lshl_b32 s13, s11, 7", "s_lshl_b32 s87, s3, 5", "s_add_u32 s87, s87, s13",
                "s_lshl_b32 s12, s3, 17", "s_add_u32 s12, s12, s13", "v_add_u32 v250, s12, v250",
                f"s_mul_i32 s12, s3, {352*4096}", "s_lshl_b32 s13, s10, 7", "s_add_u32 s12, s12, s13", "v_add_u32 v22, s12, v22"]
        for j in range(1, 4):
            out.append(f"v_add_u32 v{22+j}, {j*(8*4096-1024)}, v22")
        out += [f"v_add_u32 v251, {8*1024-1024}, v250"]
        out += ["s_and_b32 s12, s10, 30", "s_add_u32 s12, s12, s5", "s_lshl_b32 s12, s12, 8",
                f"s_add_u32 s12, s12, {CNT + 32*256}", "v_mov_b32 v240, s12",
                ] + (["s_lshl_b32 s12, s11, 3", "s_and_b32 s13, s2, 7", "s_add_u32 s12, s12, s13", "s_lshl_b32 s12, s12, 8",
                      f"s_add_u32 s12, s12, {CNT + 128*256}"] if PP8 else
                     ["s_lshl_b32 s12, s11, 2", "s_add_u32 s12, s12, s4", "s_lshl_b32 s12, s12, 8",
                      f"s_add_u32 s12, s12, {CNT + 64*256}"]) + ["v_mov_b32 v241, s12"]
        out += ["v_lshrrev_b32 v228, 2, v2", "v_lshl_add_u32 v228, v3, 2, v228", "v_lshrrev_b32 v229, 1, v228",
                "v_and_b32 v229, 3, v229", "v_lshlrev_b32 v228, 7, v228", "v_lshl_add_u32 v228, v229, 5, v228",
                "v_and_b32 v229, 3, v2", "v_lshl_add_u32 v228, v229, 3, v228", "v_add_u32 v227, s99, v228",
                "v_add_u32 v228, s100, v228"]
        for j in range(1, 4):
            out.append(f"v_xor_b32 v{228+j}, {32*j}, v228")
        out += ["s_lshl_b32 s12, s10, 16", "s_lshl_b32 s13, s3, 12", "s_add_u32 s12, s12, s13",
                f"s_add_u32 s12, s12, {OF}", "v_add_u32 v232, s12, v4", "v_add_u32 v233, 16384, v232",
                f"s_mul_i32 s13, s11, {4*43*1024}", f"s_mul_i32 s12, s3, {11*1024}", "s_add_u32 s13, s13, s12",
                f"s_add_u32 s13, s13, {GUF}"]
        for b in range(4):
            out += [f"s_add_u32 s12, s3, {1+b}", "s_and_b32 s12, s12, 3",
                    "s_lshl_b32 s14, s12, 5", f"v_xor_b32 v{224+b}, s14, v227",
                    f"s_mul_i32 s14, s12, {24576 if isq else 40960}"]
            base = 0 if isq else 16384
            if b < 3:
                out += [f"s_add_u32 s14, s14, {base + (2-b)*4096}", f"v_add_u32 v{245+b}, s14, v4"]
            else:
                out += ["v_add_u32 v244, s100, v4"]
            out += [f"s_mul_i32 s12, s12, {43*1024}", "s_add_u32 s12, s12, s13", f"v_add_u32 v{236+b}, s12, v4"]
        out += ["s_mov_b32 s84, 4096", "s_mov_b32 s85, 8192", "s_mov_b32 s86, 10240", "s_mov_b32 s91, 32768",
                lambda: (e("s_cmp_eq_u32 s3, 3"), e(f"s_cselect_b32 s86, {hex(WS_BYTES)}, s86")),
                "s_lshl_b32 s12, s10, 6", "v_add_u32 v248, s12, v2", "v_lshlrev_b32 v242, 2, v248",
                f"v_add_u32 v242, {GG}, v242", "v_lshlrev_b32 v243, 1, v248",
                "v_and_b32 v249, 1, v3", "v_lshl_add_u32 v248, v249, 4, v248", "v_lshlrev_b32 v248, 10, v248",
                "v_lshrrev_b32 v249, 1, v3", "v_lshl_add_u32 v248, v249, 4, v248", "v_add_u32 v249, 32768, v248"]
        if opt.get("tlb", 0) & 1:
            out.append(lambda: (e("s_mov_b64 exec, 1"), k.vmem(f"buffer_load_dword v243+0, v248, {OUT}, s87 offen sc1".replace("v243+0", "v255")), e("s_mov_b64 exec, -1")))
        if opt.get("tlb", 0) & 2:
            out.append(lambda: (e("v_lshlrev_b32 v254, 21, v1"), e("s_mov_b64 exec, 63"), k.vmem(f"buffer_load_dword v255, v254, {WS}, s85 offen sc1"), e("s_mov_b64 exec, -1")))
        for j in range(4):
            out.append(lambda j=j: k.vmem(f"buffer_load_ushort v{252+j}, v243, {B2}, 0 offen offset:{32*j}"))
        return out

    def wo_dma(d=None):
        out = []
        for t in range(4):
            for h_ in range(2):
                out += [f"s_add_u32 m0, s99, {t*4096 + h_*2048}", f"s_mov_b32 s101, {t*32*1024 + h_*16384}"]
                out += [dmai(f"v{250+j}", WO, "s101", j*1024, {} if d is None else d, t, WFL) for j in range(2)]
        return out

    def wo_reads():
        out = []
        for t in range(4):
            for j in range(4):
                out.append(f"ds_read_b64_tr_b16 {A(64+t*16+j*4,2)}, v{224+j} offset:{t*4096}")
                out.append(f"ds_read_b64_tr_b16 {A(66+t*16+j*4,2)}, v{224+j} offset:{t*4096+2048}")
        return out

    def yblk(t):
        return t

    def p_wdma(t, toks):
        sl = t % PL
        out = [f"s_add_u32 m0, s100, {sl*4096}",
               f"s_mov_b32 s101, {yblk(t)*32*4096}"]
        for j in range(4):
            out.append(dmai(f"v{22+j}", W2, "s101", j*1024, toks, t, WFL))
        return out

    def p_wread(t):
        out = []
        for j in range(4):
            r = (t % PNWB)*16 + j*4
            sl = t % PL
            o = (sl if sl < 6 else sl - 6)*4096
            ar = (228 if sl < 6 else 224) + j
            out.append(f"ds_read_b64_tr_b16 {A(r,2)}, v{ar} offset:{o}")
            out.append(f"ds_read_b64_tr_b16 {A(r+2,2)}, v{ar} offset:{o+2048}")
        return out

    def p3_e1(d=None):
        out = []
        for t in range(PE):
            out += p_wdma(t, {} if d is None else d)
        return out

    def freg(t, b):
        return A(128 + ((t + 4) % PFB)*16 + 4*b, 4)

    def p_fload(t, b, toks, early=False):
        y = yblk(t)
        so, off = ("s86" if y == 10 else ["0", "s84", "s85"][y // 4]), (0 if y == 10 else (y % 4)*1024)

        if early:
            so = {"0": "s90"}[so]

        def f():
            toks[(t, b)] = k.vmem(f"buffer_load_dwordx4 {freg(t,b)}, v{236+b}, {WS}, {so} offen offset:{off} sc1")
        return [f]

    def acc_init():
        out = [f"v_mov_b32 v{YA+r}, 0" for r in range(48)]
        for j in range(4):
            out += [f"v_lshlrev_b32 v{YA+48+4*j+r}, 16, v{252+j}" for r in range(4)]
        return out

    def zload(va="v5", vd="v31"):
        return k.vmem(f"buffer_load_dword {vd}, {va}, {DBG}, 0 offen sc1")

    def zcheck(va="v5", vd="v31"):
        if opt.get("nowait"):
            return
        dn = k.newlab("L_z")
        e(f"v_cmp_gt_u32 vcc, 1, {vd}")
        e(f"s_cbranch_vccz {dn}")
        k.poll(va, DBG, 1)
        k.label(dn)

    k.c("================= Q role: LN =================")
    k.vm = 0
    e("s_lshl_b32 s15, s8, 7")
    e("s_lshl_b32 s12, s9, 4")
    e("s_add_u32 s15, s15, s12")
    e("s_lshl_b32 s12, s3, 2")
    e("s_add_u32 s12, s12, s15")
    e("s_lshl_b32 s12, s12, 10")
    e("v_lshlrev_b32 v7, 4, v2")
    e("v_lshl_add_u32 v6, v3, 10, v7")
    e("s_waitcnt lgkmcnt(0)")
    srd(X)
    tx = [k.vmem(f"buffer_load_dwordx4 {V(32+4*j,4)}, v6, {X}, s12 offen offset:{256*j}") for j in range(4)]
    srd(GW)
    tg = [k.vmem(f"buffer_load_dwordx4 {V(48+4*j,4)}, v7, {GW}, 0 offen offset:{256*j}") for j in range(4)]
    srd(WQKV)
    if not opt.get("q_late", 0):
        touch_xw()
    for n_ in (WS, DBG, WO, W2, B2, OUT):
        srd(n_)
    diag_clear()
    k.stamp(1, 4)
    e("v_lshrrev_b32 v12, 3, v1")
    e("v_and_b32 v13, 7, v1")
    e("v_lshrrev_b32 v14, 1, v12")
    e("v_xor_b32 v14, v14, v13")
    e("v_lshlrev_b32 v14, 4, v14")
    e("v_lshl_add_u32 v14, v12, 10, v14")
    e("v_xor_b32 v15, 64, v14")
    e("s_lshl_b32 s13, s8, 17")
    e("s_lshl_b32 s12, s3, 15")
    e("s_add_u32 s13, s13, s12")
    e("v_add_u32 v144, s13, v14")
    e(f"s_add_u32 s13, s13, {7168}")
    e("v_add_u32 v145, s13, v15")
    e(f"v_add_u32 v146, {2*7168}, v144")
    e(f"v_add_u32 v147, {2*7168}, v145")
    e("v_and_b32 v16, 2, v12")
    e("v_xor_b32 v16, v16, v13")
    e("v_lshlrev_b32 v16, 4, v16")
    e("v_xor_b32 v17, 64, v16")
    e("v_mul_u32_u24 v12, 3072, v12")
    e("s_mul_i32 s13, s3, 49152")
    e("s_lshl_b32 s12, s9, 7")
    e("s_add_u32 s13, s13, s12")
    e("v_add3_u32 v148, v16, v12, s13")
    e(f"s_add_u32 s13, s13, {8*3072-1024}")
    e("v_add3_u32 v149, v17, v12, s13")
    for sec in (1, 2):
        e(f"v_add_u32 v{148+2*sec}, {1024*sec}, v148")
        e(f"v_add_u32 v{149+2*sec}, {1024*sec}, v149")
    e("s_lshl_b32 s90, s3, 12")
    e("s_lshl_b32 s91, s3, 11")
    ct = {}
    WQB = 98304

    def qdma(c):
        slot = c % 3
        out = [f"s_add_u32 m0, s90, {slot*32768}", f"s_mov_b32 s88, {c*128}"]
        for j in range(4):
            out.append(dmai(f"v{144+j}", X, "s88", j*1024))
        for sec in (1, 2):
            out.append(f"s_add_u32 m0, s91, {slot*32768 + 16384 + (sec-1)*8192}")
            if sec == 1:
                out.append(f"s_mov_b32 s89, {c*64*3072}")
            for j in range(2):
                out.append(dmai(f"v{148+2*sec+j}", WQKV, "s89", j*1024, ct, c, WFL))
        out.append(lambda: ctd.add(c))
        return out

    def wqdma(c):
        out = [f"s_add_u32 m0, s91, {WQB + c*8192}", f"s_mov_b32 s89, {c*64*3072}"]
        for j in range(2):
            out.append(dmai(f"v{148+j}", WQKV, "s89", j*1024, ct, "q", WFL))
        return out
    ctd = set()
    nearly = 0
    LNB = 163840 - 17408
    e("s_mul_i32 s12, s3, 4352")
    e(f"s_add_u32 s12, s12, {LNB}")
    e("v_mul_u32_u24 v8, 1088, v3")
    e("v_add3_u32 v8, v8, v7, s12")
    e("v_and_b32 v9, 1, v3")
    e("v_lshlrev_b32 v9, 3, v9")
    e("v_lshrrev_b32 v10, 2, v2")
    e("v_add_u32 v9, v9, v10")
    e("v_mul_u32_u24 v9, 1088, v9")
    e("v_lshrrev_b32 v10, 1, v3")
    e("v_lshl_add_u32 v9, v10, 5, v9")
    e("v_and_b32 v11, 3, v2")
    e("v_lshl_add_u32 v9, v11, 3, v9")
    e("s_lshl_b32 s12, s3, 8")
    e(f"s_add_u32 s12, s12, {LNB}")
    e("v_add_u32 v9, s12, v9")
    e(f"v_mul_u32_u24 v10, {HS}, v10")
    e("v_and_b32 v11, 1, v3")
    e("v_lshl_add_u32 v10, v11, 8, v10")
    e("v_add_u32 v10, v10, v7")
    e(f"s_mul_i32 s84, s3, {8*HS}")
    e("s_lshl_b32 s12, s15, 5")
    e("s_add_u32 s84, s84, s12")
    if HQ:
        e("s_lshr_b32 s12, s15, 9")
        e(f"s_mul_i32 s12, s12, {HQ}")
        e("s_add_u32 s84, s84, s12")
    if HF:
        e(f"s_add_u32 s84, s84, {HF}")
    e("s_lshl_b32 s12, s3, 2")
    e("s_add_u32 s12, s12, s15")
    e("s_lshl_b32 s12, s12, 2")
    e(f"s_add_u32 s12, s12, {GG}")
    e("v_lshl_add_u32 v11, v3, 2, s12")
    e("v_cmp_eq_u32 vcc, 0, v2")
    e("v_mov_b32 v12, 0x7ffffff0")
    e("s_mov_b32 s85, 0x3f803f80")
    e("v_cndmask_b32 v11, v12, v11, vcc")
    e("s_lshr_b32 s96, s3, 1")
    e("s_and_b32 s97, s3, 1")
    e("v_lshrrev_b32 v18, 1, v2")
    e("v_xor_b32 v18, v18, v3")
    e("v_lshlrev_b32 v18, 4, v18")
    e("v_lshl_add_u32 v18, v2, 7, v18")
    e("s_lshl_b32 s12, s96, 13")
    e("v_add_u32 v18, s12, v18")
    e("v_xor_b32 v19, 64, v18")
    e("v_add_u32 v20, 65536, v18")
    e("v_add_u32 v21, 65536, v19")
    e("v_lshrrev_b32 v22, 2, v2")
    e("v_lshrrev_b32 v23, 3, v2")
    e("v_and_b32 v24, 1, v3")
    e("v_lshl_add_u32 v23, v24, 1, v23")
    e("s_lshl_b32 s12, s97, 1")
    e("v_xor_b32 v23, s12, v23")
    e("v_lshl_add_u32 v22, v3, 3, v22")
    e("v_lshlrev_b32 v22, 7, v22")
    e("v_lshl_add_u32 v22, v23, 5, v22")
    e("v_and_b32 v24, 3, v2")
    e("v_lshl_add_u32 v22, v24, 3, v22")
    e("v_add_u32 v22, 16384, v22")
    e(f"v_add_u32 v14, {WQB - 16384}, v22")
    e("v_xor_b32 v15, 32, v14")
    e("s_lshl_b32 s12, s96, 5")
    e("v_xor_b32 v23, s12, v22")
    e("v_xor_b32 v22, 32, v23")
    e("v_add_u32 v24, 65536, v22")
    e("v_add_u32 v25, 65536, v23")
    e(f"v_lshrrev_b32 v154, {2 if PP8 else 3}, v1")
    e(f"v_and_b32 v155, {3 if PP8 else 7}, v1")
    e("v_lshlrev_b32 v154, 12, v154")
    e("v_lshl_add_u32 v154, v155, 7, v154")
    e(f"s_mul_i32 s13, s3, {352*4096}")
    e(f"s_lshl_b32 s14, s6, {16 if PP8 else 15}")
    e("s_add_u32 s13, s13, s14")
    if PP8:
        e("s_and_b32 s14, s2, 7")
        e("s_lshl_b32 s14, s14, 9")
    else:
        e("s_lshl_b32 s14, s4, 10")
    e("s_add_u32 s13, s13, s14")
    e("v_add_u32 v154, s13, v154")

    k.stamp(2, 4)
    k.wait_vm(tx[3])
    k.stamp(3, 4)
    if opt.get("q_late", 0):
        touch_xw()
    QFAST = opt.get("q_fast", 1)
    QF = opt.get("q_f", 1)
    ln_start = len(k.l)
    e("v_dot2_f32_bf16 v26, v32, s85, 0")
    e("v_dot2_f32_bf16 v27, v33, s85, 0")
    for j in range(2, 16):
        e(f"v_dot2_f32_bf16 v{26+(j&1)}, v{32+j}, s85, v{26+(j&1)}")
    unp = []
    for j in range(16):
        unp.append(f"v_lshlrev_b32 v{64+2*j}, 16, v{32+j}")
        unp.append(f"v_and_b32 v{65+2*j}, 0xffff0000, v{32+j}")
    for s in unp[:4]:
        e(s)
    e("v_add_f32 v26, v26, v27")
    ui = 4
    for rot in (8, 4, 2, 1):
        for s in unp[ui:ui+3]:
            e(s)
        ui += 3
        e(f"v_add_f32_dpp v26, v26, v26 row_ror:{rot} row_mask:0xf bank_mask:0xf")
    for s in unp[ui:]:
        e(s)
    e(f"v_mul_f32 v26, {hex(f32bits(-1.0/512))}, v26")
    for j in range(16):
        e(f"v_pk_add_f32 {V(64+2*j,2)}, {V(64+2*j,2)}, v[26:27] op_sel_hi:[1,0]")
    e("v_pk_mul_f32 v[96:97], v[64:65], v[64:65]")
    e("v_pk_mul_f32 v[98:99], v[66:67], v[66:67]")
    for j in range(2, 16):
        a_ = 96 + 2 * (j & 1)
        e(f"v_pk_fma_f32 {V(a_,2)}, {V(64+2*j,2)}, {V(64+2*j,2)}, {V(a_,2)}")
    e("v_pk_add_f32 v[96:97], v[96:97], v[98:99]")
    e("v_add_f32 v26, v96, v97")
    k.wait_vm(tg[3])
    gd = ["v_dot2_f32_bf16 v28, v32, v48, 0", "v_dot2_f32_bf16 v29, v33, v49, 0"]
    for j in range(2, 16):
        gd.append(f"v_dot2_f32_bf16 v{28+(j&1)}, v{32+j}, v{48+j}, v{28+(j&1)}")
    gi = 0
    for rot in (8, 4, 2, 1):
        e(gd[gi]); e(gd[gi+1]); gi += 2
        e(f"v_add_f32_dpp v26, v26, v26 row_ror:{rot} row_mask:0xf bank_mask:0xf")
    e(f"v_mov_b32 v27, {hex(f32bits(1e-5))}")
    e(f"v_fmac_f32 v27, {hex(f32bits(1.0/512))}, v26")
    e("v_rsq_f32 v26, v27")
    e(gd[gi]); gi += 1
    for j in range(16):
        e(f"v_pk_mul_f32 {V(64+2*j,2)}, {V(64+2*j,2)}, v[26:27] op_sel_hi:[1,0]")
    for j in range(16):
        e(f"v_cvt_pk_bf16_f32 v{100+j}, v{64+2*j}, v{65+2*j}")
        if j % 4 == 3:
            e(f"ds_write_b128 v8, {V(100+j-3,4)} offset:{256*(j//4)}")
    while gi < 16:
        e(gd[gi]); gi += 1
    if QFAST:
        body = [x.strip() for x in k.l[ln_start:]]
        del k.l[ln_start:]
        body = [(lambda: k.wait_vm(tg[3])) if x.startswith("s_waitcnt vmcnt") else x for x in body]
        skip = opt.get("q_skip", 0)
        run_all(k, body[:skip] + mix(body[skip:], sum((qdma(c) for c in range(QF)), [])))
    k.stamp(4, 4)
    k.lgkm0()
    e("s_barrier")
    k.stamp(5, 4)
    for j in range(4):
        e(f"ds_read_b64_tr_b16 {V(64+4*j,2)}, v9 offset:{64*j}")
        e(f"ds_read_b64_tr_b16 {V(66+4*j,2)}, v9 offset:{64*j+4*1088}")
    e("v_add_f32 v28, v28, v29")
    th = None
    for j in range(4):
        e(f"s_waitcnt lgkmcnt({6-2*j})") if not opt.get("diag") else k.lgkm0()
        e(f"s_add_u32 s12, s84, {j*2*HS}")
        th = k.vmem(f"buffer_store_dwordx4 {V(64+4*j,4)}, v10, {WS}, s12 offen sc1")
    k.stamp(6, 4)
    for rot in (8, 4, 2, 1):
        e(f"v_add_f32_dpp v28, v28, v28 row_ror:{rot} row_mask:0xf bank_mask:0xf")
        k.nop(2)
    e(f"v_mul_f32 v28, {hex(f32bits(-1.4426950408889634))}, v28")
    e("v_exp_f32 v28, v28")
    k.nop(1)
    e("v_add_f32 v28, 1.0, v28")
    e("v_rcp_f32 v28, v28")
    k.nop(1)
    th = k.vmem(f"buffer_store_dword v28, v11, {WS}, 0 offen sc1")
    k.stamp(1)

    th = zload()
    npre = 2

    def h_arrive():
        k.stamp(2)
        e("s_lshr_b32 s12, s8, 2")
        e("s_lshl_b32 s12, s12, 11")
        e(f"s_add_u32 s12, s12, {CNT + 96*256}")
        k.arrive(WS, "s12", 8)
    if QFAST and QF == 1:
        run_all(k, qdma(1))
    if not QFAST:
        q0 = opt.get("q_pre", 0)
        for c in range(q0):
            run_all(k, qdma(c))
        k.wait_vm(th)
        zcheck()
        e("s_barrier")
        h_arrive()
        for c in range(q0, 2):
            run_all(k, qdma(c))

    ACC = 160
    FR = [96, 112]

    def qreads(t):
        c, kk = t // 2, t % 2
        slot = c % 3
        hi = slot >= 2
        so = (slot % 2) * 32768
        out = []
        xa = 18 + kk + (2 if hi else 0)
        for i in range(4):
            out.append(f"ds_read_b128 {A(16*t+4*i,4)}, v{xa} offset:{so + i*2048}")
        for sec in range(2):
            for hh in range(2):
                wa = 22 + hh + (2 if hi else 0)
                r = FR[t % 2] + (sec*2 + hh)*4
                o = so + sec*8192 + kk*4096
                out.append(f"ds_read_b64_tr_b16 {V(r,2)}, v{wa} offset:{o}")
                out.append(f"ds_read_b64_tr_b16 {V(r+2,2)}, v{wa} offset:{o+512}")
        return out

    pfl = []
    for r0 in (([0, 96] if PP8 else [0, 128, 224])[:opt.get("pf", 1)]):
        pfl.append([lambda r0=r0: (e(f"s_mov_b32 s101, {r0*4096}"), k.vmem(f"buffer_load_dword v157, v154, {W2}, s101 offen{' nt' if opt.get('pf_nt', 0) else ''}"))])
    PFA, PFB_ = opt.get("pf_a", 2), opt.get("pf_b", 1)

    k.wait_vm(ct[0])
    e("s_barrier")
    k.stamp(3)
    run_all(k, qreads(0))
    k.lgkm0()
    pend = qdma(2) if not (QFAST and QF == 3) else []
    QPER = opt.get("q_per", 7)
    consts = [f"s_mov_b32 s92, {hex(LOG2E)}", f"s_mov_b32 s93, {hex(LOG2E)}", f"s_mov_b32 s94, {hex(f32bits(1e-6))}",
              f"s_mov_b32 s95, {hex(f32bits(1e-6))}", "v_mov_b32 v26, s85", "v_mov_b32 v27, s85", "v_mov_b32 v28, s85",
              "v_mov_b32 v29, s85",
              "s_lshl_b32 s12, s3, 11", "s_add_u32 s12, s12, 65536", "v_add_u32 v6, s12, v4", "v_xor_b32 v7, 4096, v6",
              "s_lshl_b32 s15, s9, 2", "s_lshl_b32 s12, s97, 1", "s_add_u32 s15, s15, s12", "s_add_u32 s15, s15, s96",
              "s_lshl_b32 s13, s15, 10", f"s_add_u32 s13, s13, {KVP}", "s_lshl_b32 s12, s15, 6", f"s_add_u32 s12, s12, {ZP}",
              "v_lshlrev_b32 v10, 2, v1", "v_lshlrev_b32 v8, 4, v3", "v_lshl_add_u32 v8, v2, 2, v8",
              "v_cmp_gt_u32 vcc, 4, v2", "v_mov_b32 v9, 0x7ffffff0", "s_nop 0", "v_cndmask_b32 v8, v9, v8, vcc",
              "s_nop 0"]
    for t in range(16):
        qp = dict(zip((0, 1, 2, 3, 4, 5, 6, 8, 10, 12, 14), (1, 2, 3, 4, 5, 6, 7, 8, 0, 9, 10)))
        if t in qp:
            k.stamp(qp[t], True)
        head = []
        if t % 2 == 1 and t + 1 < 16:
            c = (t + 1) // 2
            assert c in ctd, (t, c)
            head = [lambda c=c: k.wait_vm(ct[c]), "s_barrier"]
            if QFAST and c == QF:
                head = [lambda c=c: (k.wait_vm(ct[c]), zcheck()), "s_barrier", h_arrive]
            if c + 2 < 8:
                pend = pend + qdma(c + 2)
            if c == 6:
                for cq in range(8):
                    pend = pend + wqdma(cq)
        nv = len(pend) if t == 15 else (13 if t == 0 else QPER if t < 11 else 8)
        vm = pend[:nv]
        pend = pend[len(vm):]
        if t == 10:
            vm = vm + ["v_mov_b32 v158, 128", lambda: zload("v158", "v159")]
        if t == 15:
            vm = vm + sum(pfl[:PFA], []) + consts
        reads = qreads(t + 1) if t + 1 < 16 else []
        mfmas = []
        for sec in range(2):
            for hh in range(2):
                for i in range(4):
                    d = ACC + 32 + sec*32 + (hh*4 + i)*4
                    cc = "0" if t == 0 else V(d, 4)
                    mfmas.append((None, mf(V(d, 4), A(16*t + 4*i, 4), V(FR[t % 2] + (sec*2 + hh)*4, 4), cc)))
        interleave(k, mfmas, head + mix(reads, vm), tail=3)
        if reads:
            k.lgkm0()
    k.stamp(4)
    k.stamp(11, True)

    def phi(src, dst):
        for j in range(16):
            e(f"v_pk_mul_f32 {V(64+2*j,2)}, {V(src+2*j,2)}, s[92:93]")
        for j in range(32):
            e(f"v_exp_f32 v{64+j}, v{64+j} clamp")
            e(f"v_max_f32 v{src+j}, 0, v{src+j}")
        for j in range(16):
            e(f"v_pk_add_f32 {V(64+2*j,2)}, {V(64+2*j,2)}, s[94:95]")
        for j in range(16):
            e(f"v_pk_add_f32 {V(64+2*j,2)}, {V(64+2*j,2)}, {V(src+2*j,2)}")
        for j in range(16):
            e(f"v_cvt_pk_bf16_f32 v{dst+j}, v{64+2*j}, v{65+2*j}")
    PK, PV, PQ = 96, 112, 128
    phi(ACC + 32, PK)
    for j in range(16):
        e(f"v_cvt_pk_bf16_f32 v{PV+j}, v{ACC+64+2*j}, v{ACC+65+2*j}")
    e("v_cmp_eq_u32 s[88:89], 1, v2")
    e("v_cmp_eq_u32 s[90:91], 2, v2")
    for hh in range(2):
        for p in range(2):
            a_ = V(PK + hh*8 + p*4, 4)
            b_ = V(PV + hh*8 + p*4, 4)
            e(mf(V(32+8*hh, 4), a_, b_, "0" if p == 0 else V(32+8*hh, 4)))
            e(mf(V(36+8*hh, 4), a_, "v[26:29]", "0" if p == 0 else V(36+8*hh, 4)))
    k.nop(4)
    e("ds_write_b128 v6, v[32:35]")
    e("ds_write_b128 v6, v[36:39] offset:1024")
    k.wait_vm(ct["q"])
    zcheck("v158", "v159")
    e("v_cmp_eq_u32 vcc, 3, v2")
    k.lgkm0()
    e("s_barrier")
    e("ds_read_b128 v[32:35], v7")
    e("ds_read_b128 v[36:39], v7 offset:1024")

    def qq_reads(w_):
        out = []
        for kk in range(2):
            for hh in range(2):
                r = 64 + (w_ % 2)*16 + (kk*2 + hh)*4
                o = w_*8192 + kk*4096
                out.append(f"ds_read_b64_tr_b16 {V(r,2)}, v{14+hh} offset:{o}")
                out.append(f"ds_read_b64_tr_b16 {V(r+2,2)}, v{14+hh} offset:{o+512}")
        return out
    run_all(k, qq_reads(0))
    e("s_waitcnt lgkmcnt(8)") if not opt.get("diag") else k.lgkm0()
    for j in range(4):
        e(f"v_pk_add_f32 {V(32+2*j,2)}, {V(32+2*j,2)}, {V(40+2*j,2)}")
    for r in range(4):
        k.vmem(f"buffer_atomic_add_f32 v{32+r}, v10, {WS}, s13 offen offset:{256*r}")
    e("v_cndmask_b32 v36, v36, v37, s[88:89]")
    e("v_cndmask_b32 v36, v36, v38, s[90:91]")
    e("v_cndmask_b32 v36, v36, v39, vcc")
    tat = k.vmem(f"buffer_atomic_add_f32 v36, v8, {WS}, s12 offen")
    e(f"s_lshl_b32 s90, s9, 10")
    e(f"s_add_u32 s90, s90, {CNT}")
    e("s_lshl_b32 s13, s4, 8")
    e("s_add_u32 s13, s13, s90")
    e("v_mov_b32 v8, s13")
    k.lgkm0()
    ps = p3_setup(True)
    KAW = opt.get("kv_aw", 2)
    e1t = {}
    e1_all = p3_e1(e1t)
    QW = 6 * opt.get("q_w", 2)
    qw = e1_all[:QW]
    kvt = {}
    for w_ in range(8):
        mfmas = []
        for kk in range(2):
            for hh in range(2):
                for i in range(4):
                    d = ACC + (hh*4 + i)*4
                    t = 2*w_ + kk
                    mfmas.append((None, mf(V(d, 4), V(64 + (w_ % 2)*16 + (kk*2 + hh)*4, 4), A(16*t + 4*i, 4), "0" if t == 0 else V(d, 4))))
        head = []
        if w_ == KAW:
            head = [lambda: k.wait_vm(tat), "s_barrier", lambda: (k.arrive(WS, "s90", 4), k.stamp(5))] + (sum(pfl[PFA:PFA+PFB_], []) if not opt.get("pf_late", 0) else [])
        n_ = -(-len(ps) // (8 - w_))
        fl_ = ps[:n_]
        ps = ps[n_:]
        if w_ >= opt.get("q_ws", KAW):
            n_ = -(-len(qw) // max(1, opt.get("q_we", 8) - w_))
            fl_ = mix(fl_, qw[:n_])
            qw = qw[n_:]
        if w_ == 7:
            fl_ = fl_ + [lambda: kvt.__setitem__(0, k.vmem(f"buffer_load_dword v31, v8, {WS}, 0 offen sc1"))]
        interleave(k, mfmas, head + mix(qq_reads(w_ + 1) if w_ < 7 else [], fl_), tail=3)
        k.lgkm0()
    e("s_barrier")
    k.nop(6)
    qpre = wo_dma() + e1_all[QW:]
    mark = len(k.l)
    phi(ACC, PQ)
    ph = [x.strip() for x in k.l[mark:]]
    del k.l[mark:]
    cut = opt.get("q_cut", 48)
    run_all(k, ph[:cut])
    e("s_and_b32 s15, s15, 30")
    e("s_lshl_b32 s13, s15, 10")
    e(f"s_add_u32 s13, s13, {KVP}")
    e("s_lshl_b32 s12, s15, 6")
    e(f"s_add_u32 s12, s12, {ZP}")
    e("v_lshlrev_b32 v9, 4, v3")
    if not opt.get("nowait"):
        k.wait_vm(kvt[0])
        dn = k.newlab("L_kf")
        e("v_cmp_gt_u32 vcc, 16, v31")
        e(f"s_cbranch_vccz {dn}")
        k.poll("v8", WS, 16)
        k.label(dn)
    k.stamp(6)
    k.stamp(1, 3)
    for hh in range(2):
        k.vmem(f"buffer_load_dwordx4 {V(196+8*hh,4)}, v9, {WS}, s12 offen offset:{64*hh} sc1")
        for r in range(4):
            tkv = k.vmem(f"buffer_load_dword v{192+8*hh+r}, v10, {WS}, s13 offen offset:{1024*hh+256*r} sc1")
    if opt.get("pf_late", 0):
        run_all(k, sum(pfl[PFA:PFA+PFB_], []))
    n1 = 8 * opt.get("q_n1", 2)
    run_all(k, mix(ph[cut:], qpre[:n1]))
    e("s_lshl_b32 s15, s8, 3")
    e("s_lshl_b32 s12, s96, 2")
    e("s_add_u32 s15, s15, s12")
    e("s_lshl_b32 s15, s15, 4")
    e("s_lshl_b32 s12, s9, 1")
    e("s_add_u32 s15, s15, s12")
    e("s_add_u32 s15, s15, s97")
    e("s_lshl_b32 s15, s15, 10")
    e(f"s_add_u32 s15, s15, {OF}")
    k.wait_vm(tkv)
    k.stamp(2, 3)
    for q_ in range(8):
        e(f"v_cvt_pk_bf16_f32 v{40+q_}, v{192+2*q_}, v{193+2*q_}")
    k.nop(2)
    for hh in range(2):
        for i in range(4):
            q_ = V(PQ + (hh*4+i)*2, 2)
            e(f"v_mfma_f32_16x16x16_bf16 {V(192+(hh*4+i)*4,4)}, {V(42+4*hh,2)}, {q_}, 0")
    for hh in range(2):
        for i in range(4):
            q_ = V(PQ + (hh*4+i)*2, 2)
            e(f"v_mfma_f32_16x16x16_bf16 {V(160+(hh*4+i)*4,4)}, {V(40+4*hh,2)}, {q_}, 0")
    k.nop(1)
    for n_ in range(8):
        e(f"v_add_f32 v{192+4*n_}, s94, v{192+4*n_}")
    for n_ in range(8):
        e(f"v_rcp_f32 v{192+4*n_}, v{192+4*n_}")
    for n_ in range(8):
        e(f"v_pk_mul_f32 {V(160+4*n_,2)}, {V(160+4*n_,2)}, {V(192+4*n_,2)} op_sel_hi:[1,0]")
        e(f"v_pk_mul_f32 {V(162+4*n_,2)}, {V(162+4*n_,2)}, {V(192+4*n_,2)} op_sel_hi:[1,0]")
    for i in range(4):
        for hh in range(2):
            s_ = 160 + (hh*4+i)*4
            e(f"v_cvt_pk_bf16_f32 v{64+4*i+2*hh}, v{s_}, v{s_+1}")
            e(f"v_cvt_pk_bf16_f32 v{65+4*i+2*hh}, v{s_+2}, v{s_+3}")
        e(f"s_add_u32 s12, s15, {i*16384}")
        tos = k.vmem(f"buffer_store_dwordx4 {V(64+4*i,4)}, v4, {WS}, s12 offen sc1")
    k.stamp(3, 3)
    n2 = n1 + 8 * opt.get("q_n2", 2)
    assert n2 <= 32
    run_all(k, qpre[n1:n2])
    k.wait_vm(tos)
    e("s_barrier")
    e("s_lshl_b32 s12, s8, 9")
    e(f"s_add_u32 s12, s12, {CNT + 32*256}")
    k.arrive(WS, "s12", 2)
    k.stamp(7)
    k.stamp(4, 3)
    run_all(k, sum(pfl[PFA+PFB_:], []))
    run_all(k, qpre[n2:])
    e("v_mov_b32 v29, 0")
    e("s_branch L_p3")

    k.label("L_urole")
    k.c("================= U role =================")
    k.vm = 0
    assert HS == 65536 and HQ == 0
    KX = opt.get("kx", 1)
    if KX:
        e("s_and_b32 s9, s6, 3")
        e("s_lshl_b32 s9, s9, 1")
        e("s_add_u32 s9, s9, s5")
    e("s_and_b32 s97, s9, 1")
    e("s_lshl_b32 s97, s97, 2")
    e("s_add_u32 s97, s97, s3")
    e("v_lshrrev_b32 v12, 2, v1")
    e("v_and_b32 v13, 3, v1")
    e(f"s_mul_i32 s13, s97, {256*2752}")
    e("s_mul_i32 s12, s8, 192")
    e("s_add_u32 s13, s13, s12")
    for j in range(3):
        e(f"v_add_u32 v14, {16*j}, v12")
        e("v_mul_u32_u24 v15, 43, v14")
        e("v_lshrrev_b32 v15, 7, v15")
        e("v_mul_u32_u24 v16, 3, v15")
        e("v_sub_u32 v14, v14, v16")
        e("v_lshrrev_b32 v16, 2, v15")
        e("v_and_b32 v16, 2, v16")
        e("v_xor_b32 v16, v16, v13")
        e("v_lshlrev_b32 v16, 4, v16")
        e("v_lshl_add_u32 v16, v14, 6, v16")
        e("v_mul_u32_u24 v15, 2752, v15")
        e(f"v_add3_u32 v{6+j}, v15, v16, s13")
        if j:
            e(f"v_subrev_u32 v{6+j}, {j*1024}, v{6+j}")
        e(f"v_add_u32 v{9+j}, {16*2752}, v{6+j}")
    if KX:
        e("s_and_b32 s90, s6, 3")
    else:
        e("s_and_b32 s90, s9, 2")
        e("s_add_u32 s90, s90, s5")
    e(f"s_mul_i32 s88, s90, {64*2752}")
    e("s_waitcnt lgkmcnt(0)")
    srd(W1)
    e("s_cmp_eq_u32 s8, 15")
    e("s_cbranch_scc1 L_spare")
    UL, UFB = 6, 7
    RB = 22528

    def u_wdma(t, toks):
        out = []
        for j in range(6):
            if j % 3 == 0:
                out.append(f"s_add_u32 m0, s7, {(t % UL)*6144 + j*1024}")
            out.append(dmai(f"v{6+j}", W1, "s88", (j % 3)*1024, toks, t, "nt" if t < opt.get("u_nt", 0) else ""))
        if t % 2 == 0:
            out.append(f"s_add_u32 s88, s88, {32*2752}")
        elif t < 7:
            out += [f"s_xor_b32 s88, s90, {(t+1)//2}", f"s_mul_i32 s88, s88, {64*2752}"]
        return out

    def u_wread(t):
        out = []
        for fb in range(6):
            r = 64 + t*24 + fb*4
            o = (t % UL)*6144 + (fb >> 1)*64
            out.append(f"ds_read_b64_tr_b16 {A(r,2)}, v{16+(fb&1)} offset:{o}")
            out.append(f"ds_read_b64_tr_b16 {A(r+2,2)}, v{16+(fb&1)} offset:{o+768}")
        return out

    def u_fload(t, b, toks):
        def f():
            toks[(t, b)] = k.vmem(f"buffer_load_dwordx4 {V(32+(t%UFB)*16+4*b,4)}, v{12+b}, {WS}, s{92+(t%8)//2} offen offset:{(t%2)*1024} sc1")
        out = [f]
        if t == 7 and b == 3:
            out += [f"s_xor_b32 s{92+q}, s{92+q}, {4*HS}" for q in range(4)]
        return out

    def uacc(ps_, b, j):
        n_ = b*6 + j
        if b == 3:
            return V(152 + 24*ps_ + j*4, 4)
        return A(n_*4, 4) if n_ < 16 else V(144 + (n_-16)*4, 4)

    def u_mm(t, b, j):
        d = uacc(t // 8, b, j)
        first = t % 8 == 0 and not (t == 8 and b == 3)
        return mf(d, A(64 + (t % 8)*24 + j*4, 4), V(32+(t % UFB)*16+4*b, 4), "0" if first else d)

    su = SK(k, 8, UL, 8, UFB, 6, u_wdma, u_wread, u_fload, u_mm)
    TWA = opt.get("tw_after", 1)
    su.issue_w(TWA)
    touch_w1()
    su.issue_w(2)
    srd(B1)
    e("s_mul_i32 s12, s8, 192")
    e("v_lshlrev_b32 v30, 3, v3")
    for j in range(6):
        k.vmem(f"buffer_load_dwordx2 {V(208+2*j,2)}, v30, {B1}, s12 offen offset:{32*j}")
    for n_ in (WS, DBG, WO, W2, B2, OUT):
        srd(n_)
    diag_clear()
    e("v_lshrrev_b32 v16, 2, v2")
    e("v_lshl_add_u32 v16, v3, 3, v16")
    e("v_mul_u32_u24 v16, 192, v16")
    e("v_and_b32 v12, 3, v2")
    e("v_lshl_add_u32 v16, v12, 3, v16")
    e("v_add_u32 v16, s7, v16")
    e("v_and_b32 v12, 1, v3")
    e("v_lshlrev_b32 v12, 5, v12")
    e("v_xor_b32 v13, 32, v12")
    e("v_add_u32 v17, v16, v13")
    e("v_add_u32 v16, v16, v12")
    e("s_and_b32 s13, s9, 6")
    e(f"s_mul_i32 s13, s13, {4*HS}")
    e("s_lshl_b32 s12, s97, 13")
    e("s_add_u32 s13, s13, s12")
    if HF:
        e(f"s_add_u32 s13, s13, {HF}")
    for b in range(4):
        e(f"s_add_u32 s12, s3, {3-b}")
        e("s_and_b32 s12, s12, 3")
        e(f"s_mul_i32 s12, s12, {HS}")
        e("s_add_u32 s12, s12, s13")
        e(f"v_add_u32 v{12+b}, s12, v4")
    e("s_and_b32 s12, s9, 1")
    e("s_xor_b32 s12, s12, 1")
    e("s_lshl_b32 s12, s12, 18")
    for q in range(4):
        e(f"s_xor_b32 s{92+q}, s90, {q}")
        e(f"s_lshl_b32 s{92+q}, s{92+q}, 11")
        e(f"s_add_u32 s{92+q}, s{92+q}, s12")
    run_all(k, p3_setup(False))
    RB = 40960 - 6144
    e(f"s_add_u32 s12, s7, {RB}")
    e("v_add_u32 v26, s12, v4")
    e("s_add_u32 s12, s3, 3")
    e("s_and_b32 s12, s12, 3")
    e("s_mul_i32 s12, s12, 40960")
    e(f"s_add_u32 s12, s12, {RB}")
    e("v_add_u32 v27, s12, v4")
    e("s_and_b32 s12, s2, 7")
    e("s_lshr_b32 s13, s97, 1")
    e("s_lshl_b32 s13, s13, 3")
    e("s_add_u32 s12, s12, s13")
    e("s_lshl_b32 s12, s12, 8")
    e(f"s_add_u32 s12, s12, {CNT + 96*256}")
    e("v_mov_b32 v18, s12")
    for snd in range(2):
        e("s_lshl_b32 s12, s8, 3")
        e("s_add_u32 s12, s12, s9")
        if snd:
            e("s_xor_b32 s12, s12, 1")
        e("s_lshl_b32 s13, s12, 8")
        e("s_lshl_b32 s14, s3, 6")
        e("s_add_u32 s13, s13, s14")
        e(f"s_add_u32 s13, s13, {CNT + 256*256}")
        e(f"v_mov_b32 {'v21' if snd else 'v235'}, s13")
        e("s_lshl_b32 s12, s12, 2")
        e("s_add_u32 s12, s12, s3")
        e("s_mul_i32 s12, s12, 6144")
        e(f"s_add_u32 s12, s12, {UX}")
        e(f"v_add_u32 {'v20' if snd else 'v234'}, s12, v4")
    c0 = -2.0 * 0.7978845608028654 * 1.4426950408889634
    c1 = c0 * 0.044715
    e("s_lshl_b32 s15, s9, 2")
    e("s_add_u32 s15, s15, s3")
    e("s_mul_i32 s15, s15, 43")
    e("s_mul_i32 s13, s8, 3")
    e("s_add_u32 s15, s15, s13")
    e("s_lshl_b32 s15, s15, 10")
    e(f"s_add_u32 s15, s15, {GUF}")
    e("s_cmp_eq_u32 s8, 14")
    e("s_cselect_b32 s13, 0x7ff00000, 0")
    e("v_or_b32 v19, s13, v4")
    UB = opt.get("u_bar", 3)

    def front_pf():
        n_ = opt.get("u_fpf", 0)
        if not n_:
            return
        run_all(k, ["v_lshrrev_b32 v116, 3, v1", "v_and_b32 v117, 7, v1", "v_lshlrev_b32 v116, 12, v116",
                    "v_lshl_add_u32 v116, v117, 7, v116",
                    f"s_mul_i32 s13, s3, {352*4096}", "s_and_b32 s14, s6, 15", "s_lshl_b32 s14, s14, 15", "s_add_u32 s13, s13, s14",
                    "s_lshl_b32 s14, s4, 10", "s_add_u32 s13, s13, s14", "v_add_u32 v116, s13, v116"])
        for r0 in [192, 64][:n_] if n_ < 3 else [224, 96, 0]:
            e(f"s_mov_b32 s13, {r0*4096}")
            k.vmem(f"buffer_load_dword v157, v116, {W2}, s13 offen")
    if opt.get("u_fpos", 0) == 0:
        front_pf()
    if UB & 1:
        e("s_barrier")
    if UB & 8:
        k.wait_vm(su.wt[0])
    if UB & 16:
        k.wait_vm(su.wt[1])
    su.issue_w(4)
    tz_ = zload()
    if UB & 2:
        e("s_barrier")
    su.issue_w(UL)
    if UB & 4:
        e("s_barrier")
    k.stamp(5)
    su.to_regs(2, opt.get("u_hold", 1))
    k.wait_vm(tz_)
    zcheck()
    k.stamp(1)
    k.poll2("v18", WS, 32, lambda: (su.issue_w(8 - opt.get("u_keep", 0)), su.to_regs(opt.get("u_r", 5), 9)))
    k.stamp(2)
    k.stamp(1, True)
    ULA = opt.get("u_la", 16)
    ft = {}

    def fl3(i):
        blk, t = i // 8, i % 8

        def f():
            ft[i] = k.vmem(f"buffer_load_dwordx4 {V(32+(blk%4)*32+4*t,4)}, v{12+blk%4}, {WS}, s{92+t//2} offen offset:{(t%2)*1024} sc1")
        out = [f]
        if i == 31:
            out += [f"s_xor_b32 s{92+q}, s{92+q}, {4*HS}" for q in range(4)]
        return out
    for i in range(8):
        run_all(k, fl3(i))
    su.issue_w(8)
    UL0 = opt.get("u_l0", ULA)
    for i in range(8, UL0):
        run_all(k, fl3(i))
    su.to_regs(8, 9)
    fi = UL0
    UX2 = opt.get("u_x2", 0)
    uet = {}
    uwo = {}
    pe_all = wo_dma(uwo) + p3_e1(uet)
    if UX2 == 1:
        pe_all = p3_e1(uet)[:24] + wo_dma(uwo) + p3_e1(uet)[24:]
    y69 = sum((p_wdma(t, {}) for t in range(6, 10)), [])
    YR, YD, YDN = opt.get("u_yr", 11), opt.get("u_yd", 13), opt.get("u_ydn", 3)
    cuts = [0, 8, 16, 24, 32, 38, 44, 50, 56]
    UE1 = opt.get("u_e1", 6)
    pe = pe_all[:cuts[UE1]]
    UPW, UPN = opt.get("u_pw", 6 if UX2 else 8), opt.get("u_pn", 7 if UX2 else 8)
    XF, XC = opt.get("u_xf", 12), opt.get("u_xc", 14)
    xt = {}
    tx_ = {}

    def xcheck():
        k.wait_vm(xt[1])
        if not opt.get("nowait"):
            dn = k.newlab("L_xf")
            e("v_cmp_gt_u32 vcc, 1, v31")
            e(f"s_cbranch_vccz {dn}")
            k.poll("v235", WS, 1)
            k.label(dn)

    def xl(j):
        return lambda: tx_.__setitem__(j, k.vmem(f"buffer_load_dwordx4 {V(160+4*j,4)}, v234, {WS}, {'0' if j < 4 else 's84'} offen offset:{(j%4)*1024} sc1"))

    def xs(j):
        return lambda: xt.__setitem__(0, k.vmem(f"buffer_store_dwordx4 {V(184+4*j,4)}, v20, {WS}, {'0' if j < 4 else 's84'} offen offset:{(j%4)*1024} sc1"))
    uprof = dict(zip((0, 1, 2, 3, 4, 6, 8, 10, 12, 14), (2, 3, 4, 5, 6, 7, 8, 0, 9, 10)))
    for n in range(16):
        if n in uprof:
            k.stamp(uprof[n], True)
        blk, hf = n // 2, n % 2
        stg = blk % 4
        buf = 160 + (n % 4)*12
        WP0 = [int(x) for x in str(opt.get("u_wp", "2,5,9")).split(",")]
        ringn = n >= 1 and ((n - 1) // 2) % 4 < 3
        mfmas = []
        for j in range(3):
            for t in range(8):
                d = V(buf + 4*j, 4)
                pre = None
                if j == 0 and hf == 0:
                    pre = (lambda i=blk*8+t: k.wait_vm(ft[i]))
                if j == 1 and t == 0 and opt.get("u_lw", 1) and stg > 0:
                    pre = (lambda: e(f"s_waitcnt lgkmcnt({sum(1 for x in WP0 if x < 8) if ringn else 0})"))
                mfmas.append((pre, mf(d, A(64 + t*24 + (3*hf + j)*4, 4), V(32+(blk % 4)*32+4*t, 4), "0" if (t == 0 and n < 2) else d)))
        fl_ = []
        for _ in range(min(8, 4*n + 4 + ULA - fi)):
            if fi < 64:
                assert fi // 8 - 4 < blk, (n, fi)
                fl_ += fl3(fi)
                fi += 1
        at = {}
        pn = n - 1
        W0, B0 = opt.get("u_w0", 5), opt.get("u_b0", 16)
        WP = [int(x) for x in str(opt.get("u_wp", "2,5,9")).split(",")]
        RS = opt.get("u_rs", 2)
        ring = pn >= 0 and (pn // 2) % 4 < 3
        if ring:
            pb = 160 + (pn % 4)*12
            nb = 160 + ((n + 1) % 4)*12
            for j in range(3):
                at[WP[j]] = [f"ds_write_b128 v26, {V(pb+4*j,4)} offset:{(pn%2)*3072 + j*1024}"]
                at[B0 + 1 + RS*j] = [f"ds_read_b128 {V(nb+4*j,4)}, v27 offset:{(pn%2)*3072 + j*1024}"]
            at[B0] = [k.lgkm0, "s_barrier"]
        if pn in (6, 7):
            for j in range(3):
                at[8 + 5*j] = [xs(3*(pn-6) + j)]
        if n in (6, 7):
            h2 = n - 6
            for j in range(3):
                r, q = 160 + h2*12 + 4*j, 208 + 2*(3*h2 + j)
                fl_ += [f"v_lshlrev_b32 v{r}, 16, v{q}", f"v_and_b32 v{r+1}, 0xffff0000, v{q}",
                        f"v_lshlrev_b32 v{r+2}, 16, v{q+1}", f"v_and_b32 v{r+3}, 0xffff0000, v{q+1}"]
        if n == 3:
            fl_ += ["v_mov_b32 v5, 128", lambda: zload()]
        if n == XF:
            fl_ = [lambda: (k.wait_vm(xt[0]), zcheck()), lambda: k.vmem(f"buffer_store_dword v5, v21, {WS}, 0 offen sc1")] + fl_
        if UPW <= n < UPW + UPN:
            n3 = -(-len(pe) // UPN)
            fl_ += pe[(n-UPW)*n3:(n-UPW+1)*n3]
        yrd = UX2 and YR <= n < YR + 2
        if yrd:
            for t in (2*(n-YR), 2*(n-YR)+1):
                fl_ = mix(fl_, [lambda t=t: k.wait_vm(uet[t])] + p_wread(t))
        if UX2 and YD <= n:
            assert n >= UPW + UPN and n >= YR + 2
            n3 = 6*opt.get("u_ydk", 4) // (16 - YD)
            fl_ += y69[:n3]
            y69 = y69[n3:]
        if n == XC:
            fl_ = [lambda: xt.__setitem__(1, k.vmem(f"buffer_load_dword v31, v235, {WS}, 0 offen sc1"))] + fl_
        if n == 15:
            fl_ = [xcheck] + [xl(j) for j in range(6)] + fl_
            fl_ += [f"s_mov_b32 s92, {hex(f32bits(c1))}", f"s_mov_b32 s93, {hex(f32bits(c1))}",
                    f"v_mov_b32 v20, {hex(f32bits(c0))}", f"v_mov_b32 v21, {hex(f32bits(c0))}"]
        interleave(k, mfmas, fl_, tail=1, at=at)
        if yrd or (ring and not opt.get("u_lw", 1)):
            k.lgkm0()
        elif ring:
            e("s_waitcnt lgkmcnt(2)")
    k.stamp(11, True)
    k.stamp(3)
    tst = {}
    for p in range(3):
        R_ = range(4*p, 4*p+4)
        k.wait_vm(tx_[2*p+1])
        va = []
        va += [f"v_pk_add_f32 {V(32+2*r,2)}, {V(184+2*r,2)}, {V(160+2*r,2)}" for r in R_]
        va += [f"v_pk_mul_f32 {V(56+2*r,2)}, {V(32+2*r,2)}, {V(32+2*r,2)}" for r in R_]
        va += [f"v_pk_fma_f32 {V(56+2*r,2)}, {V(56+2*r,2)}, s[92:93], v[20:21]" for r in R_]
        va += [f"v_pk_mul_f32 {V(56+2*r,2)}, {V(56+2*r,2)}, {V(32+2*r,2)}" for r in R_]
        va += [f"v_exp_f32 v{56+r}, v{56+r}" for r in range(8*p, 8*p+8)]
        va += [f"v_add_f32 v{56+r}, 1.0, v{56+r}" for r in range(8*p, 8*p+8)]
        va += [f"v_rcp_f32 v{56+r}, v{56+r}" for r in range(8*p, 8*p+8)]
        va += [f"v_pk_mul_f32 {V(32+2*r,2)}, {V(32+2*r,2)}, {V(56+2*r,2)}" for r in R_]
        va += [f"v_cvt_pk_bf16_f32 v{96+4*p+q}, v{32+8*p+2*q}, v{33+8*p+2*q}" for q in range(4)]
        run_all(k, va)
        tst[p] = k.vmem(f"buffer_store_dwordx4 {V(96+4*p,4)}, {'v4' if p == 0 else 'v19'}, {WS}, s15 offen offset:{p*1024} sc1")
    k.stamp(4)
    ncut = cuts[min(8, UE1 + opt.get("u_e2", 2))]
    tof = k.vmem(f"buffer_load_dword v29, v240, {WS}, 0 offen sc1")
    run_all(k, pe_all[len(pe):ncut])
    if UX2:
        assert UE1 == 8
        run_all(k, wo_reads())
        run_all(k, y69)
    e(f"s_lshl_b32 s12, s9, {11 if PP8 else 10}")
    e(f"s_add_u32 s12, s12, {CNT + (128 if PP8 else 64)*256}")
    k.wait_vm(tst[2])
    e("s_barrier")
    k.arrive(WS, "s12", 8 if PP8 else 4)
    k.stamp(7)
    run_all(k, pe_all[ncut:])
    k.wait_vm(tof)
    e("s_branch L_p3b" if UX2 else "s_branch L_p3")

    k.label("L_spare")
    for n_ in (WS, DBG):
        srd(n_)
    touch_w1()
    for n_ in (WO, W2, B2, OUT):
        srd(n_)
    diag_clear()
    run_all(k, p3_setup(False))
    if opt.get("spf", 1):
        e("v_lshlrev_b32 v30, 7, v1")
        e("s_lshl_b32 s12, s9, 2")
        e("s_add_u32 s12, s12, s3")
        if opt.get("pfx", 4) >= 3:
            e("v_lshrrev_b32 v28, 3, v1")
            e("v_mul_u32_u24 v28, 3072, v28")
            e("v_and_b32 v29, 7, v1")
            e("v_lshl_add_u32 v28, v29, 7, v28")
            e(f"s_mul_i32 s13, s12, {16*3072}")
            e(f"buffer_load_dword v31, v28, {WQKV}, s13 offen")
            e(f"s_add_u32 s13, s13, {8*3072}")
            e(f"buffer_load_dword v31, v28, {WQKV}, s13 offen")
        e("s_lshl_b32 s12, s12, 14")
        e(f"buffer_load_dword v31, v30, {WO}, s12 offen")
        e("s_add_u32 s12, s12, 8192")
        e(f"buffer_load_dword v31, v30, {WO}, s12 offen")
        e(f"s_mul_i32 s12, s3, {352*4096}")
        e("s_lshl_b32 s13, s9, 13")
        e("s_add_u32 s12, s12, s13")
        e(f"s_add_u32 s12, s12, {(352 - 16*opt.get('spf_n', 5))*4096}")
        e("s_mov_b32 s14, 0")
        lp = k.newlab("L_spf")
        k.label(lp)
        e(f"buffer_load_dword v31, v30, {W2}, s12 offen")
        e("s_add_u32 s12, s12, 65536")
        e("s_add_u32 s14, s14, 1")
        e("s_waitcnt vmcnt(2)")
        e(f"s_cmp_lt_u32 s14, {opt.get('spf_n', 5)}")
        e(f"s_cbranch_scc1 {lp}")
        k.wait_vm0()
        k.stamp(6)
    e("v_mov_b32 v5, 128")
    k.poll("v5", DBG, 1)
    e(f"v_mov_b32 v30, {CNT}")
    k.poll("v30", WS, 16, sleep=32)
    run_all(k, wo_dma() + p3_e1())
    e("v_mov_b32 v29, 0")

    k.label("L_p3")
    k.c("================= P3 =================")

    def p_mm(t, b, j):
        d = V(YA + (b*4 + j)*4, 4)
        return mf(d, freg(t, b), A((t % PNWB)*16 + j*4, 4), d)

    k.vm = 16
    sp = SK(k, 11, PL, PNWB, PFB, 4, p_wdma, p_wread, p_fload, p_mm)
    QY = 6 - opt.get("q_w", 2)
    twos = k.vm + 4*(6 - QY)
    sp.assume_issued(PE, 4)
    k.wait_vm(twos)
    run_all(k, wo_reads())
    PRE = 4
    sp.to_regs(PRE)
    k.label("L_p3b")
    for t in range(4, 10):
        sp.wt[t] = k.vm
    if not opt.get("nowait"):
        dn = k.newlab("L_of")
        e("v_cmp_gt_u32 vcc, 8, v29")
        e(f"s_cbranch_vccz {dn}")
        k.poll("v240", WS, 8)
        k.label(dn)
    k.stamp(8)
    aft = {}

    def afl(t, b):
        def f():
            aft[(t, b)] = k.vmem(f"buffer_load_dwordx4 {A(128+t*16+4*b,4)}, v{232+(b&1)}, {WS}, {'0' if b < 2 else 's91'} offen offset:{t*1024} sc1")
        return f
    ALA = opt.get("a_la", 12)
    al = [afl(t, b) for t in range(4) for b in range(4)]
    al += [lambda j=j: aft.__setitem__("g", k.vmem(f"buffer_load_dword v{32+2*j}, v242, {WS}, 0 offen offset:{64*j} sc1")) for j in range(4)]
    run_all(k, al[:ALA])
    al = al[ALA:]
    PR0 = max(PRE, opt.get("p_r0", 2))
    sp.to_regs(PR0, 9)
    k.lgkm0()
    for win in range(4):
        mfmas = []
        for b in range(4):
            for j in range(4):
                d = V(YA + (j*4 + b)*4, 4)
                pre = (lambda x=(win, b): k.wait_vm(aft[x])) if j == 0 else None
                mfmas.append((pre, mf(d, A(64+win*16+j*4, 4), A(128+win*16+4*b, 4), "0" if win == 0 else d)))
        fl_ = al[:4]
        al = al[4:]
        if sp.issued < min(10, sp.nread + PL):
            fl_ = fl_ + p_wdma(sp.issued, sp.wt)
            sp.issued += 1
        GWN = opt.get("p_gw", 0)
        if win == GWN:
            fl_ = fl_ + [lambda: aft.__setitem__("gu", k.vmem(f"buffer_load_dword v31, v241, {WS}, 0 offen sc1"))]
        if win == 2:
            assert sp.issued == 10 and not al
            if opt.get("nowait"):
                fl_ = fl_ + ["s_mov_b32 s90, 0"]
            else:
                fl_ = fl_ + [lambda: k.wait_vm(aft["gu"]), "v_cmp_gt_u32 vcc, 15, v31", "s_nop 0",
                             lambda: (e("s_cmp_eq_u64 vcc, 0"), e(f"s_cselect_b32 s90, 0, {hex(WS_BYTES)}"))]
        if win >= 2:
            fl_ = fl_ + sum((p_fload(win - 2, b, sp.ft, True) for b in range(4)), [])
        rd = []
        if sp.nread < 4:
            rd = [lambda u=sp.nread: k.wait_vm(sp.wt[u])] + p_wread(sp.nread)
            sp.nread += 1
        interleave(k, mfmas, mix(rd, fl_), tail=2)
        if rd:
            k.lgkm0()
    sc = [f"v_sub_f32 v{48+2*j}, 1.0, v{32+2*j}" for j in range(4)]
    sc += [f"v_max_f32 v{48+2*j}, {hex(f32bits(1e-30))}, v{48+2*j}" for j in range(4)]
    sc += [f"v_rcp_f32 v{56+j}, v{48+2*j}" for j in range(4)]
    sc += [f"v_lshlrev_b32 v{40+2*j}, 16, v{252+j}" for j in range(4)]
    sc += [f"v_mul_f32 v{32+2*j}, v{32+2*j}, v{56+j}" for j in range(4)]
    for b in range(4):
        for j in range(4):
            for h_ in range(2):
                r = YA + (b*4 + j)*4 + 2*h_
                if b < 3:
                    sc.append(f"v_pk_mul_f32 {V(r,2)}, {V(r,2)}, {V(32+2*j,2)} op_sel_hi:[1,0]")
                else:
                    sc.append(f"v_pk_fma_f32 {V(r,2)}, {V(r,2)}, {V(32+2*j,2)}, {V(40+2*j,2)} op_sel_hi:[1,0,0]")
    PLA = 12
    seq_y = [(t, b) for t in range(7) for b in range(4)] + [(t, b) for b in range(4) for t in range(7, 11)]
    k.wait_vm(aft["g"])
    k.stamp(0)
    run_all(k, mix(sum((p_fload(2, b, sp.ft, True) for b in range(4)), []), sc))
    if not opt.get("nowait"):
        jn = k.newlab("L_yj")
        e("s_cmp_eq_u32 s90, 0")
        e(f"s_cbranch_scc1 {jn}")
        vs = k.vm
        k.poll("v241", WS, 15)
        k.stamp(9)
        for i in range(PLA):
            run_all(k, p_fload(*seq_y[i], {}))
        k.vm = vs
        k.label(jn)
    k.nop(2)

    def comb(b):
        return [f"ds_write_b128 v244, {V(YA+(b*4+j)*4,4)} offset:{(b*4+j)*1024}" for j in range(4)]
    cadr = [lambda: (e("s_cmp_lt_u32 s6, 16"), e("s_cselect_b32 s12, 98304, 0")),
            "v_mul_u32_u24 v60, 144, v2", "v_lshl_add_u32 v60, v3, 3, v60", "s_lshl_b32 s13, s3, 5", "s_add_u32 s13, s13, s12",
            "v_add_u32 v60, s13, v60",
            "v_lshrrev_b32 v62, 3, v1", "v_and_b32 v63, 7, v1", "v_mul_u32_u24 v61, 144, v62", "v_lshl_add_u32 v61, v63, 4, v61",
            f"s_mul_i32 s13, s3, {16*144}", "s_add_u32 s13, s13, s12", "v_add_u32 v61, s13, v61",
            "v_lshlrev_b32 v62, 10, v62", "v_lshl_add_u32 v62, v63, 4, v62",
            "s_lshl_b32 s12, s10, 16", "s_lshl_b32 s13, s3, 14", "s_add_u32 s12, s12, s13", "s_lshl_b32 s13, s11, 7",
            "s_add_u32 s12, s12, s13", "v_add_u32 v62, s12, v62"]
    sp.run(seq_y, PLA, 0, lambda win: comb(win - 8) if win >= 8 else [], rmax=1, pre_issued=PLA,
           extra=lambda win: cadr[(win-7)*7:(win-6)*7] if (7 <= win < 10 and opt.get("co", 1)) else [],
           prof=(dict(zip(range(11), (1, 2, 3, 4, 5, 6, 7, 8, 0, 9, 10))) if opt.get("prof") == 2 else None))
    if opt.get("prof") == 2:
        k.stamp(11, True)
    k.stamp(10)
    k.lgkm0()
    e("s_barrier")
    for o in range(3):
        for j in range(4):
            e(f"ds_read_b128 {V(AA+16*o+4*j,4)}, v{245+o} offset:{j*1024}")
    for o in range(3):
        e(f"s_waitcnt lgkmcnt({8-4*o})") if not opt.get("diag") else k.lgkm0()
        for r in range(8):
            e(f"v_pk_add_f32 {V(YA+48+2*r,2)}, {V(YA+48+2*r,2)}, {V(AA+16*o+2*r,2)}")
    for r in range(8):
        e(f"v_pk_mul_f32 {V(YA+48+2*r,2)}, {V(YA+48+2*r,2)}, {V(48+2*(r//2),2)} op_sel_hi:[1,0]")
    for t in range(4):
        e(f"v_cvt_pk_bf16_f32 v{32+2*t}, v{YA+48+4*t}, v{YA+49+4*t}")
        e(f"v_cvt_pk_bf16_f32 v{33+2*t}, v{YA+50+4*t}, v{YA+51+4*t}")
        if opt.get("co", 1):
            e(f"ds_write_b64 v60, {V(32+2*t,2)} offset:{t*16*144}")
    if opt.get("co", 1):
        k.lgkm0()
        e("s_barrier")
        e("ds_read_b128 v[40:43], v61")
        e(f"ds_read_b128 v[44:47], v61 offset:{8*144}")
        e("s_waitcnt lgkmcnt(1)")
        e(f"buffer_store_dwordx4 v[40:43], v62, {OUT}, 0 offen {opt.get('oflags', 'sc1')}")
        k.lgkm0()
        e(f"buffer_store_dwordx4 v[44:47], v62, {OUT}, s85 offen {opt.get('oflags', 'sc1')}")
    else:
        k.nop(2)
        for p in range(2):
            e(f"v_permlane16_swap_b32 v{32+4*p}, v{34+4*p}")
            e(f"v_permlane16_swap_b32 v{33+4*p}, v{35+4*p}")
        k.nop(1)
        for p in range(2):
            e(f"buffer_store_dwordx4 {V(32+4*p,4)}, v{248+p}, {OUT}, s87 offen {opt.get('oflags', 'sc1')}")
    if opt.get("diag"):
        e("s_waitcnt vmcnt(0)")
        k.stamp(11)
        k.lgkm0()
        for i in range(12):
            e(f"v_mov_b32 v{32+i}, s{16+2*i}")
        e("v_mov_b32 v44, s98")
        e("s_getreg_b32 s12, hwreg(HW_REG_XCC_ID)")
        e("v_mov_b32 v45, s12")
        e("s_lshl_b32 s12, s2, 2")
        e("s_add_u32 s12, s12, s3")
        e("s_lshl_b32 s12, s12, 6")
        e(f"s_add_u32 s12, s12, {DIAG}")
        e("v_mov_b32 v30, 0")
        e("s_mov_b64 exec, 1")
        for i in range(4):
            e(f"buffer_store_dwordx4 {V(32+4*i,4)}, v30, {WS}, s12 offen offset:{16*i}")
    k.label("L_end")
    e("s_endpgm")
    return "\n".join(k.l)


HEADER = open("cdna_kernels/" + NAME + ".s.ref").read().split("; Override launch geometry")[0]


def gen_meas(opt):
    mj, mk = opt["meas"], opt.get("mk", 1)
    l = []
    a = l.append
    a("s_cmp_ge_u32 s2, 1")
    a("s_cbranch_scc1 M_end")
    a("s_memrealtime s[30:31]")
    a("s_load_dwordx2 s[4:5], s[0:1], 88")
    a("v_lshlrev_b32 v1, 6, v0")
    a("v_mov_b32 v2, -1")
    a("v_mov_b32 v3, 0")
    a("s_waitcnt lgkmcnt(0)")
    a("s_mov_b32 s8, s4")
    a("s_mov_b32 s9, s5")
    a(f"s_mov_b32 s10, {WS_BYTES}")
    a("s_mov_b32 s11, 0x20000")
    lo, hi = {"Q": (0, 8), "U": (8, 16), "A": (0, 16)}[opt.get("mrole", "A")]
    for it in range(16):
        a(f"s_mov_b32 s12, {DIAG + it*4096}")
        a(f"buffer_load_dword v4, v1, s[8:11], s12 offen offset:48")
        a(f"buffer_load_dword v5, v1, s[8:11], s12 offen offset:{4*mj}")
        a("s_waitcnt vmcnt(0)")
        a("v_min_u32 v2, v2, v4")
        if lo <= it < hi:
            a("v_max_u32 v3, v3, v5")
    a("s_mov_b32 s14, -1")
    a("s_mov_b32 s15, 0")
    a("s_nop 4")
    for i in range(64):
        a(f"v_readlane_b32 s16, v2, {i}")
        a(f"v_readlane_b32 s17, v3, {i}")
        a("s_nop 3")
        a("s_min_u32 s14, s14, s16")
        a("s_max_u32 s15, s15, s17")
    if opt.get("mpost"):
        a("s_sub_u32 s15, s30, s15")
    else:
        a("s_sub_u32 s15, s15, s14")
    a("s_min_u32 s15, s15, 20000")
    a(f"s_mul_i32 s15, s15, {mk}")
    a("s_memrealtime s[20:21]")
    a("s_waitcnt lgkmcnt(0)")
    a("M_spin:")
    a("s_memrealtime s[22:23]")
    a("s_waitcnt lgkmcnt(0)")
    a("s_sub_u32 s24, s22, s20")
    a("s_cmp_lt_u32 s24, s15")
    a("s_cbranch_scc1 M_spin")
    a("M_end:")
    a("s_endpgm")
    return "\n".join(l)


def gen_file(opt):
    kn = NAME + "_kernel"
    nl = opt.get("launches", 1)
    s = HEADER
    for _ in range(opt.get("pre_empty", 0)):
        s += "; @launch kernel=empty_kernel grid=(1,1,1) block=(64,1,1) lds=0\n"
    if opt.get("pre_empty") and "meas" not in opt:
        s += f"; @launch kernel={kn} grid=(256,1,1) block=(256,1,1) lds=163840\n"
    elif "meas" in opt:
        s += f"; @launch kernel={kn} grid=(256,1,1) block=(256,1,1) lds=163840\n"
        s += f"; @launch kernel=meas_kernel grid=(1,1,1) block=(64,1,1) lds=0\n"
    elif nl == 1:
        s += "; @launch grid=(256,1,1) block=(256,1,1) lds=163840\n"
    else:
        for _ in range(nl):
            s += f"; @launch kernel={kn} grid=(256,1,1) block=(256,1,1) lds=163840\n"
    extra_code = ""
    if "meas" in opt:
        extra_code = ".globl meas_kernel\n.p2align 8\n.type meas_kernel,@function\nmeas_kernel:\n" + gen_meas(opt) + "\n"
    if opt.get("pre_empty"):
        extra_code += ".globl empty_kernel\n.p2align 8\n.type empty_kernel,@function\nempty_kernel:\n s_endpgm\n"
    s += f""".amdgcn_target "amdgcn-amd-amdhsa--gfx950"
.text
.globl {kn}
.p2align 8
.type {kn},@function
{kn}:
{gen_body(opt)}
{extra_code}.section .rodata,"a"
.p2align 6
.amdhsa_kernel {kn}
  .amdhsa_next_free_vgpr 512
  .amdhsa_next_free_sgpr 102
  .amdhsa_accum_offset 256
  .amdhsa_group_segment_fixed_size 0
  .amdhsa_kernarg_size 96
  .amdhsa_user_sgpr_count 2
  .amdhsa_user_sgpr_kernarg_segment_ptr 1
  .amdhsa_system_sgpr_workgroup_id_x 1
.end_amdhsa_kernel
"""
    if "meas" in opt:
        s += """.p2align 6
.amdhsa_kernel meas_kernel
  .amdhsa_next_free_vgpr 32
  .amdhsa_next_free_sgpr 102
  .amdhsa_accum_offset 32
  .amdhsa_group_segment_fixed_size 0
  .amdhsa_kernarg_size 96
  .amdhsa_user_sgpr_count 2
  .amdhsa_user_sgpr_kernarg_segment_ptr 1
  .amdhsa_system_sgpr_workgroup_id_x 1
.end_amdhsa_kernel
"""
    if opt.get("pre_empty"):
        s += """.p2align 6
.amdhsa_kernel empty_kernel
  .amdhsa_next_free_vgpr 32
  .amdhsa_next_free_sgpr 102
  .amdhsa_accum_offset 32
  .amdhsa_group_segment_fixed_size 0
  .amdhsa_kernarg_size 96
  .amdhsa_user_sgpr_count 2
  .amdhsa_user_sgpr_kernarg_segment_ptr 1
  .amdhsa_system_sgpr_workgroup_id_x 1
.end_amdhsa_kernel
"""
    return s


if __name__ == "__main__":
    opt = {}
    out = None
    for a in sys.argv[1:]:
        if "=" in a:
            kk, vv = a.split("=", 1)
            try:
                vv = int(vv)
            except ValueError:
                pass
            opt[kk] = vv
        else:
            out = a
    txt = gen_file(opt)
    open(out or ("cdna_kernels/" + NAME + ".s"), "w").write(txt)
```

```python
import sys

NAME = "gated_mix__linear_attn_block__mixer_token_mlp__prompt"

HF = 0x000000
GUF = 0x240000
OF = 0x400000
KVP = 0x600000
ZP = 0x608000
GG = 0x690000
CNT = 0x6A0000
AF = 0x6C0000
DIAG = 0x7E0000
UX = 0x800000
WS_BYTES = 0xC00000

X, WQKV, WO, W1, B1, W2, B2, GW, OUT, DBG, WS = [f"s[{40+4*i}:{43+4*i}]" for i in range(11)]
SRD_INFO = [(40, 16, 2048*512*2), (44, 18, 512*1536*2), (48, 20, 512*512*2), (52, 24, 2048*1376*2),
            (56, 26, 1376*2), (60, 28, 1376*2048*2), (64, 30, 2048*2), (68, 32, 512*2),
            (72, 34, 2048*512*2), (76, 36, 256), (80, 38, WS_BYTES)]

LOG2E = 0x3fb8aa3b
HS = 65536
HQ = 0


def f32bits(x):
    import struct
    return struct.unpack("<I", struct.pack("<f", x))[0]


def rr(kind, base, n):
    return f"{kind}{base}" if n == 1 else f"{kind}[{base}:{base+n-1}]"


def V(b, n=1):
    return rr("v", b, n)


def A(b, n=1):
    return rr("a", b, n)


class Em:
    def __init__(self, opt):
        self.l = []
        self.vm = 0
        self.lab = 0
        self.opt = opt
        self.nstamp = 0

    def e(self, s):
        self.l.append("    " + s)

    def c(self, s):
        self.l.append("    ; " + s)

    def label(self, s):
        self.l.append(s + ":")

    def newlab(self, p="L"):
        self.lab += 1
        return f"{p}_{self.lab}"

    def vmem(self, s):
        self.e(s)
        self.vm += 1
        return self.vm

    def wait_vm(self, tok):
        n = self.vm - tok
        assert n >= 0
        self.e(f"s_waitcnt vmcnt({min(n, 63)})")

    def wait_vm0(self):
        self.e("s_waitcnt vmcnt(0)")

    def lgkm0(self):
        self.e("s_waitcnt lgkmcnt(0)")

    def nop(self, n):
        while n > 0:
            k = min(n, 16)
            self.e(f"s_nop {k-1}")
            n -= k

    def stamp(self, i, prof=False):
        if prof is True:
            prof = self.opt.get("prof") if self.opt.get("prof") in (1, 2) else -1
        if (self.opt.get("prof") or False) != prof:
            return
        if self.opt.get("diag"):
            assert i < 12
            self.e(f"{'s_memtime' if self.opt.get('clk') else 's_memrealtime'} s[{16+2*i}:{17+2*i}]")

    def dma(self, voff, srd, soff, m0expr, flags=""):
        sreg, imm = m0expr
        if sreg is None:
            self.e(f"s_mov_b32 m0, {imm}")
        else:
            self.e(f"s_add_u32 m0, {sreg}, {imm}")
        sr, si = soff
        self.e(f"s_add_u32 s13, {sr}, {si}")
        return self.vmem(f"buffer_load_dwordx4 {voff}, {srd}, s13 offen {flags} lds".replace("  ", " "))

    def poll(self, voff, srd, expect, tmp="v31", sleep=None):
        if self.opt.get("nowait"):
            self.wait_vm0()
            return
        lp = self.newlab("L_poll")
        dn = self.newlab("L_polled")
        self.e("s_mov_b32 s14, 0")
        self.label(lp)
        self.e(f"buffer_load_dword {tmp}, {voff}, {srd}, 0 offen sc1")
        self.e("s_add_u32 s14, s14, 1")
        self.e("s_waitcnt vmcnt(0)")
        self.e(f"v_cmp_gt_u32 vcc, {expect}, {tmp}")
        self.e(f"s_cbranch_vccz {dn}")
        self.e(f"s_sleep {sleep or self.opt.get('sleep', 1)}")
        self.e("s_cmp_lt_u32 s14, 0x40000")
        self.e(f"s_cbranch_scc1 {lp}")
        self.label(dn)

    def poll2(self, voff, srd, expect, more, tmp="v31"):
        if self.opt.get("nowait"):
            more()
            return 0
        t = self.vmem(f"buffer_load_dword {tmp}, {voff}, {srd}, 0 offen sc1")
        more()
        self.wait_vm(t)
        dn = self.newlab("L_fast")
        self.e(f"v_cmp_gt_u32 vcc, {expect}, {tmp}")
        self.e(f"s_cbranch_vccz {dn}")
        self.poll(voff, srd, expect, tmp)
        self.label(dn)
        return t

    def arrive(self, srd, off_sreg, nrep):
        sk = self.newlab("L_arr")
        self.e("s_cmp_lg_u32 s3, 0")
        self.e(f"s_cbranch_scc1 {sk}")
        self.e("v_lshlrev_b32 v30, 8, v1")
        self.e("v_mov_b32 v31, 1")
        self.e(f"s_mov_b64 exec, {(1 << nrep) - 1}")
        self.e(f"buffer_atomic_add v31, v30, {srd}, {off_sreg} offen sc1")
        self.e("s_mov_b64 exec, -1")
        self.label(sk)


def mf(d, a, b, c):
    return f"v_mfma_f32_16x16x32_bf16 {d}, {a}, {b}, {c}"


def interleave(k, mfmas, fillers, tail=2, cap=2, late=(), at=None):
    nm = len(mfmas)
    if late:
        interleave(k, mfmas[:8], fillers[:len(fillers) * 8 // nm + 1], tail=0, cap=cap)
        interleave(k, mfmas[8:], mix(list(late), fillers[len(fillers) * 8 // nm + 1:]), tail=min(tail, 1), cap=cap)
        return
    nf = len(fillers)
    span = max(1, nm - tail)
    fi = 0
    for i, (pre, txt) in enumerate(mfmas):
        if pre:
            pre()
        k.e(txt)
        want = min(nf, -(-(i + 1) * nf // span))
        budget = cap - (1 if (i + 1 < nm and mfmas[i + 1][0]) else 0)
        if at and i in at:
            run_all(k, at[i])
            budget -= len(at[i])
        while fi < want and budget > 0:
            f = fillers[fi]
            fi += 1
            budget -= 1
            if callable(f):
                f()
            else:
                k.e(f)
    while fi < nf:
        f = fillers[fi]
        fi += 1
        if callable(f):
            f()
        else:
            k.e(f)


def run_all(k, items):
    for f in items:
        if callable(f):
            f()
        else:
            k.e(f)


def mix(a, b):
    out = []
    ia = ib = 0
    while ia < len(a) or ib < len(b):
        if ib >= len(b) or (ia < len(a) and ia * len(b) <= ib * len(a)):
            out.append(a[ia])
            ia += 1
        else:
            out.append(b[ib])
            ib += 1
    return out


class SK:
    def __init__(self, k, n, L, NWB, FB, NF, wdma, wread, fload, mm):
        self.__dict__.update(locals())
        self.wt = {}
        self.ft = {}
        self.issued = 0
        self.nread = 0
        self.done = set()
        self.wdone = 0
        self.wq = []
        self.wtmp = {}
        self.wage = {}

    def issue_w(self, upto):
        while self.issued < min(upto, self.n):
            assert self.issued < self.nread + self.L
            run_all(self.k, self.wdma(self.issued, self.wt))
            self.issued += 1

    def assume_issued(self, e, per):
        for t in range(e):
            self.k.vm += per
            self.wt[t] = self.k.vm
        self.issued = e

    def to_regs(self, R, hold=0):
        k = self.k
        while self.nread < R:
            t = self.nread
            assert t < self.wdone + self.NWB
            k.wait_vm(self.wt[t])
            run_all(k, self.wread(t))
            k.lgkm0()
            self.nread += 1
            if self.nread <= R - hold:
                self.issue_w(t + self.L + 1)

    def run(self, seq, LA, drained=0, post=None, wdelay=0, extra=None, pre_issued=0, prof=None,
            wsplit=1, rmax=2, age=2, burst=0, prewin=None):
        k, n, L = self.k, self.n, self.L
        fi = pre_issued

        def fl(i):
            t, b = seq[i]
            if t - self.FB >= 0:
                assert (t - self.FB, b) in self.done, (t, b)
            return self.fload(t, b, self.ft)
        while fi < min(LA, len(seq)):
            run_all(k, fl(fi))
            fi += 1
        for win in range(len(seq) // 4):
            if prof and win in prof:
                k.stamp(prof[win], True)
            if prewin:
                prewin(win)
            grp = seq[4*win:4*win+4]
            assert max(t % n for t, b in grp) < self.nread, (grp, self.nread)
            vm = []
            bursty = burst and (self.issued < n or self.wq)
            nfl = 4
            if bursty:
                ph = win % burst
                nfl = 0 if ph < burst // 2 else 8
            elif burst:
                nfl = max(0, min(8, 4*win + LA + 4 - fi))
            for _ in range(nfl):
                if fi < len(seq):
                    vm += fl(fi)
                    fi += 1
            assert fi >= min(len(seq), 4*win + 8), (win, fi)
            extra_fin = []
            if bursty:
                if nfl == 0:
                    for _ in range(2):
                        if self.issued < n and self.issued < self.nread + L:
                            vm += self.wdma(self.issued, self.wtmp)
                            extra_fin.append(self.issued)
                            self.issued += 1
            if not burst and not self.wq and win >= wdelay and self.issued < n and self.issued < self.nread + L:
                self.wq = self.wdma(self.issued, self.wtmp)
                self.wq_t = self.issued
                self.wq_n = -(-len(self.wq) // wsplit)
                self.issued += 1
            fin = None
            if self.wq:
                vm += self.wq[:self.wq_n]
                self.wq = self.wq[self.wq_n:]
                if not self.wq:
                    fin = self.wq_t
            rd = []
            nr = 0
            while nr < rmax:
                u = self.nread
                if not (u < n and u < self.wdone + self.NWB and u in self.wt):
                    break
                must = u <= max(t % n for t, b in seq[4*win:4*win+8])
                if not must and self.wage.get(u, -99) + age > win:
                    break
                if nr >= 1 and not must and self.issued < n:
                    break
                if self.wt[u] > drained:
                    rd.append(lambda u=u: k.wait_vm(self.wt[u]))
                rd += self.wread(u)
                self.nread += 1
                nr += 1
            mfmas = []
            for (t, b) in grp:
                for j in range(self.NF):
                    pre = (lambda t=t, b=b: k.wait_vm(self.ft[(t, b)])) if j == 0 else None
                    mfmas.append((pre, self.mm(t, b, j)))
            fill = mix(rd, vm)
            ps = post(win) if post else []
            if extra:
                fill = mix(fill, extra(win))
            interleave(k, mfmas, fill, tail=3, late=ps)
            for fin_ in ([fin] if fin is not None else []) + extra_fin:
                self.wt[fin_] = self.wtmp[fin_]
                self.wage[fin_] = win
            for gb in grp:
                self.done.add(gb)
            while self.wdone < n and all((self.wdone, b) in self.done for b in range(4)):
                self.wdone += 1
            if rd:
                k.lgkm0()
        assert not self.wq
        self.wage = {}


def gen_body(opt):
    k = Em(opt)
    e = k.e
    WFL = opt.get("wflags", "")
    ROTQ = opt.get("rot_q", 0)
    ROTU = opt.get("rot_u", 2)
    ROTP = opt.get("rot_p", 1)
    UPART = opt.get("upart", 4)
    UFL = opt.get("u_wflags", "")
    global HS
    global HQ
    HQ = opt.get("hq", 0)
    HS = opt.get("hs", 65536)
    assert HS >= 65536 + 4*HQ
    PW = "s[84:87]"

    def srd(name):
        for (d, s, sz) in SRD_INFO:
            if f"s[{d}:{d+3}]" == name:
                e(f"s_mov_b32 s{d}, s{s}")
                e(f"s_mov_b32 s{d+1}, s{s+1}")
                e(f"s_mov_b32 s{d+2}, {sz}")
                e(f"s_mov_b32 s{d+3}, 0x20000")

    def dmai(voff, srd_, soff, off, toks=None, key=None, fl=""):
        def f():
            if " m0," in k.l[-1]:
                e("s_nop 0")
            t = k.vmem(f"buffer_load_dwordx4 {voff}, {srd_}, {soff} offen offset:{off} {fl} lds".replace("  ", " "))
            if toks is not None:
                toks[key] = t
        return f

    def diag_clear():
        if opt.get("diag"):
            for i in range(16, 40):
                e(f"s_mov_b32 s{i}, 0")

    k.label("L_code0")
    e("s_cmp_ge_u32 s2, 256")
    e("s_cbranch_scc1 L_end")
    e("s_load_dwordx16 s[16:31], s[0:1], 0")
    e("s_load_dwordx8 s[32:39], s[0:1], 64")
    if opt.get("diag"):
        e(f"{'s_memtime' if opt.get('clk') else 's_memrealtime'} s[98:99]")
    if opt.get("cpf", 1):
        e("s_getpc_b64 s[92:93]")
        k.label("L_pc")
        e("s_lshr_b32 s12, s2, 3")
        e(f"s_mul_i32 s12, s12, {12*128}")
        e("s_sub_u32 s92, s92, L_pc-L_code0")
        e("s_subb_u32 s93, s93, 0")
        e("v_lshl_add_u32 v30, v0, 7, s12")
        e("v_min_u32 v30, L_end-L_code0, v30")
        e("v_mov_b32 v31, s93")
        e("v_cmp_gt_u32 s[94:95], 12, v0")
        e("v_add_co_u32 v30, vcc, s92, v30")
        e("s_nop 1")
        e("v_addc_co_u32 v31, vcc, 0, v31, vcc")
        e("s_mov_b64 exec, s[94:95]")
        cs = k.newlab("L_cs")
        e(f"s_cbranch_execz {cs}")
        e("global_load_dword v157, v[30:31], off")
        k.label(cs)
        e("s_mov_b64 exec, -1")
    e("v_lshrrev_b32 v2, 6, v0")
    e("v_and_b32 v1, 63, v0")
    e("v_readfirstlane_b32 s3, v2")
    e("s_and_b32 s4, s2, 7")
    e("s_lshr_b32 s6, s2, 3")
    e("s_and_b32 s5, s4, 1")
    e("s_lshr_b32 s4, s4, 1")
    k.c("role tile: s8 = a*4 + ((idx&15)>>2) (sb / ft), s9 = b*4 + (idx&3) (hg / dt)")
    e("s_bfe_u32 s8, s6, 0x20002")
    e("s_lshl_b32 s12, s4, 2")
    e("s_add_u32 s8, s8, s12")
    e("s_and_b32 s9, s6, 3")
    e("s_lshl_b32 s12, s5, 2")
    e("s_add_u32 s9, s9, s12")
    PP8 = opt.get("pp8", 1)
    if PP8:
        k.c("P3 tile: st = xcd*4 + (idx&3), dt3 = 2*((idx>>2)&3) + ((idx ^ (idx>>4))&1)")
        e("s_and_b32 s10, s6, 3")
        e("s_and_b32 s12, s2, 7")
        e("s_lshl_b32 s12, s12, 2")
        e("s_add_u32 s10, s10, s12")
        e("s_lshr_b32 s11, s6, 4")
        e("s_xor_b32 s11, s11, s6")
        e("s_and_b32 s11, s11, 1")
        e("s_lshr_b32 s12, s6, 1")
        e("s_and_b32 s12, s12, 6")
        e("s_add_u32 s11, s11, s12")
    else:
        k.c("P3 tile: s10 = st = a*8 + (idx&7), s11 = dt3 = b*4 + 2*((idx>>3)&1) + ((idx ^ (idx>>4))&1)")
        e("s_and_b32 s10, s6, 7")
        if opt.get("stx"):
            e(f"s_xor_b32 s10, s10, {opt['stx']}")
        e("s_lshr_b32 s11, s6, 4")
        e("s_xor_b32 s11, s11, s6")
        e("s_and_b32 s11, s11, 1")
        e("s_add_u32 s11, s11, s12")
        e("s_lshr_b32 s12, s6, 2")
        e("s_and_b32 s12, s12, 2")
        e("s_add_u32 s11, s11, s12")
        e("s_lshl_b32 s12, s4, 3")
        e("s_add_u32 s10, s10, s12")
    e("s_mul_i32 s7, s3, 40960")
    e("v_and_b32 v2, 15, v1")
    e("v_lshrrev_b32 v3, 4, v1")
    e("v_lshlrev_b32 v4, 4, v1")
    e("v_mov_b32 v5, 0")
    e("s_cmp_lt_u32 s6, 16")
    e("s_cbranch_scc1 L_qrole")
    nz = k.newlab("L_nz")
    n1_ = k.newlab("L_n1")
    e("s_and_b32 s12, s2, 0xf7")
    e("s_cmp_lg_u32 s12, 230")
    e("s_cbranch_scc1 L_urole")
    e("v_mov_b32 v31, 1")
    e("v_lshlrev_b32 v30, 8, v0")
    e("s_waitcnt lgkmcnt(0)")
    srd(WS)
    srd(DBG)
    e("s_cmp_lg_u32 s2, 230")
    e(f"s_cbranch_scc1 {n1_}")
    e("s_cmp_lg_u32 s3, 0")
    e(f"s_cbranch_scc1 {nz}")
    e(f"s_mov_b32 s12, {CNT + 96*256}")
    e("s_mov_b64 exec, 0xffffffff")
    e(f"buffer_store_dword v5, v30, {WS}, s12 offen sc1")
    e("s_mov_b64 exec, -1")
    k.wait_vm0()
    e(f"buffer_store_dword v31, v5, {DBG}, 0 offen sc1")
    e(f"s_branch {nz}")
    k.label(n1_)
    e("v_lshrrev_b32 v29, 5, v0")
    e("v_cmp_ne_u32 vcc, 3, v29")
    e(f"s_mov_b32 s12, {CNT}")
    e("s_and_b64 exec, exec, vcc")
    e(f"buffer_store_dword v5, v30, {WS}, s12 offen sc1")
    e("s_mov_b64 exec, -1")
    e("v_lshlrev_b32 v30, 6, v0")
    for z_ in range(2):
        e(f"s_mov_b32 s12, {CNT + 256*256 + z_*16384}")
        e(f"buffer_store_dword v5, v30, {WS}, s12 offen sc1")
    for r in range(4):
        e(f"v_mov_b32 v{32+r}, 0")
    e("v_lshlrev_b32 v30, 4, v0")
    for z_ in range(9):
        e(f"s_mov_b32 s12, {KVP + z_*4096}")
        e(f"buffer_store_dwordx4 v[32:35], v30, {WS}, s12 offen sc1")
    k.wait_vm0()
    e("s_barrier")
    e("s_cmp_lg_u32 s3, 0")
    e(f"s_cbranch_scc1 {nz}")
    e(f"buffer_store_dword v31, v5, {DBG}, 0 offen offset:128 sc1")
    k.label(nz)
    e("s_branch L_urole")
    k.label("L_qrole")


    def touch_xw():
        if not opt.get("pfx", 4):
            return
        if opt.get("pfx", 4) == 2:
            return touch_xw_all()
        if opt.get("pfx", 4) >= 3:
            return touch_kv(64 if opt.get("pfx", 4) == 3 else 128)
        e("s_lshl_b32 s12, s6, 2")
        e("s_add_u32 s12, s12, s3")
        e("v_lshrrev_b32 v116, 2, v1")
        e("v_lshlrev_b32 v116, 10, v116")
        e("v_and_b32 v117, 3, v1")
        e("v_lshl_add_u32 v116, v117, 7, v116")
        e(f"s_mul_i32 s13, s12, {8*3072}")
        e("s_lshl_b32 s14, s5, 9")
        e("s_add_u32 s13, s13, s14")
        k.vmem(f"buffer_load_dword v157, v116, {WQKV}, s13 offen")
        e("v_lshlrev_b32 v117, 7, v1")
        e("s_lshl_b32 s12, s12, 13")
        e("s_lshl_b32 s14, s4, 19")
        e("s_add_u32 s12, s12, s14")
        k.vmem(f"buffer_load_dword v157, v117, {X}, s12 offen")
        e("s_add_u32 s13, s13, 16384")
        e("s_mov_b64 exec, 0xffffffff")
        k.vmem(f"buffer_load_dword v157, v116, {WQKV}, s13 offen")
        e("s_mov_b64 exec, -1")

    def touch_xw_all():
        e("s_lshl_b32 s12, s6, 2")
        e("s_add_u32 s12, s12, s3")
        e("v_lshrrev_b32 v116, 2, v1")
        e("v_lshlrev_b32 v116, 10, v116")
        e("v_and_b32 v117, 3, v1")
        e("v_lshl_add_u32 v116, v117, 7, v116")
        e(f"s_mul_i32 s13, s12, {4*3072}")
        e("s_lshl_b32 s14, s5, 9")
        e("s_add_u32 s13, s13, s14")
        e("s_mov_b32 s14, 0xffff")
        e("s_mov_b32 exec_hi, s14")
        k.vmem(f"buffer_load_dword v157, v116, {WQKV}, s13 offen")
        e("s_mov_b64 exec, -1")

    def touch_kv(nw):
        e("s_lshl_b32 s12, s6, 2")
        e("s_add_u32 s12, s12, s3")
        e("v_lshrrev_b32 v116, 3, v1")
        e("v_mul_u32_u24 v116, 3072, v116")
        e("v_bfe_u32 v117, v1, 2, 1")
        e("v_lshl_add_u32 v116, v117, 10, v116")
        e("v_and_b32 v117, 3, v1")
        e("v_lshl_add_u32 v116, v117, 7, v116")
        e(f"s_mul_i32 s13, s12, {(512//nw)*3072}")
        e("s_lshl_b32 s14, s5, 9")
        e("s_add_u32 s13, s13, s14")
        if nw == 128:
            e("s_mov_b64 exec, 0xffffffff")
        k.vmem(f"buffer_load_dword v157, v116, {WQKV}, s13 offen offset:1024")
        if nw == 128:
            e("s_mov_b64 exec, -1")

    def touch_x_other():
        e("s_and_b32 s12, s6, 15")
        e("s_lshl_b32 s12, s12, 2")
        e("s_add_u32 s12, s12, s3")
        e("s_lshr_b32 s13, s12, 4")
        e("s_lshl_b32 s13, s13, 17")
        e("s_and_b32 s12, s12, 15")
        e("s_lshl_b32 s12, s12, 12")
        e("s_add_u32 s12, s12, s13")
        e("s_lshl_b32 s13, s4, 19")
        e("s_add_u32 s12, s12, s13")
        e("s_xor_b32 s13, s5, 1")
        e("s_lshl_b32 s13, s13, 16")
        e("s_add_u32 s12, s12, s13")
        e("v_lshlrev_b32 v117, 7, v1")
        e("s_mov_b64 exec, 0xffffffff")
        k.vmem(f"buffer_load_dword v157, v117, {X}, s12 offen")
        e("s_mov_b64 exec, -1")

    def touch_w1():
        if opt.get("pfx", 4) == 2:
            srd(X)
            srd(WQKV)
            touch_x_other()
            touch_xw_all()
        if opt.get("pfx", 4) >= 3:
            srd(X)
            srd(WQKV)
            touch_x_other()
            if opt.get("pfx", 4) == 4:
                touch_kv(128)
        if not opt.get("pfw", 0):
            return
        bw = 768 if UPART == 4 else 384
        e("s_and_b32 s12, s6, 15")
        e("s_lshl_b32 s12, s12, 2")
        e("s_add_u32 s12, s12, s3")
        e(f"s_mul_i32 s12, s12, {32*2752}")
        if UPART == 4:
            e("s_mul_i32 s13, s4, 768")
            e("v_lshrrev_b32 v158, 3, v1")
            e("v_and_b32 v159, 7, v1")
        else:
            e("s_and_b32 s13, s2, 7")
            e("s_mul_i32 s13, s13, 384")
            e("v_lshrrev_b32 v158, 2, v1")
            e("v_and_b32 v159, 3, v1")
        e("s_add_u32 s12, s12, s13")
        e("v_lshlrev_b32 v159, 7, v159")
        e(f"v_min_u32 v159, {bw-4}, v159")
        e("v_mul_u32_u24 v158, 2752, v158")
        e("v_add_u32 v158, v158, v159")
        nrow = 8 if UPART == 4 else 16
        for j in range(32 // nrow):
            k.vmem(f"buffer_load_dword v157, v158, {W1}, s12 offen {UFL}")
            if j + 1 < 32 // nrow:
                e(f"s_add_u32 s12, s12, {nrow*2752}")

    PL, PNWB, PFB = 6, 8, 8
    PE = 6
    YA, AA = 64, 128

    def p3_setup(isq):
        out = (["s_mul_i32 s100, s3, 24576", "s_lshl_b32 s99, s3, 14", "s_add_u32 s99, s99, 98304"] if isq
               else ["s_add_u32 s100, s7, 16384", "s_mov_b32 s99, s7"])
        out += ["v_lshrrev_b32 v30, 3, v1", "v_and_b32 v31, 7, v1", "v_and_b32 v22, 6, v30", "v_xor_b32 v31, v31, v22",
                "v_lshlrev_b32 v31, 4, v31", "v_lshl_add_u32 v22, v30, 12, v31", "v_lshl_add_u32 v250, v30, 10, v31",
                "s_lshl_b32 s13, s11, 7", "s_lshl_b32 s87, s3, 5", "s_add_u32 s87, s87, s13",
                "s_lshl_b32 s12, s3, 17", "s_add_u32 s12, s12, s13", "v_add_u32 v250, s12, v250",
                f"s_mul_i32 s12, s3, {352*4096}", "s_lshl_b32 s13, s10, 7", "s_add_u32 s12, s12, s13", "v_add_u32 v22, s12, v22"]
        for j in range(1, 4):
            out.append(f"v_add_u32 v{22+j}, {j*(8*4096-1024)}, v22")
        out += [f"v_add_u32 v251, {8*1024-1024}, v250"]
        out += ["s_and_b32 s12, s10, 30", "s_add_u32 s12, s12, s5", "s_lshl_b32 s12, s12, 8",
                f"s_add_u32 s12, s12, {CNT + 32*256}", "v_mov_b32 v240, s12",
                ] + (["s_lshl_b32 s12, s11, 3", "s_and_b32 s13, s2, 7", "s_add_u32 s12, s12, s13", "s_lshl_b32 s12, s12, 8",
                      f"s_add_u32 s12, s12, {CNT + 128*256}"] if PP8 else
                     ["s_lshl_b32 s12, s11, 2", "s_add_u32 s12, s12, s4", "s_lshl_b32 s12, s12, 8",
                      f"s_add_u32 s12, s12, {CNT + 64*256}"]) + ["v_mov_b32 v241, s12"]
        out += ["v_lshrrev_b32 v228, 2, v2", "v_lshl_add_u32 v228, v3, 2, v228", "v_lshrrev_b32 v229, 1, v228",
                "v_and_b32 v229, 3, v229", "v_lshlrev_b32 v228, 7, v228", "v_lshl_add_u32 v228, v229, 5, v228",
                "v_and_b32 v229, 3, v2", "v_lshl_add_u32 v228, v229, 3, v228", "v_add_u32 v227, s99, v228",
                "v_add_u32 v228, s100, v228"]
        for j in range(1, 4):
            out.append(f"v_xor_b32 v{228+j}, {32*j}, v228")
        out += ["s_lshl_b32 s12, s10, 16", "s_lshl_b32 s13, s3, 12", "s_add_u32 s12, s12, s13",
                f"s_add_u32 s12, s12, {OF}", "v_add_u32 v232, s12, v4", "v_add_u32 v233, 16384, v232",
                f"s_mul_i32 s13, s11, {4*43*1024}", f"s_mul_i32 s12, s3, {11*1024}", "s_add_u32 s13, s13, s12",
                f"s_add_u32 s13, s13, {GUF}"]
        for b in range(4):
            out += [f"s_add_u32 s12, s3, {1+b}", "s_and_b32 s12, s12, 3",
                    "s_lshl_b32 s14, s12, 5", f"v_xor_b32 v{224+b}, s14, v227",
                    f"s_mul_i32 s14, s12, {24576 if isq else 40960}"]
            base = 0 if isq else 16384
            if b < 3:
                out += [f"s_add_u32 s14, s14, {base + (2-b)*4096}", f"v_add_u32 v{245+b}, s14, v4"]
            else:
                out += ["v_add_u32 v244, s100, v4"]
            out += [f"s_mul_i32 s12, s12, {43*1024}", "s_add_u32 s12, s12, s13", f"v_add_u32 v{236+b}, s12, v4"]
        out += ["s_mov_b32 s84, 4096", "s_mov_b32 s85, 8192", "s_mov_b32 s86, 10240", "s_mov_b32 s91, 32768",
                lambda: (e("s_cmp_eq_u32 s3, 3"), e(f"s_cselect_b32 s86, {hex(WS_BYTES)}, s86")),
                "s_lshl_b32 s12, s10, 6", "v_add_u32 v248, s12, v2", "v_lshlrev_b32 v242, 2, v248",
                f"v_add_u32 v242, {GG}, v242", "v_lshlrev_b32 v243, 1, v248",
                "v_and_b32 v249, 1, v3", "v_lshl_add_u32 v248, v249, 4, v248", "v_lshlrev_b32 v248, 10, v248",
                "v_lshrrev_b32 v249, 1, v3", "v_lshl_add_u32 v248, v249, 4, v248", "v_add_u32 v249, 32768, v248"]
        if opt.get("tlb", 0) & 1:
            out.append(lambda: (e("s_mov_b64 exec, 1"), k.vmem(f"buffer_load_dword v243+0, v248, {OUT}, s87 offen sc1".replace("v243+0", "v255")), e("s_mov_b64 exec, -1")))
        if opt.get("tlb", 0) & 2:
            out.append(lambda: (e("v_lshlrev_b32 v254, 21, v1"), e("s_mov_b64 exec, 63"), k.vmem(f"buffer_load_dword v255, v254, {WS}, s85 offen sc1"), e("s_mov_b64 exec, -1")))
        for j in range(4):
            out.append(lambda j=j: k.vmem(f"buffer_load_ushort v{252+j}, v243, {B2}, 0 offen offset:{32*j}"))
        return out

    def wo_dma(d=None):
        out = []
        for t in range(4):
            for h_ in range(2):
                out += [f"s_add_u32 m0, s99, {t*4096 + h_*2048}", f"s_mov_b32 s101, {t*32*1024 + h_*16384}"]
                out += [dmai(f"v{250+j}", WO, "s101", j*1024, {} if d is None else d, t, WFL) for j in range(2)]
        return out

    def wo_reads():
        out = []
        for t in range(4):
            for j in range(4):
                out.append(f"ds_read_b64_tr_b16 {A(64+t*16+j*4,2)}, v{224+j} offset:{t*4096}")
                out.append(f"ds_read_b64_tr_b16 {A(66+t*16+j*4,2)}, v{224+j} offset:{t*4096+2048}")
        return out

    def yblk(t):
        return t

    def p_wdma(t, toks):
        sl = t % PL
        out = [f"s_add_u32 m0, s100, {sl*4096}",
               f"s_mov_b32 s101, {yblk(t)*32*4096}"]
        for j in range(4):
            out.append(dmai(f"v{22+j}", W2, "s101", j*1024, toks, t, WFL))
        return out

    def p_wread(t):
        out = []
        for j in range(4):
            r = (t % PNWB)*16 + j*4
            sl = t % PL
            o = (sl if sl < 6 else sl - 6)*4096
            ar = (228 if sl < 6 else 224) + j
            out.append(f"ds_read_b64_tr_b16 {A(r,2)}, v{ar} offset:{o}")
            out.append(f"ds_read_b64_tr_b16 {A(r+2,2)}, v{ar} offset:{o+2048}")
        return out

    def p3_e1(d=None):
        out = []
        for t in range(PE):
            out += p_wdma(t, {} if d is None else d)
        return out

    def freg(t, b):
        return A(128 + ((t + 4) % PFB)*16 + 4*b, 4)

    def p_fload(t, b, toks, early=False):
        y = yblk(t)
        so, off = ("s86" if y == 10 else ["0", "s84", "s85"][y // 4]), (0 if y == 10 else (y % 4)*1024)

        if early:
            so = {"0": "s90"}[so]

        def f():
            toks[(t, b)] = k.vmem(f"buffer_load_dwordx4 {freg(t,b)}, v{236+b}, {WS}, {so} offen offset:{off} sc1")
        return [f]

    def acc_init():
        out = [f"v_mov_b32 v{YA+r}, 0" for r in range(48)]
        for j in range(4):
            out += [f"v_lshlrev_b32 v{YA+48+4*j+r}, 16, v{252+j}" for r in range(4)]
        return out

    def zload(va="v5", vd="v31"):
        return k.vmem(f"buffer_load_dword {vd}, {va}, {DBG}, 0 offen sc1")

    def zcheck(va="v5", vd="v31"):
        if opt.get("nowait"):
            return
        dn = k.newlab("L_z")
        e(f"v_cmp_gt_u32 vcc, 1, {vd}")
        e(f"s_cbranch_vccz {dn}")
        k.poll(va, DBG, 1)
        k.label(dn)

    k.c("================= Q role: LN =================")
    k.vm = 0
    e("s_lshl_b32 s15, s8, 7")
    e("s_lshl_b32 s12, s9, 4")
    e("s_add_u32 s15, s15, s12")
    e("s_lshl_b32 s12, s3, 2")
    e("s_add_u32 s12, s12, s15")
    e("s_lshl_b32 s12, s12, 10")
    e("v_lshlrev_b32 v7, 4, v2")
    e("v_lshl_add_u32 v6, v3, 10, v7")
    e("s_waitcnt lgkmcnt(0)")
    srd(X)
    tx = [k.vmem(f"buffer_load_dwordx4 {V(32+4*j,4)}, v6, {X}, s12 offen offset:{256*j}") for j in range(4)]
    srd(GW)
    tg = [k.vmem(f"buffer_load_dwordx4 {V(48+4*j,4)}, v7, {GW}, 0 offen offset:{256*j}") for j in range(4)]
    srd(WQKV)
    if not opt.get("q_late", 0):
        touch_xw()
    for n_ in (WS, DBG, WO, W2, B2, OUT):
        srd(n_)
    diag_clear()
    k.stamp(1, 4)
    e("v_lshrrev_b32 v12, 3, v1")
    e("v_and_b32 v13, 7, v1")
    e("v_lshrrev_b32 v14, 1, v12")
    e("v_xor_b32 v14, v14, v13")
    e("v_lshlrev_b32 v14, 4, v14")
    e("v_lshl_add_u32 v14, v12, 10, v14")
    e("v_xor_b32 v15, 64, v14")
    e("s_lshl_b32 s13, s8, 17")
    e("s_lshl_b32 s12, s3, 15")
    e("s_add_u32 s13, s13, s12")
    e("v_add_u32 v144, s13, v14")
    e(f"s_add_u32 s13, s13, {7168}")
    e("v_add_u32 v145, s13, v15")
    e(f"v_add_u32 v146, {2*7168}, v144")
    e(f"v_add_u32 v147, {2*7168}, v145")
    e("v_and_b32 v16, 2, v12")
    e("v_xor_b32 v16, v16, v13")
    e("v_lshlrev_b32 v16, 4, v16")
    e("v_xor_b32 v17, 64, v16")
    e("v_mul_u32_u24 v12, 3072, v12")
    e("s_mul_i32 s13, s3, 49152")
    e("s_lshl_b32 s12, s9, 7")
    e("s_add_u32 s13, s13, s12")
    e("v_add3_u32 v148, v16, v12, s13")
    e(f"s_add_u32 s13, s13, {8*3072-1024}")
    e("v_add3_u32 v149, v17, v12, s13")
    for sec in (1, 2):
        e(f"v_add_u32 v{148+2*sec}, {1024*sec}, v148")
        e(f"v_add_u32 v{149+2*sec}, {1024*sec}, v149")
    e("s_lshl_b32 s90, s3, 12")
    e("s_lshl_b32 s91, s3, 11")
    ct = {}
    WQB = 98304

    def qdma(c):
        slot = c % 3
        out = [f"s_add_u32 m0, s90, {slot*32768}", f"s_mov_b32 s88, {c*128}"]
        for j in range(4):
            out.append(dmai(f"v{144+j}", X, "s88", j*1024))
        for sec in (1, 2):
            out.append(f"s_add_u32 m0, s91, {slot*32768 + 16384 + (sec-1)*8192}")
            if sec == 1:
                out.append(f"s_mov_b32 s89, {c*64*3072}")
            for j in range(2):
                out.append(dmai(f"v{148+2*sec+j}", WQKV, "s89", j*1024, ct, c, WFL))
        out.append(lambda: ctd.add(c))
        return out

    def wqdma(c):
        out = [f"s_add_u32 m0, s91, {WQB + c*8192}", f"s_mov_b32 s89, {c*64*3072}"]
        for j in range(2):
            out.append(dmai(f"v{148+j}", WQKV, "s89", j*1024, ct, "q", WFL))
        return out
    ctd = set()
    nearly = 0
    LNB = 163840 - 17408
    e("s_mul_i32 s12, s3, 4352")
    e(f"s_add_u32 s12, s12, {LNB}")
    e("v_mul_u32_u24 v8, 1088, v3")
    e("v_add3_u32 v8, v8, v7, s12")
    e("v_and_b32 v9, 1, v3")
    e("v_lshlrev_b32 v9, 3, v9")
    e("v_lshrrev_b32 v10, 2, v2")
    e("v_add_u32 v9, v9, v10")
    e("v_mul_u32_u24 v9, 1088, v9")
    e("v_lshrrev_b32 v10, 1, v3")
    e("v_lshl_add_u32 v9, v10, 5, v9")
    e("v_and_b32 v11, 3, v2")
    e("v_lshl_add_u32 v9, v11, 3, v9")
    e("s_lshl_b32 s12, s3, 8")
    e(f"s_add_u32 s12, s12, {LNB}")
    e("v_add_u32 v9, s12, v9")
    e(f"v_mul_u32_u24 v10, {HS}, v10")
    e("v_and_b32 v11, 1, v3")
    e("v_lshl_add_u32 v10, v11, 8, v10")
    e("v_add_u32 v10, v10, v7")
    e(f"s_mul_i32 s84, s3, {8*HS}")
    e("s_lshl_b32 s12, s15, 5")
    e("s_add_u32 s84, s84, s12")
    if HQ:
        e("s_lshr_b32 s12, s15, 9")
        e(f"s_mul_i32 s12, s12, {HQ}")
        e("s_add_u32 s84, s84, s12")
    if HF:
        e(f"s_add_u32 s84, s84, {HF}")
    e("s_lshl_b32 s12, s3, 2")
    e("s_add_u32 s12, s12, s15")
    e("s_lshl_b32 s12, s12, 2")
    e(f"s_add_u32 s12, s12, {GG}")
    e("v_lshl_add_u32 v11, v3, 2, s12")
    e("v_cmp_eq_u32 vcc, 0, v2")
    e("v_mov_b32 v12, 0x7ffffff0")
    e("s_mov_b32 s85, 0x3f803f80")
    e("v_cndmask_b32 v11, v12, v11, vcc")
    e("s_lshr_b32 s96, s3, 1")
    e("s_and_b32 s97, s3, 1")
    e("v_lshrrev_b32 v18, 1, v2")
    e("v_xor_b32 v18, v18, v3")
    e("v_lshlrev_b32 v18, 4, v18")
    e("v_lshl_add_u32 v18, v2, 7, v18")
    e("s_lshl_b32 s12, s96, 13")
    e("v_add_u32 v18, s12, v18")
    e("v_xor_b32 v19, 64, v18")
    e("v_add_u32 v20, 65536, v18")
    e("v_add_u32 v21, 65536, v19")
    e("v_lshrrev_b32 v22, 2, v2")
    e("v_lshrrev_b32 v23, 3, v2")
    e("v_and_b32 v24, 1, v3")
    e("v_lshl_add_u32 v23, v24, 1, v23")
    e("s_lshl_b32 s12, s97, 1")
    e("v_xor_b32 v23, s12, v23")
    e("v_lshl_add_u32 v22, v3, 3, v22")
    e("v_lshlrev_b32 v22, 7, v22")
    e("v_lshl_add_u32 v22, v23, 5, v22")
    e("v_and_b32 v24, 3, v2")
    e("v_lshl_add_u32 v22, v24, 3, v22")
    e("v_add_u32 v22, 16384, v22")
    e(f"v_add_u32 v14, {WQB - 16384}, v22")
    e("v_xor_b32 v15, 32, v14")
    e("s_lshl_b32 s12, s96, 5")
    e("v_xor_b32 v23, s12, v22")
    e("v_xor_b32 v22, 32, v23")
    e("v_add_u32 v24, 65536, v22")
    e("v_add_u32 v25, 65536, v23")
    e(f"v_lshrrev_b32 v154, {2 if PP8 else 3}, v1")
    e(f"v_and_b32 v155, {3 if PP8 else 7}, v1")
    e("v_lshlrev_b32 v154, 12, v154")
    e("v_lshl_add_u32 v154, v155, 7, v154")
    e(f"s_mul_i32 s13, s3, {352*4096}")
    e(f"s_lshl_b32 s14, s6, {16 if PP8 else 15}")
    e("s_add_u32 s13, s13, s14")
    if PP8:
        e("s_and_b32 s14, s2, 7")
        e("s_lshl_b32 s14, s14, 9")
    else:
        e("s_lshl_b32 s14, s4, 10")
    e("s_add_u32 s13, s13, s14")
    e("v_add_u32 v154, s13, v154")

    k.stamp(2, 4)
    k.wait_vm(tx[3])
    k.stamp(3, 4)
    if opt.get("q_late", 0):
        touch_xw()
    QFAST = opt.get("q_fast", 1)
    QF = opt.get("q_f", 1)
    ln_start = len(k.l)
    e("v_dot2_f32_bf16 v26, v32, s85, 0")
    e("v_dot2_f32_bf16 v27, v33, s85, 0")
    for j in range(2, 16):
        e(f"v_dot2_f32_bf16 v{26+(j&1)}, v{32+j}, s85, v{26+(j&1)}")
    unp = []
    for j in range(16):
        unp.append(f"v_lshlrev_b32 v{64+2*j}, 16, v{32+j}")
        unp.append(f"v_and_b32 v{65+2*j}, 0xffff0000, v{32+j}")
    for s in unp[:4]:
        e(s)
    e("v_add_f32 v26, v26, v27")
    ui = 4
    for rot in (8, 4, 2, 1):
        for s in unp[ui:ui+3]:
            e(s)
        ui += 3
        e(f"v_add_f32_dpp v26, v26, v26 row_ror:{rot} row_mask:0xf bank_mask:0xf")
    for s in unp[ui:]:
        e(s)
    e(f"v_mul_f32 v26, {hex(f32bits(-1.0/512))}, v26")
    for j in range(16):
        e(f"v_pk_add_f32 {V(64+2*j,2)}, {V(64+2*j,2)}, v[26:27] op_sel_hi:[1,0]")
    e("v_pk_mul_f32 v[96:97], v[64:65], v[64:65]")
    e("v_pk_mul_f32 v[98:99], v[66:67], v[66:67]")
    for j in range(2, 16):
        a_ = 96 + 2 * (j & 1)
        e(f"v_pk_fma_f32 {V(a_,2)}, {V(64+2*j,2)}, {V(64+2*j,2)}, {V(a_,2)}")
    e("v_pk_add_f32 v[96:97], v[96:97], v[98:99]")
    e("v_add_f32 v26, v96, v97")
    k.wait_vm(tg[3])
    gd = ["v_dot2_f32_bf16 v28, v32, v48, 0", "v_dot2_f32_bf16 v29, v33, v49, 0"]
    for j in range(2, 16):
        gd.append(f"v_dot2_f32_bf16 v{28+(j&1)}, v{32+j}, v{48+j}, v{28+(j&1)}")
    gi = 0
    for rot in (8, 4, 2, 1):
        e(gd[gi]); e(gd[gi+1]); gi += 2
        e(f"v_add_f32_dpp v26, v26, v26 row_ror:{rot} row_mask:0xf bank_mask:0xf")
    e(f"v_mov_b32 v27, {hex(f32bits(1e-5))}")
    e(f"v_fmac_f32 v27, {hex(f32bits(1.0/512))}, v26")
    e("v_rsq_f32 v26, v27")
    e(gd[gi]); gi += 1
    for j in range(16):
        e(f"v_pk_mul_f32 {V(64+2*j,2)}, {V(64+2*j,2)}, v[26:27] op_sel_hi:[1,0]")
    for j in range(16):
        e(f"v_cvt_pk_bf16_f32 v{100+j}, v{64+2*j}, v{65+2*j}")
        if j % 4 == 3:
            e(f"ds_write_b128 v8, {V(100+j-3,4)} offset:{256*(j//4)}")
    while gi < 16:
        e(gd[gi]); gi += 1
    if QFAST:
        body = [x.strip() for x in k.l[ln_start:]]
        del k.l[ln_start:]
        body = [(lambda: k.wait_vm(tg[3])) if x.startswith("s_waitcnt vmcnt") else x for x in body]
        skip = opt.get("q_skip", 0)
        run_all(k, body[:skip] + mix(body[skip:], sum((qdma(c) for c in range(QF)), [])))
    k.stamp(4, 4)
    k.lgkm0()
    e("s_barrier")
    k.stamp(5, 4)
    for j in range(4):
        e(f"ds_read_b64_tr_b16 {V(64+4*j,2)}, v9 offset:{64*j}")
        e(f"ds_read_b64_tr_b16 {V(66+4*j,2)}, v9 offset:{64*j+4*1088}")
    e("v_add_f32 v28, v28, v29")
    th = None
    for j in range(4):
        e(f"s_waitcnt lgkmcnt({6-2*j})") if not opt.get("diag") else k.lgkm0()
        e(f"s_add_u32 s12, s84, {j*2*HS}")
        th = k.vmem(f"buffer_store_dwordx4 {V(64+4*j,4)}, v10, {WS}, s12 offen sc1")
    k.stamp(6, 4)
    for rot in (8, 4, 2, 1):
        e(f"v_add_f32_dpp v28, v28, v28 row_ror:{rot} row_mask:0xf bank_mask:0xf")
        k.nop(2)
    e(f"v_mul_f32 v28, {hex(f32bits(-1.4426950408889634))}, v28")
    e("v_exp_f32 v28, v28")
    k.nop(1)
    e("v_add_f32 v28, 1.0, v28")
    e("v_rcp_f32 v28, v28")
    k.nop(1)
    th = k.vmem(f"buffer_store_dword v28, v11, {WS}, 0 offen sc1")
    k.stamp(1)

    th = zload()
    npre = 2

    def h_arrive():
        k.stamp(2)
        e("s_lshr_b32 s12, s8, 2")
        e("s_lshl_b32 s12, s12, 11")
        e(f"s_add_u32 s12, s12, {CNT + 96*256}")
        k.arrive(WS, "s12", 8)
    if QFAST and QF == 1:
        run_all(k, qdma(1))
    if not QFAST:
        q0 = opt.get("q_pre", 0)
        for c in range(q0):
            run_all(k, qdma(c))
        k.wait_vm(th)
        zcheck()
        e("s_barrier")
        h_arrive()
        for c in range(q0, 2):
            run_all(k, qdma(c))

    ACC = 160
    FR = [96, 112]

    def qreads(t):
        c, kk = t // 2, t % 2
        slot = c % 3
        hi = slot >= 2
        so = (slot % 2) * 32768
        out = []
        xa = 18 + kk + (2 if hi else 0)
        for i in range(4):
            out.append(f"ds_read_b128 {A(16*t+4*i,4)}, v{xa} offset:{so + i*2048}")
        for sec in range(2):
            for hh in range(2):
                wa = 22 + hh + (2 if hi else 0)
                r = FR[t % 2] + (sec*2 + hh)*4
                o = so + sec*8192 + kk*4096
                out.append(f"ds_read_b64_tr_b16 {V(r,2)}, v{wa} offset:{o}")
                out.append(f"ds_read_b64_tr_b16 {V(r+2,2)}, v{wa} offset:{o+512}")
        return out

    pfl = []
    for r0 in (([0, 96] if PP8 else [0, 128, 224])[:opt.get("pf", 1)]):
        pfl.append([lambda r0=r0: (e(f"s_mov_b32 s101, {r0*4096}"), k.vmem(f"buffer_load_dword v157, v154, {W2}, s101 offen{' nt' if opt.get('pf_nt', 0) else ''}"))])
    PFA, PFB_ = opt.get("pf_a", 2), opt.get("pf_b", 1)

    k.wait_vm(ct[0])
    e("s_barrier")
    k.stamp(3)
    run_all(k, qreads(0))
    k.lgkm0()
    pend = qdma(2) if not (QFAST and QF == 3) else []
    QPER = opt.get("q_per", 7)
    consts = [f"s_mov_b32 s92, {hex(LOG2E)}", f"s_mov_b32 s93, {hex(LOG2E)}", f"s_mov_b32 s94, {hex(f32bits(1e-6))}",
              f"s_mov_b32 s95, {hex(f32bits(1e-6))}", "v_mov_b32 v26, s85", "v_mov_b32 v27, s85", "v_mov_b32 v28, s85",
              "v_mov_b32 v29, s85",
              "s_lshl_b32 s12, s3, 11", "s_add_u32 s12, s12, 65536", "v_add_u32 v6, s12, v4", "v_xor_b32 v7, 4096, v6",
              "s_lshl_b32 s15, s9, 2", "s_lshl_b32 s12, s97, 1", "s_add_u32 s15, s15, s12", "s_add_u32 s15, s15, s96",
              "s_lshl_b32 s13, s15, 10", f"s_add_u32 s13, s13, {KVP}", "s_lshl_b32 s12, s15, 6", f"s_add_u32 s12, s12, {ZP}",
              "v_lshlrev_b32 v10, 2, v1", "v_lshlrev_b32 v8, 4, v3", "v_lshl_add_u32 v8, v2, 2, v8",
              "v_cmp_gt_u32 vcc, 4, v2", "v_mov_b32 v9, 0x7ffffff0", "s_nop 0", "v_cndmask_b32 v8, v9, v8, vcc",
              "s_nop 0"]
    for t in range(16):
        qp = dict(zip((0, 1, 2, 3, 4, 5, 6, 8, 10, 12, 14), (1, 2, 3, 4, 5, 6, 7, 8, 0, 9, 10)))
        if t in qp:
            k.stamp(qp[t], True)
        head = []
        if t % 2 == 1 and t + 1 < 16:
            c = (t + 1) // 2
            assert c in ctd, (t, c)
            head = [lambda c=c: k.wait_vm(ct[c]), "s_barrier"]
            if QFAST and c == QF:
                head = [lambda c=c: (k.wait_vm(ct[c]), zcheck()), "s_barrier", h_arrive]
            if c + 2 < 8:
                pend = pend + qdma(c + 2)
            if c == 6:
                for cq in range(8):
                    pend = pend + wqdma(cq)
        nv = len(pend) if t == 15 else (13 if t == 0 else QPER if t < 11 else 8)
        vm = pend[:nv]
        pend = pend[len(vm):]
        if t == 10:
            vm = vm + ["v_mov_b32 v158, 128", lambda: zload("v158", "v159")]
        if t == 15:
            vm = vm + sum(pfl[:PFA], []) + consts
        reads = qreads(t + 1) if t + 1 < 16 else []
        mfmas = []
        for sec in range(2):
            for hh in range(2):
                for i in range(4):
                    d = ACC + 32 + sec*32 + (hh*4 + i)*4
                    cc = "0" if t == 0 else V(d, 4)
                    mfmas.append((None, mf(V(d, 4), A(16*t + 4*i, 4), V(FR[t % 2] + (sec*2 + hh)*4, 4), cc)))
        interleave(k, mfmas, head + mix(reads, vm), tail=3)
        if reads:
            k.lgkm0()
    k.stamp(4)
    k.stamp(11, True)

    def phi(src, dst):
        for j in range(16):
            e(f"v_pk_mul_f32 {V(64+2*j,2)}, {V(src+2*j,2)}, s[92:93]")
        for j in range(32):
            e(f"v_exp_f32 v{64+j}, v{64+j} clamp")
            e(f"v_max_f32 v{src+j}, 0, v{src+j}")
        for j in range(16):
            e(f"v_pk_add_f32 {V(64+2*j,2)}, {V(64+2*j,2)}, s[94:95]")
        for j in range(16):
            e(f"v_pk_add_f32 {V(64+2*j,2)}, {V(64+2*j,2)}, {V(src+2*j,2)}")
        for j in range(16):
            e(f"v_cvt_pk_bf16_f32 v{dst+j}, v{64+2*j}, v{65+2*j}")
    PK, PV, PQ = 96, 112, 128
    phi(ACC + 32, PK)
    for j in range(16):
        e(f"v_cvt_pk_bf16_f32 v{PV+j}, v{ACC+64+2*j}, v{ACC+65+2*j}")
    e("v_cmp_eq_u32 s[88:89], 1, v2")
    e("v_cmp_eq_u32 s[90:91], 2, v2")
    for hh in range(2):
        for p in range(2):
            a_ = V(PK + hh*8 + p*4, 4)
            b_ = V(PV + hh*8 + p*4, 4)
            e(mf(V(32+8*hh, 4), a_, b_, "0" if p == 0 else V(32+8*hh, 4)))
            e(mf(V(36+8*hh, 4), a_, "v[26:29]", "0" if p == 0 else V(36+8*hh, 4)))
    k.nop(4)
    e("ds_write_b128 v6, v[32:35]")
    e("ds_write_b128 v6, v[36:39] offset:1024")
    k.wait_vm(ct["q"])
    zcheck("v158", "v159")
    e("v_cmp_eq_u32 vcc, 3, v2")
    k.lgkm0()
    e("s_barrier")
    e("ds_read_b128 v[32:35], v7")
    e("ds_read_b128 v[36:39], v7 offset:1024")

    def qq_reads(w_):
        out = []
        for kk in range(2):
            for hh in range(2):
                r = 64 + (w_ % 2)*16 + (kk*2 + hh)*4
                o = w_*8192 + kk*4096
                out.append(f"ds_read_b64_tr_b16 {V(r,2)}, v{14+hh} offset:{o}")
                out.append(f"ds_read_b64_tr_b16 {V(r+2,2)}, v{14+hh} offset:{o+512}")
        return out
    run_all(k, qq_reads(0))
    e("s_waitcnt lgkmcnt(8)") if not opt.get("diag") else k.lgkm0()
    for j in range(4):
        e(f"v_pk_add_f32 {V(32+2*j,2)}, {V(32+2*j,2)}, {V(40+2*j,2)}")
    for r in range(4):
        k.vmem(f"buffer_atomic_add_f32 v{32+r}, v10, {WS}, s13 offen offset:{256*r}")
    e("v_cndmask_b32 v36, v36, v37, s[88:89]")
    e("v_cndmask_b32 v36, v36, v38, s[90:91]")
    e("v_cndmask_b32 v36, v36, v39, vcc")
    tat = k.vmem(f"buffer_atomic_add_f32 v36, v8, {WS}, s12 offen")
    e(f"s_lshl_b32 s90, s9, 10")
    e(f"s_add_u32 s90, s90, {CNT}")
    e("s_lshl_b32 s13, s4, 8")
    e("s_add_u32 s13, s13, s90")
    e("v_mov_b32 v8, s13")
    k.lgkm0()
    ps = p3_setup(True)
    KAW = opt.get("kv_aw", 2)
    e1t = {}
    e1_all = p3_e1(e1t)
    QW = 6 * opt.get("q_w", 2)
    qw = e1_all[:QW]
    kvt = {}
    for w_ in range(8):
        mfmas = []
        for kk in range(2):
            for hh in range(2):
                for i in range(4):
                    d = ACC + (hh*4 + i)*4
                    t = 2*w_ + kk
                    mfmas.append((None, mf(V(d, 4), V(64 + (w_ % 2)*16 + (kk*2 + hh)*4, 4), A(16*t + 4*i, 4), "0" if t == 0 else V(d, 4))))
        head = []
        if w_ == KAW:
            head = [lambda: k.wait_vm(tat), "s_barrier", lambda: (k.arrive(WS, "s90", 4), k.stamp(5))] + (sum(pfl[PFA:PFA+PFB_], []) if not opt.get("pf_late", 0) else [])
        n_ = -(-len(ps) // (8 - w_))
        fl_ = ps[:n_]
        ps = ps[n_:]
        if w_ >= opt.get("q_ws", KAW):
            n_ = -(-len(qw) // max(1, opt.get("q_we", 8) - w_))
            fl_ = mix(fl_, qw[:n_])
            qw = qw[n_:]
        if w_ == 7:
            fl_ = fl_ + [lambda: kvt.__setitem__(0, k.vmem(f"buffer_load_dword v31, v8, {WS}, 0 offen sc1"))]
        interleave(k, mfmas, head + mix(qq_reads(w_ + 1) if w_ < 7 else [], fl_), tail=3)
        k.lgkm0()
    e("s_barrier")
    k.nop(6)
    qpre = wo_dma() + e1_all[QW:]
    mark = len(k.l)
    phi(ACC, PQ)
    ph = [x.strip() for x in k.l[mark:]]
    del k.l[mark:]
    cut = opt.get("q_cut", 48)
    run_all(k, ph[:cut])
    e("s_and_b32 s15, s15, 30")
    e("s_lshl_b32 s13, s15, 10")
    e(f"s_add_u32 s13, s13, {KVP}")
    e("s_lshl_b32 s12, s15, 6")
    e(f"s_add_u32 s12, s12, {ZP}")
    e("v_lshlrev_b32 v9, 4, v3")
    if not opt.get("nowait"):
        k.wait_vm(kvt[0])
        dn = k.newlab("L_kf")
        e("v_cmp_gt_u32 vcc, 16, v31")
        e(f"s_cbranch_vccz {dn}")
        k.poll("v8", WS, 16)
        k.label(dn)
    k.stamp(6)
    k.stamp(1, 3)
    for hh in range(2):
        k.vmem(f"buffer_load_dwordx4 {V(196+8*hh,4)}, v9, {WS}, s12 offen offset:{64*hh} sc1")
        for r in range(4):
            tkv = k.vmem(f"buffer_load_dword v{192+8*hh+r}, v10, {WS}, s13 offen offset:{1024*hh+256*r} sc1")
    if opt.get("pf_late", 0):
        run_all(k, sum(pfl[PFA:PFA+PFB_], []))
    n1 = 8 * opt.get("q_n1", 2)
    run_all(k, mix(ph[cut:], qpre[:n1]))
    e("s_lshl_b32 s15, s8, 3")
    e("s_lshl_b32 s12, s96, 2")
    e("s_add_u32 s15, s15, s12")
    e("s_lshl_b32 s15, s15, 4")
    e("s_lshl_b32 s12, s9, 1")
    e("s_add_u32 s15, s15, s12")
    e("s_add_u32 s15, s15, s97")
    e("s_lshl_b32 s15, s15, 10")
    e(f"s_add_u32 s15, s15, {OF}")
    k.wait_vm(tkv)
    k.stamp(2, 3)
    for q_ in range(8):
        e(f"v_cvt_pk_bf16_f32 v{40+q_}, v{192+2*q_}, v{193+2*q_}")
    k.nop(2)
    for hh in range(2):
        for i in range(4):
            q_ = V(PQ + (hh*4+i)*2, 2)
            e(f"v_mfma_f32_16x16x16_bf16 {V(192+(hh*4+i)*4,4)}, {V(42+4*hh,2)}, {q_}, 0")
    for hh in range(2):
        for i in range(4):
            q_ = V(PQ + (hh*4+i)*2, 2)
            e(f"v_mfma_f32_16x16x16_bf16 {V(160+(hh*4+i)*4,4)}, {V(40+4*hh,2)}, {q_}, 0")
    k.nop(1)
    for n_ in range(8):
        e(f"v_add_f32 v{192+4*n_}, s94, v{192+4*n_}")
    for n_ in range(8):
        e(f"v_rcp_f32 v{192+4*n_}, v{192+4*n_}")
    for n_ in range(8):
        e(f"v_pk_mul_f32 {V(160+4*n_,2)}, {V(160+4*n_,2)}, {V(192+4*n_,2)} op_sel_hi:[1,0]")
        e(f"v_pk_mul_f32 {V(162+4*n_,2)}, {V(162+4*n_,2)}, {V(192+4*n_,2)} op_sel_hi:[1,0]")
    for i in range(4):
        for hh in range(2):
            s_ = 160 + (hh*4+i)*4
            e(f"v_cvt_pk_bf16_f32 v{64+4*i+2*hh}, v{s_}, v{s_+1}")
            e(f"v_cvt_pk_bf16_f32 v{65+4*i+2*hh}, v{s_+2}, v{s_+3}")
        e(f"s_add_u32 s12, s15, {i*16384}")
        tos = k.vmem(f"buffer_store_dwordx4 {V(64+4*i,4)}, v4, {WS}, s12 offen sc1")
    k.stamp(3, 3)
    n2 = n1 + 8 * opt.get("q_n2", 2)
    assert n2 <= 32
    run_all(k, qpre[n1:n2])
    k.wait_vm(tos)
    e("s_barrier")
    e("s_lshl_b32 s12, s8, 9")
    e(f"s_add_u32 s12, s12, {CNT + 32*256}")
    k.arrive(WS, "s12", 2)
    k.stamp(7)
    k.stamp(4, 3)
    run_all(k, sum(pfl[PFA+PFB_:], []))
    run_all(k, qpre[n2:])
    e("v_mov_b32 v29, 0")
    e("s_branch L_p3")

    k.label("L_urole")
    k.c("================= U role =================")
    k.vm = 0
    assert HS == 65536 and HQ == 0
    KX = opt.get("kx", 1)
    if KX:
        e("s_and_b32 s9, s6, 3")
        e("s_lshl_b32 s9, s9, 1")
        e("s_add_u32 s9, s9, s5")
    e("s_and_b32 s97, s9, 1")
    e("s_lshl_b32 s97, s97, 2")
    e("s_add_u32 s97, s97, s3")
    e("v_lshrrev_b32 v12, 2, v1")
    e("v_and_b32 v13, 3, v1")
    e(f"s_mul_i32 s13, s97, {256*2752}")
    e("s_mul_i32 s12, s8, 192")
    e("s_add_u32 s13, s13, s12")
    for j in range(3):
        e(f"v_add_u32 v14, {16*j}, v12")
        e("v_mul_u32_u24 v15, 43, v14")
        e("v_lshrrev_b32 v15, 7, v15")
        e("v_mul_u32_u24 v16, 3, v15")
        e("v_sub_u32 v14, v14, v16")
        e("v_lshrrev_b32 v16, 2, v15")
        e("v_and_b32 v16, 2, v16")
        e("v_xor_b32 v16, v16, v13")
        e("v_lshlrev_b32 v16, 4, v16")
        e("v_lshl_add_u32 v16, v14, 6, v16")
        e("v_mul_u32_u24 v15, 2752, v15")
        e(f"v_add3_u32 v{6+j}, v15, v16, s13")
        if j:
            e(f"v_subrev_u32 v{6+j}, {j*1024}, v{6+j}")
        e(f"v_add_u32 v{9+j}, {16*2752}, v{6+j}")
    if KX:
        e("s_and_b32 s90, s6, 3")
    else:
        e("s_and_b32 s90, s9, 2")
        e("s_add_u32 s90, s90, s5")
    e(f"s_mul_i32 s88, s90, {64*2752}")
    e("s_waitcnt lgkmcnt(0)")
    srd(W1)
    e("s_cmp_eq_u32 s8, 15")
    e("s_cbranch_scc1 L_spare")
    UL, UFB = 6, 7
    RB = 22528

    def u_wdma(t, toks):
        out = []
        for j in range(6):
            if j % 3 == 0:
                out.append(f"s_add_u32 m0, s7, {(t % UL)*6144 + j*1024}")
            out.append(dmai(f"v{6+j}", W1, "s88", (j % 3)*1024, toks, t, "nt" if t < opt.get("u_nt", 0) else ""))
        if t % 2 == 0:
            out.append(f"s_add_u32 s88, s88, {32*2752}")
        elif t < 7:
            out += [f"s_xor_b32 s88, s90, {(t+1)//2}", f"s_mul_i32 s88, s88, {64*2752}"]
        return out

    def u_wread(t):
        out = []
        for fb in range(6):
            r = 64 + t*24 + fb*4
            o = (t % UL)*6144 + (fb >> 1)*64
            out.append(f"ds_read_b64_tr_b16 {A(r,2)}, v{16+(fb&1)} offset:{o}")
            out.append(f"ds_read_b64_tr_b16 {A(r+2,2)}, v{16+(fb&1)} offset:{o+768}")
        return out

    def u_fload(t, b, toks):
        def f():
            toks[(t, b)] = k.vmem(f"buffer_load_dwordx4 {V(32+(t%UFB)*16+4*b,4)}, v{12+b}, {WS}, s{92+(t%8)//2} offen offset:{(t%2)*1024} sc1")
        out = [f]
        if t == 7 and b == 3:
            out += [f"s_xor_b32 s{92+q}, s{92+q}, {4*HS}" for q in range(4)]
        return out

    def uacc(ps_, b, j):
        n_ = b*6 + j
        if b == 3:
            return V(152 + 24*ps_ + j*4, 4)
        return A(n_*4, 4) if n_ < 16 else V(144 + (n_-16)*4, 4)

    def u_mm(t, b, j):
        d = uacc(t // 8, b, j)
        first = t % 8 == 0 and not (t == 8 and b == 3)
        return mf(d, A(64 + (t % 8)*24 + j*4, 4), V(32+(t % UFB)*16+4*b, 4), "0" if first else d)

    su = SK(k, 8, UL, 8, UFB, 6, u_wdma, u_wread, u_fload, u_mm)
    TWA = opt.get("tw_after", 1)
    su.issue_w(TWA)
    touch_w1()
    su.issue_w(2)
    srd(B1)
    e("s_mul_i32 s12, s8, 192")
    e("v_lshlrev_b32 v30, 3, v3")
    for j in range(6):
        k.vmem(f"buffer_load_dwordx2 {V(208+2*j,2)}, v30, {B1}, s12 offen offset:{32*j}")
    for n_ in (WS, DBG, WO, W2, B2, OUT):
        srd(n_)
    diag_clear()
    e("v_lshrrev_b32 v16, 2, v2")
    e("v_lshl_add_u32 v16, v3, 3, v16")
    e("v_mul_u32_u24 v16, 192, v16")
    e("v_and_b32 v12, 3, v2")
    e("v_lshl_add_u32 v16, v12, 3, v16")
    e("v_add_u32 v16, s7, v16")
    e("v_and_b32 v12, 1, v3")
    e("v_lshlrev_b32 v12, 5, v12")
    e("v_xor_b32 v13, 32, v12")
    e("v_add_u32 v17, v16, v13")
    e("v_add_u32 v16, v16, v12")
    e("s_and_b32 s13, s9, 6")
    e(f"s_mul_i32 s13, s13, {4*HS}")
    e("s_lshl_b32 s12, s97, 13")
    e("s_add_u32 s13, s13, s12")
    if HF:
        e(f"s_add_u32 s13, s13, {HF}")
    for b in range(4):
        e(f"s_add_u32 s12, s3, {3-b}")
        e("s_and_b32 s12, s12, 3")
        e(f"s_mul_i32 s12, s12, {HS}")
        e("s_add_u32 s12, s12, s13")
        e(f"v_add_u32 v{12+b}, s12, v4")
    e("s_and_b32 s12, s9, 1")
    e("s_xor_b32 s12, s12, 1")
    e("s_lshl_b32 s12, s12, 18")
    for q in range(4):
        e(f"s_xor_b32 s{92+q}, s90, {q}")
        e(f"s_lshl_b32 s{92+q}, s{92+q}, 11")
        e(f"s_add_u32 s{92+q}, s{92+q}, s12")
    run_all(k, p3_setup(False))
    RB = 40960 - 6144
    e(f"s_add_u32 s12, s7, {RB}")
    e("v_add_u32 v26, s12, v4")
    e("s_add_u32 s12, s3, 3")
    e("s_and_b32 s12, s12, 3")
    e("s_mul_i32 s12, s12, 40960")
    e(f"s_add_u32 s12, s12, {RB}")
    e("v_add_u32 v27, s12, v4")
    e("s_and_b32 s12, s2, 7")
    e("s_lshr_b32 s13, s97, 1")
    e("s_lshl_b32 s13, s13, 3")
    e("s_add_u32 s12, s12, s13")
    e("s_lshl_b32 s12, s12, 8")
    e(f"s_add_u32 s12, s12, {CNT + 96*256}")
    e("v_mov_b32 v18, s12")
    for snd in range(2):
        e("s_lshl_b32 s12, s8, 3")
        e("s_add_u32 s12, s12, s9")
        if snd:
            e("s_xor_b32 s12, s12, 1")
        e("s_lshl_b32 s13, s12, 8")
        e("s_lshl_b32 s14, s3, 6")
        e("s_add_u32 s13, s13, s14")
        e(f"s_add_u32 s13, s13, {CNT + 256*256}")
        e(f"v_mov_b32 {'v21' if snd else 'v235'}, s13")
        e("s_lshl_b32 s12, s12, 2")
        e("s_add_u32 s12, s12, s3")
        e("s_mul_i32 s12, s12, 6144")
        e(f"s_add_u32 s12, s12, {UX}")
        e(f"v_add_u32 {'v20' if snd else 'v234'}, s12, v4")
    c0 = -2.0 * 0.7978845608028654 * 1.4426950408889634
    c1 = c0 * 0.044715
    e("s_lshl_b32 s15, s9, 2")
    e("s_add_u32 s15, s15, s3")
    e("s_mul_i32 s15, s15, 43")
    e("s_mul_i32 s13, s8, 3")
    e("s_add_u32 s15, s15, s13")
    e("s_lshl_b32 s15, s15, 10")
    e(f"s_add_u32 s15, s15, {GUF}")
    e("s_cmp_eq_u32 s8, 14")
    e("s_cselect_b32 s13, 0x7ff00000, 0")
    e("v_or_b32 v19, s13, v4")
    UB = opt.get("u_bar", 3)

    def front_pf():
        n_ = opt.get("u_fpf", 0)
        if not n_:
            return
        run_all(k, ["v_lshrrev_b32 v116, 3, v1", "v_and_b32 v117, 7, v1", "v_lshlrev_b32 v116, 12, v116",
                    "v_lshl_add_u32 v116, v117, 7, v116",
                    f"s_mul_i32 s13, s3, {352*4096}", "s_and_b32 s14, s6, 15", "s_lshl_b32 s14, s14, 15", "s_add_u32 s13, s13, s14",
                    "s_lshl_b32 s14, s4, 10", "s_add_u32 s13, s13, s14", "v_add_u32 v116, s13, v116"])
        for r0 in [192, 64][:n_] if n_ < 3 else [224, 96, 0]:
            e(f"s_mov_b32 s13, {r0*4096}")
            k.vmem(f"buffer_load_dword v157, v116, {W2}, s13 offen")
    if opt.get("u_fpos", 0) == 0:
        front_pf()
    if UB & 1:
        e("s_barrier")
    if UB & 8:
        k.wait_vm(su.wt[0])
    if UB & 16:
        k.wait_vm(su.wt[1])
    su.issue_w(4)
    tz_ = zload()
    if UB & 2:
        e("s_barrier")
    su.issue_w(UL)
    if UB & 4:
        e("s_barrier")
    k.stamp(5)
    su.to_regs(2, opt.get("u_hold", 1))
    k.wait_vm(tz_)
    zcheck()
    k.stamp(1)
    k.poll2("v18", WS, 32, lambda: (su.issue_w(8 - opt.get("u_keep", 0)), su.to_regs(opt.get("u_r", 5), 9)))
    k.stamp(2)
    k.stamp(1, True)
    ULA = opt.get("u_la", 16)
    ft = {}

    def fl3(i):
        blk, t = i // 8, i % 8

        def f():
            ft[i] = k.vmem(f"buffer_load_dwordx4 {V(32+(blk%4)*32+4*t,4)}, v{12+blk%4}, {WS}, s{92+t//2} offen offset:{(t%2)*1024} sc1")
        out = [f]
        if i == 31:
            out += [f"s_xor_b32 s{92+q}, s{92+q}, {4*HS}" for q in range(4)]
        return out
    for i in range(8):
        run_all(k, fl3(i))
    su.issue_w(8)
    UL0 = opt.get("u_l0", ULA)
    for i in range(8, UL0):
        run_all(k, fl3(i))
    su.to_regs(8, 9)
    fi = UL0
    UX2 = opt.get("u_x2", 0)
    uet = {}
    uwo = {}
    pe_all = wo_dma(uwo) + p3_e1(uet)
    if UX2 == 1:
        pe_all = p3_e1(uet)[:24] + wo_dma(uwo) + p3_e1(uet)[24:]
    y69 = sum((p_wdma(t, {}) for t in range(6, 10)), [])
    YR, YD, YDN = opt.get("u_yr", 11), opt.get("u_yd", 13), opt.get("u_ydn", 3)
    cuts = [0, 8, 16, 24, 32, 38, 44, 50, 56, 62, 68]
    UFULL = opt.get("u_full", 0)
    UE1 = opt.get("u_e1", 6)
    assert UE1 <= 8
    pe = pe_all[:cuts[UE1]]
    UPW, UPN = opt.get("u_pw", 6 if UX2 else 8), opt.get("u_pn", 7 if UX2 else 8)
    XF, XC = opt.get("u_xf", 12), opt.get("u_xc", 14)
    xt = {}
    tx_ = {}

    def xcheck():
        k.wait_vm(xt[1])
        if not opt.get("nowait"):
            dn = k.newlab("L_xf")
            e("v_cmp_gt_u32 vcc, 1, v31")
            e(f"s_cbranch_vccz {dn}")
            k.poll("v235", WS, 1)
            k.label(dn)

    def xl(j):
        return lambda: tx_.__setitem__(j, k.vmem(f"buffer_load_dwordx4 {V(160+4*j,4)}, v234, {WS}, {'0' if j < 4 else 's84'} offen offset:{(j%4)*1024} sc1"))

    def xs(j):
        return lambda: xt.__setitem__(0, k.vmem(f"buffer_store_dwordx4 {V(184+4*j,4)}, v20, {WS}, {'0' if j < 4 else 's84'} offen offset:{(j%4)*1024} sc1"))
    uprof = dict(zip((0, 1, 2, 3, 4, 6, 8, 10, 12, 14), (2, 3, 4, 5, 6, 7, 8, 0, 9, 10)))
    for n in range(16):
        if n in uprof:
            k.stamp(uprof[n], True)
        blk, hf = n // 2, n % 2
        stg = blk % 4
        buf = 160 + (n % 4)*12
        WP0 = [int(x) for x in str(opt.get("u_wp", "2,5,9")).split(",")]
        ringn = n >= 1 and ((n - 1) // 2) % 4 < 3
        mfmas = []
        for j in range(3):
            for t in range(8):
                d = V(buf + 4*j, 4)
                pre = None
                if j == 0 and hf == 0:
                    pre = (lambda i=blk*8+t: k.wait_vm(ft[i]))
                if j == 1 and t == 0 and opt.get("u_lw", 1) and stg > 0:
                    pre = (lambda: e(f"s_waitcnt lgkmcnt({sum(1 for x in WP0 if x < 8) if ringn else 0})"))
                mfmas.append((pre, mf(d, A(64 + t*24 + (3*hf + j)*4, 4), V(32+(blk % 4)*32+4*t, 4), "0" if (t == 0 and n < 2) else d)))
        fl_ = []
        for _ in range(min(8, 4*n + 4 + ULA - fi)):
            if fi < 64:
                assert fi // 8 - 4 < blk, (n, fi)
                fl_ += fl3(fi)
                fi += 1
        at = {}
        pn = n - 1
        W0, B0 = opt.get("u_w0", 5), opt.get("u_b0", 16)
        WP = [int(x) for x in str(opt.get("u_wp", "2,5,9")).split(",")]
        RS = opt.get("u_rs", 2)
        ring = pn >= 0 and (pn // 2) % 4 < 3
        if ring:
            pb = 160 + (pn % 4)*12
            nb = 160 + ((n + 1) % 4)*12
            for j in range(3):
                at[WP[j]] = [f"ds_write_b128 v26, {V(pb+4*j,4)} offset:{(pn%2)*3072 + j*1024}"]
                at[B0 + 1 + RS*j] = [f"ds_read_b128 {V(nb+4*j,4)}, v27 offset:{(pn%2)*3072 + j*1024}"]
            at[B0] = [k.lgkm0, "s_barrier"]
        if n == 15 and UFULL:
            at[12] = ["s_barrier"]
        if pn in (6, 7):
            for j in range(3):
                at[8 + 5*j] = [xs(3*(pn-6) + j)]
        if n in (6, 7):
            h2 = n - 6
            for j in range(3):
                r, q = 160 + h2*12 + 4*j, 208 + 2*(3*h2 + j)
                fl_ += [f"v_lshlrev_b32 v{r}, 16, v{q}", f"v_and_b32 v{r+1}, 0xffff0000, v{q}",
                        f"v_lshlrev_b32 v{r+2}, 16, v{q+1}", f"v_and_b32 v{r+3}, 0xffff0000, v{q+1}"]
        if n == 3:
            fl_ += ["v_mov_b32 v5, 128", lambda: zload()]
        if n == XF:
            fl_ = [lambda: (k.wait_vm(xt[0]), zcheck()), lambda: k.vmem(f"buffer_store_dword v5, v21, {WS}, 0 offen sc1")] + fl_
        if UPW <= n < UPW + UPN:
            n3 = -(-len(pe) // UPN)
            fl_ += pe[(n-UPW)*n3:(n-UPW+1)*n3]
        yrd = UX2 and YR <= n < YR + 2
        if yrd:
            for t in (2*(n-YR), 2*(n-YR)+1):
                fl_ = mix(fl_, [lambda t=t: k.wait_vm(uet[t])] + p_wread(t))
        if UX2 and YD <= n:
            assert n >= UPW + UPN and n >= YR + 2
            n3 = 6*opt.get("u_ydk", 4) // (16 - YD)
            fl_ += y69[:n3]
            y69 = y69[n3:]
        if n == XC:
            fl_ = [lambda: xt.__setitem__(1, k.vmem(f"buffer_load_dword v31, v235, {WS}, 0 offen sc1"))] + fl_
        if n == 15:
            fl_ = [xcheck] + [xl(j) for j in range(6)] + fl_
            fl_ += [f"s_mov_b32 s92, {hex(f32bits(c1))}", f"s_mov_b32 s93, {hex(f32bits(c1))}",
                    f"v_mov_b32 v20, {hex(f32bits(c0))}", f"v_mov_b32 v21, {hex(f32bits(c0))}"]
        interleave(k, mfmas, fl_, tail=1, at=at)
        if yrd or (ring and not opt.get("u_lw", 1)):
            k.lgkm0()
        elif ring:
            e("s_waitcnt lgkmcnt(2)")
    k.stamp(11, True)
    k.stamp(3)
    tst = {}
    UEV = opt.get("u_ev", 0)
    ev = pe_all[len(pe):cuts[UE1 + UEV]]
    pe = pe_all[:cuts[UE1 + UEV]]
    UE1 += UEV
    assert UE1 <= (10 if UFULL else 8)
    nev = -(-len(ev) // opt.get("u_evn", 2))
    for p in range(3):
        R_ = range(4*p, 4*p+4)
        k.wait_vm(tx_[2*p+1])
        va = []
        va += [f"v_pk_add_f32 {V(32+2*r,2)}, {V(184+2*r,2)}, {V(160+2*r,2)}" for r in R_]
        va += [f"v_pk_mul_f32 {V(56+2*r,2)}, {V(32+2*r,2)}, {V(32+2*r,2)}" for r in R_]
        va += [f"v_pk_fma_f32 {V(56+2*r,2)}, {V(56+2*r,2)}, s[92:93], v[20:21]" for r in R_]
        va += [f"v_pk_mul_f32 {V(56+2*r,2)}, {V(56+2*r,2)}, {V(32+2*r,2)}" for r in R_]
        va += [f"v_exp_f32 v{56+r}, v{56+r}" for r in range(8*p, 8*p+8)]
        va += [f"v_add_f32 v{56+r}, 1.0, v{56+r}" for r in range(8*p, 8*p+8)]
        va += [f"v_rcp_f32 v{56+r}, v{56+r}" for r in range(8*p, 8*p+8)]
        va += [f"v_pk_mul_f32 {V(32+2*r,2)}, {V(32+2*r,2)}, {V(56+2*r,2)}" for r in R_]
        va += [f"v_cvt_pk_bf16_f32 v{96+4*p+q}, v{32+8*p+2*q}, v{33+8*p+2*q}" for q in range(4)]
        run_all(k, mix(va, ev[p*nev:(p+1)*nev]))
        tst[p] = k.vmem(f"buffer_store_dwordx4 {V(96+4*p,4)}, {'v4' if p == 0 else 'v19'}, {WS}, s15 offen offset:{p*1024} sc1")
    k.stamp(4)
    ncut = cuts[min(10 if UFULL else 8, UE1 + opt.get("u_e2", 2))]
    tof = k.vmem(f"buffer_load_dword v29, v240, {WS}, 0 offen sc1")
    run_all(k, pe_all[len(pe):ncut])
    if UX2:
        assert UE1 == 8
        run_all(k, wo_reads())
        run_all(k, y69)
    e(f"s_lshl_b32 s12, s9, {11 if PP8 else 10}")
    e(f"s_add_u32 s12, s12, {CNT + (128 if PP8 else 64)*256}")
    k.wait_vm(tst[2])
    e("s_barrier")
    k.arrive(WS, "s12", 8 if PP8 else 4)
    k.stamp(7)
    run_all(k, pe_all[ncut:])
    k.wait_vm(tof)
    e("s_branch L_p3b" if UX2 else "s_branch L_p3")

    k.label("L_spare")
    for n_ in (WS, DBG):
        srd(n_)
    touch_w1()
    for n_ in (WO, W2, B2, OUT):
        srd(n_)
    diag_clear()
    run_all(k, p3_setup(False))
    if opt.get("spf", 1):
        e("v_lshlrev_b32 v30, 7, v1")
        e("s_lshl_b32 s12, s9, 2")
        e("s_add_u32 s12, s12, s3")
        if opt.get("pfx", 4) >= 3:
            e("v_lshrrev_b32 v28, 3, v1")
            e("v_mul_u32_u24 v28, 3072, v28")
            e("v_and_b32 v29, 7, v1")
            e("v_lshl_add_u32 v28, v29, 7, v28")
            e(f"s_mul_i32 s13, s12, {16*3072}")
            e(f"buffer_load_dword v31, v28, {WQKV}, s13 offen")
            e(f"s_add_u32 s13, s13, {8*3072}")
            e(f"buffer_load_dword v31, v28, {WQKV}, s13 offen")
        e("s_lshl_b32 s12, s12, 14")
        e(f"buffer_load_dword v31, v30, {WO}, s12 offen")
        e("s_add_u32 s12, s12, 8192")
        e(f"buffer_load_dword v31, v30, {WO}, s12 offen")
        e(f"s_mul_i32 s12, s3, {352*4096}")
        e("s_lshl_b32 s13, s9, 13")
        e("s_add_u32 s12, s12, s13")
        e(f"s_add_u32 s12, s12, {(352 - 16*opt.get('spf_n', 5))*4096}")
        e("s_mov_b32 s14, 0")
        lp = k.newlab("L_spf")
        k.label(lp)
        e(f"buffer_load_dword v31, v30, {W2}, s12 offen")
        e("s_add_u32 s12, s12, 65536")
        e("s_add_u32 s14, s14, 1")
        e("s_waitcnt vmcnt(2)")
        e(f"s_cmp_lt_u32 s14, {opt.get('spf_n', 5)}")
        e(f"s_cbranch_scc1 {lp}")
        k.wait_vm0()
        k.stamp(6)
    e("v_mov_b32 v5, 128")
    k.poll("v5", DBG, 1)
    e(f"v_mov_b32 v30, {CNT}")
    k.poll("v30", WS, 16, sleep=32)
    run_all(k, wo_dma() + p3_e1())
    e("v_mov_b32 v29, 0")

    k.label("L_p3")
    k.c("================= P3 =================")

    def p_mm(t, b, j):
        d = V(YA + (b*4 + j)*4, 4)
        return mf(d, freg(t, b), A((t % PNWB)*16 + j*4, 4), d)

    k.vm = 16
    sp = SK(k, 11, PL, PNWB, PFB, 4, p_wdma, p_wread, p_fload, p_mm)
    QY = 6 - opt.get("q_w", 2)
    twos = k.vm + 4*(6 - QY)
    sp.assume_issued(PE, 4)
    k.wait_vm(twos)
    run_all(k, wo_reads())
    PRE = 4
    sp.to_regs(PRE)
    k.label("L_p3b")
    for t in range(4, 10):
        sp.wt[t] = k.vm
    if not opt.get("nowait"):
        dn = k.newlab("L_of")
        e("v_cmp_gt_u32 vcc, 8, v29")
        e(f"s_cbranch_vccz {dn}")
        k.poll("v240", WS, 8)
        k.label(dn)
    k.stamp(8)
    aft = {}

    def afl(t, b):
        def f():
            aft[(t, b)] = k.vmem(f"buffer_load_dwordx4 {A(128+t*16+4*b,4)}, v{232+(b&1)}, {WS}, {'0' if b < 2 else 's91'} offen offset:{t*1024} sc1")
        return f
    ALA = opt.get("a_la", 12)
    al = [afl(t, b) for t in range(4) for b in range(4)]
    al += [lambda j=j: aft.__setitem__("g", k.vmem(f"buffer_load_dword v{32+2*j}, v242, {WS}, 0 offen offset:{64*j} sc1")) for j in range(4)]
    run_all(k, al[:ALA])
    al = al[ALA:]
    PR0 = max(PRE, opt.get("p_r0", 2))
    sp.to_regs(PR0, 9)
    k.lgkm0()
    for win in range(4):
        mfmas = []
        for b in range(4):
            for j in range(4):
                d = V(YA + (j*4 + b)*4, 4)
                pre = (lambda x=(win, b): k.wait_vm(aft[x])) if j == 0 else None
                mfmas.append((pre, mf(d, A(64+win*16+j*4, 4), A(128+win*16+4*b, 4), "0" if win == 0 else d)))
        fl_ = al[:4]
        al = al[4:]
        if sp.issued < min(10, sp.nread + PL):
            fl_ = fl_ + p_wdma(sp.issued, sp.wt)
            sp.issued += 1
        GWN = opt.get("p_gw", 0)
        if win == GWN:
            fl_ = fl_ + [lambda: aft.__setitem__("gu", k.vmem(f"buffer_load_dword v31, v241, {WS}, 0 offen sc1"))]
        if win == 2:
            assert sp.issued == 10 and not al
            if opt.get("nowait"):
                fl_ = fl_ + ["s_mov_b32 s90, 0"]
            else:
                fl_ = fl_ + [lambda: k.wait_vm(aft["gu"]), "v_cmp_gt_u32 vcc, 15, v31", "s_nop 0",
                             lambda: (e("s_cmp_eq_u64 vcc, 0"), e(f"s_cselect_b32 s90, 0, {hex(WS_BYTES)}"))]
        if win >= 2:
            fl_ = fl_ + sum((p_fload(win - 2, b, sp.ft, True) for b in range(4)), [])
        rd = []
        if sp.nread < 4:
            rd = [lambda u=sp.nread: k.wait_vm(sp.wt[u])] + p_wread(sp.nread)
            sp.nread += 1
        interleave(k, mfmas, mix(rd, fl_), tail=2)
        if rd:
            k.lgkm0()
    sc = [f"v_sub_f32 v{48+2*j}, 1.0, v{32+2*j}" for j in range(4)]
    sc += [f"v_max_f32 v{48+2*j}, {hex(f32bits(1e-30))}, v{48+2*j}" for j in range(4)]
    sc += [f"v_rcp_f32 v{56+j}, v{48+2*j}" for j in range(4)]
    sc += [f"v_lshlrev_b32 v{40+2*j}, 16, v{252+j}" for j in range(4)]
    sc += [f"v_mul_f32 v{32+2*j}, v{32+2*j}, v{56+j}" for j in range(4)]
    for b in range(4):
        for j in range(4):
            for h_ in range(2):
                r = YA + (b*4 + j)*4 + 2*h_
                if b < 3:
                    sc.append(f"v_pk_mul_f32 {V(r,2)}, {V(r,2)}, {V(32+2*j,2)} op_sel_hi:[1,0]")
                else:
                    sc.append(f"v_pk_fma_f32 {V(r,2)}, {V(r,2)}, {V(32+2*j,2)}, {V(40+2*j,2)} op_sel_hi:[1,0,0]")
    PLA = 12
    seq_y = [(t, b) for t in range(7) for b in range(4)] + [(t, b) for b in range(4) for t in range(7, 11)]
    k.wait_vm(aft["g"])
    k.stamp(0)
    run_all(k, mix(sum((p_fload(2, b, sp.ft, True) for b in range(4)), []), sc))
    if not opt.get("nowait"):
        jn = k.newlab("L_yj")
        e("s_cmp_eq_u32 s90, 0")
        e(f"s_cbranch_scc1 {jn}")
        vs = k.vm
        k.poll("v241", WS, 15)
        k.stamp(9)
        for i in range(PLA):
            run_all(k, p_fload(*seq_y[i], {}))
        k.vm = vs
        k.label(jn)
    k.nop(2)

    def comb(b):
        return [f"ds_write_b128 v244, {V(YA+(b*4+j)*4,4)} offset:{(b*4+j)*1024}" for j in range(4)]
    cadr = [lambda: (e("s_cmp_lt_u32 s6, 16"), e("s_cselect_b32 s12, 98304, 0")),
            "v_mul_u32_u24 v60, 144, v2", "v_lshl_add_u32 v60, v3, 3, v60", "s_lshl_b32 s13, s3, 5", "s_add_u32 s13, s13, s12",
            "v_add_u32 v60, s13, v60",
            "v_lshrrev_b32 v62, 3, v1", "v_and_b32 v63, 7, v1", "v_mul_u32_u24 v61, 144, v62", "v_lshl_add_u32 v61, v63, 4, v61",
            f"s_mul_i32 s13, s3, {16*144}", "s_add_u32 s13, s13, s12", "v_add_u32 v61, s13, v61",
            "v_lshlrev_b32 v62, 10, v62", "v_lshl_add_u32 v62, v63, 4, v62",
            "s_lshl_b32 s12, s10, 16", "s_lshl_b32 s13, s3, 14", "s_add_u32 s12, s12, s13", "s_lshl_b32 s13, s11, 7",
            "s_add_u32 s12, s12, s13", "v_add_u32 v62, s12, v62"]
    sp.run(seq_y, PLA, 0, lambda win: comb(win - 8) if win >= 8 else [], rmax=1, pre_issued=PLA,
           extra=lambda win: cadr[(win-7)*7:(win-6)*7] if (7 <= win < 10 and opt.get("co", 1)) else [],
           prof=(dict(zip(range(11), (1, 2, 3, 4, 5, 6, 7, 8, 0, 9, 10))) if opt.get("prof") == 2 else None))
    if opt.get("prof") == 2:
        k.stamp(11, True)
    k.stamp(10)
    k.lgkm0()
    e("s_barrier")
    for o in range(3):
        for j in range(4):
            e(f"ds_read_b128 {V(AA+16*o+4*j,4)}, v{245+o} offset:{j*1024}")
    for o in range(3):
        e(f"s_waitcnt lgkmcnt({8-4*o})") if not opt.get("diag") else k.lgkm0()
        for r in range(8):
            e(f"v_pk_add_f32 {V(YA+48+2*r,2)}, {V(YA+48+2*r,2)}, {V(AA+16*o+2*r,2)}")
    for r in range(8):
        e(f"v_pk_mul_f32 {V(YA+48+2*r,2)}, {V(YA+48+2*r,2)}, {V(48+2*(r//2),2)} op_sel_hi:[1,0]")
    for t in range(4):
        e(f"v_cvt_pk_bf16_f32 v{32+2*t}, v{YA+48+4*t}, v{YA+49+4*t}")
        e(f"v_cvt_pk_bf16_f32 v{33+2*t}, v{YA+50+4*t}, v{YA+51+4*t}")
        if opt.get("co", 1):
            e(f"ds_write_b64 v60, {V(32+2*t,2)} offset:{t*16*144}")
    if opt.get("co", 1):
        k.lgkm0()
        e("s_barrier")
        e("ds_read_b128 v[40:43], v61")
        e(f"ds_read_b128 v[44:47], v61 offset:{8*144}")
        e("s_waitcnt lgkmcnt(1)")
        e(f"buffer_store_dwordx4 v[40:43], v62, {OUT}, 0 offen {opt.get('oflags', 'sc1')}")
        k.lgkm0()
        e(f"buffer_store_dwordx4 v[44:47], v62, {OUT}, s85 offen {opt.get('oflags', 'sc1')}")
    else:
        k.nop(2)
        for p in range(2):
            e(f"v_permlane16_swap_b32 v{32+4*p}, v{34+4*p}")
            e(f"v_permlane16_swap_b32 v{33+4*p}, v{35+4*p}")
        k.nop(1)
        for p in range(2):
            e(f"buffer_store_dwordx4 {V(32+4*p,4)}, v{248+p}, {OUT}, s87 offen {opt.get('oflags', 'sc1')}")
    if opt.get("diag"):
        e("s_waitcnt vmcnt(0)")
        k.stamp(11)
        k.lgkm0()
        for i in range(12):
            e(f"v_mov_b32 v{32+i}, s{16+2*i}")
        e("v_mov_b32 v44, s98")
        e("s_getreg_b32 s12, hwreg(HW_REG_XCC_ID)")
        e("v_mov_b32 v45, s12")
        e("s_lshl_b32 s12, s2, 2")
        e("s_add_u32 s12, s12, s3")
        e("s_lshl_b32 s12, s12, 6")
        e(f"s_add_u32 s12, s12, {DIAG}")
        e("v_mov_b32 v30, 0")
        e("s_mov_b64 exec, 1")
        for i in range(4):
            e(f"buffer_store_dwordx4 {V(32+4*i,4)}, v30, {WS}, s12 offen offset:{16*i}")
    k.label("L_end")
    e("s_endpgm")
    return "\n".join(k.l)


HEADER = open("cdna_kernels/" + NAME + ".s.ref").read().split("; Override launch geometry")[0]


DOC = "; ---------------------------------------------------------------------------------------------\n; ---------------------------------------------------------------------------------------------\n"


def gen_meas(opt):
    mj, mk = opt["meas"], opt.get("mk", 1)
    l = []
    a = l.append
    a("s_cmp_ge_u32 s2, 1")
    a("s_cbranch_scc1 M_end")
    a("s_memrealtime s[30:31]")
    a("s_load_dwordx2 s[4:5], s[0:1], 88")
    a("v_lshlrev_b32 v1, 6, v0")
    a("v_mov_b32 v2, -1")
    a("v_mov_b32 v3, 0")
    a("s_waitcnt lgkmcnt(0)")
    a("s_mov_b32 s8, s4")
    a("s_mov_b32 s9, s5")
    a(f"s_mov_b32 s10, {WS_BYTES}")
    a("s_mov_b32 s11, 0x20000")
    lo, hi = {"Q": (0, 8), "U": (8, 16), "A": (0, 16)}[opt.get("mrole", "A")]
    for it in range(16):
        a(f"s_mov_b32 s12, {DIAG + it*4096}")
        a(f"buffer_load_dword v4, v1, s[8:11], s12 offen offset:48")
        a(f"buffer_load_dword v5, v1, s[8:11], s12 offen offset:{4*mj}")
        a("s_waitcnt vmcnt(0)")
        a("v_min_u32 v2, v2, v4")
        if lo <= it < hi:
            a("v_max_u32 v3, v3, v5")
    a("s_mov_b32 s14, -1")
    a("s_mov_b32 s15, 0")
    a("s_nop 4")
    for i in range(64):
        a(f"v_readlane_b32 s16, v2, {i}")
        a(f"v_readlane_b32 s17, v3, {i}")
        a("s_nop 3")
        a("s_min_u32 s14, s14, s16")
        a("s_max_u32 s15, s15, s17")
    if opt.get("mpost"):
        a("s_sub_u32 s15, s30, s15")
    else:
        a("s_sub_u32 s15, s15, s14")
    a("s_min_u32 s15, s15, 20000")
    a(f"s_mul_i32 s15, s15, {mk}")
    a("s_memrealtime s[20:21]")
    a("s_waitcnt lgkmcnt(0)")
    a("M_spin:")
    a("s_memrealtime s[22:23]")
    a("s_waitcnt lgkmcnt(0)")
    a("s_sub_u32 s24, s22, s20")
    a("s_cmp_lt_u32 s24, s15")
    a("s_cbranch_scc1 M_spin")
    a("M_end:")
    a("s_endpgm")
    return "\n".join(l)


def gen_file(opt):
    kn = NAME + "_kernel"
    nl = opt.get("launches", 1)
    s = HEADER + DOC
    for _ in range(opt.get("pre_empty", 0)):
        s += "; @launch kernel=empty_kernel grid=(1,1,1) block=(64,1,1) lds=0\n"
    if opt.get("pre_empty") and "meas" not in opt:
        s += f"; @launch kernel={kn} grid=(256,1,1) block=(256,1,1) lds=163840\n"
    elif "meas" in opt:
        s += f"; @launch kernel={kn} grid=(256,1,1) block=(256,1,1) lds=163840\n"
        s += f"; @launch kernel=meas_kernel grid=(1,1,1) block=(64,1,1) lds=0\n"
    elif nl == 1:
        s += "; @launch grid=(256,1,1) block=(256,1,1) lds=163840\n"
    else:
        for _ in range(nl):
            s += f"; @launch kernel={kn} grid=(256,1,1) block=(256,1,1) lds=163840\n"
    extra_code = ""
    if "meas" in opt:
        extra_code = ".globl meas_kernel\n.p2align 8\n.type meas_kernel,@function\nmeas_kernel:\n" + gen_meas(opt) + "\n"
    if opt.get("pre_empty"):
        extra_code += ".globl empty_kernel\n.p2align 8\n.type empty_kernel,@function\nempty_kernel:\n s_endpgm\n"
    s += f""".amdgcn_target "amdgcn-amd-amdhsa--gfx950"
.text
.globl {kn}
.p2align 8
.type {kn},@function
{kn}:
{gen_body(opt)}
{extra_code}.section .rodata,"a"
.p2align 6
.amdhsa_kernel {kn}
  .amdhsa_next_free_vgpr 512
  .amdhsa_next_free_sgpr 102
  .amdhsa_accum_offset 256
  .amdhsa_group_segment_fixed_size 0
  .amdhsa_kernarg_size 96
  .amdhsa_user_sgpr_count 2
  .amdhsa_user_sgpr_kernarg_segment_ptr 1
  .amdhsa_system_sgpr_workgroup_id_x 1
.end_amdhsa_kernel
"""
    if "meas" in opt:
        s += """.p2align 6
.amdhsa_kernel meas_kernel
  .amdhsa_next_free_vgpr 32
  .amdhsa_next_free_sgpr 102
  .amdhsa_accum_offset 32
  .amdhsa_group_segment_fixed_size 0
  .amdhsa_kernarg_size 96
  .amdhsa_user_sgpr_count 2
  .amdhsa_user_sgpr_kernarg_segment_ptr 1
  .amdhsa_system_sgpr_workgroup_id_x 1
.end_amdhsa_kernel
"""
    if opt.get("pre_empty"):
        s += """.p2align 6
.amdhsa_kernel empty_kernel
  .amdhsa_next_free_vgpr 32
  .amdhsa_next_free_sgpr 102
  .amdhsa_accum_offset 32
  .amdhsa_group_segment_fixed_size 0
  .amdhsa_kernarg_size 96
  .amdhsa_user_sgpr_count 2
  .amdhsa_user_sgpr_kernarg_segment_ptr 1
  .amdhsa_system_sgpr_workgroup_id_x 1
.end_amdhsa_kernel
"""
    return s


if __name__ == "__main__":
    opt = {}
    out = None
    for a in sys.argv[1:]:
        if "=" in a:
            kk, vv = a.split("=", 1)
            try:
                vv = int(vv)
            except ValueError:
                pass
            opt[kk] = vv
        else:
            out = a
    txt = gen_file(opt)
    open(out or ("cdna_kernels/" + NAME + ".s"), "w").write(txt)
```
